```python
import torch

def _softmax(x, axis=-1):
    return torch.softmax(x, dim=axis)
def _gelu(x):
    return torch.nn.functional.gelu(x, approximate="tanh")
def _silu(x):
    return torch.nn.functional.silu(x)
def _sigmoid(x):
    return torch.sigmoid(x)
def _layernorm(x, axis=-1, eps=1e-5):
    m = x.mean(dim=axis, keepdim=True)
    v = x.var(dim=axis, keepdim=True, unbiased=False)
    return (x - m) / torch.sqrt(v + eps)
def _scatter_add(tgt, idx, src, axis=0):
    return tgt.clone().index_add_(axis, idx, src)
def _segment_sum(src, seg, n):
    out = torch.zeros((n,) + src.shape[1:], dtype=src.dtype)
    return out.index_add_(0, seg, src)
def _pad(x, pw):
    flat = tuple(v for pair in reversed(pw) for v in pair)
    return torch.nn.functional.pad(x, flat)

kernel_name = 'concat_heads__spectral_fnet__grouped_kv_mqa__prompt'

def setup_inputs():

    _w = (lambda a: (lambda t: t.to(torch.bfloat16) if t.is_floating_point() else t)(torch.as_tensor(a)))
    def _A_setup():
        B, S, D = 1, 2048, 640
        ns = torch.arange(S)[:, None] * torch.arange(S)[None, :]
        nd = torch.arange(D)[:, None] * torch.arange(D)[None, :]
        Ws_re = torch.cos(-2.0 * torch.pi * ns / S).to(float)
        Ws_im = torch.sin(-2.0 * torch.pi * ns / S).to(float)
        Wd_re = torch.cos(-2.0 * torch.pi * nd / D).to(float)
        Wd_im = torch.sin(-2.0 * torch.pi * nd / D).to(float)
        return {
            "x": _w((lambda *s: torch.randn(*s, dtype=torch.bfloat16) * 0.05)(B, S, D)),
            "dft_seq_re": _w(Ws_re),
            "dft_seq_im": _w(Ws_im),
            "dft_hid_re": _w(Wd_re),
            "dft_hid_im": _w(Wd_im),
        }
    _A_in = _A_setup()

    def _B_setup():
        B, S, D, H = 1, 2048, 640, 32
        Dh = D // H
        return {
            "x": _w((lambda *s: torch.randn(*s, dtype=torch.bfloat16) * 0.05)(B, S, D)),
            "wq": _w((lambda *s: torch.randn(*s, dtype=torch.bfloat16) * 3.2)(D, H * Dh)),
            "wk": _w((lambda *s: torch.randn(*s, dtype=torch.bfloat16) * 3.2)(D, Dh)),
            "wv": _w((lambda *s: torch.randn(*s, dtype=torch.bfloat16) * 0.4)(D, Dh)),
            "wo": _w((lambda *s: torch.randn(*s, dtype=torch.bfloat16) * 0.4)(H * Dh, D)),
        }
    _B_in = _B_setup()

    return {
        "A_x": _A_in["x"],
        "A_dft_seq_re": _A_in["dft_seq_re"],
        "A_dft_seq_im": _A_in["dft_seq_im"],
        "A_dft_hid_re": _A_in["dft_hid_re"],
        "A_dft_hid_im": _A_in["dft_hid_im"],
        "B_x": _B_in["x"],
        "B_wq": _B_in["wq"],
        "B_wk": _B_in["wk"],
        "B_wv": _B_in["wv"],
        "B_wo": _B_in["wo"],
    }

def reference(A_x, A_dft_seq_re, A_dft_seq_im, A_dft_hid_re, A_dft_hid_im, B_x, B_wq, B_wk, B_wv, B_wo):
    def _A_ref(x, dft_seq_re, dft_seq_im, dft_hid_re, dft_hid_im):
        a = torch.einsum("bsd,ed->bse", x, dft_hid_re)
        b = torch.einsum("bsd,ed->bse", x, dft_hid_im)
        y = torch.einsum("ts,bse->bte", dft_seq_re, a) - torch.einsum("ts,bse->bte", dft_seq_im, b)
        return y

    def _B_ref(x, wq, wk, wv, wo):
        B, S, D = x.shape
        H = 32
        Dh = D // H
        q = (lambda x, *d: x.permute(*d))((x @ wq).reshape(B, S, H, Dh), 0, 2, 1, 3)
        k = x @ wk
        v = x @ wv
        scores = torch.einsum("bhqd,bkd->bhqk", q, k) * (Dh ** -0.5)
        p = _softmax(scores, axis=-1)
        o = torch.einsum("bhqk,bkd->bhqd", p, v)
        return (lambda x, *d: x.permute(*d))(o, 0, 2, 1, 3).reshape(B, S, H * Dh) @ wo

    a = _A_ref(A_x, A_dft_seq_re, A_dft_seq_im, A_dft_hid_re, A_dft_hid_im)
    b = _B_ref(B_x, B_wq, B_wk, B_wv, B_wo)
    return torch.concatenate([a, b], axis=-1)
```

```python
class Asm:
    def __init__(self):
        self.lines=[]
    def __call__(self, s):
        for l in s.split('\n'):
            l=l.strip()
            if l: self.lines.append(('' if (l.endswith(':') and not l.startswith(';')) else '  ')+l)
    def text(self): return '\n'.join(self.lines)+'\n'
def vr(a,n=1): return f'v{a}' if n==1 else f'v[{a}:{a+n-1}]'
def sr(a,n=1): return f's{a}' if n==1 else f's[{a}:{a+n-1}]'
def srd(a, d, base, nbytes):
    a(f's_mov_b32 s{d}, s{base}\ns_mov_b32 s{d+1}, s{base+1}\ns_mov_b32 s{d+2}, {nbytes}\ns_mov_b32 s{d+3}, 0x20000')
def kdesc(name, vgpr, sgpr=96, accum=None, kernarg=104):
    accum = accum or min(256,(vgpr+3)//4*4)
    return f""".p2align 6
.amdhsa_kernel {name}
  .amdhsa_next_free_vgpr {vgpr}
  .amdhsa_next_free_sgpr {sgpr}
  .amdhsa_accum_offset {accum}
  .amdhsa_group_segment_fixed_size 0
  .amdhsa_kernarg_size {kernarg}
  .amdhsa_user_sgpr_count 2
  .amdhsa_user_sgpr_kernarg_segment_ptr 1
  .amdhsa_system_sgpr_workgroup_id_x 1
.end_amdhsa_kernel
"""
def khead(name):
    return f".globl {name}\n.p2align 8\n.type {name},@function\n{name}:\n"
```

```python
import sys, math, struct
import numpy as np
sys.path.insert(0,'gen')
from asmlib import *

STAMP = '--stamp' in sys.argv
OUTF = [a for a in sys.argv[1:] if not a.startswith('--')]
OUTF = OUTF[0] if OUTF else 'concat_heads__spectral_fnet__grouped_kv_mqa__prompt.s'

WS_QF = 0
WS_KV = 0x300000
WS_O  = 0x340000
WS_U  = 0x600000
WS_ST = 0x900000
WS_SZ = 0x1000000
CSCALE = (20**-0.5)*math.log2(math.e)
OFFS = 80.0
def f2u(x): return struct.unpack('<I',struct.pack('<f',x))[0]
def bf(x):
    u=np.asarray(x,np.float32).view(np.uint32)
    return ((u+0x7fff+((u>>16)&1))>>16).astype(np.uint32)
def pack(vals):
    b=bf(vals); return b[...,0::2]|(b[...,1::2]<<16)

def table_f128():
    t=np.zeros((8,4,64,8),np.float64)
    for w in range(8):
        for s in range(4):
            for l in range(64):
                kidx=16*w+(l&15); u=kidx>>1; q=kidx&1
                for j in range(8):
                    sh=32*s+8*(l>>4)+j
                    if kidx==1: v=math.cos(math.pi*sh)
                    elif q==0: v=math.cos(2*math.pi*u*sh/128)
                    else: v=-math.sin(2*math.pi*u*sh/128)
                    t[w,s,l,j]=v
    return pack(t).reshape(-1)
def sig(n): return 16*((n>>2)&1)+4*(n>>3)+(n&3)
def table_hid():
    out=np.zeros((13,64,4),np.uint32)
    for l in range(64):
        n=l&31; h=l>>5; k1=sig(n)
        for s in range(2):
            d1=np.arange(8)+16*s+8*h
            out[s,l]=pack(np.cos(2*np.pi*d1*k1/32))
            out[2+s,l]=pack(-np.sin(2*np.pi*d1*k1/32))
        for j in range(3):
            d2=8*j+4*h+np.arange(4); ok=(d2<20)
            out[4+j,l]=(np.cos(2*np.pi*d2*k1/640)*ok).astype(np.float32).view(np.uint32)
            out[7+j,l]=(-np.sin(2*np.pi*d2*k1/640)*ok).astype(np.float32).view(np.uint32)
            k2=n if n<20 else 0
            out[10+j,l]=pack(np.concatenate([np.cos(2*np.pi*d2*k2/20)*ok, np.sin(2*np.pi*d2*k2/20)*ok]))
    return out.reshape(-1)
def emit_table(name, arr):
    s=f".p2align 8\n.type {name},@object\n{name}:\n"
    for i in range(0,len(arr),8):
        s+=".long "+",".join(hex(int(x)) for x in arr[i:i+8])+"\n"
    s+=f".size {name}, {4*len(arr)}\n"
    return s

S_W=3
S_QB=4; S_HG=5
def stamp(a, kid, idx, wsreg):
    if not STAMP: return
    a(f"""s_memrealtime s[90:91]
    s_lshl_b32 s92, s2, 3
    s_add_u32 s92, s92, s{S_W}
    s_lshl_b32 s92, s92, 5
    s_add_u32 s92, s92, {WS_ST+kid*0x10000+idx*4}
    s_waitcnt lgkmcnt(0)
    v_mov_b32 v250, s90
    v_mov_b32 v251, s92
    global_store_dword v251, v250, s[{wsreg}:{wsreg+1}]""")
def prologue(a, lbl_end):
    if STAMP: a("s_memrealtime s[88:89]")
    a(f"""s_cmp_ge_u32 s2, 256
    s_cbranch_scc1 {lbl_end}
    v_lshrrev_b32 v1, 6, v0
    v_and_b32 v0, 63, v0
    s_and_b32 s{S_QB}, s2, 7
    v_readfirstlane_b32 s{S_W}, v1
    s_lshl_b32 s{S_QB}, s{S_QB}, 2
    s_bfe_u32 s6, s2, 0x20003
    s_add_u32 s{S_QB}, s{S_QB}, s6
    s_lshr_b32 s{S_HG}, s2, 5""")
def stamp0(a,kid,wsreg):
    if not STAMP: return
    a(f"""s_lshl_b32 s92, s2, 3
    s_add_u32 s92, s92, s{S_W}
    s_lshl_b32 s92, s92, 5
    s_add_u32 s92, s92, {WS_ST+kid*0x10000}
    v_mov_b32 v250, s88
    v_mov_b32 v251, s92
    global_store_dword v251, v250, s[{wsreg}:{wsreg+1}]""")
NST = 1 if STAMP else 0

SLOT=40960
class G:
    XA=2
    WA=4
    WS=10
    XR=16
    WR=20
    ACC=32
    FR=48
    sX=12
    sM=14
    sE=16
def gemm_setup(a, wbase, kvbase, colperm):
    a(f"""v_lshrrev_b32 v21, 3, v0
    s_lshl_b32 s6, s{S_W}, 3
    v_add_u32 v21, s6, v21
    v_bfe_u32 v22, v21, 1, 3
    v_and_b32 v23, 7, v0
    v_xor_b32 v22, v22, v23
    v_mul_u32_u24 v21, 0x500, v21
    v_lshl_add_u32 v{G.XA}, v22, 4, v21""")
    a(f"s_mul_i32 s7, s{S_HG}, 160\ns_lshl_b32 s6, s{S_W}, 4")
    for i in range(3):
        A=G.WA+2*i; S=G.WS+2*i
        a(f"""v_add_u32 v21, {64*i}, v0
        v_mul_u32_u24 v22, 0x556, v21
        v_lshrrev_b32 v22, 14, v22
        v_mul_u32_u24 v23, 12, v22
        v_sub_u32 v23, v21, v23
        v_add_u32 v22, s6, v22
        v_mul_u32_u24 v24, 0x500, v22
        v_lshl_add_u32 v24, v23, 4, v24
        v_add_u32 v24, s7, v24
        v_mov_b32 v{A+1}, s{wbase+1}
        v_add_co_u32 v{A}, vcc, s{wbase}, v24
        v_mov_b32 v{S}, {128*1280}
        v_mov_b32 v{S+1}, 0
        v_addc_co_u32 v{A+1}, vcc, 0, v{A+1}, vcc""")
        if kvbase is not None:
            a(f"""v_mul_u32_u24 v24, 40, v22
            v_mov_b32 v25, s{kvbase+1}
            v_add_co_u32 v24, vcc, s{kvbase}, v24
            v_mov_b32 v26, {128*40}
            v_cmp_eq_u32 s[8:9], 11, v23
            v_addc_co_u32 v25, vcc, 0, v25, vcc
            v_cmp_ne_u32 s[{G.sE+2*i}:{G.sE+2*i+1}], 10, v23
            v_cndmask_b32 v{A}, v{A}, v24, s[8:9]
            v_cndmask_b32 v{A+1}, v{A+1}, v25, s[8:9]
            v_cndmask_b32 v{S}, v{S}, v26, s[8:9]""")
        else:
            a(f"v_cmp_gt_u32 s[{G.sE+2*i}:{G.sE+2*i+1}], 10, v23")
    a(f"""s_and_b32 s6, s{S_W}, 1
    s_lshl_b32 s6, s6, 5
    v_and_b32 v21, 31, v0
    v_add_u32 v21, s6, v21
    v_bfe_u32 v22, v21, 1, 3
    v_lshrrev_b32 v23, 5, v0
    v_xor_b32 v22, v22, v23
    v_lshlrev_b32 v21, 7, v21""")
    for s in range(4):
        a(f"v_xor_b32 v24, {2*s}, v22\nv_lshl_add_u32 v{G.XR+s}, v24, 4, v21")
    lo=sum((colperm[i]&0xff)<<(8*i) for i in range(4)); hi=sum((colperm[4+i]&0xff)<<(8*i) for i in range(4))
    a(f"""v_bfe_u32 v21, v0, 2, 2
    v_lshl_add_u32 v21, v23, 3, v21
    v_mul_u32_u24 v21, 192, v21
    v_mov_b32 v24, {hex(lo)}
    v_mov_b32 v25, {hex(hi)}
    v_and_b32 v26, 16, v0
    v_cmp_ne_u32 vcc, 0, v26
    v_and_b32 v26, 3, v0
    v_lshlrev_b32 v26, 3, v26
    v_cndmask_b32 v24, v24, v25, vcc
    v_bfe_u32 v24, v24, v26, 8
    s_lshr_b32 s6, s{S_W}, 1
    s_mul_i32 s6, s6, 40
    v_mov_b32 v25, s6
    v_cmp_gt_u32 vcc, 160, v24
    v_add_u32 v21, 16384, v21
    s_nop 0
    v_cndmask_b32 v25, 0, v25, vcc
    v_add3_u32 v{G.WR}, v21, v24, v25""")
def gemm_issue(a, slotexpr=None):
    a(f"""s_lshl_b32 s6, s{S_W}, 10
    s_add_u32 m0, s{G.sM}, s6
    s_mul_i32 s7, s{S_W}, 3072
    global_load_lds_dwordx4 v{G.XA}, s[{G.sX}:{G.sX+1}]
    s_add_u32 m0, m0, {8192-128}
    s_add_u32 s7, s7, s{G.sM}
    global_load_lds_dwordx4 v{G.XA}, s[{G.sX}:{G.sX+1}] offset:128
    s_add_u32 m0, s7, 16384
    s_add_u32 s{G.sX}, s{G.sX}, 256
    s_addc_u32 s{G.sX+1}, s{G.sX+1}, 0""")
    for i in range(3):
        A=G.WA+2*i; S=G.WS+2*i
        a(f"""s_mov_b64 exec, s[{G.sE+2*i}:{G.sE+2*i+1}]
        global_load_lds_dwordx4 v[{A}:{A+1}], off
        s_add_u32 m0, m0, 1024
        v_lshl_add_u64 v[{A}:{A+1}], v[{S}:{S+1}], 0, v[{A}:{A+1}]""")
    a("s_mov_b64 exec, -1")
def gemm_compute(a):
    for half in range(2):
        for s in range(4):
            f=G.FR+32*half+8*s
            a(f"""ds_read_b128 v[{f}:{f+3}], v{G.XR+s} offset:{8192*half}
            ds_read_b64_tr_b16 v[{f+4}:{f+5}], v{G.WR} offset:{(64*half+16*s)*192}
            ds_read_b64_tr_b16 v[{f+6}:{f+7}], v{G.WR} offset:{(64*half+16*s+4)*192}""")
            if half==1:
                f0=G.FR+8*s
                a(f"s_waitcnt lgkmcnt(12)\nv_mfma_f32_32x32x16_bf16 v[{G.ACC}:{G.ACC+15}], v[{f0+4}:{f0+7}], v[{f0}:{f0+3}], v[{G.ACC}:{G.ACC+15}]")
    for s in range(4):
        f=G.FR+32+8*s
        a(f"s_waitcnt lgkmcnt({9-3*s})\nv_mfma_f32_32x32x16_bf16 v[{G.ACC}:{G.ACC+15}], v[{f+4}:{f+7}], v[{f}:{f+3}], v[{G.ACC}:{G.ACC+15}]")
def gemm_advance(a, delta):
    for s in range(4): a(f"v_add_u32 v{G.XR+s}, {delta}, v{G.XR+s}")
    a(f"v_add_u32 v{G.WR}, {delta}, v{G.WR}")
def zero(a, base, n):
    for i in range(n): a(f"v_mov_b32 v{base+i}, 0")
def add64(a, d, s, imm_or_sreg):
    a(f"s_add_u32 s{d}, s{s}, {imm_or_sreg}\ns_addc_u32 s{d+1}, s{s+1}, 0")

def k1():
    a=Asm()
    prologue(a,'K1_end')
    a("""s_load_dwordx2 s[24:25], s[0:1], 0
    s_load_dwordx2 s[28:29], s[0:1], 40
    s_load_dwordx2 s[30:31], s[0:1], 48
    s_load_dwordx4 s[32:35], s[0:1], 56
    s_load_dwordx2 s[36:37], s[0:1], 96
    s_getpc_b64 s[40:41]
    K1_pc:""")
    a(f"""s_mul_i32 s6, s{S_W}, 5120
    v_lshl_add_u32 v21, v0, 7, s6
    s_sub_u32 s42, s40, K1_pc-k1_kernel
    s_subb_u32 s43, s41, 0
    s_mov_b32 exec_hi, 0xff
    global_load_dword v112, v21, s[42:43]
    s_mov_b32 exec_hi, -1""")
    a(f"""s_add_u32 s40, s40, tab_f128-K1_pc
    s_addc_u32 s41, s41, 0
    s_lshl_b32 s6, s{S_W}, 12
    v_lshl_add_u32 v21, v0, 4, s6""")
    for s in range(4): a(f"global_load_dwordx4 v[{116+4*s}:{119+4*s}], v21, s[40:41] offset:{1024*s}")
    a(f"""s_and_b32 s44, s2, 7
    s_lshl_b32 s44, s44, 1
    s_bfe_u32 s6, s2, 0x10003
    s_add_u32 s44, s44, s6
    s_lshr_b32 s45, s2, 4
    s_mul_i32 s46, s44, 1280
    s_mul_i32 s6, s45, 80
    s_add_u32 s46, s46, s6
    s_lshl_b32 s6, s{S_W}, 6
    v_add_u32 v21, s6, v0
    v_mul_u32_u24 v22, 0xccd, v21
    v_lshrrev_b32 v22, 14, v22
    v_mul_u32_u24 v23, 5, v22
    v_sub_u32 v23, v21, v23
    v_mul_u32_u24 v22, {16*1280}, v22
    v_lshl_add_u32 v27, v23, 4, v22
    v_add_u32 v21, 512, v21
    v_mul_u32_u24 v22, 0xccd, v21
    v_lshrrev_b32 v22, 14, v22
    v_mul_u32_u24 v23, 5, v22
    v_sub_u32 v23, v21, v23
    v_mul_u32_u24 v22, {16*1280}, v22
    v_lshl_add_u32 v28, v23, 4, v22
    s_lshl_b32 s6, s{S_W}, 10
    s_add_u32 m0, s6, {3*SLOT}
    s_waitcnt lgkmcnt(0)""")
    stamp0(a,0,36)
    add64(a,24,24,'s46')
    a(f"""global_load_lds_dwordx4 v27, s[24:25]
    s_cmp_ge_u32 s{S_W}, 2
    s_cbranch_scc1 K1_nof2
    s_add_u32 m0, m0, 8192
    s_nop 0
    global_load_lds_dwordx4 v28, s[24:25]
    K1_nof2:""")
    a(f"s_mul_i32 s6, s{S_QB}, {64*1280}")
    add64(a,G.sX,28,'s6')
    a(f"""s_cmp_ge_u32 s{S_HG}, 3
    s_cselect_b32 s38, s34, s32
    s_cselect_b32 s39, s35, s33
    s_cselect_b32 s6, 3, 0
    s_sub_u32 s47, s{S_HG}, s6
    s_min_u32 s47, s47, 2
    s_lshl_b32 s6, s47, 4
    s_min_u32 s6, s6, 24""")
    add64(a,38,38,'s6')
    gemm_setup(a,30,38,[0,16,8,24,32,32,176,184])
    a(f"s_mov_b32 s{G.sM}, 0\nK1_pre:")
    gemm_issue(a)
    a(f"""s_add_u32 s{G.sM}, s{G.sM}, {SLOT}
    s_cmp_lt_u32 s{G.sM}, {3*SLOT}
    s_cbranch_scc1 K1_pre""")
    zero(a,G.ACC,16)
    a(f"""v_lshrrev_b32 v21, 4, v0
    v_bfe_u32 v22, v0, 2, 2
    v_lshl_add_u32 v22, v21, 3, v22
    v_mul_u32_u24 v22, 80, v22
    v_and_b32 v23, 3, v0
    v_add_u32 v22, {3*SLOT}, v22
    v_lshl_add_u32 v24, v23, 4, v22
    v_and_b32 v23, 1, v0
    v_lshl_add_u32 v25, v23, 3, v22
    s_waitcnt vmcnt(15)
    s_barrier""")
    stamp(a,0,1,36)
    D=[100,104,108]
    for s in range(4):
        f=G.FR+12*s
        for T in range(3):
            for u in range(2):
                ad,co=(24,8*T) if T<2 else (25,64)
                a(f"ds_read_b64_tr_b16 v[{f+4*T+2*u}:{f+4*T+2*u+1}], v{ad} offset:{(32*s+4*u)*80+co}")
        if s>=1:
            sp=s-1; fp=G.FR+12*sp
            a("s_waitcnt lgkmcnt(6)")
            for T in range(3):
                c='0' if sp==0 else f"v[{D[T]}:{D[T]+3}]"
                a(f"v_mfma_f32_16x16x32_bf16 v[{D[T]}:{D[T]+3}], v[{fp+4*T}:{fp+4*T+3}], v[{116+4*sp}:{119+4*sp}], {c}")
    a("s_waitcnt lgkmcnt(0)\ns_barrier")
    fp=G.FR+36
    for T in range(3): a(f"v_mfma_f32_16x16x32_bf16 v[{D[T]}:{D[T]+3}], v[{fp+4*T}:{fp+4*T+3}], v[128:131], v[{D[T]}:{D[T]+3}]")
    gemm_issue(a)
    a(f"""s_lshl_b32 s6, s{S_W}, 4
    v_and_b32 v22, 15, v0
    v_add_u32 v22, s6, v22
    v_mul_u32_u24 v22, {16*1280}, v22
    v_lshl_add_u32 v23, v21, 3, v22
    v_lshl_add_u32 v22, v21, 4, v22
    s_add_u32 s6, s46, {WS_U}""")
    add64(a,42,36,'s6')
    a(f"""v_cvt_pk_bf16_f32 v100, v100, v101
    v_cvt_pk_bf16_f32 v101, v102, v103
    v_cvt_pk_bf16_f32 v102, v104, v105
    v_cvt_pk_bf16_f32 v103, v106, v107
    v_cvt_pk_bf16_f32 v104, v108, v109
    v_cvt_pk_bf16_f32 v105, v110, v111
    global_store_dwordx4 v22, v[100:103], s[42:43]
    s_mov_b32 exec_hi, 0
    global_store_dwordx2 v23, v[104:105], s[42:43] offset:64
    s_mov_b64 exec, -1""")
    a(f"s_waitcnt vmcnt({17+NST})\ns_barrier")
    gemm_compute(a); gemm_advance(a,SLOT)
    a(f"s_waitcnt vmcnt({12+NST})\ns_barrier\ns_mov_b32 s{G.sM}, 0")
    gemm_issue(a)
    a("s_mov_b32 s48, 1\nK1_loop:")
    gemm_compute(a)
    a(f"""s_mov_b32 s6, {SLOT}
    s_cmp_eq_u32 s48, 3
    s_cselect_b32 s6, {(-3*SLOT)&0xffffffff}, s6""")
    gemm_advance(a,'s6')
    a(f"""s_add_u32 s48, s48, 1
    s_cmp_eq_u32 s48, 5
    s_cbranch_scc1 K1_done
    s_cmp_eq_u32 s48, 2
    s_cbranch_scc1 K1_w2
    s_cmp_eq_u32 s48, 3
    s_cbranch_scc1 K1_w3
    s_waitcnt vmcnt(0)
    K1_w3:
    s_waitcnt vmcnt(7)
    K1_w2:
    s_waitcnt vmcnt({12+NST})
    s_barrier
    s_branch K1_loop
    K1_done:""")
    stamp(a,0,2,36)
    A=G.ACC
    a(f"""s_lshl_b32 s6, s2, 3
    s_add_u32 s6, s6, s{S_W}
    s_mul_i32 s6, s6, 1536
    s_mov_b32 s7, {hex(f2u(CSCALE))}
    v_lshlrev_b32 v21, 4, v0
    v_lshlrev_b32 v22, 3, v0""")
    add64(a,42,36,'s6')
    a("s_nop 7")
    for i in range(12): a(f"v_mul_f32 v{A+i}, s7, v{A+i}")
    for i in range(8): a(f"v_cvt_pk_bf16_f32 v{48+i}, v{A+2*i}, v{A+2*i+1}")
    a(f"""global_store_dwordx4 v21, v[48:51], s[42:43]
    global_store_dwordx2 v22, v[52:53], s[42:43] offset:1024
    s_cmp_ge_u32 s{S_W}, 2
    s_cbranch_scc1 K1_fin
    s_cmp_ge_u32 s{S_HG}, 6
    s_cbranch_scc1 K1_fin""")
    a(f"""s_lshr_b32 s6, s{S_QB}, 1
    s_mul_i32 s6, s6, 10240
    s_add_u32 s6, s6, {WS_KV}""")
    add64(a,42,36,'s6')
    a(f"""s_and_b32 s8, s{S_QB}, 1
    v_and_b32 v21, 31, v0
    v_lshrrev_b32 v22, 5, v0
    s_cmp_eq_u32 s47, 2
    s_cbranch_scc0 K1_full
    s_mov_b32 exec_lo, 0
    K1_full:
    s_cmp_ge_u32 s{S_HG}, 3
    s_cbranch_scc1 K1_v
    s_lshl_b32 s6, s8, 1
    s_add_u32 s6, s6, s{S_W}
    s_lshl_b32 s6, s6, 10
    s_lshl_b32 s7, s47, 9
    s_add_u32 s6, s6, s7
    s_lshl_b32 s7, s{S_W}, 9
    s_lshl_b32 s9, s8, 3
    s_add_u32 s7, s7, s9
    s_add_u32 s7, s7, {4096-8}
    s_cmp_eq_u32 s47, 2
    s_cselect_b32 s6, s7, s6
    v_lshlrev_b32 v21, 4, v21
    v_lshl_add_u32 v21, v22, 3, v21
    v_add_u32 v21, s6, v21
    global_store_dwordx2 v21, v[54:55], s[42:43]
    s_branch K1_fin
    K1_v:""")
    a(f"""s_lshl_b32 s6, s8, 1
    s_add_u32 s6, s6, s{S_W}
    s_mul_i32 s6, s6, 1280
    s_add_u32 s6, s6, 5120
    v_lshrrev_b32 v23, 3, v21
    v_mul_u32_u24 v23, 320, v23
    v_and_b32 v21, 7, v21
    v_lshl_add_u32 v23, v21, 1, v23
    s_lshl_b32 s7, s47, 1
    v_add_u32 v22, s7, v22
    v_mul_u32_u24 v22, 5, v22
    v_mov_b32 v24, {hex(0|(8<<5)|(16<<10)|(4<<15)|(12<<20)|(12<<25))}
    v_bfe_u32 v22, v24, v22, 5
    v_lshl_add_u32 v23, v22, 4, v23
    v_add_u32 v23, s6, v23
    global_store_short v23, v54, s[42:43]
    global_store_short_d16_hi v23, v54, s[42:43] offset:16
    global_store_short v23, v55, s[42:43] offset:32
    global_store_short_d16_hi v23, v55, s[42:43] offset:48
    K1_fin:
    s_mov_b64 exec, -1""")
    if STAMP:
        a("s_waitcnt vmcnt(0)"); stamp(a,0,3,36)
    a("K1_end:\ns_endpgm")
    return a.text()

def k2():
    a=Asm()
    prologue(a,'K2_end')
    Q16=4; Q4=8; IDX=2; AK=3; AV=1
    CM=12; O=28; S=[44,76]; KF=[108,116]; K4=[124,128]; VF=[132,148]; T=164
    a(f"""s_load_dwordx2 s[36:37], s[0:1], 96
    v_lshlrev_b32 v{AK}, 4, v0
    v_lshlrev_b32 v10, 3, v0
    v_lshrrev_b32 v11, 5, v0
    v_and_b32 v{T}, 31, v0
    v_mad_u32_u24 v{AV}, v11, 20, v{T}
    v_lshlrev_b32 v{AV}, 4, v{AV}
    v_mov_b32 v{IDX}, 0xdddddddd
    s_mov_b32 s30, 0xfffff
    s_mov_b32 s31, 0xfffff
    s_lshl_b32 s6, s2, 3
    s_add_u32 s6, s6, s{S_W}
    s_mul_i32 s6, s6, 1536
    s_lshl_b32 m0, s{S_W}, 10
    s_waitcnt lgkmcnt(0)""")
    stamp0(a,1,36)
    add64(a,42,36,'s6')
    a(f"""s_add_u32 s8, s36, {WS_KV}
    s_addc_u32 s9, s37, 0
    s_mov_b32 s10, 163840
    s_mov_b32 s11, 0x20000
    global_load_dwordx4 v[{Q16}:{Q16+3}], v{AK}, s[42:43]
    global_load_dwordx2 v[{Q4}:{Q4+1}], v10, s[42:43] offset:1024""")
    dma=f"buffer_load_dwordx4 v{T+1}, s[8:11], m0 offen lds"
    bump="s_add_u32 m0, m0, 8192"
    a(f"v_mov_b32 v{T+1}, v{AK}")
    NPRE=4
    for i in range(NPRE): a(dma+"\n"+bump+"\ns_nop 0")
    for i in range(32): a(f"v_mov_b32 v{VF[0]+i}, 0x3f803f80")
    zero(a,O,16)
    a(f"s_setprio 3\ns_waitcnt vmcnt({NPRE-2})\ns_barrier")
    stamp(a,1,1,36)
    def koff(g,t): return (g>>1)*10240+(2*(g&1)+t)*1024
    def k4off(g): return (g>>1)*10240+4096
    def voff(g,u): return (g>>1)*10240+5120+(4*(g&1)+u)*640
    on="s_mov_b64 exec, s[30:31]"; off="s_mov_b64 exec, -1"
    def M16(d,k,c): return f"v_mfma_f32_32x32x16_bf16 v[{d}:{d+15}], v[{k}:{k+3}], v[{Q16}:{Q16+3}], {c}"
    def M4(d,k): return f"v_mfma_f32_32x32x4_2b_bf16 v[{d}:{d+31}], v[{k}:{k+1}], v[{Q4}:{Q4+1}], v[{d}:{d+31}]"
    def SM(v,x): return f"v_smfmac_f32_32x32x32_bf16 v[{O}:{O+15}], v[{v}:{v+3}], v[{x}:{x+7}], v{IDX}"
    CMr=f"v[{CM}:{CM+15}]"
    def rowmax_to_cm(X, offs):
        pass
    a(f"""ds_read_b128 v[{KF[0]}:{KF[0]+3}], v{AK} offset:{koff(0,0)}
    ds_read_b128 v[{KF[0]+4}:{KF[0]+7}], v{AK} offset:{koff(0,1)}
    ds_read_b128 v[{K4[0]}:{K4[0]+3}], v{AK} offset:{k4off(0)}
    ds_read_b128 v[{KF[1]}:{KF[1]+3}], v{AK} offset:{koff(1,0)}
    ds_read_b128 v[{KF[1]+4}:{KF[1]+7}], v{AK} offset:{koff(1,1)}
    {on}""")
    for u in range(4): a(f"ds_read_b128 v[{VF[0]+4*u}:{VF[0]+4*u+3}], v{AV} offset:{voff(0,u)}")
    X=S[0]
    a(f"""{off}
    s_waitcnt lgkmcnt(6)
    {M16(X,KF[0],'0')}
    {M16(X+16,KF[0]+4,'0')}
    s_nop 9
    {M4(X,K4[0])}
    s_nop 15
    s_nop 3""")
    a(f"v_max3_f32 v{T+2}, v{X}, v{X+1}, v{X+2}\nv_max3_f32 v{T+3}, v{X+3}, v{X+4}, v{X+5}")
    for i in range(6,32,4):
        a(f"v_max3_f32 v{T+2}, v{T+2}, v{X+i}, v{X+i+1}")
        if i+2<32: a(f"v_max3_f32 v{T+3}, v{T+3}, v{X+i+2}, v{X+i+3}")
    a(f"""v_max_f32 v{T+2}, v{T+2}, v{T+3}
    v_mov_b32 v{T+3}, v{T+2}
    s_nop 1
    v_permlane32_swap_b32 v{T+2}, v{T+3}
    v_max_f32 v{T+2}, v{T+2}, v{T+3}
    v_sub_f32 v{CM}, {hex(f2u(-OFFS))}, v{T+2}""")
    for i in range(1,16): a(f"v_mov_b32 v{CM+i}, v{CM}")
    a(f"s_waitcnt lgkmcnt(0)\ns_nop 0\n{M16(S[1],KF[1],CMr)}")
    for i in range(32): a(f"v_add_f32 v{X+i}, v{CM}, v{X+i}")
    pos=dict(smp=2,mB=5,s0=10,mC=13,s1=21,s2=26,mA=29)
    order=sorted(pos,key=lambda k:pos[k])
    ndma=NPRE
    kbase=0; vbase=0
    for g in range(32):
        X=S[g%2]; Y=S[(g+1)%2]; g1=g+1; g2=g+2
        m={}
        m['mA']=M16(X,KF[g2%2],CMr) if g2<32 else None
        m['mB']=M16(Y+16,KF[g1%2]+4,CMr) if g1<32 else None
        m['mC']=M4(Y,K4[(g1//2)%2]+2*(g1%2)) if g1<32 else None
        for i in range(3): m[f's{i}']=SM(VF[g%2]+4*i,X+8*i)
        m['smp']=SM(VF[(g-1)%2]+12,Y+24) if g>0 else "s_nop 0"
        aft={k:[] for k in pos}
        pre=[]
        if g2<32 and k4off(g2)-kbase>=61440:
            pre.append(f"v_add_u32 v{AK}, 61440, v{AK}"); kbase+=61440
        if g1<32 and voff(g1,3)-vbase>=61440:
            pre.append(f"v_add_u32 v{AV}, 61440, v{AV}"); vbase+=61440
        if g==1: aft['smp']+= [f"s_waitcnt vmcnt({ndma-5})","s_barrier"]
        if g==6: aft['smp']+= ["s_waitcnt vmcnt(0)","s_barrier"]
        if g2<32:
            aft['smp'].append(f"ds_read_b128 v[{KF[g2%2]}:{KF[g2%2]+3}], v{AK} offset:{koff(g2,0)-kbase}")
            aft['mB']+=["s_waitcnt lgkmcnt(1)", f"ds_read_b128 v[{KF[g2%2]+4}:{KF[g2%2]+7}], v{AK} offset:{koff(g2,1)-kbase}"]
            if g2%2==0: aft['mC'].append(f"ds_read_b128 v[{K4[(g2//2)%2]}:{K4[(g2//2)%2]+3}], v{AK} offset:{k4off(g2)-kbase}")
        else:
            aft['smp'].append("s_waitcnt lgkmcnt(0)")
        if g1<32:
            b=VF[g1%2]
            vv=[f"ds_read_b128 v[{b+4*i}:{b+4*i+3}], v{AV} offset:{voff(g1,i)-vbase}" for i in range(4)]
            aft['s0']+=[on,vv[0],vv[1],off]; aft['s1']+=[on,vv[2],vv[3],off]
            aft['s2'].append("s_waitcnt lgkmcnt(2)")
        for k in ['mA','s2','mC','mB']:
            if ndma<20:
                aft[k]+=[dma,bump]; ndma+=1
        if g in (18,27,30): aft['s2'].append(f"s_setprio {dict([(18,2),(27,1),(30,0)])[g]}")
        ins={i:[] for i in range(33)}
        ins[0]+=pre
        for k in order:
            if m[k]: ins[pos[k]].append(m[k])
            ins[pos[k]]+=aft[k]
        for i in range(33):
            for x in ins[i]: a(x)
            if i<32: a(f"v_exp_f32 v{X+i}, v{X+i}")
    a("s_nop 1\n"+SM(VF[1]+12,S[1]+24))
    a("s_mov_b32 s40, 0\nK2_check:\ns_nop 11")
    stamp(a,1,2,36)
    a(f"""v_max3_f32 v{T+2}, |v{O}|, |v{O+1}|, |v{O+2}|
    v_max3_f32 v{T+3}, |v{O+3}|, |v{O+4}|, |v{O+5}|
    v_max3_f32 v{T+2}, v{T+2}, |v{O+6}|, |v{O+7}|
    v_max3_f32 v{T+4}, |v{O+8}|, |v{O+9}|, |v{O+10}|
    v_max_f32 v{T+2}, v{T+2}, v{T+3}
    v_max3_f32 v{T+4}, v{T+4}, |v{O+11}|, v{T+2}
    v_rcp_f32 v{T+5}, v{O+12}
    v_cmp_gt_f32 vcc, {hex(f2u(2.0**110))}, v{O+12}
    s_mov_b32 s6, 0x7f800000
    s_mov_b32 s7, {hex(f2u(2.0**-100))}
    v_cmp_gt_f32 s[12:13], s6, v{T+4}
    v_cmp_lt_f32 s[14:15], s7, v{T+2}
    s_and_b64 vcc, vcc, s[12:13]
    s_and_b64 vcc, vcc, s[14:15]
    s_cmp_eq_u64 vcc, -1
    s_cbranch_scc0 K2_slow
    K2_store:""")
    for i in range(12): a(f"v_mul_f32 v{O+i}, v{T+5}, v{O+i}")
    for i in range(6): a(f"v_cvt_pk_bf16_f32 v{S[0]+i}, v{O+2*i}, v{O+2*i+1}")
    a(f"""s_lshl_b32 s6, s{S_QB}, 1
    s_and_b32 s7, s{S_W}, 1
    s_add_u32 s6, s6, s7
    s_mul_i32 s6, s6, {32*1280}
    s_lshl_b32 s7, s{S_HG}, 2
    s_lshr_b32 s12, s{S_W}, 1
    s_add_u32 s7, s7, s12
    s_mul_i32 s7, s7, 40
    s_add_u32 s6, s6, s7
    s_add_u32 s6, s6, {WS_O}
    v_mul_u32_u24 v{T+2}, 0x500, v{T}
    v_mad_u32_u24 v{T+2}, v11, 24, v{T+2}""")
    add64(a,42,36,'s6')
    a(f"""global_store_dwordx4 v{T+2}, v[{S[0]}:{S[0]+3}], s[42:43]
    s_mov_b32 exec_hi, 0
    global_store_dwordx2 v{T+2}, v[{S[0]+4}:{S[0]+5}], s[42:43] offset:16
    s_mov_b64 exec, -1""")
    if STAMP:
        a("s_waitcnt vmcnt(0)"); stamp(a,1,3,36)
    a("K2_end:\ns_endpgm")
    X=S[0]
    a(f"""K2_slow:
    s_cmp_lg_u32 s40, 0
    s_cbranch_scc1 K2_store
    s_mov_b32 s40, 1
    v_mov_b32 v{T+2}, 0xff800000""")
    zero(a,CM,16); zero(a,O,16)
    a("K2_pass:")
    a(f"""v_lshlrev_b32 v{AK}, 4, v0
    v_mad_u32_u24 v{AV}, v11, 20, v{T}
    v_lshlrev_b32 v{AV}, 4, v{AV}
    s_mov_b32 s41, 0
    K2_sl:
    s_and_b32 s6, s41, 1
    s_mul_i32 s7, s6, 2048
    s_mul_i32 s12, s6, 8
    s_mul_i32 s13, s6, 2560
    v_add_u32 v{T+3}, s7, v{AK}
    v_add_u32 v{T+4}, s12, v{AK}
    v_add_u32 v{T+5}, s13, v{AV}
    ds_read_b128 v[{KF[0]}:{KF[0]+3}], v{T+3}
    ds_read_b128 v[{KF[0]+4}:{KF[0]+7}], v{T+3} offset:1024
    ds_read_b64 v[{K4[0]}:{K4[0]+1}], v{T+4} offset:4096
    {on}""")
    for u in range(4): a(f"ds_read_b128 v[{VF[0]+4*u}:{VF[0]+4*u+3}], v{T+5} offset:{5120+640*u}")
    a(f"""{off}
    s_mul_i32 s7, s6, 10240
    v_add_u32 v{AK}, s7, v{AK}
    v_add_u32 v{AV}, s7, v{AV}
    s_waitcnt lgkmcnt(0)
    {M16(X,KF[0],CMr)}
    {M16(X+16,KF[0]+4,CMr)}
    s_nop 9
    {M4(X,K4[0])}
    s_nop 15
    s_nop 3
    s_cmp_eq_u32 s40, 1
    s_cbranch_scc0 K2_p2""")
    for i in range(0,32,2): a(f"v_max3_f32 v{T+2}, v{T+2}, v{X+i}, v{X+i+1}")
    a("s_branch K2_nx\nK2_p2:")
    for i in range(32): a(f"v_exp_f32 v{X+i}, v{X+i}")
    a("s_nop 1")
    for u in range(4): a(SM(VF[0]+4*u,X+8*u))
    a(f"""K2_nx:
    s_add_u32 s41, s41, 1
    s_cmp_lt_u32 s41, 32
    s_cbranch_scc1 K2_sl
    s_cmp_eq_u32 s40, 1
    s_cbranch_scc0 K2_check
    s_mov_b32 s40, 2
    v_mov_b32 v{T+3}, v{T+2}
    s_nop 1
    v_permlane32_swap_b32 v{T+2}, v{T+3}
    v_max_f32 v{T+2}, v{T+2}, v{T+3}""")
    for i in range(16): a(f"v_sub_f32 v{CM+i}, 0, v{T+2}")
    a("s_branch K2_pass")
    return a.text()

def k3():
    a=Asm()
    prologue(a,'K3_end')
    UL=3*SLOT; VL=2*SLOT; TL=2*SLOT+21504
    a("""s_load_dwordx4 s[28:31], s[0:1], 72
    s_load_dwordx2 s[36:37], s[0:1], 96
    s_getpc_b64 s[40:41]
    K3_pc:
    s_add_u32 s40, s40, tab_hid-K3_pc
    s_addc_u32 s41, s41, 0""")
    a(f"""s_lshl_b32 s6, s{S_W}, 10
    v_lshl_add_u32 v21, v0, 4, s6
    s_add_u32 m0, s6, {TL}
    v_add_u32 v22, 8192, v21
    global_load_lds_dwordx4 v21, s[40:41]
    s_cmp_ge_u32 s{S_W}, 5
    s_cbranch_scc1 K3_not2
    s_add_u32 m0, m0, 8192
    s_nop 0
    global_load_lds_dwordx4 v22, s[40:41]
    K3_not2:""")
    a(f"""s_and_b32 s44, s2, 7
    s_lshl_b32 s44, s44, 3
    s_bfe_u32 s6, s2, 0x30003
    s_add_u32 s44, s44, s6
    s_lshr_b32 s45, s2, 6
    s_mul_i32 s46, s44, 40960
    s_add_u32 s46, s46, {WS_U}
    s_mul_i32 s7, s{S_W}, 5120
    s_bfe_u32 s8, s{S_W}, 0x10001
    s_lshl_b32 s8, s8, 2""")
    for i in range(5):
        a(f"""v_add_u32 v21, {64*i}, v0
        v_mul_u32_u24 v22, 205, v21
        v_lshrrev_b32 v22, 14, v22
        v_or_b32 v22, s8, v22
        v_lshlrev_b32 v22, 5, v22
        v_lshl_add_u32 v21, v21, 4, s7
        v_xor_b32 v{100+i}, v21, v22""")
    a(f"s_add_u32 m0, s7, {UL}\ns_waitcnt lgkmcnt(0)")
    stamp0(a,2,36)
    add64(a,42,36,'s46')
    for i in range(5): a(f"global_load_lds_dwordx4 v{100+i}, s[42:43]\ns_add_u32 m0, m0, 1024\ns_nop 0")
    a(f"s_mul_i32 s6, s{S_QB}, {64*1280}\ns_add_u32 s6, s6, {WS_O}")
    add64(a,G.sX,36,'s6')
    gemm_setup(a,28,None,[0,24,8,32,16,16,16,16])
    a(f"s_mov_b32 s{G.sM}, 0\nK3_pre:")
    gemm_issue(a)
    a(f"""s_add_u32 s{G.sM}, s{G.sM}, {SLOT}
    s_cmp_lt_u32 s{G.sM}, {2*SLOT}
    s_cbranch_scc1 K3_pre""")
    zero(a,G.ACC,16)
    a(f"""s_lshr_b32 s47, s45, 1
    s_sub_u32 s6, 128, s44
    s_cmp_eq_u32 s44, 0
    s_cselect_b32 s6, 64, s6
    s_cselect_b32 s9, 0, 512
    s_cmp_eq_u32 s47, 0
    s_cselect_b32 s48, s44, s6
    s_and_b32 s6, s45, 1
    s_lshl_b32 s6, s6, 10
    s_add_u32 s48, s48, s6
    s_mul_i32 s6, s9, 3
    s_cmp_eq_u32 s47, 0
    s_cselect_b32 s9, s6, s9
    v_bfe_u32 v21, v0, 1, 3
    v_lshl_add_u32 v21, v21, 7, s48
    v_and_b32 v22, 1, v0
    v_lshlrev_b32 v22, 9, v22
    v_lshrrev_b32 v23, 5, v0
    v_mad_u32_u24 v22, v23, s9, v22
    v_bfe_u32 v24, v0, 4, 1
    v_lshlrev_b32 v24, 3, v24
    v_mad_u32_u24 v22, v24, v21, v22
    s_mov_b32 s6, {hex(f2u(1/2048))}""")
    for i in range(8):
        a(f"""v_and_b32 v24, 0x7ff, v22
        v_cvt_f32_u32 v24, v24
        v_mul_f32 v24, s6, v24
        v_cos_f32 v{112+i}, v24
        v_add_u32 v22, v22, v21""")
    for i in range(4): a(f"v_cvt_pk_bf16_f32 v{112+i}, v{112+2*i}, v{113+2*i}")
    a(f"""s_cmp_eq_u32 s44, 0
    s_cbranch_scc0 K3_reg
    v_cmp_eq_u32 vcc, s47, v23
    s_nop 1""")
    for i in range(4): a(f"v_cndmask_b32 v{112+i}, 0, v{112+i}, vcc")
    a("K3_reg:")
    a(f"""v_lshrrev_b32 v21, 4, v0
    v_bfe_u32 v22, v0, 2, 2
    v_lshl_add_u32 v24, v21, 3, v22
    v_mul_u32_u24 v24, 0x500, v24
    v_bfe_u32 v25, v0, 2, 3
    v_xor_b32 v25, s{S_W}, v25
    v_lshl_add_u32 v24, v25, 5, v24
    v_and_b32 v25, 3, v0
    v_lshl_add_u32 v24, v25, 3, v24
    v_add_u32 v24, {UL}, v24
    v_and_b32 v26, 15, v0
    v_mul_u32_u24 v26, 1288, v26
    v_lshl_add_u32 v26, v21, 3, v26
    s_lshl_b32 s6, s{S_W}, 5
    s_add_u32 s6, s6, {VL}
    v_add_u32 v26, s6, v26
    s_waitcnt vmcnt(10)
    s_barrier""")
    stamp(a,2,1,36)
    F=G.FR
    for i in range(5):
        for u in range(2): a(f"ds_read_b64_tr_b16 v[{F+4*i+2*u}:{F+4*i+2*u+1}], v24 offset:{256*i+5120*u}")
    for i in range(5):
        a(f"s_waitcnt lgkmcnt({8-2*i})\nv_mfma_f32_16x16x32_bf16 v[{F+20+4*i}:{F+23+4*i}], v[{F+4*i}:{F+4*i+3}], v[112:115], 0")
    TB=128
    a(f"v_lshlrev_b32 v27, 4, v0\nv_add_u32 v27, {TL}, v27")
    for qd in range(13): a(f"ds_read_b128 v[{TB+4*qd}:{TB+4*qd+3}], v27 offset:{1024*qd}")
    a("s_waitcnt lgkmcnt(10)")
    for i in range(5):
        d=F+20+4*i
        a(f"v_cvt_pk_bf16_f32 v{d}, v{d}, v{d+1}\nv_cvt_pk_bf16_f32 v{d+1}, v{d+2}, v{d+3}\nds_write_b64 v26, v[{d}:{d+1}] offset:{256*i}")
    a(f"""v_lshrrev_b32 v23, 5, v0
    v_lshl_add_u32 v22, v23, 3, v22
    v_mul_u32_u24 v22, 40, v22
    v_lshlrev_b32 v25, 3, v25
    v_and_b32 v28, 16, v0
    v_cmp_ne_u32 vcc, 0, v28
    s_mul_i32 s6, s{S_W}, {2*1288}
    s_add_u32 s6, s6, {VL}
    v_cndmask_b32 v25, v25, 32, vcc
    v_add3_u32 v22, v22, v25, s6
    s_waitcnt lgkmcnt(0)
    s_barrier""")
    for p in range(2):
        for s in range(2):
            for u in range(2):
                a(f"ds_read_b64_tr_b16 v[{F+8*p+4*s+2*u}:{F+8*p+4*s+2*u+1}], v22 offset:{1288*p+640*s+160*u}")
    a(f"s_mov_b32 s{G.sM}, {3*SLOT}")
    gemm_issue(a)
    for i in range(8): a(f"v_xor_b32 v{180+i}, 0x80008000, v{TB+8+i}")
    a("s_waitcnt lgkmcnt(0)\ns_barrier")
    TR=F+16; TI=F+32
    def mm(d,A,B,c): return f"v_mfma_f32_32x32x16_bf16 v[{d}:{d+15}], v[{A}:{A+3}], v[{B}:{B+3}], {c}"
    TRr=f"v[{TR}:{TR+15}]"; TIr=f"v[{TI}:{TI+15}]"
    a(mm(TR,F,TB,'0')); a(mm(TI,F,TB+8,'0'))
    a(mm(TR,F+4,TB+4,TRr)); a(mm(TI,F+4,TB+12,TIr))
    a(mm(TR,F+8,180,TRr)); a(mm(TI,F+8,TB,TIr))
    a(mm(TR,F+12,184,TRr)); a(mm(TI,F+12,TB+4,TIr))
    a(f"s_mov_b32 s{G.sM}, {2*SLOT}")
    gemm_issue(a)
    WRr=TB+16; WI=TB+28; GG=TB+40; P=100
    for i in range(12):
        a(f"""v_mul_f32 v{P}, v{TI+i}, v{WI+i}
        v_mul_f32 v{P+1}, v{TR+i}, v{WI+i}
        v_fma_f32 v{TR+i}, v{TR+i}, v{WRr+i}, -v{P}
        v_fma_f32 v{TI+i}, v{TI+i}, v{WRr+i}, v{P+1}""")
    for j in range(3):
        a(f"""v_cvt_pk_bf16_f32 v{F+4*j}, v{TR+4*j}, v{TR+4*j+1}
        v_cvt_pk_bf16_f32 v{F+4*j+1}, v{TR+4*j+2}, v{TR+4*j+3}
        v_cvt_pk_bf16_f32 v{F+4*j+2}, v{TI+4*j}, v{TI+4*j+1}
        v_cvt_pk_bf16_f32 v{F+4*j+3}, v{TI+4*j+2}, v{TI+4*j+3}""")
    Y=112
    a("s_nop 1")
    a(mm(Y,F,GG,'0')); a(mm(Y,F+4,GG+4,f"v[{Y}:{Y+15}]")); a(mm(Y,F+8,GG+8,f"v[{Y}:{Y+15}]"))
    a(f"""s_lshl_b32 s6, s{S_W}, 7
    s_add_u32 s6, s6, s48
    s_mul_i32 s6, s6, 2560
    v_and_b32 v21, 31, v0
    v_lshlrev_b32 v22, 6, v21
    v_lshl_add_u32 v22, v23, 5, v22
    s_mov_b32 s8, 0xfffff
    s_mov_b32 s9, 0xfffff""")
    add64(a,42,30,'s6')
    a("s_nop 3")
    for i in range(8): a(f"v_cvt_pk_bf16_f32 v{100+i}, v{Y+2*i}, v{Y+2*i+1}")
    a("""s_mov_b64 exec, s[8:9]
    global_store_dwordx4 v22, v[100:103], s[42:43]
    global_store_dwordx4 v22, v[104:107], s[42:43] offset:16
    s_mov_b64 exec, -1""")
    a(f"s_waitcnt vmcnt({17+NST})\ns_barrier")
    gemm_compute(a); gemm_advance(a,SLOT)
    a(f"s_waitcnt vmcnt({12+NST})\ns_barrier\ns_mov_b32 s{G.sM}, 0")
    gemm_issue(a)
    a("s_mov_b32 s49, 1\nK3_loop:")
    gemm_compute(a)
    a(f"""s_mov_b32 s6, {(-SLOT)&0xffffffff}
    s_cmp_eq_u32 s49, 1
    s_cselect_b32 s6, {2*SLOT}, s6
    s_cmp_eq_u32 s49, 3
    s_cselect_b32 s6, {(-2*SLOT)&0xffffffff}, s6""")
    gemm_advance(a,'s6')
    a(f"""s_add_u32 s49, s49, 1
    s_cmp_eq_u32 s49, 5
    s_cbranch_scc1 K3_done
    s_cmp_eq_u32 s49, 2
    s_cbranch_scc1 K3_w2
    s_cmp_eq_u32 s49, 3
    s_cbranch_scc1 K3_w3
    s_waitcnt vmcnt(0)
    K3_w3:
    s_waitcnt vmcnt(7)
    K3_w2:
    s_waitcnt vmcnt(12)
    s_barrier
    s_branch K3_loop
    K3_done:""")
    stamp(a,2,2,36)
    A=G.ACC
    a(f"""s_lshl_b32 s6, s{S_QB}, 1
    s_and_b32 s7, s{S_W}, 1
    s_add_u32 s6, s6, s7
    s_mul_i32 s6, s6, {32*2560}
    s_lshl_b32 s7, s{S_HG}, 2
    s_lshr_b32 s12, s{S_W}, 1
    s_add_u32 s7, s7, s12
    s_mul_i32 s7, s7, 40
    s_add_u32 s6, s6, s7
    s_add_u32 s6, s6, 1280
    v_mul_u32_u24 v22, 0xa00, v21
    v_mad_u32_u24 v22, v23, 24, v22""")
    add64(a,42,30,'s6')
    for i in range(6): a(f"v_cvt_pk_bf16_f32 v{48+i}, v{A+2*i}, v{A+2*i+1}")
    a(f"""global_store_dwordx4 v22, v[48:51], s[42:43]
    s_mov_b32 exec_hi, 0
    global_store_dwordx2 v22, v[52:53], s[42:43] offset:16
    s_mov_b64 exec, -1""")
    if STAMP:
        a("s_waitcnt vmcnt(0)"); stamp(a,2,3,36)
    a("K3_end:\ns_endpgm")
    return a.text()

hdr=open('concat_heads__spectral_fnet__grouped_kv_mqa__prompt.s.ref').read().split('; Override launch')[0]
s=hdr
for k in ['k1','k2','k3']:
    s+=f"; @launch kernel={k}_kernel grid=(256,1,1) block=(512,1,1) lds=163840\n"
s+='.amdgcn_target "amdgcn-amd-amdhsa--gfx950"\n.text\n'
s+=khead('k1_kernel')+k1()+khead('k2_kernel')+k2()+khead('k3_kernel')+k3()
s+=emit_table('tab_hid',table_hid())+emit_table('tab_f128',table_f128())
s+='.section .rodata,"a"\n'
nv=256 if STAMP else 192
s+=kdesc('k1_kernel',nv)+kdesc('k2_kernel',nv)+kdesc('k3_kernel',nv)
open(OUTF,'w').write(s)
print('wrote',OUTF,len(s))
```

```python
import sys, math, struct
import numpy as np
sys.path.insert(0,'gen')
from asmlib import *

STAMP = '--stamp' in sys.argv
FUSE = '--fuse' in sys.argv
OUTF = [a for a in sys.argv[1:] if not a.startswith('--')]
OUTF = OUTF[0] if OUTF else 'concat_heads__spectral_fnet__grouped_kv_mqa__prompt.s'

WS_QF = 0
WS_KV = 0x300000
WS_O  = 0x340000
WS_U  = 0x600000
WS_ST = 0x900000
WS_SZ = 0x1000000
CSCALE = (20**-0.5)*math.log2(math.e)
OFFS = 80.0
def f2u(x): return struct.unpack('<I',struct.pack('<f',x))[0]
def bf(x):
    u=np.asarray(x,np.float32).view(np.uint32)
    return ((u+0x7fff+((u>>16)&1))>>16).astype(np.uint32)
def pack(vals):
    b=bf(vals); return b[...,0::2]|(b[...,1::2]<<16)

def table_f128():
    t=np.zeros((8,4,64,8),np.float64)
    for w in range(8):
        for s in range(4):
            for l in range(64):
                kidx=16*w+(l&15); u=kidx>>1; q=kidx&1
                for j in range(8):
                    sh=32*s+8*(l>>4)+j
                    if kidx==1: v=math.cos(math.pi*sh)
                    elif q==0: v=math.cos(2*math.pi*u*sh/128)
                    else: v=-math.sin(2*math.pi*u*sh/128)
                    t[w,s,l,j]=v
    return pack(t).reshape(-1)
def sig(n): return 16*((n>>2)&1)+4*(n>>3)+(n&3)
def table_hid():
    out=np.zeros((13,64,4),np.uint32)
    for l in range(64):
        n=l&31; h=l>>5; k1=sig(n)
        for s in range(2):
            d1=np.arange(8)+16*s+8*h
            out[s,l]=pack(np.cos(2*np.pi*d1*k1/32))
            out[2+s,l]=pack(-np.sin(2*np.pi*d1*k1/32))
        for j in range(3):
            d2=8*j+4*h+np.arange(4); ok=(d2<20)
            out[4+j,l]=(np.cos(2*np.pi*d2*k1/640)*ok).astype(np.float32).view(np.uint32)
            out[7+j,l]=(-np.sin(2*np.pi*d2*k1/640)*ok).astype(np.float32).view(np.uint32)
            k2=n if n<20 else 0
            out[10+j,l]=pack(np.concatenate([np.cos(2*np.pi*d2*k2/20)*ok, np.sin(2*np.pi*d2*k2/20)*ok]))
    return out.reshape(-1)
def emit_table(name, arr):
    s=f".p2align 8\n.type {name},@object\n{name}:\n"
    for i in range(0,len(arr),8):
        s+=".long "+",".join(hex(int(x)) for x in arr[i:i+8])+"\n"
    s+=f".size {name}, {4*len(arr)}\n"
    return s

S_W=3
S_QB=4; S_HG=5
def stamp(a, kid, idx, wsreg):
    if not STAMP: return
    a(f"""s_memrealtime s[90:91]
    s_memtime s[94:95]
    s_lshl_b32 s92, s2, 3
    s_add_u32 s92, s92, s{S_W}
    s_lshl_b32 s92, s92, 5
    s_add_u32 s92, s92, {WS_ST+kid*0x10000+idx*4}
    s_waitcnt lgkmcnt(0)
    v_mov_b32 v250, s90
    v_mov_b32 v251, s92
    v_mov_b32 v252, s94
    global_store_dword v251, v250, s[{wsreg}:{wsreg+1}]
    global_store_dword v251, v252, s[{wsreg}:{wsreg+1}] offset:16""")
def gridbar(a, n):
    a(f"""s_waitcnt vmcnt(0)
    s_barrier
    s_cmp_lg_u32 s{S_W}, 0
    s_cbranch_scc1 GB{n}_w
    s_load_dwordx2 s[50:51], s[0:1], 88
    v_mov_b32 v180, {128*n}
    v_mov_b32 v181, 1
    s_mov_b64 exec, 1
    buffer_wbl2 sc1
    s_waitcnt vmcnt(0) lgkmcnt(0)
    global_atomic_add v180, v181, s[50:51] sc1
    s_mov_b32 s52, 0
    GB{n}_p:
    global_load_dword v182, v180, s[50:51] sc1
    s_add_u32 s52, s52, 1
    s_waitcnt vmcnt(0)
    v_readfirstlane_b32 s53, v182
    s_cmp_gt_u32 s52, 100000
    s_cbranch_scc1 GB{n}_x
    s_cmp_lt_u32 s53, 256
    s_cbranch_scc1 GB{n}_p
    GB{n}_x:
    buffer_inv sc1
    s_waitcnt vmcnt(0)
    s_mov_b64 exec, -1
    GB{n}_w:
    s_barrier""")
def prologue(a, lbl_end):
    if STAMP: a("s_memrealtime s[88:89]")
    if FUSE and lbl_end!='K1_end': return
    a(f"""s_cmp_ge_u32 s2, 256
    s_cbranch_scc1 {lbl_end}
    v_lshrrev_b32 v1, 6, v0
    v_and_b32 v0, 63, v0
    s_and_b32 s{S_QB}, s2, 7
    v_readfirstlane_b32 s{S_W}, v1
    s_lshl_b32 s{S_QB}, s{S_QB}, 2
    s_bfe_u32 s6, s2, 0x20003
    s_add_u32 s{S_QB}, s{S_QB}, s6
    s_lshr_b32 s{S_HG}, s2, 5""")
def stamp0(a,kid,wsreg):
    if not STAMP: return
    a(f"""s_lshl_b32 s92, s2, 3
    s_add_u32 s92, s92, s{S_W}
    s_lshl_b32 s92, s92, 5
    s_add_u32 s92, s92, {WS_ST+kid*0x10000}
    v_mov_b32 v250, s88
    v_mov_b32 v251, s92
    global_store_dword v251, v250, s[{wsreg}:{wsreg+1}]""")
NST = 2 if STAMP else 0

SLOT=40960
class G:
    XA=2
    WA=4
    WS=10
    XR=16
    WR=20
    ACC=32
    FR=48
    sX=12
    sM=14
    sE=16
def gemm_setup(a, wbase, kvbase, colperm):
    a(f"""v_lshrrev_b32 v21, 3, v0
    s_lshl_b32 s6, s{S_W}, 3
    v_add_u32 v21, s6, v21
    v_bfe_u32 v22, v21, 1, 3
    v_and_b32 v23, 7, v0
    v_xor_b32 v22, v22, v23
    v_mul_u32_u24 v21, 0x500, v21
    v_lshl_add_u32 v{G.XA}, v22, 4, v21""")
    a(f"s_mul_i32 s7, s{S_HG}, 160\ns_lshl_b32 s6, s{S_W}, 4")
    for i in range(3):
        A=G.WA+2*i; S=G.WS+2*i
        a(f"""v_add_u32 v21, {64*i}, v0
        v_mul_u32_u24 v22, 0x556, v21
        v_lshrrev_b32 v22, 14, v22
        v_mul_u32_u24 v23, 12, v22
        v_sub_u32 v23, v21, v23
        v_add_u32 v22, s6, v22
        v_mul_u32_u24 v24, 0x500, v22
        v_lshl_add_u32 v24, v23, 4, v24
        v_add_u32 v24, s7, v24
        v_mov_b32 v{A+1}, s{wbase+1}
        v_add_co_u32 v{A}, vcc, s{wbase}, v24
        v_mov_b32 v{S}, {128*1280}
        v_mov_b32 v{S+1}, 0
        v_addc_co_u32 v{A+1}, vcc, 0, v{A+1}, vcc""")
        if kvbase is not None:
            a(f"""v_mul_u32_u24 v24, 40, v22
            v_mov_b32 v25, s{kvbase+1}
            v_add_co_u32 v24, vcc, s{kvbase}, v24
            v_mov_b32 v26, {128*40}
            v_cmp_eq_u32 s[8:9], 11, v23
            v_addc_co_u32 v25, vcc, 0, v25, vcc
            v_cmp_ne_u32 s[{G.sE+2*i}:{G.sE+2*i+1}], 10, v23
            v_cndmask_b32 v{A}, v{A}, v24, s[8:9]
            v_cndmask_b32 v{A+1}, v{A+1}, v25, s[8:9]
            v_cndmask_b32 v{S}, v{S}, v26, s[8:9]""")
        else:
            a(f"v_cmp_gt_u32 s[{G.sE+2*i}:{G.sE+2*i+1}], 10, v23")
    a(f"""s_and_b32 s6, s{S_W}, 1
    s_lshl_b32 s6, s6, 5
    v_and_b32 v21, 31, v0
    v_add_u32 v21, s6, v21
    v_bfe_u32 v22, v21, 1, 3
    v_lshrrev_b32 v23, 5, v0
    v_xor_b32 v22, v22, v23
    v_lshlrev_b32 v21, 7, v21""")
    for s in range(4):
        a(f"v_xor_b32 v24, {2*s}, v22\nv_lshl_add_u32 v{G.XR+s}, v24, 4, v21")
    lo=sum((colperm[i]&0xff)<<(8*i) for i in range(4)); hi=sum((colperm[4+i]&0xff)<<(8*i) for i in range(4))
    a(f"""v_bfe_u32 v21, v0, 2, 2
    v_lshl_add_u32 v21, v23, 3, v21
    v_mul_u32_u24 v21, 192, v21
    v_mov_b32 v24, {hex(lo)}
    v_mov_b32 v25, {hex(hi)}
    v_and_b32 v26, 16, v0
    v_cmp_ne_u32 vcc, 0, v26
    v_and_b32 v26, 3, v0
    v_lshlrev_b32 v26, 3, v26
    v_cndmask_b32 v24, v24, v25, vcc
    v_bfe_u32 v24, v24, v26, 8
    s_lshr_b32 s6, s{S_W}, 1
    s_mul_i32 s6, s6, 40
    v_mov_b32 v25, s6
    v_cmp_gt_u32 vcc, 160, v24
    v_add_u32 v21, 16384, v21
    s_nop 0
    v_cndmask_b32 v25, 0, v25, vcc
    v_add3_u32 v{G.WR}, v21, v24, v25""")
def gemm_issue(a, slotexpr=None):
    a(f"""s_lshl_b32 s6, s{S_W}, 10
    s_add_u32 m0, s{G.sM}, s6
    s_mul_i32 s7, s{S_W}, 3072
    global_load_lds_dwordx4 v{G.XA}, s[{G.sX}:{G.sX+1}]
    s_add_u32 m0, m0, {8192-128}
    s_add_u32 s7, s7, s{G.sM}
    global_load_lds_dwordx4 v{G.XA}, s[{G.sX}:{G.sX+1}] offset:128
    s_add_u32 m0, s7, 16384
    s_add_u32 s{G.sX}, s{G.sX}, 256
    s_addc_u32 s{G.sX+1}, s{G.sX+1}, 0""")
    for i in range(3):
        A=G.WA+2*i; S=G.WS+2*i
        a(f"""s_mov_b64 exec, s[{G.sE+2*i}:{G.sE+2*i+1}]
        global_load_lds_dwordx4 v[{A}:{A+1}], off
        s_add_u32 m0, m0, 1024
        v_lshl_add_u64 v[{A}:{A+1}], v[{S}:{S+1}], 0, v[{A}:{A+1}]""")
    a("s_mov_b64 exec, -1")
def gemm_compute(a):
    for half in range(2):
        for s in range(4):
            f=G.FR+32*half+8*s
            a(f"""ds_read_b128 v[{f}:{f+3}], v{G.XR+s} offset:{8192*half}
            ds_read_b64_tr_b16 v[{f+4}:{f+5}], v{G.WR} offset:{(64*half+16*s)*192}
            ds_read_b64_tr_b16 v[{f+6}:{f+7}], v{G.WR} offset:{(64*half+16*s+4)*192}""")
            if half==1:
                f0=G.FR+8*s
                a(f"s_waitcnt lgkmcnt(12)\nv_mfma_f32_32x32x16_bf16 v[{G.ACC}:{G.ACC+15}], v[{f0+4}:{f0+7}], v[{f0}:{f0+3}], v[{G.ACC}:{G.ACC+15}]")
    for s in range(4):
        f=G.FR+32+8*s
        a(f"s_waitcnt lgkmcnt({9-3*s})\nv_mfma_f32_32x32x16_bf16 v[{G.ACC}:{G.ACC+15}], v[{f+4}:{f+7}], v[{f}:{f+3}], v[{G.ACC}:{G.ACC+15}]")
def gemm_advance(a, delta):
    for s in range(4): a(f"v_add_u32 v{G.XR+s}, {delta}, v{G.XR+s}")
    a(f"v_add_u32 v{G.WR}, {delta}, v{G.WR}")
def zero(a, base, n):
    for i in range(n): a(f"v_mov_b32 v{base+i}, 0")
def add64(a, d, s, imm_or_sreg):
    a(f"s_add_u32 s{d}, s{s}, {imm_or_sreg}\ns_addc_u32 s{d+1}, s{s+1}, 0")

def k1():
    a=Asm()
    prologue(a,'K1_end')
    a("""s_load_dwordx2 s[24:25], s[0:1], 0
    s_load_dwordx2 s[28:29], s[0:1], 40
    s_load_dwordx2 s[30:31], s[0:1], 48
    s_load_dwordx4 s[32:35], s[0:1], 56
    s_load_dwordx2 s[36:37], s[0:1], 96
    s_getpc_b64 s[40:41]
    K1_pc:""")
    a(f"""s_mul_i32 s6, s{S_W}, 5120
    v_lshl_add_u32 v21, v0, 7, s6
    s_sub_u32 s42, s40, K1_pc-k1_kernel
    s_subb_u32 s43, s41, 0
    s_mov_b32 exec_hi, 0xff
    global_load_dword v112, v21, s[42:43]
    s_mov_b32 exec_hi, -1""")
    a(f"""s_add_u32 s40, s40, tab_f128-K1_pc
    s_addc_u32 s41, s41, 0
    s_lshl_b32 s6, s{S_W}, 12
    v_lshl_add_u32 v21, v0, 4, s6""")
    for s in range(4): a(f"global_load_dwordx4 v[{116+4*s}:{119+4*s}], v21, s[40:41] offset:{1024*s}")
    a(f"""s_and_b32 s44, s2, 7
    s_lshl_b32 s44, s44, 1
    s_bfe_u32 s6, s2, 0x10003
    s_add_u32 s44, s44, s6
    s_lshr_b32 s45, s2, 4
    s_mul_i32 s46, s44, 1280
    s_mul_i32 s6, s45, 80
    s_add_u32 s46, s46, s6
    s_lshl_b32 s6, s{S_W}, 6
    v_add_u32 v21, s6, v0
    v_mul_u32_u24 v22, 0xccd, v21
    v_lshrrev_b32 v22, 14, v22
    v_mul_u32_u24 v23, 5, v22
    v_sub_u32 v23, v21, v23
    v_mul_u32_u24 v22, {16*1280}, v22
    v_lshl_add_u32 v27, v23, 4, v22
    v_add_u32 v21, 512, v21
    v_mul_u32_u24 v22, 0xccd, v21
    v_lshrrev_b32 v22, 14, v22
    v_mul_u32_u24 v23, 5, v22
    v_sub_u32 v23, v21, v23
    v_mul_u32_u24 v22, {16*1280}, v22
    v_lshl_add_u32 v28, v23, 4, v22
    s_lshl_b32 s6, s{S_W}, 10
    s_add_u32 m0, s6, {3*SLOT}
    s_waitcnt lgkmcnt(0)""")
    stamp0(a,0,36)
    add64(a,24,24,'s46')
    a(f"""global_load_lds_dwordx4 v27, s[24:25]
    s_cmp_ge_u32 s{S_W}, 2
    s_cbranch_scc1 K1_nof2
    s_add_u32 m0, m0, 8192
    s_nop 0
    global_load_lds_dwordx4 v28, s[24:25]
    K1_nof2:""")
    a(f"s_mul_i32 s6, s{S_QB}, {64*1280}")
    add64(a,G.sX,28,'s6')
    a(f"""s_cmp_ge_u32 s{S_HG}, 3
    s_cselect_b32 s38, s34, s32
    s_cselect_b32 s39, s35, s33
    s_cselect_b32 s6, 3, 0
    s_sub_u32 s47, s{S_HG}, s6
    s_min_u32 s47, s47, 2
    s_lshl_b32 s6, s47, 4
    s_min_u32 s6, s6, 24""")
    add64(a,38,38,'s6')
    gemm_setup(a,30,38,[0,16,8,24,32,32,176,184])
    a(f"s_mov_b32 s{G.sM}, 0\nK1_pre:")
    gemm_issue(a)
    a(f"""s_add_u32 s{G.sM}, s{G.sM}, {SLOT}
    s_cmp_lt_u32 s{G.sM}, {3*SLOT}
    s_cbranch_scc1 K1_pre""")
    zero(a,G.ACC,16)
    a(f"""v_lshrrev_b32 v21, 4, v0
    v_bfe_u32 v22, v0, 2, 2
    v_lshl_add_u32 v22, v21, 3, v22
    v_mul_u32_u24 v22, 80, v22
    v_and_b32 v23, 3, v0
    v_add_u32 v22, {3*SLOT}, v22
    v_lshl_add_u32 v24, v23, 4, v22
    v_and_b32 v23, 1, v0
    v_lshl_add_u32 v25, v23, 3, v22
    s_waitcnt vmcnt(15)
    s_barrier""")
    stamp(a,0,1,36)
    D=[100,104,108]
    for s in range(4):
        f=G.FR+12*s
        for T in range(3):
            for u in range(2):
                ad,co=(24,8*T) if T<2 else (25,64)
                a(f"ds_read_b64_tr_b16 v[{f+4*T+2*u}:{f+4*T+2*u+1}], v{ad} offset:{(32*s+4*u)*80+co}")
        if s>=1:
            sp=s-1; fp=G.FR+12*sp
            a("s_waitcnt lgkmcnt(6)")
            for T in range(3):
                c='0' if sp==0 else f"v[{D[T]}:{D[T]+3}]"
                a(f"v_mfma_f32_16x16x32_bf16 v[{D[T]}:{D[T]+3}], v[{fp+4*T}:{fp+4*T+3}], v[{116+4*sp}:{119+4*sp}], {c}")
    a("s_waitcnt lgkmcnt(0)\ns_barrier")
    fp=G.FR+36
    for T in range(3): a(f"v_mfma_f32_16x16x32_bf16 v[{D[T]}:{D[T]+3}], v[{fp+4*T}:{fp+4*T+3}], v[128:131], v[{D[T]}:{D[T]+3}]")
    gemm_issue(a)
    a(f"""s_lshl_b32 s6, s{S_W}, 4
    v_and_b32 v22, 15, v0
    v_add_u32 v22, s6, v22
    v_mul_u32_u24 v22, {16*1280}, v22
    v_lshl_add_u32 v23, v21, 3, v22
    v_lshl_add_u32 v22, v21, 4, v22
    s_add_u32 s6, s46, {WS_U}""")
    add64(a,42,36,'s6')
    a(f"""v_cvt_pk_bf16_f32 v100, v100, v101
    v_cvt_pk_bf16_f32 v101, v102, v103
    v_cvt_pk_bf16_f32 v102, v104, v105
    v_cvt_pk_bf16_f32 v103, v106, v107
    v_cvt_pk_bf16_f32 v104, v108, v109
    v_cvt_pk_bf16_f32 v105, v110, v111
    global_store_dwordx4 v22, v[100:103], s[42:43]
    s_mov_b32 exec_hi, 0
    global_store_dwordx2 v23, v[104:105], s[42:43] offset:64
    s_mov_b64 exec, -1""")
    a(f"s_waitcnt vmcnt({17+NST})\ns_barrier")
    gemm_compute(a); gemm_advance(a,SLOT)
    a(f"s_waitcnt vmcnt({12+NST})\ns_barrier\ns_mov_b32 s{G.sM}, 0")
    gemm_issue(a)
    a("s_mov_b32 s48, 1\nK1_loop:")
    gemm_compute(a)
    a(f"""s_mov_b32 s6, {SLOT}
    s_cmp_eq_u32 s48, 3
    s_cselect_b32 s6, {(-3*SLOT)&0xffffffff}, s6""")
    gemm_advance(a,'s6')
    a(f"""s_add_u32 s48, s48, 1
    s_cmp_eq_u32 s48, 5
    s_cbranch_scc1 K1_done
    s_cmp_eq_u32 s48, 2
    s_cbranch_scc1 K1_w2
    s_cmp_eq_u32 s48, 3
    s_cbranch_scc1 K1_w3
    s_waitcnt vmcnt(0)
    K1_w3:
    s_waitcnt vmcnt(7)
    K1_w2:
    s_waitcnt vmcnt({12+NST})
    s_barrier
    s_branch K1_loop
    K1_done:""")
    stamp(a,0,2,36)
    A=G.ACC
    a(f"""s_lshl_b32 s6, s2, 3
    s_add_u32 s6, s6, s{S_W}
    s_mul_i32 s6, s6, 1536
    s_mov_b32 s7, {hex(f2u(CSCALE))}
    v_lshlrev_b32 v21, 4, v0
    v_lshlrev_b32 v22, 3, v0""")
    add64(a,42,36,'s6')
    a("s_nop 7")
    for i in range(12): a(f"v_mul_f32 v{A+i}, s7, v{A+i}")
    for i in range(8): a(f"v_cvt_pk_bf16_f32 v{48+i}, v{A+2*i}, v{A+2*i+1}")
    a(f"""global_store_dwordx4 v21, v[48:51], s[42:43]
    global_store_dwordx2 v22, v[52:53], s[42:43] offset:1024
    s_cmp_ge_u32 s{S_W}, 2
    s_cbranch_scc1 K1_fin
    s_cmp_ge_u32 s{S_HG}, 6
    s_cbranch_scc1 K1_fin""")
    a(f"""s_lshr_b32 s6, s{S_QB}, 1
    s_mul_i32 s6, s6, 10240
    s_add_u32 s6, s6, {WS_KV}""")
    add64(a,42,36,'s6')
    a(f"""s_and_b32 s8, s{S_QB}, 1
    v_and_b32 v21, 31, v0
    v_lshrrev_b32 v22, 5, v0
    s_cmp_eq_u32 s47, 2
    s_cbranch_scc0 K1_full
    s_mov_b32 exec_lo, 0
    K1_full:
    s_cmp_ge_u32 s{S_HG}, 3
    s_cbranch_scc1 K1_v
    s_lshl_b32 s6, s8, 1
    s_add_u32 s6, s6, s{S_W}
    s_lshl_b32 s6, s6, 10
    s_lshl_b32 s7, s47, 9
    s_add_u32 s6, s6, s7
    s_lshl_b32 s7, s{S_W}, 9
    s_lshl_b32 s9, s8, 3
    s_add_u32 s7, s7, s9
    s_add_u32 s7, s7, {4096-8}
    s_cmp_eq_u32 s47, 2
    s_cselect_b32 s6, s7, s6
    v_lshlrev_b32 v21, 4, v21
    v_lshl_add_u32 v21, v22, 3, v21
    v_add_u32 v21, s6, v21
    global_store_dwordx2 v21, v[54:55], s[42:43]
    s_branch K1_fin
    K1_v:""")
    a(f"""s_lshl_b32 s6, s8, 1
    s_add_u32 s6, s6, s{S_W}
    s_mul_i32 s6, s6, 1280
    s_add_u32 s6, s6, 5120
    v_lshrrev_b32 v23, 3, v21
    v_mul_u32_u24 v23, 320, v23
    v_and_b32 v21, 7, v21
    v_lshl_add_u32 v23, v21, 1, v23
    s_lshl_b32 s7, s47, 1
    v_add_u32 v22, s7, v22
    v_mul_u32_u24 v22, 5, v22
    v_mov_b32 v24, {hex(0|(8<<5)|(16<<10)|(4<<15)|(12<<20)|(12<<25))}
    v_bfe_u32 v22, v24, v22, 5
    v_lshl_add_u32 v23, v22, 4, v23
    v_add_u32 v23, s6, v23
    global_store_short v23, v54, s[42:43]
    global_store_short_d16_hi v23, v54, s[42:43] offset:16
    global_store_short v23, v55, s[42:43] offset:32
    global_store_short_d16_hi v23, v55, s[42:43] offset:48
    K1_fin:
    s_mov_b64 exec, -1""")
    if STAMP:
        a("s_waitcnt vmcnt(0)"); stamp(a,0,3,36)
    if FUSE: gridbar(a,0); a("s_branch K2_start")
    a("K1_end:\ns_endpgm")
    return a.text()

def k2():
    a=Asm()
    prologue(a,'K2_end')
    Q16=4; Q4=8; IDX=2; AK=3; AV=1
    CM=12; O=28; S=[44,76]; KF=[108,116]; K4=[124,128]; VF=[132,148]; T=164
    a(f"""s_load_dwordx2 s[36:37], s[0:1], 96
    v_lshlrev_b32 v{AK}, 4, v0
    v_lshlrev_b32 v10, 3, v0
    v_lshrrev_b32 v11, 5, v0
    v_and_b32 v{T}, 31, v0
    v_mad_u32_u24 v{AV}, v11, 20, v{T}
    v_lshlrev_b32 v{AV}, 4, v{AV}
    v_mov_b32 v{IDX}, 0xdddddddd
    s_mov_b32 s30, 0xfffff
    s_mov_b32 s31, 0xfffff
    s_lshl_b32 s6, s2, 3
    s_add_u32 s6, s6, s{S_W}
    s_mul_i32 s6, s6, 1536
    s_lshl_b32 m0, s{S_W}, 10
    s_waitcnt lgkmcnt(0)""")
    stamp0(a,1,36)
    add64(a,42,36,'s6')
    a(f"""s_add_u32 s8, s36, {WS_KV}
    s_addc_u32 s9, s37, 0
    s_mov_b32 s10, 163840
    s_mov_b32 s11, 0x20000
    global_load_dwordx4 v[{Q16}:{Q16+3}], v{AK}, s[42:43]
    global_load_dwordx2 v[{Q4}:{Q4+1}], v10, s[42:43] offset:1024""")
    dma=f"buffer_load_dwordx4 v{T+1}, s[8:11], m0 offen lds"
    bump="s_add_u32 m0, m0, 8192"
    a(f"v_mov_b32 v{T+1}, v{AK}")
    NPRE=4
    for i in range(NPRE): a(dma+"\n"+bump+"\ns_nop 0")
    for i in range(32): a(f"v_mov_b32 v{VF[0]+i}, 0x3f803f80")
    zero(a,O,16)
    a(f"s_setprio 3\ns_waitcnt vmcnt({NPRE-2})\ns_barrier")
    stamp(a,1,1,36)
    def koff(g,t): return (g>>1)*10240+(2*(g&1)+t)*1024
    def k4off(g): return (g>>1)*10240+4096
    def voff(g,u): return (g>>1)*10240+5120+(4*(g&1)+u)*640
    on="s_mov_b64 exec, s[30:31]"; off="s_mov_b64 exec, -1"
    def M16(d,k,c): return f"v_mfma_f32_32x32x16_bf16 v[{d}:{d+15}], v[{k}:{k+3}], v[{Q16}:{Q16+3}], {c}"
    def M4(d,k): return f"v_mfma_f32_32x32x4_2b_bf16 v[{d}:{d+31}], v[{k}:{k+1}], v[{Q4}:{Q4+1}], v[{d}:{d+31}]"
    def SM(v,x): return f"v_smfmac_f32_32x32x32_bf16 v[{O}:{O+15}], v[{v}:{v+3}], v[{x}:{x+7}], v{IDX}"
    CMr=f"v[{CM}:{CM+15}]"
    def rowmax_to_cm(X, offs):
        pass
    a(f"""ds_read_b128 v[{KF[0]}:{KF[0]+3}], v{AK} offset:{koff(0,0)}
    ds_read_b128 v[{KF[0]+4}:{KF[0]+7}], v{AK} offset:{koff(0,1)}
    ds_read_b128 v[{K4[0]}:{K4[0]+3}], v{AK} offset:{k4off(0)}
    ds_read_b128 v[{KF[1]}:{KF[1]+3}], v{AK} offset:{koff(1,0)}
    ds_read_b128 v[{KF[1]+4}:{KF[1]+7}], v{AK} offset:{koff(1,1)}
    {on}""")
    for u in range(4): a(f"ds_read_b128 v[{VF[0]+4*u}:{VF[0]+4*u+3}], v{AV} offset:{voff(0,u)}")
    X=S[0]
    a(f"""{off}
    s_waitcnt lgkmcnt(6)
    {M16(X,KF[0],'0')}
    {M16(X+16,KF[0]+4,'0')}
    s_nop 9
    {M4(X,K4[0])}
    s_nop 15
    s_nop 3""")
    a(f"v_max3_f32 v{T+2}, v{X}, v{X+1}, v{X+2}\nv_max3_f32 v{T+3}, v{X+3}, v{X+4}, v{X+5}")
    for i in range(6,32,4):
        a(f"v_max3_f32 v{T+2}, v{T+2}, v{X+i}, v{X+i+1}")
        if i+2<32: a(f"v_max3_f32 v{T+3}, v{T+3}, v{X+i+2}, v{X+i+3}")
    a(f"""v_max_f32 v{T+2}, v{T+2}, v{T+3}
    v_mov_b32 v{T+3}, v{T+2}
    s_nop 1
    v_permlane32_swap_b32 v{T+2}, v{T+3}
    v_max_f32 v{T+2}, v{T+2}, v{T+3}
    v_sub_f32 v{CM}, {hex(f2u(-OFFS))}, v{T+2}""")
    for i in range(1,16): a(f"v_mov_b32 v{CM+i}, v{CM}")
    a(f"s_waitcnt lgkmcnt(0)\ns_nop 0\n{M16(S[1],KF[1],CMr)}")
    for i in range(32): a(f"v_add_f32 v{X+i}, v{CM}, v{X+i}")
    pos=dict(smp=2,mB=5,s0=10,mC=13,s1=21,s2=26,mA=29)
    order=sorted(pos,key=lambda k:pos[k])
    ndma=NPRE
    kbase=0; vbase=0
    for g in range(32):
        X=S[g%2]; Y=S[(g+1)%2]; g1=g+1; g2=g+2
        m={}
        m['mA']=M16(X,KF[g2%2],CMr) if g2<32 else None
        m['mB']=M16(Y+16,KF[g1%2]+4,CMr) if g1<32 else None
        m['mC']=M4(Y,K4[(g1//2)%2]+2*(g1%2)) if g1<32 else None
        for i in range(3): m[f's{i}']=SM(VF[g%2]+4*i,X+8*i)
        m['smp']=SM(VF[(g-1)%2]+12,Y+24) if g>0 else "s_nop 0"
        aft={k:[] for k in pos}
        pre=[]
        if g2<32 and k4off(g2)-kbase>=61440:
            pre.append(f"v_add_u32 v{AK}, 61440, v{AK}"); kbase+=61440
        if g1<32 and voff(g1,3)-vbase>=61440:
            pre.append(f"v_add_u32 v{AV}, 61440, v{AV}"); vbase+=61440
        if g==1: aft['smp']+= [f"s_waitcnt vmcnt({ndma-5})","s_barrier"]
        if g==6: aft['smp']+= ["s_waitcnt vmcnt(0)","s_barrier"]
        if g2<32:
            aft['smp'].append(f"ds_read_b128 v[{KF[g2%2]}:{KF[g2%2]+3}], v{AK} offset:{koff(g2,0)-kbase}")
            aft['mB']+=["s_waitcnt lgkmcnt(1)", f"ds_read_b128 v[{KF[g2%2]+4}:{KF[g2%2]+7}], v{AK} offset:{koff(g2,1)-kbase}"]
            if g2%2==0: aft['mC'].append(f"ds_read_b128 v[{K4[(g2//2)%2]}:{K4[(g2//2)%2]+3}], v{AK} offset:{k4off(g2)-kbase}")
        else:
            aft['smp'].append("s_waitcnt lgkmcnt(0)")
        if g1<32:
            b=VF[g1%2]
            vv=[f"ds_read_b128 v[{b+4*i}:{b+4*i+3}], v{AV} offset:{voff(g1,i)-vbase}" for i in range(4)]
            aft['s0']+=[on,vv[0],vv[1],off]; aft['s1']+=[on,vv[2],vv[3],off]
            aft['s2'].append("s_waitcnt lgkmcnt(2)")
        for k in ['mA','s2','mC','mB']:
            if ndma<20:
                aft[k]+=[dma,bump]; ndma+=1
        if g in (18,27,30): aft['s2'].append(f"s_setprio {dict([(18,2),(27,1),(30,0)])[g]}")
        ins={i:[] for i in range(33)}
        ins[0]+=pre
        for k in order:
            if m[k]: ins[pos[k]].append(m[k])
            ins[pos[k]]+=aft[k]
        for i in range(33):
            for x in ins[i]: a(x)
            if i<32: a(f"v_exp_f32 v{X+i}, v{X+i}")
    a("s_nop 1\n"+SM(VF[1]+12,S[1]+24))
    a("s_mov_b32 s40, 0\nK2_check:\ns_nop 11")
    stamp(a,1,2,36)
    a(f"""v_max3_f32 v{T+2}, |v{O}|, |v{O+1}|, |v{O+2}|
    v_max3_f32 v{T+3}, |v{O+3}|, |v{O+4}|, |v{O+5}|
    v_max3_f32 v{T+2}, v{T+2}, |v{O+6}|, |v{O+7}|
    v_max3_f32 v{T+4}, |v{O+8}|, |v{O+9}|, |v{O+10}|
    v_max_f32 v{T+2}, v{T+2}, v{T+3}
    v_max3_f32 v{T+4}, v{T+4}, |v{O+11}|, v{T+2}
    v_rcp_f32 v{T+5}, v{O+12}
    v_cmp_gt_f32 vcc, {hex(f2u(2.0**110))}, v{O+12}
    s_mov_b32 s6, 0x7f800000
    s_mov_b32 s7, {hex(f2u(2.0**-100))}
    v_cmp_gt_f32 s[12:13], s6, v{T+4}
    v_cmp_lt_f32 s[14:15], s7, v{T+2}
    s_and_b64 vcc, vcc, s[12:13]
    s_and_b64 vcc, vcc, s[14:15]
    s_cmp_eq_u64 vcc, -1
    s_cbranch_scc0 K2_slow
    K2_store:""")
    for i in range(12): a(f"v_mul_f32 v{O+i}, v{T+5}, v{O+i}")
    for i in range(6): a(f"v_cvt_pk_bf16_f32 v{S[0]+i}, v{O+2*i}, v{O+2*i+1}")
    a(f"""s_lshl_b32 s6, s{S_QB}, 1
    s_and_b32 s7, s{S_W}, 1
    s_add_u32 s6, s6, s7
    s_mul_i32 s6, s6, {32*1280}
    s_lshl_b32 s7, s{S_HG}, 2
    s_lshr_b32 s12, s{S_W}, 1
    s_add_u32 s7, s7, s12
    s_mul_i32 s7, s7, 40
    s_add_u32 s6, s6, s7
    s_add_u32 s6, s6, {WS_O}
    v_mul_u32_u24 v{T+2}, 0x500, v{T}
    v_mad_u32_u24 v{T+2}, v11, 24, v{T+2}""")
    add64(a,42,36,'s6')
    a(f"""global_store_dwordx4 v{T+2}, v[{S[0]}:{S[0]+3}], s[42:43]
    s_mov_b32 exec_hi, 0
    global_store_dwordx2 v{T+2}, v[{S[0]+4}:{S[0]+5}], s[42:43] offset:16
    s_mov_b64 exec, -1""")
    if STAMP:
        a("s_waitcnt vmcnt(0)"); stamp(a,1,3,36)
    if FUSE: gridbar(a,1); a("s_branch K3_start")
    a("K2_end:\ns_endpgm")
    X=S[0]
    a(f"""K2_slow:
    s_cmp_lg_u32 s40, 0
    s_cbranch_scc1 K2_store
    s_mov_b32 s40, 1
    v_mov_b32 v{T+2}, 0xff800000""")
    zero(a,CM,16); zero(a,O,16)
    a("K2_pass:")
    a(f"""v_lshlrev_b32 v{AK}, 4, v0
    v_mad_u32_u24 v{AV}, v11, 20, v{T}
    v_lshlrev_b32 v{AV}, 4, v{AV}
    s_mov_b32 s41, 0
    K2_sl:
    s_and_b32 s6, s41, 1
    s_mul_i32 s7, s6, 2048
    s_mul_i32 s12, s6, 8
    s_mul_i32 s13, s6, 2560
    v_add_u32 v{T+3}, s7, v{AK}
    v_add_u32 v{T+4}, s12, v{AK}
    v_add_u32 v{T+5}, s13, v{AV}
    ds_read_b128 v[{KF[0]}:{KF[0]+3}], v{T+3}
    ds_read_b128 v[{KF[0]+4}:{KF[0]+7}], v{T+3} offset:1024
    ds_read_b64 v[{K4[0]}:{K4[0]+1}], v{T+4} offset:4096
    {on}""")
    for u in range(4): a(f"ds_read_b128 v[{VF[0]+4*u}:{VF[0]+4*u+3}], v{T+5} offset:{5120+640*u}")
    a(f"""{off}
    s_mul_i32 s7, s6, 10240
    v_add_u32 v{AK}, s7, v{AK}
    v_add_u32 v{AV}, s7, v{AV}
    s_waitcnt lgkmcnt(0)
    {M16(X,KF[0],CMr)}
    {M16(X+16,KF[0]+4,CMr)}
    s_nop 9
    {M4(X,K4[0])}
    s_nop 15
    s_nop 3
    s_cmp_eq_u32 s40, 1
    s_cbranch_scc0 K2_p2""")
    for i in range(0,32,2): a(f"v_max3_f32 v{T+2}, v{T+2}, v{X+i}, v{X+i+1}")
    a("s_branch K2_nx\nK2_p2:")
    for i in range(32): a(f"v_exp_f32 v{X+i}, v{X+i}")
    a("s_nop 1")
    for u in range(4): a(SM(VF[0]+4*u,X+8*u))
    a(f"""K2_nx:
    s_add_u32 s41, s41, 1
    s_cmp_lt_u32 s41, 32
    s_cbranch_scc1 K2_sl
    s_cmp_eq_u32 s40, 1
    s_cbranch_scc0 K2_check
    s_mov_b32 s40, 2
    v_mov_b32 v{T+3}, v{T+2}
    s_nop 1
    v_permlane32_swap_b32 v{T+2}, v{T+3}
    v_max_f32 v{T+2}, v{T+2}, v{T+3}""")
    for i in range(16): a(f"v_sub_f32 v{CM+i}, 0, v{T+2}")
    a("s_branch K2_pass")
    return a.text()

def k3():
    a=Asm()
    prologue(a,'K3_end')
    UL=3*SLOT; VL=2*SLOT; TL=2*SLOT+21504
    a("""s_load_dwordx4 s[28:31], s[0:1], 72
    s_load_dwordx2 s[36:37], s[0:1], 96
    s_getpc_b64 s[40:41]
    K3_pc:
    s_add_u32 s40, s40, tab_hid-K3_pc
    s_addc_u32 s41, s41, 0""")
    a(f"""s_lshl_b32 s6, s{S_W}, 10
    v_lshl_add_u32 v21, v0, 4, s6
    s_add_u32 m0, s6, {TL}
    v_add_u32 v22, 8192, v21
    global_load_lds_dwordx4 v21, s[40:41]
    s_cmp_ge_u32 s{S_W}, 5
    s_cbranch_scc1 K3_not2
    s_add_u32 m0, m0, 8192
    s_nop 0
    global_load_lds_dwordx4 v22, s[40:41]
    K3_not2:""")
    a(f"""s_and_b32 s44, s2, 7
    s_lshl_b32 s44, s44, 3
    s_bfe_u32 s6, s2, 0x30003
    s_add_u32 s44, s44, s6
    s_lshr_b32 s45, s2, 6
    s_mul_i32 s46, s44, 40960
    s_add_u32 s46, s46, {WS_U}
    s_mul_i32 s7, s{S_W}, 5120
    s_bfe_u32 s8, s{S_W}, 0x10001
    s_lshl_b32 s8, s8, 2""")
    for i in range(5):
        a(f"""v_add_u32 v21, {64*i}, v0
        v_mul_u32_u24 v22, 205, v21
        v_lshrrev_b32 v22, 14, v22
        v_or_b32 v22, s8, v22
        v_lshlrev_b32 v22, 5, v22
        v_lshl_add_u32 v21, v21, 4, s7
        v_xor_b32 v{100+i}, v21, v22""")
    a(f"s_add_u32 m0, s7, {UL}\ns_waitcnt lgkmcnt(0)")
    stamp0(a,2,36)
    add64(a,42,36,'s46')
    for i in range(5): a(f"global_load_lds_dwordx4 v{100+i}, s[42:43]\ns_add_u32 m0, m0, 1024\ns_nop 0")
    a(f"s_mul_i32 s6, s{S_QB}, {64*1280}\ns_add_u32 s6, s6, {WS_O}")
    add64(a,G.sX,36,'s6')
    gemm_setup(a,28,None,[0,24,8,32,16,16,16,16])
    a(f"s_mov_b32 s{G.sM}, 0\nK3_pre:")
    gemm_issue(a)
    a(f"""s_add_u32 s{G.sM}, s{G.sM}, {SLOT}
    s_cmp_lt_u32 s{G.sM}, {2*SLOT}
    s_cbranch_scc1 K3_pre""")
    zero(a,G.ACC,16)
    a(f"""s_lshr_b32 s47, s45, 1
    s_sub_u32 s6, 128, s44
    s_cmp_eq_u32 s44, 0
    s_cselect_b32 s6, 64, s6
    s_cselect_b32 s9, 0, 512
    s_cmp_eq_u32 s47, 0
    s_cselect_b32 s48, s44, s6
    s_and_b32 s6, s45, 1
    s_lshl_b32 s6, s6, 10
    s_add_u32 s48, s48, s6
    s_mul_i32 s6, s9, 3
    s_cmp_eq_u32 s47, 0
    s_cselect_b32 s9, s6, s9
    v_bfe_u32 v21, v0, 1, 3
    v_lshl_add_u32 v21, v21, 7, s48
    v_and_b32 v22, 1, v0
    v_lshlrev_b32 v22, 9, v22
    v_lshrrev_b32 v23, 5, v0
    v_mad_u32_u24 v22, v23, s9, v22
    v_bfe_u32 v24, v0, 4, 1
    v_lshlrev_b32 v24, 3, v24
    v_mad_u32_u24 v22, v24, v21, v22
    s_mov_b32 s6, {hex(f2u(1/2048))}""")
    for i in range(8):
        a(f"""v_and_b32 v24, 0x7ff, v22
        v_cvt_f32_u32 v24, v24
        v_mul_f32 v24, s6, v24
        v_cos_f32 v{112+i}, v24
        v_add_u32 v22, v22, v21""")
    for i in range(4): a(f"v_cvt_pk_bf16_f32 v{112+i}, v{112+2*i}, v{113+2*i}")
    a(f"""s_cmp_eq_u32 s44, 0
    s_cbranch_scc0 K3_reg
    v_cmp_eq_u32 vcc, s47, v23
    s_nop 1""")
    for i in range(4): a(f"v_cndmask_b32 v{112+i}, 0, v{112+i}, vcc")
    a("K3_reg:")
    a(f"""v_lshrrev_b32 v21, 4, v0
    v_bfe_u32 v22, v0, 2, 2
    v_lshl_add_u32 v24, v21, 3, v22
    v_mul_u32_u24 v24, 0x500, v24
    v_bfe_u32 v25, v0, 2, 3
    v_xor_b32 v25, s{S_W}, v25
    v_lshl_add_u32 v24, v25, 5, v24
    v_and_b32 v25, 3, v0
    v_lshl_add_u32 v24, v25, 3, v24
    v_add_u32 v24, {UL}, v24
    v_and_b32 v26, 15, v0
    v_mul_u32_u24 v26, 1288, v26
    v_lshl_add_u32 v26, v21, 3, v26
    s_lshl_b32 s6, s{S_W}, 5
    s_add_u32 s6, s6, {VL}
    v_add_u32 v26, s6, v26
    s_waitcnt vmcnt(10)
    s_barrier""")
    stamp(a,2,1,36)
    F=G.FR
    for i in range(5):
        for u in range(2): a(f"ds_read_b64_tr_b16 v[{F+4*i+2*u}:{F+4*i+2*u+1}], v24 offset:{256*i+5120*u}")
    for i in range(5):
        a(f"s_waitcnt lgkmcnt({8-2*i})\nv_mfma_f32_16x16x32_bf16 v[{F+20+4*i}:{F+23+4*i}], v[{F+4*i}:{F+4*i+3}], v[112:115], 0")
    TB=128
    a(f"v_lshlrev_b32 v27, 4, v0\nv_add_u32 v27, {TL}, v27")
    for qd in range(13): a(f"ds_read_b128 v[{TB+4*qd}:{TB+4*qd+3}], v27 offset:{1024*qd}")
    a("s_waitcnt lgkmcnt(10)")
    for i in range(5):
        d=F+20+4*i
        a(f"v_cvt_pk_bf16_f32 v{d}, v{d}, v{d+1}\nv_cvt_pk_bf16_f32 v{d+1}, v{d+2}, v{d+3}\nds_write_b64 v26, v[{d}:{d+1}] offset:{256*i}")
    a(f"""v_lshrrev_b32 v23, 5, v0
    v_lshl_add_u32 v22, v23, 3, v22
    v_mul_u32_u24 v22, 40, v22
    v_lshlrev_b32 v25, 3, v25
    v_and_b32 v28, 16, v0
    v_cmp_ne_u32 vcc, 0, v28
    s_mul_i32 s6, s{S_W}, {2*1288}
    s_add_u32 s6, s6, {VL}
    v_cndmask_b32 v25, v25, 32, vcc
    v_add3_u32 v22, v22, v25, s6
    s_waitcnt lgkmcnt(0)
    s_barrier""")
    for p in range(2):
        for s in range(2):
            for u in range(2):
                a(f"ds_read_b64_tr_b16 v[{F+8*p+4*s+2*u}:{F+8*p+4*s+2*u+1}], v22 offset:{1288*p+640*s+160*u}")
    a(f"s_mov_b32 s{G.sM}, {3*SLOT}")
    gemm_issue(a)
    for i in range(8): a(f"v_xor_b32 v{180+i}, 0x80008000, v{TB+8+i}")
    a("s_waitcnt lgkmcnt(0)\ns_barrier")
    TR=F+16; TI=F+32
    def mm(d,A,B,c): return f"v_mfma_f32_32x32x16_bf16 v[{d}:{d+15}], v[{A}:{A+3}], v[{B}:{B+3}], {c}"
    TRr=f"v[{TR}:{TR+15}]"; TIr=f"v[{TI}:{TI+15}]"
    a(mm(TR,F,TB,'0')); a(mm(TI,F,TB+8,'0'))
    a(mm(TR,F+4,TB+4,TRr)); a(mm(TI,F+4,TB+12,TIr))
    a(mm(TR,F+8,180,TRr)); a(mm(TI,F+8,TB,TIr))
    a(mm(TR,F+12,184,TRr)); a(mm(TI,F+12,TB+4,TIr))
    a(f"s_mov_b32 s{G.sM}, {2*SLOT}")
    gemm_issue(a)
    WRr=TB+16; WI=TB+28; GG=TB+40; P=100
    for i in range(12):
        a(f"""v_mul_f32 v{P}, v{TI+i}, v{WI+i}
        v_mul_f32 v{P+1}, v{TR+i}, v{WI+i}
        v_fma_f32 v{TR+i}, v{TR+i}, v{WRr+i}, -v{P}
        v_fma_f32 v{TI+i}, v{TI+i}, v{WRr+i}, v{P+1}""")
    for j in range(3):
        a(f"""v_cvt_pk_bf16_f32 v{F+4*j}, v{TR+4*j}, v{TR+4*j+1}
        v_cvt_pk_bf16_f32 v{F+4*j+1}, v{TR+4*j+2}, v{TR+4*j+3}
        v_cvt_pk_bf16_f32 v{F+4*j+2}, v{TI+4*j}, v{TI+4*j+1}
        v_cvt_pk_bf16_f32 v{F+4*j+3}, v{TI+4*j+2}, v{TI+4*j+3}""")
    Y=112
    a("s_nop 1")
    a(mm(Y,F,GG,'0')); a(mm(Y,F+4,GG+4,f"v[{Y}:{Y+15}]")); a(mm(Y,F+8,GG+8,f"v[{Y}:{Y+15}]"))
    a(f"""s_lshl_b32 s6, s{S_W}, 7
    s_add_u32 s6, s6, s48
    s_mul_i32 s6, s6, 2560
    v_and_b32 v21, 31, v0
    v_lshlrev_b32 v22, 6, v21
    v_lshl_add_u32 v22, v23, 5, v22
    s_mov_b32 s8, 0xfffff
    s_mov_b32 s9, 0xfffff""")
    add64(a,42,30,'s6')
    a("s_nop 3")
    for i in range(8): a(f"v_cvt_pk_bf16_f32 v{100+i}, v{Y+2*i}, v{Y+2*i+1}")
    a("""s_mov_b64 exec, s[8:9]
    global_store_dwordx4 v22, v[100:103], s[42:43]
    global_store_dwordx4 v22, v[104:107], s[42:43] offset:16
    s_mov_b64 exec, -1""")
    a(f"s_waitcnt vmcnt({17+NST})\ns_barrier")
    gemm_compute(a); gemm_advance(a,SLOT)
    a(f"s_waitcnt vmcnt({12+NST})\ns_barrier\ns_mov_b32 s{G.sM}, 0")
    gemm_issue(a)
    a("s_mov_b32 s49, 1\nK3_loop:")
    gemm_compute(a)
    a(f"""s_mov_b32 s6, {(-SLOT)&0xffffffff}
    s_cmp_eq_u32 s49, 1
    s_cselect_b32 s6, {2*SLOT}, s6
    s_cmp_eq_u32 s49, 3
    s_cselect_b32 s6, {(-2*SLOT)&0xffffffff}, s6""")
    gemm_advance(a,'s6')
    a(f"""s_add_u32 s49, s49, 1
    s_cmp_eq_u32 s49, 5
    s_cbranch_scc1 K3_done
    s_cmp_eq_u32 s49, 2
    s_cbranch_scc1 K3_w2
    s_cmp_eq_u32 s49, 3
    s_cbranch_scc1 K3_w3
    s_waitcnt vmcnt(0)
    K3_w3:
    s_waitcnt vmcnt(7)
    K3_w2:
    s_waitcnt vmcnt(12)
    s_barrier
    s_branch K3_loop
    K3_done:""")
    stamp(a,2,2,36)
    A=G.ACC
    a(f"""s_lshl_b32 s6, s{S_QB}, 1
    s_and_b32 s7, s{S_W}, 1
    s_add_u32 s6, s6, s7
    s_mul_i32 s6, s6, {32*2560}
    s_lshl_b32 s7, s{S_HG}, 2
    s_lshr_b32 s12, s{S_W}, 1
    s_add_u32 s7, s7, s12
    s_mul_i32 s7, s7, 40
    s_add_u32 s6, s6, s7
    s_add_u32 s6, s6, 1280
    v_mul_u32_u24 v22, 0xa00, v21
    v_mad_u32_u24 v22, v23, 24, v22""")
    add64(a,42,30,'s6')
    for i in range(6): a(f"v_cvt_pk_bf16_f32 v{48+i}, v{A+2*i}, v{A+2*i+1}")
    a(f"""global_store_dwordx4 v22, v[48:51], s[42:43]
    s_mov_b32 exec_hi, 0
    global_store_dwordx2 v22, v[52:53], s[42:43] offset:16
    s_mov_b64 exec, -1""")
    if STAMP:
        a("s_waitcnt vmcnt(0)"); stamp(a,2,3,36)
    a("K3_end:\ns_endpgm")
    return a.text()

hdr=open('concat_heads__spectral_fnet__grouped_kv_mqa__prompt.s.ref').read().split('; Override launch')[0]
s=hdr
KN='concat_heads__spectral_fnet__grouped_kv_mqa__prompt_kernel'
if FUSE:
    s+="; @launch grid=(256,1,1) block=(512,1,1) lds=163840\n"
else:
    for k in ['k1','k2','k3']:
        s+=f"; @launch kernel={k}_kernel grid=(256,1,1) block=(512,1,1) lds=163840\n"
s+='.amdgcn_target "amdgcn-amd-amdhsa--gfx950"\n.text\n'
if FUSE: s+=khead(KN)+k1().replace('k1_kernel',KN)+'.p2align 6\nK2_start:\n'+k2()+'.p2align 6\nK3_start:\n'+k3()
else: s+=khead('k1_kernel')+k1()+khead('k2_kernel')+k2()+khead('k3_kernel')+k3()
s+=emit_table('tab_hid',table_hid())+emit_table('tab_f128',table_f128())
s+='.section .rodata,"a"\n'
nv=256 if STAMP else 192
if FUSE: s+=kdesc(KN,nv)
else: s+=kdesc('k1_kernel',nv)+kdesc('k2_kernel',nv)+kdesc('k3_kernel',nv)
open(OUTF,'w').write(s)
print('wrote',OUTF,len(s))
```

```python
import sys
src,out,A,B,amp=sys.argv[1:6]; pre=sys.argv[6] if len(sys.argv)>6 else None
amp=int(amp)
s=open(src).read()
WS_ST=0x900000
def red(spec,dst):
    k,i,op=spec.split(','); k=int(k); i=int(i)
    base=WS_ST+k*0x10000+i*4
    t=f"  v_lshlrev_b32 v1, 11, v0\n  v_add_u32 v1, {base}, v1\n"
    for j in range(4): t+=f"  global_load_dword v{4+j}, v1, s[4:5] offset:{512*j}\n"
    t+="  s_waitcnt vmcnt(0)\n"
    for j in range(1,4): t+=f"  v_{op}_u32 v4, v4, v{4+j}\n"
    t+=f"  s_nop 1\n  v_readlane_b32 s{dst}, v4, 0\n"
    for l in range(1,64): t+=f"  v_readlane_b32 s20, v4, {l}\n  s_nop 0\n  s_{op}_u32 s{dst}, s{dst}, s20\n"
    return t
code=".globl z_kernel\n.p2align 8\n.type z_kernel,@function\nz_kernel:\n  s_cmp_ge_u32 s2, 1\n  s_cbranch_scc1 Z_end\n  s_load_dwordx2 s[4:5], s[0:1], 96\n  s_waitcnt lgkmcnt(0)\n"
code+=red(A,10)+red(B,11)+red('7,0,min' if pre else '0,0,min',12)
code+=f"""  s_sub_u32 s13, s11, s10
  s_mul_i32 s13, s13, {amp}
  s_add_u32 s13, s13, 10000
  s_min_u32 s13, s13, 100000
Z_pad:
  s_memrealtime s[14:15]
  s_waitcnt lgkmcnt(0)
  s_sub_u32 s14, s14, s12
  s_cmp_lt_u32 s14, s13
  s_cbranch_scc1 Z_pad
Z_end:
  s_endpgm
"""
desc=lambda n:f""".p2align 6
.amdhsa_kernel {n}
  .amdhsa_next_free_vgpr 32
  .amdhsa_next_free_sgpr 32
  .amdhsa_accum_offset 32
  .amdhsa_group_segment_fixed_size 0
  .amdhsa_kernarg_size 104
  .amdhsa_user_sgpr_count 2
  .amdhsa_user_sgpr_kernarg_segment_ptr 1
  .amdhsa_system_sgpr_workgroup_id_x 1
.end_amdhsa_kernel
"""
KN='concat_heads__spectral_fnet__grouped_kv_mqa__prompt_kernel'
s=s.replace("; @launch grid","; @launch kernel="+KN+" grid")
s=s.replace('.amdgcn_target','; @launch kernel=z_kernel grid=(1,1,1) block=(64,1,1) lds=0\n.amdgcn_target',1)
d=desc('z_kernel')
if pre:
    code+=f""".globl y_kernel
.p2align 8
.type y_kernel,@function
y_kernel:
  s_memrealtime s[14:15]
  s_cmp_ge_u32 s2, 1
  s_cbranch_scc1 Y_end
  s_load_dwordx2 s[4:5], s[0:1], 96
  v_lshlrev_b32 v1, 10, v0
  v_add_u32 v1, {WS_ST+7*0x10000}, v1
  s_waitcnt lgkmcnt(0)
  v_mov_b32 v2, s14
  global_store_dword v1, v2, s[4:5]
  global_store_dword v1, v2, s[4:5] offset:256
  global_store_dword v1, v2, s[4:5] offset:512
  global_store_dword v1, v2, s[4:5] offset:768
Y_end:
  s_endpgm
"""
    d+=desc('y_kernel')
    i=s.index('; @launch')
    s=s[:i]+'; @launch kernel=y_kernel grid=(1,1,1) block=(64,1,1) lds=0\n'+s[i:]
s=s.replace('.section .rodata',code+'.section .rodata',1)+d
open(out,'w').write(s)
```

```python
import sys, math, struct
import numpy as np
sys.path.insert(0,'gen')
from asmlib import *

STAMP = '--stamp' in sys.argv
FUSE = '--fuse' in sys.argv
XP = [a[4:] for a in sys.argv if a.startswith('--x=')]
OUTF = [a for a in sys.argv[1:] if not a.startswith('--')]
OUTF = OUTF[0] if OUTF else 'concat_heads__spectral_fnet__grouped_kv_mqa__prompt.s'

WS_QF = 0
WS_KV = 0x300000
WS_O  = 0x340000
WS_U  = 0x600000
WS_ST = 0x900000
WS_SZ = 0x1000000
CSCALE = (20**-0.5)*math.log2(math.e)
OFFS = 80.0
for _x in XP:
    if _x.startswith('offs'): OFFS=float(_x[4:])
def f2u(x): return struct.unpack('<I',struct.pack('<f',x))[0]
def bf(x):
    u=np.asarray(x,np.float32).view(np.uint32)
    return ((u+0x7fff+((u>>16)&1))>>16).astype(np.uint32)
def pack(vals):
    b=bf(vals); return b[...,0::2]|(b[...,1::2]<<16)

def table_f128():
    t=np.zeros((8,4,64,8),np.float64)
    for w in range(8):
        for s in range(4):
            for l in range(64):
                kidx=16*w+(l&15); u=kidx>>1; q=kidx&1
                for j in range(8):
                    sh=32*s+8*(l>>4)+j
                    if kidx==1: v=math.cos(math.pi*sh)
                    elif q==0: v=math.cos(2*math.pi*u*sh/128)
                    else: v=-math.sin(2*math.pi*u*sh/128)
                    t[w,s,l,j]=v
    return pack(t).reshape(-1)
def sig(n): return 16*((n>>2)&1)+4*(n>>3)+(n&3)
def table_hid():
    out=np.zeros((13,64,4),np.uint32)
    for l in range(64):
        n=l&31; h=l>>5; k1=sig(n)
        for s in range(2):
            d1=np.arange(8)+16*s+8*h
            out[s,l]=pack(np.cos(2*np.pi*d1*k1/32))
            out[2+s,l]=pack(-np.sin(2*np.pi*d1*k1/32))
        for j in range(3):
            d2=8*j+4*h+np.arange(4); ok=(d2<20)
            out[4+j,l]=(np.cos(2*np.pi*d2*k1/640)*ok).astype(np.float32).view(np.uint32)
            out[7+j,l]=(-np.sin(2*np.pi*d2*k1/640)*ok).astype(np.float32).view(np.uint32)
            k2=n if n<20 else 0
            out[10+j,l]=pack(np.concatenate([np.cos(2*np.pi*d2*k2/20)*ok, np.sin(2*np.pi*d2*k2/20)*ok]))
    return out.reshape(-1)
def emit_table(name, arr):
    s=f".p2align 8\n.type {name},@object\n{name}:\n"
    for i in range(0,len(arr),8):
        s+=".long "+",".join(hex(int(x)) for x in arr[i:i+8])+"\n"
    s+=f".size {name}, {4*len(arr)}\n"
    return s

S_W=3
S_QB=4; S_HG=5
def stamp(a, kid, idx, wsreg):
    if not STAMP: return
    a(f"""s_memrealtime s[90:91]
    s_memtime s[94:95]
    s_lshl_b32 s92, s2, 3
    s_add_u32 s92, s92, s{S_W}
    s_lshl_b32 s92, s92, 5
    s_add_u32 s92, s92, {WS_ST+kid*0x10000+idx*4}
    s_waitcnt lgkmcnt(0)
    v_mov_b32 v250, s90
    v_mov_b32 v251, s92
    v_mov_b32 v252, s94
    global_store_dword v251, v250, s[{wsreg}:{wsreg+1}]
    global_store_dword v251, v252, s[{wsreg}:{wsreg+1}] offset:16""")
def gridbar(a, n):
    a(f"""s_waitcnt vmcnt(0)
    s_barrier
    s_cmp_lg_u32 s{S_W}, 0
    s_cbranch_scc1 GB{n}_w
    s_load_dwordx2 s[50:51], s[0:1], 88
    v_mov_b32 v180, {128*n}
    v_mov_b32 v181, 1
    s_mov_b64 exec, 1
    buffer_wbl2 sc1
    s_waitcnt vmcnt(0) lgkmcnt(0)
    global_atomic_add v180, v181, s[50:51] sc1
    s_mov_b32 s52, 0
    GB{n}_p:
    global_load_dword v182, v180, s[50:51] sc1
    s_add_u32 s52, s52, 1
    s_waitcnt vmcnt(0)
    v_readfirstlane_b32 s53, v182
    s_cmp_gt_u32 s52, 100000
    s_cbranch_scc1 GB{n}_x
    s_cmp_lt_u32 s53, 256
    s_cbranch_scc1 GB{n}_p
    GB{n}_x:
    buffer_inv sc1
    s_waitcnt vmcnt(0)
    s_mov_b64 exec, -1
    GB{n}_w:
    s_barrier""")
def prologue(a, lbl_end):
    if STAMP: a("s_memrealtime s[88:89]")
    if FUSE and lbl_end!='K1_end': return
    a(f"""s_cmp_ge_u32 s2, 256
    s_cbranch_scc1 {lbl_end}
    v_lshrrev_b32 v1, 6, v0
    v_and_b32 v0, 63, v0
    s_and_b32 s{S_QB}, s2, 7
    v_readfirstlane_b32 s{S_W}, v1
    s_lshl_b32 s{S_QB}, s{S_QB}, 2
    s_bfe_u32 s6, s2, 0x20003
    s_add_u32 s{S_QB}, s{S_QB}, s6
    s_lshr_b32 s{S_HG}, s2, 5""")
def stamp0(a,kid,wsreg):
    if not STAMP: return
    a(f"""s_lshl_b32 s92, s2, 3
    s_add_u32 s92, s92, s{S_W}
    s_lshl_b32 s92, s92, 5
    s_add_u32 s92, s92, {WS_ST+kid*0x10000}
    v_mov_b32 v250, s88
    v_mov_b32 v251, s92
    global_store_dword v251, v250, s[{wsreg}:{wsreg+1}]""")
NST = 2 if STAMP else 0

SLOT=40960
class G:
    XA=2
    WA=4
    WS=10
    XR=16
    WR=20
    ACC=32
    FR=48
    sX=12
    sM=14
    sE=16
def gemm_setup(a, wbase, kvbase, colperm):
    a(f"""v_lshrrev_b32 v21, 3, v0
    s_lshl_b32 s6, s{S_W}, 3
    v_add_u32 v21, s6, v21
    v_bfe_u32 v22, v21, 1, 3
    v_and_b32 v23, 7, v0
    v_xor_b32 v22, v22, v23
    v_mul_u32_u24 v21, 0x500, v21
    v_lshl_add_u32 v{G.XA}, v22, 4, v21""")
    a(f"s_mul_i32 s7, s{S_HG}, 160\ns_lshl_b32 s6, s{S_W}, 4")
    for i in range(3):
        A=G.WA+2*i; S=G.WS+2*i
        a(f"""v_add_u32 v21, {64*i}, v0
        v_mul_u32_u24 v22, 0x556, v21
        v_lshrrev_b32 v22, 14, v22
        v_mul_u32_u24 v23, 12, v22
        v_sub_u32 v23, v21, v23
        v_add_u32 v22, s6, v22
        v_mul_u32_u24 v24, 0x500, v22
        v_lshl_add_u32 v24, v23, 4, v24
        v_add_u32 v24, s7, v24
        v_mov_b32 v{A+1}, s{wbase+1}
        v_add_co_u32 v{A}, vcc, s{wbase}, v24
        v_mov_b32 v{S}, {128*1280}
        v_mov_b32 v{S+1}, 0
        v_addc_co_u32 v{A+1}, vcc, 0, v{A+1}, vcc""")
        if kvbase is not None:
            a(f"""v_mul_u32_u24 v24, 40, v22
            v_mov_b32 v25, s{kvbase+1}
            v_add_co_u32 v24, vcc, s{kvbase}, v24
            v_mov_b32 v26, {128*40}
            v_cmp_eq_u32 s[8:9], 11, v23
            v_addc_co_u32 v25, vcc, 0, v25, vcc
            v_cmp_ne_u32 s[{G.sE+2*i}:{G.sE+2*i+1}], 10, v23
            v_cndmask_b32 v{A}, v{A}, v24, s[8:9]
            v_cndmask_b32 v{A+1}, v{A+1}, v25, s[8:9]
            v_cndmask_b32 v{S}, v{S}, v26, s[8:9]""")
        else:
            a(f"v_cmp_gt_u32 s[{G.sE+2*i}:{G.sE+2*i+1}], 10, v23")
    a(f"""s_and_b32 s6, s{S_W}, 1
    s_lshl_b32 s6, s6, 5
    v_and_b32 v21, 31, v0
    v_add_u32 v21, s6, v21
    v_bfe_u32 v22, v21, 1, 3
    v_lshrrev_b32 v23, 5, v0
    v_xor_b32 v22, v22, v23
    v_lshlrev_b32 v21, 7, v21""")
    for s in range(4):
        a(f"v_xor_b32 v24, {2*s}, v22\nv_lshl_add_u32 v{G.XR+s}, v24, 4, v21")
    lo=sum((colperm[i]&0xff)<<(8*i) for i in range(4)); hi=sum((colperm[4+i]&0xff)<<(8*i) for i in range(4))
    a(f"""v_bfe_u32 v21, v0, 2, 2
    v_lshl_add_u32 v21, v23, 3, v21
    v_mul_u32_u24 v21, 192, v21
    v_mov_b32 v24, {hex(lo)}
    v_mov_b32 v25, {hex(hi)}
    v_and_b32 v26, 16, v0
    v_cmp_ne_u32 vcc, 0, v26
    v_and_b32 v26, 3, v0
    v_lshlrev_b32 v26, 3, v26
    v_cndmask_b32 v24, v24, v25, vcc
    v_bfe_u32 v24, v24, v26, 8
    s_lshr_b32 s6, s{S_W}, 1
    s_mul_i32 s6, s6, 40
    v_mov_b32 v25, s6
    v_cmp_gt_u32 vcc, 160, v24
    v_add_u32 v21, 16384, v21
    s_nop 0
    v_cndmask_b32 v25, 0, v25, vcc
    v_add3_u32 v{G.WR}, v21, v24, v25""")
def gemm_issue(a, slotexpr=None):
    a(f"""s_lshl_b32 s6, s{S_W}, 10
    s_add_u32 m0, s{G.sM}, s6
    s_mul_i32 s7, s{S_W}, 3072
    global_load_lds_dwordx4 v{G.XA}, s[{G.sX}:{G.sX+1}]
    s_add_u32 m0, m0, {8192-128}
    s_add_u32 s7, s7, s{G.sM}
    global_load_lds_dwordx4 v{G.XA}, s[{G.sX}:{G.sX+1}] offset:128
    s_add_u32 m0, s7, 16384
    s_add_u32 s{G.sX}, s{G.sX}, 256
    s_addc_u32 s{G.sX+1}, s{G.sX+1}, 0""")
    for i in range(3):
        A=G.WA+2*i; S=G.WS+2*i
        a(f"""s_mov_b64 exec, s[{G.sE+2*i}:{G.sE+2*i+1}]
        global_load_lds_dwordx4 v[{A}:{A+1}], off
        s_add_u32 m0, m0, 1024
        v_lshl_add_u64 v[{A}:{A+1}], v[{S}:{S+1}], 0, v[{A}:{A+1}]""")
    a("s_mov_b64 exec, -1")
def gemm_compute(a):
    for half in range(2):
        for s in range(4):
            f=G.FR+32*half+8*s
            a(f"""ds_read_b128 v[{f}:{f+3}], v{G.XR+s} offset:{8192*half}
            ds_read_b64_tr_b16 v[{f+4}:{f+5}], v{G.WR} offset:{(64*half+16*s)*192}
            ds_read_b64_tr_b16 v[{f+6}:{f+7}], v{G.WR} offset:{(64*half+16*s+4)*192}""")
            if half==1:
                f0=G.FR+8*s
                a(f"s_waitcnt lgkmcnt(12)\nv_mfma_f32_32x32x16_bf16 v[{G.ACC}:{G.ACC+15}], v[{f0+4}:{f0+7}], v[{f0}:{f0+3}], v[{G.ACC}:{G.ACC+15}]")
    for s in range(4):
        f=G.FR+32+8*s
        a(f"s_waitcnt lgkmcnt({9-3*s})\nv_mfma_f32_32x32x16_bf16 v[{G.ACC}:{G.ACC+15}], v[{f+4}:{f+7}], v[{f}:{f+3}], v[{G.ACC}:{G.ACC+15}]")
def gemm_advance(a, delta):
    for s in range(4): a(f"v_add_u32 v{G.XR+s}, {delta}, v{G.XR+s}")
    a(f"v_add_u32 v{G.WR}, {delta}, v{G.WR}")
def zero(a, base, n):
    for i in range(n): a(f"v_mov_b32 v{base+i}, 0")
def add64(a, d, s, imm_or_sreg):
    a(f"s_add_u32 s{d}, s{s}, {imm_or_sreg}\ns_addc_u32 s{d+1}, s{s+1}, 0")

def k1():
    a=Asm()
    prologue(a,'K1_end')
    a("""s_load_dwordx2 s[24:25], s[0:1], 0
    s_load_dwordx2 s[28:29], s[0:1], 40
    s_load_dwordx2 s[30:31], s[0:1], 48
    s_load_dwordx4 s[32:35], s[0:1], 56
    s_load_dwordx2 s[36:37], s[0:1], 96
    s_getpc_b64 s[40:41]
    K1_pc:""")
    a(f"""s_mul_i32 s6, s{S_W}, 5120
    v_lshl_add_u32 v21, v0, 7, s6
    s_sub_u32 s42, s40, K1_pc-k1_kernel
    s_subb_u32 s43, s41, 0
    s_mov_b32 exec_hi, 0xff
    global_load_dword v112, v21, s[42:43]
    s_mov_b32 exec_hi, -1""")
    a(f"""s_add_u32 s40, s40, tab_f128-K1_pc
    s_addc_u32 s41, s41, 0
    s_lshl_b32 s6, s{S_W}, 12
    v_lshl_add_u32 v21, v0, 4, s6""")
    for s in range(4): a(f"global_load_dwordx4 v[{116+4*s}:{119+4*s}], v21, s[40:41] offset:{1024*s}")
    a(f"""s_and_b32 s44, s2, 7
    s_lshl_b32 s44, s44, 1
    s_bfe_u32 s6, s2, 0x10003
    s_add_u32 s44, s44, s6
    s_lshr_b32 s45, s2, 4
    s_mul_i32 s46, s44, 1280
    s_mul_i32 s6, s45, 80
    s_add_u32 s46, s46, s6
    s_lshl_b32 s6, s{S_W}, 6
    v_add_u32 v21, s6, v0
    v_mul_u32_u24 v22, 0xccd, v21
    v_lshrrev_b32 v22, 14, v22
    v_mul_u32_u24 v23, 5, v22
    v_sub_u32 v23, v21, v23
    v_mul_u32_u24 v22, {16*1280}, v22
    v_lshl_add_u32 v27, v23, 4, v22
    v_add_u32 v21, 512, v21
    v_mul_u32_u24 v22, 0xccd, v21
    v_lshrrev_b32 v22, 14, v22
    v_mul_u32_u24 v23, 5, v22
    v_sub_u32 v23, v21, v23
    v_mul_u32_u24 v22, {16*1280}, v22
    v_lshl_add_u32 v28, v23, 4, v22
    s_lshl_b32 s6, s{S_W}, 10
    s_add_u32 m0, s6, {3*SLOT}
    s_waitcnt lgkmcnt(0)""")
    stamp0(a,0,36)
    add64(a,24,24,'s46')
    a(f"""global_load_lds_dwordx4 v27, s[24:25]
    s_cmp_ge_u32 s{S_W}, 2
    s_cbranch_scc1 K1_nof2
    s_add_u32 m0, m0, 8192
    s_nop 0
    global_load_lds_dwordx4 v28, s[24:25]
    K1_nof2:""")
    a(f"s_mul_i32 s6, s{S_QB}, {64*1280}")
    add64(a,G.sX,28,'s6')
    a(f"""s_cmp_ge_u32 s{S_HG}, 3
    s_cselect_b32 s38, s34, s32
    s_cselect_b32 s39, s35, s33
    s_cselect_b32 s6, 3, 0
    s_sub_u32 s47, s{S_HG}, s6
    s_min_u32 s47, s47, 2
    s_lshl_b32 s6, s47, 4
    s_min_u32 s6, s6, 24""")
    add64(a,38,38,'s6')
    gemm_setup(a,30,38,[0,16,8,24,32,32,176,184])
    a(f"s_mov_b32 s{G.sM}, 0\nK1_pre:")
    gemm_issue(a)
    a(f"""s_add_u32 s{G.sM}, s{G.sM}, {SLOT}
    s_cmp_lt_u32 s{G.sM}, {3*SLOT}
    s_cbranch_scc1 K1_pre""")
    zero(a,G.ACC,16)
    a(f"""v_lshrrev_b32 v21, 4, v0
    v_bfe_u32 v22, v0, 2, 2
    v_lshl_add_u32 v22, v21, 3, v22
    v_mul_u32_u24 v22, 80, v22
    v_and_b32 v23, 3, v0
    v_add_u32 v22, {3*SLOT}, v22
    v_lshl_add_u32 v24, v23, 4, v22
    v_and_b32 v23, 1, v0
    v_lshl_add_u32 v25, v23, 3, v22
    s_waitcnt vmcnt(15)
    s_barrier""")
    stamp(a,0,1,36)
    D=[100,104,108]
    for s in range(4):
        f=G.FR+12*s
        for T in range(3):
            for u in range(2):
                ad,co=(24,8*T) if T<2 else (25,64)
                a(f"ds_read_b64_tr_b16 v[{f+4*T+2*u}:{f+4*T+2*u+1}], v{ad} offset:{(32*s+4*u)*80+co}")
        if s>=1:
            sp=s-1; fp=G.FR+12*sp
            a("s_waitcnt lgkmcnt(6)")
            for T in range(3):
                c='0' if sp==0 else f"v[{D[T]}:{D[T]+3}]"
                a(f"v_mfma_f32_16x16x32_bf16 v[{D[T]}:{D[T]+3}], v[{fp+4*T}:{fp+4*T+3}], v[{116+4*sp}:{119+4*sp}], {c}")
    a("s_waitcnt lgkmcnt(0)\ns_barrier")
    fp=G.FR+36
    for T in range(3): a(f"v_mfma_f32_16x16x32_bf16 v[{D[T]}:{D[T]+3}], v[{fp+4*T}:{fp+4*T+3}], v[128:131], v[{D[T]}:{D[T]+3}]")
    gemm_issue(a)
    a(f"""s_lshl_b32 s6, s{S_W}, 4
    v_and_b32 v22, 15, v0
    v_add_u32 v22, s6, v22
    v_mul_u32_u24 v22, {16*1280}, v22
    v_lshl_add_u32 v23, v21, 3, v22
    v_lshl_add_u32 v22, v21, 4, v22
    s_add_u32 s6, s46, {WS_U}""")
    add64(a,42,36,'s6')
    a(f"""v_cvt_pk_bf16_f32 v100, v100, v101
    v_cvt_pk_bf16_f32 v101, v102, v103
    v_cvt_pk_bf16_f32 v102, v104, v105
    v_cvt_pk_bf16_f32 v103, v106, v107
    v_cvt_pk_bf16_f32 v104, v108, v109
    v_cvt_pk_bf16_f32 v105, v110, v111
    global_store_dwordx4 v22, v[100:103], s[42:43]
    s_mov_b32 exec_hi, 0
    global_store_dwordx2 v23, v[104:105], s[42:43] offset:64
    s_mov_b64 exec, -1""")
    a(f"s_waitcnt vmcnt({17+NST})\ns_barrier")
    gemm_compute(a); gemm_advance(a,SLOT)
    a(f"s_waitcnt vmcnt({12+NST})\ns_barrier\ns_mov_b32 s{G.sM}, 0")
    gemm_issue(a)
    a("s_mov_b32 s48, 1\nK1_loop:")
    gemm_compute(a)
    a(f"""s_mov_b32 s6, {SLOT}
    s_cmp_eq_u32 s48, 3
    s_cselect_b32 s6, {(-3*SLOT)&0xffffffff}, s6""")
    gemm_advance(a,'s6')
    a(f"""s_add_u32 s48, s48, 1
    s_cmp_eq_u32 s48, 5
    s_cbranch_scc1 K1_done
    s_cmp_eq_u32 s48, 2
    s_cbranch_scc1 K1_w2
    s_cmp_eq_u32 s48, 3
    s_cbranch_scc1 K1_w3
    s_waitcnt vmcnt(0)
    K1_w3:
    s_waitcnt vmcnt(7)
    K1_w2:
    s_waitcnt vmcnt({12+NST})
    s_barrier
    s_branch K1_loop
    K1_done:""")
    stamp(a,0,2,36)
    A=G.ACC
    a(f"""s_lshl_b32 s6, s2, 3
    s_add_u32 s6, s6, s{S_W}
    s_mul_i32 s6, s6, 1536
    s_mov_b32 s7, {hex(f2u(CSCALE))}
    v_lshlrev_b32 v21, 4, v0
    v_lshlrev_b32 v22, 3, v0""")
    add64(a,42,36,'s6')
    a("s_nop 7")
    for i in range(12): a(f"v_mul_f32 v{A+i}, s7, v{A+i}")
    for i in range(8): a(f"v_cvt_pk_bf16_f32 v{48+i}, v{A+2*i}, v{A+2*i+1}")
    a(f"""global_store_dwordx4 v21, v[48:51], s[42:43]
    global_store_dwordx2 v22, v[52:53], s[42:43] offset:1024
    s_cmp_ge_u32 s{S_W}, 2
    s_cbranch_scc1 K1_fin
    s_cmp_ge_u32 s{S_HG}, 6
    s_cbranch_scc1 K1_fin""")
    a(f"""s_lshr_b32 s6, s{S_QB}, 1
    s_mul_i32 s6, s6, 10240
    s_add_u32 s6, s6, {WS_KV}""")
    add64(a,42,36,'s6')
    a(f"""s_and_b32 s8, s{S_QB}, 1
    v_and_b32 v21, 31, v0
    v_lshrrev_b32 v22, 5, v0
    s_cmp_eq_u32 s47, 2
    s_cbranch_scc0 K1_full
    s_mov_b32 exec_lo, 0
    K1_full:
    s_cmp_ge_u32 s{S_HG}, 3
    s_cbranch_scc1 K1_v
    s_lshl_b32 s6, s8, 1
    s_add_u32 s6, s6, s{S_W}
    s_lshl_b32 s6, s6, 10
    s_lshl_b32 s7, s47, 9
    s_add_u32 s6, s6, s7
    s_lshl_b32 s7, s{S_W}, 9
    s_lshl_b32 s9, s8, 3
    s_add_u32 s7, s7, s9
    s_add_u32 s7, s7, {4096-8}
    s_cmp_eq_u32 s47, 2
    s_cselect_b32 s6, s7, s6
    v_lshlrev_b32 v21, 4, v21
    v_lshl_add_u32 v21, v22, 3, v21
    v_add_u32 v21, s6, v21
    global_store_dwordx2 v21, v[54:55], s[42:43]
    s_branch K1_fin
    K1_v:""")
    a(f"""s_lshl_b32 s6, s8, 1
    s_add_u32 s6, s6, s{S_W}
    s_mul_i32 s6, s6, 1280
    s_add_u32 s6, s6, 5120
    v_lshrrev_b32 v23, 3, v21
    v_mul_u32_u24 v23, 320, v23
    v_and_b32 v21, 7, v21
    v_lshl_add_u32 v23, v21, 1, v23
    s_lshl_b32 s7, s47, 1
    v_add_u32 v22, s7, v22
    v_mul_u32_u24 v22, 5, v22
    v_mov_b32 v24, {hex(0|(8<<5)|(16<<10)|(4<<15)|(12<<20)|(12<<25))}
    v_bfe_u32 v22, v24, v22, 5
    v_lshl_add_u32 v23, v22, 4, v23
    v_add_u32 v23, s6, v23
    global_store_short v23, v54, s[42:43]
    global_store_short_d16_hi v23, v54, s[42:43] offset:16
    global_store_short v23, v55, s[42:43] offset:32
    global_store_short_d16_hi v23, v55, s[42:43] offset:48
    K1_fin:
    s_mov_b64 exec, -1""")
    if STAMP:
        a("s_waitcnt vmcnt(0)"); stamp(a,0,3,36)
    if FUSE: gridbar(a,0); a("s_branch K2_start")
    a("K1_end:\ns_endpgm")
    return a.text()

def k2():
    a=Asm()
    prologue(a,'K2_end')
    Q16=4; Q4=8; IDX=2; AK=3; AV=1
    CM=12; O=28; S=[44,76]; KF=[108,116]; K4=[124,128]; VF=[132,148]; T=164
    a(f"""s_load_dwordx2 s[36:37], s[0:1], 96
    v_lshlrev_b32 v{AK}, 4, v0
    v_lshlrev_b32 v10, 3, v0
    v_lshrrev_b32 v11, 5, v0
    v_and_b32 v{T}, 31, v0
    v_mad_u32_u24 v{AV}, v11, 20, v{T}
    v_lshlrev_b32 v{AV}, 4, v{AV}
    v_mov_b32 v{IDX}, 0xdddddddd
    s_mov_b32 s30, 0xfffff
    s_mov_b32 s31, 0xfffff
    s_lshl_b32 s6, s2, 3
    s_add_u32 s6, s6, s{S_W}
    s_mul_i32 s6, s6, 1536
    s_lshl_b32 m0, s{S_W}, 10
    s_waitcnt lgkmcnt(0)""")
    stamp0(a,1,36)
    add64(a,42,36,'s6')
    a(f"""s_add_u32 s8, s36, {WS_KV}
    s_addc_u32 s9, s37, 0
    s_mov_b32 s10, 163840
    s_mov_b32 s11, 0x20000
    global_load_dwordx4 v[{Q16}:{Q16+3}], v{AK}, s[42:43]
    global_load_dwordx2 v[{Q4}:{Q4+1}], v10, s[42:43] offset:1024""")
    dma=f"buffer_load_dwordx4 v{T+1}, s[8:11], m0 offen lds"
    bump="s_add_u32 m0, m0, 8192"
    a(f"v_mov_b32 v{T+1}, v{AK}")
    NPRE=4
    for i in range(NPRE): a(dma+"\n"+bump+"\ns_nop 0")
    for i in range(32): a(f"v_mov_b32 v{VF[0]+i}, 0x3f803f80")
    if 'vzero' in XP:
        a("s_mov_b32 exec_lo, 0xeeffffff\ns_mov_b32 exec_hi, 0xeeffffff")
        for i in range(32): a(f"v_mov_b32 v{VF[0]+i}, 0")
        a("s_mov_b64 exec, -1")
    zero(a,O,16)
    a(f"s_setprio 3\ns_waitcnt vmcnt({NPRE-2})\ns_barrier")
    stamp(a,1,1,36)
    def koff(g,t): return (g>>1)*10240+(2*(g&1)+t)*1024
    def k4off(g): return (g>>1)*10240+4096
    def voff(g,u): return (g>>1)*10240+5120+(4*(g&1)+u)*640
    on="s_mov_b64 exec, s[30:31]"; off="s_mov_b64 exec, -1"
    def M16(d,k,c): return f"v_mfma_f32_32x32x16_bf16 v[{d}:{d+15}], v[{k}:{k+3}], v[{Q16}:{Q16+3}], {c}"
    def M4(d,k): return f"v_mfma_f32_32x32x4_2b_bf16 v[{d}:{d+31}], v[{k}:{k+1}], v[{Q4}:{Q4+1}], v[{d}:{d+31}]"
    def SM(v,x): return f"v_smfmac_f32_32x32x32_bf16 v[{O}:{O+15}], v[{v}:{v+3}], v[{x}:{x+7}], v{IDX}"
    CMr=f"v[{CM}:{CM+15}]"
    def rowmax_to_cm(X, offs):
        pass
    a(f"""ds_read_b128 v[{KF[0]}:{KF[0]+3}], v{AK} offset:{koff(0,0)}
    ds_read_b128 v[{KF[0]+4}:{KF[0]+7}], v{AK} offset:{koff(0,1)}
    ds_read_b128 v[{K4[0]}:{K4[0]+3}], v{AK} offset:{k4off(0)}
    ds_read_b128 v[{KF[1]}:{KF[1]+3}], v{AK} offset:{koff(1,0)}
    ds_read_b128 v[{KF[1]+4}:{KF[1]+7}], v{AK} offset:{koff(1,1)}
    {on}""")
    for u in range(4): a(f"ds_read_b128 v[{VF[0]+4*u}:{VF[0]+4*u+3}], v{AV} offset:{voff(0,u)}")
    X=S[0]
    a(f"""{off}
    s_waitcnt lgkmcnt(6)
    {M16(X,KF[0],'0')}
    {M16(X+16,KF[0]+4,'0')}
    s_nop 9
    {M4(X,K4[0])}
    s_nop 15
    s_nop 3""")
    a(f"v_max3_f32 v{T+2}, v{X}, v{X+1}, v{X+2}\nv_max3_f32 v{T+3}, v{X+3}, v{X+4}, v{X+5}")
    for i in range(6,32,4):
        a(f"v_max3_f32 v{T+2}, v{T+2}, v{X+i}, v{X+i+1}")
        if i+2<32: a(f"v_max3_f32 v{T+3}, v{T+3}, v{X+i+2}, v{X+i+3}")
    a(f"""v_max_f32 v{T+2}, v{T+2}, v{T+3}
    v_mov_b32 v{T+3}, v{T+2}
    s_nop 1
    v_permlane32_swap_b32 v{T+2}, v{T+3}
    v_max_f32 v{T+2}, v{T+2}, v{T+3}
    v_sub_f32 v{CM}, {hex(f2u(-OFFS))}, v{T+2}""")
    for i in range(1,16): a(f"v_mov_b32 v{CM+i}, v{CM}")
    a(f"s_waitcnt lgkmcnt(0)\ns_nop 0\n{M16(S[1],KF[1],CMr)}")
    for i in range(32): a(f"v_add_f32 v{X+i}, v{CM}, v{X+i}")
    pos=dict(smp=2,mB=5,s0=10,mC=13,s1=21,s2=26,mA=29)
    order=sorted(pos,key=lambda k:pos[k])
    ndma=NPRE
    kbase=0; vbase=0
    for g in range(32):
        X=S[g%2]; Y=S[(g+1)%2]; g1=g+1; g2=g+2
        m={}
        m['mA']=M16(X,KF[g2%2],CMr) if g2<32 else None
        m['mB']=M16(Y+16,KF[g1%2]+4,CMr) if g1<32 else None
        m['mC']=M4(Y,K4[(g1//2)%2]+2*(g1%2)) if g1<32 else None
        for i in range(3): m[f's{i}']=SM(VF[g%2]+4*i,X+8*i)
        m['smp']=SM(VF[(g-1)%2]+12,Y+24) if g>0 else "s_nop 0"
        aft={k:[] for k in pos}
        pre=[]
        if g2<32 and k4off(g2)-kbase>=61440:
            pre.append(f"v_add_u32 v{AK}, 61440, v{AK}"); kbase+=61440
        if g1<32 and voff(g1,3)-vbase>=61440:
            pre.append(f"v_add_u32 v{AV}, 61440, v{AV}"); vbase+=61440
        if g==1: aft['smp']+= [f"s_waitcnt vmcnt({ndma-5})","s_barrier"]
        if g==6: aft['smp']+= ["s_waitcnt vmcnt(0)","s_barrier"]
        if g2<32:
            aft['smp'].append(f"ds_read_b128 v[{KF[g2%2]}:{KF[g2%2]+3}], v{AK} offset:{koff(g2,0)-kbase}")
            aft['mB']+=["s_waitcnt lgkmcnt(1)", f"ds_read_b128 v[{KF[g2%2]+4}:{KF[g2%2]+7}], v{AK} offset:{koff(g2,1)-kbase}"]
            if g2%2==0: aft['mC'].append(f"ds_read_b128 v[{K4[(g2//2)%2]}:{K4[(g2//2)%2]+3}], v{AK} offset:{k4off(g2)-kbase}")
        else:
            aft['smp'].append("s_waitcnt lgkmcnt(0)")
        if g1<32:
            b=VF[g1%2]
            vv=[f"ds_read_b128 v[{b+4*i}:{b+4*i+3}], v{AV} offset:{voff(g1,i)-vbase}" for i in range(4)]
            aft['s0']+=[on,vv[0],vv[1],off]; aft['s1']+=[on,vv[2],vv[3],off]
            aft['s2'].append("s_waitcnt lgkmcnt(2)")
        for k in ['mA','s2','mC','mB']:
            if ndma<20:
                aft[k]+=[dma,bump]; ndma+=1
        if g in (18,27,30): aft['s2'].append(f"s_setprio {dict([(18,2),(27,1),(30,0)])[g]}")
        ins={i:[] for i in range(33)}
        ins[0]+=pre
        kq=K4[(g//2)%2]+2*(g%2)
        if 'addm16' in XP: ins[17].append(M16(192,KF[g1%2],CMr))
        if 'addm16z' in XP: ins[17].append(M16(192,KF[g1%2],'0'))
        if 'addm8' in XP: ins[17].append(f"v_mfma_f32_32x32x8_bf16 v[192:207], v[{kq}:{kq+1}], v[{Q4}:{Q4+1}], {CMr}")
        if 'add2b' in XP: ins[17].append(f"v_mfma_f32_32x32x4_2b_bf16 v[192:223], v[{kq}:{kq+1}], v[{Q4}:{Q4+1}], 0")
        if 'addsm' in XP: ins[17].append(f"v_smfmac_f32_32x32x32_bf16 v[192:207], v[{VF[g%2]}:{VF[g%2]+3}], v[{X}:{X+7}], v{IDX}")
        if 'addexp' in XP: ins[17]+= [f"v_exp_f32 v{192+i}, v{X+20+i}" for i in range(2)]
        if 'addval' in XP: ins[17]+= [f"v_mov_b32 v{192+i}, 0" for i in range(4)]
        for k in order:
            if m[k]: ins[pos[k]].append(m[k])
            ins[pos[k]]+=aft[k]
        if STAMP and 'prof' in XP and g%4==0:
            a(f"s_memrealtime s[{56+g}:{57+g}]\ns_memtime s[{58+g}:{59+g}]\ns_waitcnt lgkmcnt(0)")
        for i in range(33):
            for x in ins[i]:
                if 'nosm' in XP and x.startswith('v_smfmac'): x='s_nop 0'
                if 'noqk' in XP and x.startswith('v_mfma'): x='s_nop 0'
                if 'nolds' in XP and g>2 and x.startswith('ds_read'): x='s_nop 0'
                if 'nohalf' in XP and g>2 and (g&2) and x.startswith('ds_read'): x='s_nop 0'
                if 'noqk4' in XP and x.startswith('v_mfma_f32_32x32x4'): x='s_nop 0'
                a(x)
            if i<32 and 'noexp' not in XP: a(f"v_exp_f32 v{X+i}, v{X+i}")
    if STAMP and 'prof' in XP:
        a(f"""s_lshl_b32 s92, s2, 3
        s_add_u32 s92, s92, s{S_W}
        s_lshl_b32 s92, s92, 6
        s_add_u32 s92, s92, {WS_ST+0x40000}
        v_mov_b32 v251, s92""")
        for j in range(8):
            a(f"v_mov_b32 v252, s{56+4*j}\nv_mov_b32 v253, s{58+4*j}\nglobal_store_dwordx2 v251, v[252:253], s[36:37] offset:{8*j}\ns_nop 1")
    a("s_nop 1\n"+SM(VF[1]+12,S[1]+24))
    a("s_mov_b32 s40, 0\nK2_check:\ns_nop 11")
    stamp(a,1,2,36)
    a(f"""v_max3_f32 v{T+2}, |v{O}|, |v{O+1}|, |v{O+2}|
    v_max3_f32 v{T+3}, |v{O+3}|, |v{O+4}|, |v{O+5}|
    v_max3_f32 v{T+2}, v{T+2}, |v{O+6}|, |v{O+7}|
    v_max3_f32 v{T+4}, |v{O+8}|, |v{O+9}|, |v{O+10}|
    v_max_f32 v{T+2}, v{T+2}, v{T+3}
    v_max3_f32 v{T+4}, v{T+4}, |v{O+11}|, v{T+2}
    v_rcp_f32 v{T+5}, v{O+12}
    v_cmp_gt_f32 vcc, {hex(f2u(2.0**110))}, v{O+12}
    s_mov_b32 s6, 0x7f800000
    s_mov_b32 s7, {hex(f2u(2.0**-(OFFS+14)))}
    v_cmp_gt_f32 s[12:13], s6, v{T+4}
    v_cmp_lt_f32 s[14:15], s7, v{T+2}
    s_and_b64 vcc, vcc, s[12:13]
    s_and_b64 vcc, vcc, s[14:15]
    s_cmp_eq_u64 vcc, -1
    {'s_nop 0' if any(x.startswith('no') for x in XP) else 's_cbranch_scc0 K2_slow'}
    K2_store:""")
    for i in range(12): a(f"v_mul_f32 v{O+i}, v{T+5}, v{O+i}")
    for i in range(6): a(f"v_cvt_pk_bf16_f32 v{S[0]+i}, v{O+2*i}, v{O+2*i+1}")
    a(f"""s_lshl_b32 s6, s{S_QB}, 1
    s_and_b32 s7, s{S_W}, 1
    s_add_u32 s6, s6, s7
    s_mul_i32 s6, s6, {32*1280}
    s_lshl_b32 s7, s{S_HG}, 2
    s_lshr_b32 s12, s{S_W}, 1
    s_add_u32 s7, s7, s12
    s_mul_i32 s7, s7, 40
    s_add_u32 s6, s6, s7
    s_add_u32 s6, s6, {WS_O}
    v_mul_u32_u24 v{T+2}, 0x500, v{T}
    v_mad_u32_u24 v{T+2}, v11, 24, v{T+2}""")
    add64(a,42,36,'s6')
    a(f"""global_store_dwordx4 v{T+2}, v[{S[0]}:{S[0]+3}], s[42:43]
    s_mov_b32 exec_hi, 0
    global_store_dwordx2 v{T+2}, v[{S[0]+4}:{S[0]+5}], s[42:43] offset:16
    s_mov_b64 exec, -1""")
    if STAMP:
        a("s_waitcnt vmcnt(0)"); stamp(a,1,3,36)
    if FUSE: gridbar(a,1); a("s_branch K3_start")
    a("K2_end:\ns_endpgm")
    X=S[0]
    a(f"""K2_slow:
    s_cmp_lg_u32 s40, 0
    s_cbranch_scc1 K2_store
    s_mov_b32 s40, 1
    v_mov_b32 v{T+2}, 0xff800000""")
    zero(a,CM,16); zero(a,O,16)
    a("K2_pass:")
    a(f"""v_lshlrev_b32 v{AK}, 4, v0
    v_mad_u32_u24 v{AV}, v11, 20, v{T}
    v_lshlrev_b32 v{AV}, 4, v{AV}
    s_mov_b32 s41, 0
    K2_sl:
    s_and_b32 s6, s41, 1
    s_mul_i32 s7, s6, 2048
    s_mul_i32 s12, s6, 8
    s_mul_i32 s13, s6, 2560
    v_add_u32 v{T+3}, s7, v{AK}
    v_add_u32 v{T+4}, s12, v{AK}
    v_add_u32 v{T+5}, s13, v{AV}
    ds_read_b128 v[{KF[0]}:{KF[0]+3}], v{T+3}
    ds_read_b128 v[{KF[0]+4}:{KF[0]+7}], v{T+3} offset:1024
    ds_read_b64 v[{K4[0]}:{K4[0]+1}], v{T+4} offset:4096
    {on}""")
    for u in range(4): a(f"ds_read_b128 v[{VF[0]+4*u}:{VF[0]+4*u+3}], v{T+5} offset:{5120+640*u}")
    a(f"""{off}
    s_mul_i32 s7, s6, 10240
    v_add_u32 v{AK}, s7, v{AK}
    v_add_u32 v{AV}, s7, v{AV}
    s_waitcnt lgkmcnt(0)
    {M16(X,KF[0],CMr)}
    {M16(X+16,KF[0]+4,CMr)}
    s_nop 9
    {M4(X,K4[0])}
    s_nop 15
    s_nop 3
    s_cmp_eq_u32 s40, 1
    s_cbranch_scc0 K2_p2""")
    for i in range(0,32,2): a(f"v_max3_f32 v{T+2}, v{T+2}, v{X+i}, v{X+i+1}")
    a("s_branch K2_nx\nK2_p2:")
    for i in range(32): a(f"v_exp_f32 v{X+i}, v{X+i}")
    a("s_nop 1")
    for u in range(4): a(SM(VF[0]+4*u,X+8*u))
    a(f"""K2_nx:
    s_add_u32 s41, s41, 1
    s_cmp_lt_u32 s41, 32
    s_cbranch_scc1 K2_sl
    s_cmp_eq_u32 s40, 1
    s_cbranch_scc0 K2_check
    s_mov_b32 s40, 2
    v_mov_b32 v{T+3}, v{T+2}
    s_nop 1
    v_permlane32_swap_b32 v{T+2}, v{T+3}
    v_max_f32 v{T+2}, v{T+2}, v{T+3}""")
    for i in range(16): a(f"v_sub_f32 v{CM+i}, 0, v{T+2}")
    a("s_branch K2_pass")
    return a.text()

def k3():
    a=Asm()
    prologue(a,'K3_end')
    UL=3*SLOT; VL=2*SLOT; TL=2*SLOT+21504
    a("""s_load_dwordx4 s[28:31], s[0:1], 72
    s_load_dwordx2 s[36:37], s[0:1], 96
    s_getpc_b64 s[40:41]
    K3_pc:
    s_add_u32 s40, s40, tab_hid-K3_pc
    s_addc_u32 s41, s41, 0""")
    a(f"""s_lshl_b32 s6, s{S_W}, 10
    v_lshl_add_u32 v21, v0, 4, s6
    s_add_u32 m0, s6, {TL}
    v_add_u32 v22, 8192, v21
    global_load_lds_dwordx4 v21, s[40:41]
    s_cmp_ge_u32 s{S_W}, 5
    s_cbranch_scc1 K3_not2
    s_add_u32 m0, m0, 8192
    s_nop 0
    global_load_lds_dwordx4 v22, s[40:41]
    K3_not2:""")
    a(f"""s_and_b32 s44, s2, 7
    s_lshl_b32 s44, s44, 3
    s_bfe_u32 s6, s2, 0x30003
    s_add_u32 s44, s44, s6
    s_lshr_b32 s45, s2, 6
    s_mul_i32 s46, s44, 40960
    s_add_u32 s46, s46, {WS_U}
    s_mul_i32 s7, s{S_W}, 5120
    s_bfe_u32 s8, s{S_W}, 0x10001
    s_lshl_b32 s8, s8, 2""")
    for i in range(5):
        a(f"""v_add_u32 v21, {64*i}, v0
        v_mul_u32_u24 v22, 205, v21
        v_lshrrev_b32 v22, 14, v22
        v_or_b32 v22, s8, v22
        v_lshlrev_b32 v22, 5, v22
        v_lshl_add_u32 v21, v21, 4, s7
        v_xor_b32 v{100+i}, v21, v22""")
    a(f"s_add_u32 m0, s7, {UL}\ns_waitcnt lgkmcnt(0)")
    stamp0(a,2,36)
    add64(a,42,36,'s46')
    for i in range(5): a(f"global_load_lds_dwordx4 v{100+i}, s[42:43]\ns_add_u32 m0, m0, 1024\ns_nop 0")
    a(f"s_mul_i32 s6, s{S_QB}, {64*1280}\ns_add_u32 s6, s6, {WS_O}")
    add64(a,G.sX,36,'s6')
    gemm_setup(a,28,None,[0,24,8,32,16,16,16,16])
    a(f"s_mov_b32 s{G.sM}, 0\nK3_pre:")
    gemm_issue(a)
    a(f"""s_add_u32 s{G.sM}, s{G.sM}, {SLOT}
    s_cmp_lt_u32 s{G.sM}, {2*SLOT}
    s_cbranch_scc1 K3_pre""")
    zero(a,G.ACC,16)
    a(f"""s_lshr_b32 s47, s45, 1
    s_sub_u32 s6, 128, s44
    s_cmp_eq_u32 s44, 0
    s_cselect_b32 s6, 64, s6
    s_cselect_b32 s9, 0, 512
    s_cmp_eq_u32 s47, 0
    s_cselect_b32 s48, s44, s6
    s_and_b32 s6, s45, 1
    s_lshl_b32 s6, s6, 10
    s_add_u32 s48, s48, s6
    s_mul_i32 s6, s9, 3
    s_cmp_eq_u32 s47, 0
    s_cselect_b32 s9, s6, s9
    v_bfe_u32 v21, v0, 1, 3
    v_lshl_add_u32 v21, v21, 7, s48
    v_and_b32 v22, 1, v0
    v_lshlrev_b32 v22, 9, v22
    v_lshrrev_b32 v23, 5, v0
    v_mad_u32_u24 v22, v23, s9, v22
    v_bfe_u32 v24, v0, 4, 1
    v_lshlrev_b32 v24, 3, v24
    v_mad_u32_u24 v22, v24, v21, v22
    s_mov_b32 s6, {hex(f2u(1/2048))}""")
    for i in range(8):
        a(f"""v_and_b32 v24, 0x7ff, v22
        v_cvt_f32_u32 v24, v24
        v_mul_f32 v24, s6, v24
        v_cos_f32 v{112+i}, v24
        v_add_u32 v22, v22, v21""")
    for i in range(4): a(f"v_cvt_pk_bf16_f32 v{112+i}, v{112+2*i}, v{113+2*i}")
    a(f"""s_cmp_eq_u32 s44, 0
    s_cbranch_scc0 K3_reg
    v_cmp_eq_u32 vcc, s47, v23
    s_nop 1""")
    for i in range(4): a(f"v_cndmask_b32 v{112+i}, 0, v{112+i}, vcc")
    a("K3_reg:")
    a(f"""v_lshrrev_b32 v21, 4, v0
    v_bfe_u32 v22, v0, 2, 2
    v_lshl_add_u32 v24, v21, 3, v22
    v_mul_u32_u24 v24, 0x500, v24
    v_bfe_u32 v25, v0, 2, 3
    v_xor_b32 v25, s{S_W}, v25
    v_lshl_add_u32 v24, v25, 5, v24
    v_and_b32 v25, 3, v0
    v_lshl_add_u32 v24, v25, 3, v24
    v_add_u32 v24, {UL}, v24
    v_and_b32 v26, 15, v0
    v_mul_u32_u24 v26, 1288, v26
    v_lshl_add_u32 v26, v21, 3, v26
    s_lshl_b32 s6, s{S_W}, 5
    s_add_u32 s6, s6, {VL}
    v_add_u32 v26, s6, v26
    s_waitcnt vmcnt(10)
    s_barrier""")
    stamp(a,2,1,36)
    F=G.FR
    for i in range(5):
        for u in range(2): a(f"ds_read_b64_tr_b16 v[{F+4*i+2*u}:{F+4*i+2*u+1}], v24 offset:{256*i+5120*u}")
    for i in range(5):
        a(f"s_waitcnt lgkmcnt({8-2*i})\nv_mfma_f32_16x16x32_bf16 v[{F+20+4*i}:{F+23+4*i}], v[{F+4*i}:{F+4*i+3}], v[112:115], 0")
    TB=128
    a(f"v_lshlrev_b32 v27, 4, v0\nv_add_u32 v27, {TL}, v27")
    for qd in range(13): a(f"ds_read_b128 v[{TB+4*qd}:{TB+4*qd+3}], v27 offset:{1024*qd}")
    a("s_waitcnt lgkmcnt(10)")
    for i in range(5):
        d=F+20+4*i
        a(f"v_cvt_pk_bf16_f32 v{d}, v{d}, v{d+1}\nv_cvt_pk_bf16_f32 v{d+1}, v{d+2}, v{d+3}\nds_write_b64 v26, v[{d}:{d+1}] offset:{256*i}")
    a(f"""v_lshrrev_b32 v23, 5, v0
    v_lshl_add_u32 v22, v23, 3, v22
    v_mul_u32_u24 v22, 40, v22
    v_lshlrev_b32 v25, 3, v25
    v_and_b32 v28, 16, v0
    v_cmp_ne_u32 vcc, 0, v28
    s_mul_i32 s6, s{S_W}, {2*1288}
    s_add_u32 s6, s6, {VL}
    v_cndmask_b32 v25, v25, 32, vcc
    v_add3_u32 v22, v22, v25, s6
    s_waitcnt lgkmcnt(0)
    s_barrier""")
    for p in range(2):
        for s in range(2):
            for u in range(2):
                a(f"ds_read_b64_tr_b16 v[{F+8*p+4*s+2*u}:{F+8*p+4*s+2*u+1}], v22 offset:{1288*p+640*s+160*u}")
    a(f"s_mov_b32 s{G.sM}, {3*SLOT}")
    gemm_issue(a)
    for i in range(8): a(f"v_xor_b32 v{180+i}, 0x80008000, v{TB+8+i}")
    a("s_waitcnt lgkmcnt(0)\ns_barrier")
    TR=F+16; TI=F+32
    def mm(d,A,B,c): return f"v_mfma_f32_32x32x16_bf16 v[{d}:{d+15}], v[{A}:{A+3}], v[{B}:{B+3}], {c}"
    TRr=f"v[{TR}:{TR+15}]"; TIr=f"v[{TI}:{TI+15}]"
    a(mm(TR,F,TB,'0')); a(mm(TI,F,TB+8,'0'))
    a(mm(TR,F+4,TB+4,TRr)); a(mm(TI,F+4,TB+12,TIr))
    a(mm(TR,F+8,180,TRr)); a(mm(TI,F+8,TB,TIr))
    a(mm(TR,F+12,184,TRr)); a(mm(TI,F+12,TB+4,TIr))
    a(f"s_mov_b32 s{G.sM}, {2*SLOT}")
    gemm_issue(a)
    WRr=TB+16; WI=TB+28; GG=TB+40; P=100
    for i in range(12):
        a(f"""v_mul_f32 v{P}, v{TI+i}, v{WI+i}
        v_mul_f32 v{P+1}, v{TR+i}, v{WI+i}
        v_fma_f32 v{TR+i}, v{TR+i}, v{WRr+i}, -v{P}
        v_fma_f32 v{TI+i}, v{TI+i}, v{WRr+i}, v{P+1}""")
    for j in range(3):
        a(f"""v_cvt_pk_bf16_f32 v{F+4*j}, v{TR+4*j}, v{TR+4*j+1}
        v_cvt_pk_bf16_f32 v{F+4*j+1}, v{TR+4*j+2}, v{TR+4*j+3}
        v_cvt_pk_bf16_f32 v{F+4*j+2}, v{TI+4*j}, v{TI+4*j+1}
        v_cvt_pk_bf16_f32 v{F+4*j+3}, v{TI+4*j+2}, v{TI+4*j+3}""")
    Y=112
    a("s_nop 1")
    a(mm(Y,F,GG,'0')); a(mm(Y,F+4,GG+4,f"v[{Y}:{Y+15}]")); a(mm(Y,F+8,GG+8,f"v[{Y}:{Y+15}]"))
    a(f"""s_lshl_b32 s6, s{S_W}, 7
    s_add_u32 s6, s6, s48
    s_mul_i32 s6, s6, 2560
    v_and_b32 v21, 31, v0
    v_lshlrev_b32 v22, 6, v21
    v_lshl_add_u32 v22, v23, 5, v22
    s_mov_b32 s8, 0xfffff
    s_mov_b32 s9, 0xfffff""")
    add64(a,42,30,'s6')
    a("s_nop 3")
    for i in range(8): a(f"v_cvt_pk_bf16_f32 v{100+i}, v{Y+2*i}, v{Y+2*i+1}")
    a("""s_mov_b64 exec, s[8:9]
    global_store_dwordx4 v22, v[100:103], s[42:43]
    global_store_dwordx4 v22, v[104:107], s[42:43] offset:16
    s_mov_b64 exec, -1""")
    a(f"s_waitcnt vmcnt({17+NST})\ns_barrier")
    gemm_compute(a); gemm_advance(a,SLOT)
    a(f"s_waitcnt vmcnt({12+NST})\ns_barrier\ns_mov_b32 s{G.sM}, 0")
    gemm_issue(a)
    a("s_mov_b32 s49, 1\nK3_loop:")
    gemm_compute(a)
    a(f"""s_mov_b32 s6, {(-SLOT)&0xffffffff}
    s_cmp_eq_u32 s49, 1
    s_cselect_b32 s6, {2*SLOT}, s6
    s_cmp_eq_u32 s49, 3
    s_cselect_b32 s6, {(-2*SLOT)&0xffffffff}, s6""")
    gemm_advance(a,'s6')
    a(f"""s_add_u32 s49, s49, 1
    s_cmp_eq_u32 s49, 5
    s_cbranch_scc1 K3_done
    s_cmp_eq_u32 s49, 2
    s_cbranch_scc1 K3_w2
    s_cmp_eq_u32 s49, 3
    s_cbranch_scc1 K3_w3
    s_waitcnt vmcnt(0)
    K3_w3:
    s_waitcnt vmcnt(7)
    K3_w2:
    s_waitcnt vmcnt(12)
    s_barrier
    s_branch K3_loop
    K3_done:""")
    stamp(a,2,2,36)
    A=G.ACC
    a(f"""s_lshl_b32 s6, s{S_QB}, 1
    s_and_b32 s7, s{S_W}, 1
    s_add_u32 s6, s6, s7
    s_mul_i32 s6, s6, {32*2560}
    s_lshl_b32 s7, s{S_HG}, 2
    s_lshr_b32 s12, s{S_W}, 1
    s_add_u32 s7, s7, s12
    s_mul_i32 s7, s7, 40
    s_add_u32 s6, s6, s7
    s_add_u32 s6, s6, 1280
    v_mul_u32_u24 v22, 0xa00, v21
    v_mad_u32_u24 v22, v23, 24, v22""")
    add64(a,42,30,'s6')
    for i in range(6): a(f"v_cvt_pk_bf16_f32 v{48+i}, v{A+2*i}, v{A+2*i+1}")
    a(f"""global_store_dwordx4 v22, v[48:51], s[42:43]
    s_mov_b32 exec_hi, 0
    global_store_dwordx2 v22, v[52:53], s[42:43] offset:16
    s_mov_b64 exec, -1""")
    if STAMP:
        a("s_waitcnt vmcnt(0)"); stamp(a,2,3,36)
    a("K3_end:\ns_endpgm")
    return a.text()

hdr=open('concat_heads__spectral_fnet__grouped_kv_mqa__prompt.s.ref').read().split('; Override launch')[0]
s=hdr
KN='concat_heads__spectral_fnet__grouped_kv_mqa__prompt_kernel'
if FUSE:
    s+="; @launch grid=(256,1,1) block=(512,1,1) lds=163840\n"
else:
    for k in ['k1','k2','k3']:
        s+=f"; @launch kernel={k}_kernel grid=(256,1,1) block=(512,1,1) lds=163840\n"
s+='.amdgcn_target "amdgcn-amd-amdhsa--gfx950"\n.text\n'
if FUSE: s+=khead(KN)+k1().replace('k1_kernel',KN)+'.p2align 6\nK2_start:\n'+k2()+'.p2align 6\nK3_start:\n'+k3()
else: s+=khead('k1_kernel')+k1()+khead('k2_kernel')+k2()+khead('k3_kernel')+k3()
s+=emit_table('tab_hid',table_hid())+emit_table('tab_f128',table_f128())
s+='.section .rodata,"a"\n'
nv=256 if STAMP else 192
if FUSE: s+=kdesc(KN,nv)
else: s+=kdesc('k1_kernel',nv)+kdesc('k2_kernel',nv)+kdesc('k3_kernel',nv)
open(OUTF,'w').write(s)
print('wrote',OUTF,len(s))
```

```python
import sys, math, struct
import numpy as np
sys.path.insert(0,'gen')
from asmlib import *

STAMP = '--stamp' in sys.argv
XP = [a[4:] for a in sys.argv if a.startswith('--x=')]
OUTF = [a for a in sys.argv[1:] if not a.startswith('--')]
OUTF = OUTF[0] if OUTF else 'concat_heads__spectral_fnet__grouped_kv_mqa__prompt.s'
KN='concat_heads__spectral_fnet__grouped_kv_mqa__prompt_kernel'

WS_KV = 0x000000
WS_F1 = 0x040000
WS_F2 = 0x050000
WS_F3 = 0x060000
WS_O  = 0x100000
WS_U  = 0x400000
WS_ST = 0x900000
WS_SZ = 0x1000000
CSCALE = (20**-0.5)*math.log2(math.e)
OFFS = 100.0
SPIN = 200000
def f2u(x): return struct.unpack('<I',struct.pack('<f',x))[0]
def bf(x):
    u=np.asarray(x,np.float32).view(np.uint32)
    return ((u+0x7fff+((u>>16)&1))>>16).astype(np.uint32)
def pack(vals):
    b=bf(vals); return b[...,0::2]|(b[...,1::2]<<16)
def table_f128():
    t=np.zeros((8,4,64,8),np.float64)
    for w in range(8):
        for s in range(4):
            for l in range(64):
                kidx=16*w+(l&15); u=kidx>>1; q=kidx&1
                for j in range(8):
                    sh=32*s+8*(l>>4)+j
                    if kidx==1: v=math.cos(math.pi*sh)
                    elif q==0: v=math.cos(2*math.pi*u*sh/128)
                    else: v=-math.sin(2*math.pi*u*sh/128)
                    t[w,s,l,j]=v
    return pack(t).reshape(-1)
def sig(n): return 16*((n>>2)&1)+4*(n>>3)+(n&3)
def table_hid():
    out=np.zeros((13,64,4),np.uint32)
    for l in range(64):
        n=l&31; h=l>>5; k1=sig(n)
        for s in range(2):
            d1=np.arange(8)+16*s+8*h
            out[s,l]=pack(np.cos(2*np.pi*d1*k1/32))
            out[2+s,l]=pack(-np.sin(2*np.pi*d1*k1/32))
        for j in range(3):
            d2=8*j+4*h+np.arange(4); ok=(d2<20)
            out[4+j,l]=(np.cos(2*np.pi*d2*k1/640)*ok).astype(np.float32).view(np.uint32)
            out[7+j,l]=(-np.sin(2*np.pi*d2*k1/640)*ok).astype(np.float32).view(np.uint32)
            k2=n if n<20 else 0
            out[10+j,l]=pack(np.concatenate([np.cos(2*np.pi*d2*k2/20)*ok, np.sin(2*np.pi*d2*k2/20)*ok]))
    return out.reshape(-1)
def emit_table(name, arr):
    s=f".p2align 8\n.type {name},@object\n{name}:\n"
    for i in range(0,len(arr),8):
        s+=".long "+",".join(hex(int(x)) for x in arr[i:i+8])+"\n"
    s+=f".size {name}, {4*len(arr)}\n"
    return s

W=3; QB=4; HG=5
XB_=8; WQ_=12; KV_=16; WS_=20; XA_=24; WO_=28; OUT_=32; LD_=36
DBG=40; TAB=42; NON=44; R0=45; J=46; RBA=47; RBB=48
SA=49; SB=50; SSTR=51; LA=52; LB=53; LSTR=54; CH=55
PB=56; UU=57; QT=58; T0=59; MIR=60; SLOW=61; CNT=62
VM=64
STB=70
def S(r,n=4): return f"s[{r}:{r+n-1}]"
a=Asm()
nstamp=[0]
def stamp():
    if STAMP:
        a(f"s_memrealtime s[{STB+2*nstamp[0]}:{STB+1+2*nstamp[0]}]"); nstamp[0]+=1
def zero(base,n):
    for i in range(n): a(f"v_mov_b32 v{base+i}, 0")
def dmab(v,srd,soff,off=0,fl=''):
    return f"buffer_load_dwordx4 v{v}, {S(srd)}, {soff} offen{' offset:%d'%off if off else ''} {fl} lds"
def mod5(d,s,t):
    a(f"s_mul_i32 s{t}, s{s}, 0x3334\ns_lshr_b32 s{t}, s{t}, 16\ns_mul_i32 s{t}, s{t}, 5\ns_sub_u32 s{d}, s{s}, s{t}")

L16=2
WOA=226
UA=231
MM=236
PF=240
TB=174
XBL=25600; RB=107520; NONL=158720

stamp()
a(f"""s_cmp_ge_u32 s2, 256
s_cbranch_scc1 L_end
s_load_dwordx8 s[48:55], s[0:1], 40
s_load_dwordx8 s[56:63], s[0:1], 72
s_load_dwordx2 s[24:25], s[0:1], 0
s_memrealtime s[66:67]
s_getpc_b64 s[{TAB}:{TAB+1}]
L_pc:
v_lshrrev_b32 v1, 6, v0
v_and_b32 v0, 63, v0
s_and_b32 s{QB}, s2, 7
v_readfirstlane_b32 s{W}, v1
s_lshl_b32 s{QB}, s{QB}, 2
s_bfe_u32 s6, s2, 0x20003
s_add_u32 s{QB}, s{QB}, s6
s_lshr_b32 s{HG}, s2, 5
v_lshlrev_b32 v{L16}, 4, v0
s_mul_i32 s7, s{W}, 3072
v_lshl_add_u32 v21, v0, 7, s7
s_mov_b64 exec, 0xffffff
global_load_dword v255, v21, s[{TAB}:{TAB+1}]
s_mov_b64 exec, -1
s_add_u32 s{R0}, s6, s{HG}""")
mod5(R0,R0,7)
a(f"""v_lshrrev_b32 v21, 3, v0
v_lshrrev_b32 v23, 4, v0
v_and_b32 v24, 7, v0
v_xor_b32 v23, v23, v24
v_mul_u32_u24 v21, 0x500, v21
v_lshl_add_u32 v3, v23, 4, v21
v_xor_b32 v4, 64, v3
s_and_b32 s{J}, s{HG}, 3
s_waitcnt lgkmcnt(0)""")
def mksrd(d,lo,size):
    if lo!=d: a(f"s_mov_b32 s{d}, s{lo}\ns_mov_b32 s{d+1}, s{lo+1}")
    a(f"s_mov_b32 s{d+2}, {size}\ns_mov_b32 s{d+3}, 0x20000")
mksrd(XB_,48,2621440)
a(f"s_cmp_lt_u32 s{HG}, 4\ns_cselect_b32 s{KV_}, s52, s54\ns_cselect_b32 s{KV_+1}, s53, s55")
mksrd(KV_,KV_,25600)
mksrd(WQ_,50,819200); mksrd(WO_,56,819200); mksrd(OUT_,58,5242880); mksrd(WS_,62,WS_SZ); mksrd(XA_,XA_,2621440)
a(f"s_mov_b32 s{DBG}, s60\ns_mov_b32 s{DBG+1}, s61")
a(f"""s_lshl_b32 s6, s2, 3
s_add_u32 s6, s6, s{W}
s_cmp_eq_u32 s6, 5
s_cbranch_scc0 L_nonon
s_or_b32 s66, s66, 1
v_mov_b32 v21, 0
v_mov_b32 v23, s66
s_mov_b64 exec, 1
global_store_dword v21, v23, s[{DBG}:{DBG+1}] sc1
s_mov_b64 exec, -1
L_nonon:""")
a(f"""s_max_u32 s6, s{W}, 4
s_add_u32 s6, s6, s{J}
s_and_b32 s6, s6, 3
s_lshl_b32 s7, s6, 1
s_cmp_lt_u32 s{HG}, 4
s_cselect_b32 s{RBA}, s6, s7
s_cselect_b32 s7, 4, 1
s_add_u32 s{RBB}, s{RBA}, s7
s_bitcmp1_b32 s{RBA}, 0
s_cselect_b64 vcc, -1, 0
v_cndmask_b32 v5, v3, v4, vcc
s_bitcmp1_b32 s{RBB}, 0
s_cselect_b64 vcc, -1, 0
v_cndmask_b32 v6, v3, v4, vcc
s_lshl_b32 s6, s{QB}, 3
s_add_u32 s7, s6, s{RBA}
s_mul_i32 s{SA}, s7, 10240
s_add_u32 s7, s6, s{RBB}
s_mul_i32 s{SB}, s7, 10240
s_lshl_b32 s{LA}, s{RBA}, 10
s_lshl_b32 s{LB}, s{RBB}, 10
s_add_u32 s{LA}, s{LA}, {XBL}
s_add_u32 s{LB}, s{LB}, {XBL}
s_lshl_b32 s{CH}, s{R0}, 1
s_cmp_ge_u32 s{W}, 5
s_cbranch_scc1 L_xrole""")
a(f"s_add_u32 s6, s{R0}, s{W}")
mod5(6,6,7)
a(f"""s_mul_i32 s7, s6, 5120
s_mul_i32 s66, s{W}, 5120
s_mov_b32 m0, s66
s_lshl_b32 s6, s6, 8
s_lshl_b32 s67, s{W}, 14""")
for p in range(4): a(dmab(L16,KV_,'s7',1024*p))
a(f"""s_add_u32 m0, m0, 4096
s_add_u32 s7, s7, 4096
{dmab(L16,KV_,'s7')}
s_add_u32 m0, s{LA}, s67
s_add_u32 s7, s{SA}, s6
{dmab(5,XB_,'s7')}
s_add_u32 m0, m0, {8192-128}
s_add_u32 s6, s{SB}, s6
{dmab(5,XB_,'s7',128)}
s_add_u32 m0, s{LB}, s67
s_nop 0
{dmab(6,XB_,'s6')}
s_add_u32 m0, m0, {8192-128}
s_nop 0
{dmab(6,XB_,'s6',128)}""")
a(f"""v_and_b32 v21, 7, v0
v_lshrrev_b32 v23, 4, v0
v_lshrrev_b32 v24, 1, v21
v_xor_b32 v24, v24, v23
v_lshlrev_b32 v24, 4, v24
v_lshl_add_u32 v24, v21, 7, v24
s_and_b32 s6, s{RBA}, 1
s_lshl_b32 s6, s6, 6
s_add_u32 s6, s6, s{LA}
s_and_b32 s7, s{RBB}, 1
s_lshl_b32 s7, s7, 6
s_add_u32 s7, s7, s{LB}
v_mov_b32 v25, s6
v_mov_b32 v26, s7
v_and_b32 v27, 8, v0
v_cmp_ne_u32 vcc, 0, v27
v_add_u32 v24, s67, v24
s_nop 0
v_cndmask_b32 v25, v25, v26, vcc
v_add_u32 v7, v24, v25""")
a(f"""s_lshl_b32 s6, s{W}, 6
v_add_u32 v21, s6, v0
v_mul_u32_u24 v23, 0x667, v21
v_lshrrev_b32 v23, 14, v23
v_mul_u32_u24 v24, 10, v23
v_sub_u32 v24, v21, v24
v_and_b32 v25, 0x18, v23
v_bfe_u32 v26, v23, 1, 2
v_and_b32 v23, 1, v23
v_lshl_add_u32 v23, v23, 2, v26
v_add_u32 v23, v23, v25
v_mul_u32_u24 v23, 0x500, v23
v_lshl_add_u32 v5, v24, 4, v23
v_mov_b32 v6, v5
s_mov_b32 s{LD_}, s{WQ_}
s_mov_b32 s{LD_+1}, s{WQ_+1}
s_mov_b32 s{LD_+2}, 819200
s_mul_i32 s{SA}, s{HG}, 160
s_add_u32 s{SB}, s{SA}, {32*1280}
s_mov_b32 s{SSTR}, {64*1280}
s_lshl_b32 s{LA}, s{W}, 10
s_add_u32 s{LA}, s{LA}, {RB}
s_add_u32 s{LB}, s{LA}, 5120
s_mov_b32 s{LSTR}, 0
s_branch L_roled
L_xrole:
s_mov_b32 s{LD_}, s{XB_}
s_mov_b32 s{LD_+1}, s{XB_+1}
s_mov_b32 s{LD_+2}, 2621440
s_mov_b32 s{SSTR}, 128
s_mov_b32 s{LSTR}, 1
L_roled:
s_mov_b32 s{LD_+3}, 0x20000""")
def issue_chunk(i):
    a(f"""s_mul_i32 s6, s{CH}, s{SSTR}
    s_mul_i32 s68, s{LSTR}, {(i*8192-(i%5)*10240)&0xffffffff}
    s_add_u32 s68, s68, {(i%5)*10240}
    s_add_u32 m0, s{LA}, s68
    s_add_u32 s7, s6, s{SA}
    {dmab(5,LD_,'s7')}
    s_add_u32 m0, s{LB}, s68
    s_add_u32 s7, s6, s{SB}
    {dmab(6,LD_,'s7')}
    s_add_u32 s{CH}, s{CH}, 1
    s_cmp_eq_u32 s{CH}, 10
    s_cselect_b32 s{CH}, 0, s{CH}""")
issue_chunk(0); issue_chunk(1)

XR=8; WR=12; FA=13
a(f"""s_and_b32 s6, s{W}, 1
s_lshl_b32 s6, s6, 5
v_and_b32 v21, 31, v0
v_add_u32 v21, s6, v21
v_bfe_u32 v22, v21, 1, 3
v_lshrrev_b32 v23, 5, v0
v_xor_b32 v22, v22, v23
v_lshlrev_b32 v21, 7, v21
v_add_u32 v21, {XBL}, v21""")
for s in range(4): a(f"v_xor_b32 v24, {2*s}, v22\nv_lshl_add_u32 v{XR+s}, v24, 4, v21")
a(f"""v_bfe_u32 v21, v0, 2, 2
v_lshl_add_u32 v21, v23, 2, v21
v_mul_u32_u24 v21, 320, v21
v_mov_b32 v24, 0x18081000
v_and_b32 v26, 16, v0
v_cmp_ne_u32 vcc, 0, v26
v_and_b32 v26, 3, v0
v_lshlrev_b32 v26, 3, v26
v_bfe_u32 v24, v24, v26, 8
v_cndmask_b32 v24, v24, 32, vcc
s_lshr_b32 s6, s{W}, 1
s_mul_i32 s6, s6, 40
s_add_u32 s6, s6, {RB}
v_add3_u32 v{WR}, v21, v24, s6""")
a(f"""s_and_b32 s6, s2, 7
s_lshl_b32 s6, s6, 1
s_bfe_u32 s7, s2, 0x10003
s_add_u32 s6, s6, s7
s_lshr_b32 s7, s2, 4
s_lshl_b32 s{PB}, s6, 4
s_add_u32 s{PB}, s{PB}, s7
s_mul_i32 s6, s6, 1280
s_mul_i32 s7, s7, 80
s_add_u32 s6, s6, s7
s_lshl_b32 s7, s{W}, 6
v_add_u32 v21, s7, v0
v_mul_u32_u24 v22, 0xccd, v21
v_lshrrev_b32 v22, 14, v22
v_mul_u32_u24 v23, 5, v22
v_sub_u32 v23, v21, v23
v_mul_u32_u24 v22, {16*1280}, v22
v_lshl_add_u32 v22, v23, 4, v22
v_add_u32 v{FA}, s6, v22
v_add_u32 v{FA+1}, {64*16*1280}, v{FA}""")
a(f"""s_and_b32 s6, s{W}, 1
s_xor_b32 s6, s6, 1
s_lshl_b32 s6, s6, 14
v_lshl_add_u32 v{PF+2}, v0, 8, s6""")
ACC=32; FR=48
zero(ACC,16); zero(17,1)
a(f"s_cmp_ge_u32 s{W}, 5\ns_cbranch_scc1 L_nokv")
a(f"""v_lshrrev_b32 v21, 4, v0
v_bfe_u32 v22, v0, 2, 2
v_lshl_add_u32 v22, v21, 3, v22
v_mul_u32_u24 v22, 40, v22
v_add_u32 v22, s66, v22
v_and_b32 v23, 3, v0
v_lshl_add_u32 v23, v23, 3, v22
v_xor_b32 v24, 64, v7
s_waitcnt vmcnt(4)""")
stamp()
for st in range(4):
    f=FR+12*st
    a(f"ds_read_b128 v[{f}:{f+3}], v{7 if st%2==0 else 24} offset:{8192*(st//2)}")
    for u in range(2): a(f"ds_read_b64_tr_b16 v[{f+4+2*u}:{f+5+2*u}], v23 offset:{(32*st+4*u)*40}")
    for u in range(2): a(f"ds_read_b64_tr_b16 v[{f+8+2*u}:{f+9+2*u}], v22 offset:{(32*st+4*u)*40+32}")
    if st==2: a("s_waitcnt lgkmcnt(10)")
D0=100; D1=104
def kvmm(isK):
    for st in range(4):
        f=FR+12*st
        if st>0: a(f"s_waitcnt lgkmcnt({15-5*st})")
        for D,o in ((D0,4),(D1,8)):
            c='0' if st==0 else f"v[{D}:{D+3}]"
            A,B=(f+o,f) if isK else (f,f+o)
            a(f"v_mfma_f32_16x16x32_bf16 v[{D}:{D+3}], v[{A}:{A+3}], v[{B}:{B+3}], {c}")
a(f"""v_and_b32 v25, 15, v0
s_cmp_ge_u32 s{HG}, 4
s_cbranch_scc1 L_kvV""")
kvmm(True)
a(f"""v_lshrrev_b32 v26, 3, v25
v_and_b32 v27, 7, v25
v_lshlrev_b32 v27, 5, v27
v_lshl_add_u32 v28, v26, 9, v27
v_lshrrev_b32 v29, 1, v21
v_lshl_add_u32 v28, v29, 8, v28
v_and_b32 v29, 1, v21
v_lshl_add_u32 v28, v29, 4, v28
v_lshl_add_u32 v27, v26, 4, v27
v_add_u32 v27, 1024, v27
s_mov_b32 s6, 0xffff
s_mov_b32 s7, 0
s_branch L_kvW
L_kvV:""")
kvmm(False)
a(f"""v_lshrrev_b32 v29, 1, v21
v_mul_u32_u24 v29, 640, v29
v_and_b32 v26, 1, v21
v_lshl_add_u32 v29, v26, 4, v29
v_and_b32 v26, 3, v25
v_lshl_add_u32 v29, v26, 5, v29
v_add_u32 v27, {12*32}, v29
v_and_b32 v26, 12, v25
v_lshlrev_b32 v26, 1, v26
v_mov_b32 v28, 0x04100800
v_bfe_u32 v26, v28, v26, 8
v_lshl_add_u32 v28, v26, 5, v29
s_mov_b32 s6, 0x000f000f
s_mov_b32 s7, 0x000f000f
L_kvW:
v_add_u32 v28, s66, v28
v_add_u32 v27, s66, v27
ds_write_b128 v28, v[{D0}:{D0+3}]
s_mov_b64 exec, s[6:7]
ds_write_b128 v27, v[{D1}:{D1+3}]
s_mov_b64 exec, -1
L_nokv:""")
issue_chunk(2)
a(f"""s_lshr_b32 s6, s{QB}, 1
s_mul_i32 s6, s6, 10240
s_and_b32 s7, s{QB}, 1
s_cmp_ge_u32 s{HG}, 4
s_cbranch_scc1 L_raV
v_and_b32 v21, 7, v0
v_lshlrev_b32 v21, 4, v21
v_bfe_u32 v22, v0, 3, 1
v_lshl_add_u32 v21, v22, 9, v21
v_lshrrev_b32 v22, 4, v0
v_lshl_add_u32 v21, v22, 11, v21
s_lshl_b32 s66, s7, 10
s_lshl_b32 s67, s7, 9
v_mov_b32 v22, s66
v_mov_b32 v23, s67
v_cmp_gt_u32 vcc, 32, v0
s_lshl_b32 s7, s{J}, 7
s_add_u32 s6, s6, s7
v_cndmask_b32 v22, v23, v22, vcc
v_add3_u32 v15, v21, v22, s6
s_branch L_raE
L_raV:
s_lshr_b32 s66, s{J}, 1
s_lshl_b32 s66, s66, 1
s_add_u32 s66, s66, s7
s_lshl_b32 s66, s66, 1
s_and_b32 s7, s{J}, 1
s_add_u32 s66, s66, s7
s_mul_i32 s66, s66, 640
s_add_u32 s6, s6, s66
s_add_u32 s6, s6, 5120
v_add_u32 v15, s6, v{L16}
L_raE:
s_waitcnt lgkmcnt(0)""")

def pre_wo():
    for n in range(5):
        a(f"""s_add_u32 s6, s{W}, {8*n}
        s_lshl_b32 s6, s6, 6
        v_add_u32 v21, s6, v0
        v_mul_u32_u24 v23, 0x199a, v21
        v_lshrrev_b32 v23, 16, v23
        v_mul_u32_u24 v24, 10, v23
        v_sub_u32 v24, v21, v24
        v_and_b32 v25, 0xfff8, v23
        v_bfe_u32 v26, v23, 1, 2
        v_and_b32 v23, 1, v23
        v_lshl_add_u32 v23, v23, 2, v26
        v_add_u32 v23, v23, v25
        v_mul_u32_u24 v23, 0x500, v23
        v_lshl_add_u32 v{WOA+n}, v24, 4, v23""")
def pre_u():
    a(f"""s_and_b32 s{UU}, s2, 7
    s_lshl_b32 s{UU}, s{UU}, 3
    s_bfe_u32 s6, s2, 0x30003
    s_add_u32 s{UU}, s{UU}, s6
    s_lshr_b32 s{QT}, s2, 6
    s_mul_i32 s6, s{UU}, 160
    s_lshr_b32 s7, s{W}, 2
    s_mul_i32 s7, s7, 80
    s_add_u32 s6, s6, s7
    s_and_b32 s7, s{W}, 3
    s_mul_i32 s7, s7, {4*163840}
    s_add_u32 s6, s6, s7
    s_add_u32 s6, s6, {WS_U}
    s_bfe_u32 s7, s{W}, 0x10001
    s_lshl_b32 s7, s7, 2""")
    for i in range(5):
        a(f"""v_add_u32 v21, {64*i}, v0
        v_mul_u32_u24 v22, 205, v21
        v_lshrrev_b32 v22, 14, v22
        v_mul_u32_u24 v23, 80, v22
        v_sub_u32 v23, v21, v23
        v_or_b32 v24, s7, v22
        v_lshlrev_b32 v24, 1, v24
        v_xor_b32 v23, v23, v24
        v_mul_u32_u24 v24, 0xccd, v23
        v_lshrrev_b32 v24, 14, v24
        v_mul_u32_u24 v22, 163840, v22
        v_mul_u32_u24 v24, {10240-80}, v24
        v_lshl_add_u32 v23, v23, 4, s6
        v_add3_u32 v{UA+i}, v22, v23, v24""")
def pre_m():
    a(f"""s_lshr_b32 s{MIR}, s{QT}, 1
    s_sub_u32 s6, 128, s{UU}
    s_cmp_eq_u32 s{UU}, 0
    s_cselect_b32 s6, 64, s6
    s_cselect_b32 s66, 0, 512
    s_cmp_eq_u32 s{MIR}, 0
    s_cselect_b32 s{T0}, s{UU}, s6
    s_and_b32 s6, s{QT}, 1
    s_lshl_b32 s6, s6, 10
    s_add_u32 s{T0}, s{T0}, s6
    s_mul_i32 s6, s66, 3
    s_cmp_eq_u32 s{MIR}, 0
    s_cselect_b32 s66, s6, s66
    v_bfe_u32 v21, v0, 1, 3
    v_lshl_add_u32 v21, v21, 7, s{T0}
    v_and_b32 v22, 1, v0
    v_lshlrev_b32 v22, 9, v22
    v_lshrrev_b32 v23, 5, v0
    v_mad_u32_u24 v22, v23, s66, v22
    v_cmp_eq_u32 vcc, s{MIR}, v23
    v_bfe_u32 v24, v0, 4, 1
    v_lshlrev_b32 v24, 3, v24
    v_mad_u32_u24 v22, v24, v21, v22
    s_mov_b32 s6, {hex(f2u(1/2048))}
    s_cmp_eq_u32 s{UU}, 0
    s_cselect_b64 vcc, vcc, -1""")
    for i in range(8):
        a(f"""v_and_b32 v24, 0x7ff, v22
        v_cvt_f32_u32 v24, v24
        v_mul_f32 v24, s6, v24
        v_cos_f32 v{25+(i&1)}, v24
        v_add_u32 v22, v22, v21""")
        if i&1: a(f"v_cvt_pk_bf16_f32 v24, v25, v26\nv_cndmask_b32 v{MM+i//2}, 0, v24, vcc")

FT=116
def qmm(i):
    for s in range(4):
        f=FR+32*(i%2)+8*s
        a(f"v_mfma_f32_32x32x16_bf16 v[{ACC}:{ACC+15}], v[{f+4}:{f+7}], v[{f}:{f+3}], v[{ACC}:{ACC+15}]")
for i in range(10):
    a(f"s_waitcnt vmcnt({6 if i==9 else 4})")
    if i==2:
        a(f"""s_cmp_eq_u32 s{W}, 7
        s_cbranch_scc0 L_nofl1
        s_mov_b32 s{CNT}, 0
        L_non:
        v_readfirstlane_b32 s{NON}, v16
        s_add_u32 s{CNT}, s{CNT}, 1
        s_cmp_gt_u32 s{CNT}, {SPIN}
        s_cbranch_scc1 L_gotnon
        s_cmp_lg_u32 s{NON}, 0
        s_cbranch_scc1 L_gotnon
        global_load_dword v16, v17, s[{DBG}:{DBG+1}] sc1
        s_waitcnt vmcnt(0)
        s_branch L_non
        L_gotnon:
        s_lshl_b32 s6, s2, 7
        s_add_u32 s6, s6, {WS_F1}
        v_mov_b32 v18, {NONL}
        s_mov_b64 exec, 1
        buffer_store_dword v16, v17, {S(WS_)}, s6 offen sc1
        ds_write_b32 v18, v16
        s_mov_b64 exec, -1
        s_waitcnt lgkmcnt(0)
        L_nofl1:""")
    a("s_barrier")
    if i==0:
        stamp()
        a(f"""s_cmp_eq_u32 s{W}, 7
        s_cbranch_scc0 L_nored
        v_lshlrev_b32 v21, 5, v0
        global_load_dword v16, v17, s[{DBG}:{DBG+1}] sc1
        s_mov_b32 exec_hi, 0xff""")
        for p in range(5):
            for hh in range(2): a(f"ds_read_b128 v[{132+8*p+4*hh}:{135+8*p+4*hh}], v21 offset:{5120*p+16*hh}")
        for p in range(1,5):
            a(f"s_waitcnt lgkmcnt({8-2*p})")
            for r in range(8): a(f"v_add_f32 v{132+r}, v{132+r}, v{132+8*p+r}")
        for r in range(4): a(f"v_cvt_pk_bf16_f32 v{140+r}, v{132+2*r}, v{133+2*r}")
        a(f"""buffer_store_dwordx4 v[140:143], v15, {S(WS_)}, 0 offen sc1
        s_mov_b32 exec_hi, -1
        L_nored:""")
    if i==8:
        for s in range(4): a(f"v_add_u32 v{XR+s}, 0x10000, v{XR+s}")
    for s in range(4):
        f=FR+32*(i%2)+8*s
        a(f"""ds_read_b128 v[{f}:{f+3}], v{XR+s} offset:{(8192*i)&0xffff}
        ds_read_b64_tr_b16 v[{f+4}:{f+5}], v{WR} offset:{(i%5)*10240+16*s*160}
        ds_read_b64_tr_b16 v[{f+6}:{f+7}], v{WR} offset:{(i%5)*10240+(16*s+1)*160}""")
    if i==3: a(f"v_mov_b32 v18, {NONL}\nds_read_b32 v16, v18")
    if i>0: qmm(i-1)
    if i<7: issue_chunk(i+3)
    if i==1: pre_wo()
    if i==3: pre_u()
    if i==4: a(f"v_readfirstlane_b32 s{NON}, v16"); pre_m()
    if i==7:
        a(f"""s_cmp_ge_u32 s{W}, 5
        s_cbranch_scc1 L_poll1
        s_mov_b32 m0, s{LA}
        s_nop 0
        {dmab(FA,XA_,'0')}
        s_mov_b32 m0, s{LB}
        s_nop 0
        {dmab(FA+1,XA_,'0')}
        s_branch L_poll1e
        L_poll1:
        s_mov_b32 s6, {WS_F1}
        buffer_load_dword v{PF}, v{PF+2}, {S(WS_)}, s6 offen sc1
        buffer_load_dword v{PF+1}, v{PF+2}, {S(WS_)}, s6 offen offset:128 sc1
        L_poll1e:""")
    if i==8:
        a(f"""s_add_u32 s66, s{TAB}, tab_f128-L_pc
        s_addc_u32 s67, s{TAB+1}, 0
        s_lshl_b32 s6, s{W}, 12
        v_add_u32 v21, s6, v{L16}""")
        for s in range(4): a(f"global_load_dwordx4 v[{FT+4*s}:{FT+3+4*s}], v21, s[66:67] offset:{1024*s}")
    a("s_waitcnt lgkmcnt(0)")
qmm(9)
stamp()
def pollcheck(tag, base):
    a(f"""s_cmp_ge_u32 s{W}, 5
    s_cbranch_scc0 L_{tag}ok
    s_mov_b32 s{CNT}, 0
    s_mov_b32 s6, {base}
    L_{tag}:
    v_cmp_ne_u32 vcc, s{NON}, v{PF}
    v_cmp_ne_u32 s[66:67], s{NON}, v{PF+1}
    s_add_u32 s{CNT}, s{CNT}, 1
    s_or_b64 vcc, vcc, s[66:67]
    s_cbranch_scc0 L_{tag}ok
    s_cmp_gt_u32 s{CNT}, {SPIN}
    s_cbranch_scc1 L_{tag}ok
    buffer_load_dword v{PF}, v{PF+2}, {S(WS_)}, s6 offen sc1
    buffer_load_dword v{PF+1}, v{PF+2}, {S(WS_)}, s6 offen offset:128 sc1
    s_waitcnt vmcnt(0)
    s_branch L_{tag}
    L_{tag}ok:""")
a("s_waitcnt vmcnt(4)")
pollcheck('pk',WS_F1)
a("s_barrier")
stamp()
dma=f"buffer_load_dwordx4 v{L16}, {S(WS_)}, m0 offen sc1 lds"
bump="s_add_u32 m0, m0, 8192"
NPRE=4
a(f"s_lshl_b32 m0, s{W}, 10\ns_nop 0")
for i in range(NPRE): a(dma+"\n"+bump+"\ns_nop 0")
a(f"""v_lshrrev_b32 v21, 4, v0
v_bfe_u32 v22, v0, 2, 2
v_lshl_add_u32 v22, v21, 3, v22
v_mul_u32_u24 v22, 80, v22
v_and_b32 v23, 3, v0
v_add_u32 v22, {RB}, v22
v_lshl_add_u32 v24, v23, 4, v22
v_and_b32 v23, 1, v0
v_lshl_add_u32 v25, v23, 3, v22""")
D=[100,104,108]
def p1mm(sp):
    fp=FR+12*sp
    for T in range(3):
        c='0' if sp==0 else f"v[{D[T]}:{D[T]+3}]"
        a(f"v_mfma_f32_16x16x32_bf16 v[{D[T]}:{D[T]+3}], v[{fp+4*T}:{fp+4*T+3}], v[{FT+4*sp}:{FT+3+4*sp}], {c}")
for s in range(4):
    f=FR+12*s
    for T in range(3):
        for u in range(2):
            ad,co=(24,8*T) if T<2 else (25,64)
            a(f"ds_read_b64_tr_b16 v[{f+4*T+2*u}:{f+4*T+2*u+1}], v{ad} offset:{(32*s+4*u)*80+co}")
    if s==1: a(f"s_waitcnt vmcnt({NPRE})")
    if s>=1: a("s_waitcnt lgkmcnt(6)"); p1mm(s-1)
a("s_waitcnt lgkmcnt(0)"); p1mm(3)
Q16=4; Q4=8; IDX=10; AK=3; AV=1; HH=11
CM=12; O=28; SS=[44,76]; KF=[108,116]; K4=[124,128]; VF=[132,148]; T=164
a(f"s_mov_b32 s7, {hex(f2u(CSCALE))}")
for i in range(12): a(f"v_mul_f32 v{ACC+i}, s7, v{ACC+i}")
for i in range(6): a(f"v_cvt_pk_bf16_f32 v{Q16+i}, v{ACC+2*i}, v{ACC+2*i+1}")
a(f"""s_mul_i32 s6, s{W}, 1280
s_add_u32 s7, s6, {RB+10240}
v_and_b32 v22, 15, v0
v_mul_u32_u24 v22, 80, v22
v_add_u32 v22, s7, v22
v_lshl_add_u32 v23, v21, 3, v22
v_lshl_add_u32 v22, v21, 4, v22
v_add_u32 v24, s7, v{L16}
v_cvt_pk_bf16_f32 v100, v100, v101
v_cvt_pk_bf16_f32 v101, v102, v103
v_cvt_pk_bf16_f32 v102, v104, v105
v_cvt_pk_bf16_f32 v103, v106, v107
v_cvt_pk_bf16_f32 v104, v108, v109
v_cvt_pk_bf16_f32 v105, v110, v111
ds_write_b128 v22, v[100:103]
s_mov_b32 exec_hi, 0
ds_write_b64 v23, v[104:105] offset:64
s_mov_b32 exec_hi, -1
ds_read_b128 v[48:51], v24
ds_read_b128 v[52:55], v24 offset:1024
s_mul_i32 s7, s{PB}, 10240
s_add_u32 s6, s6, s7
s_add_u32 s6, s6, {WS_U}
v_mov_b32 v{AK}, v{L16}
v_lshrrev_b32 v{HH}, 5, v0
v_and_b32 v{T}, 31, v0
v_mad_u32_u24 v{AV}, v{HH}, 20, v{T}
v_lshlrev_b32 v{AV}, 4, v{AV}
v_mov_b32 v{IDX}, 0xdddddddd
s_mov_b32 s{VM}, 0xfffff
s_mov_b32 s{VM+1}, 0xfffff
v_and_b32 v21, 27, v0
v_cmp_eq_u32 vcc, 24, v21
v_mov_b32 v21, 0x3f803f80
s_waitcnt lgkmcnt(0)
buffer_store_dwordx4 v[48:51], v{L16}, {S(WS_)}, s6 offen sc1
s_mov_b64 exec, 0xffff
buffer_store_dwordx4 v[52:55], v{L16}, {S(WS_)}, s6 offen offset:1024 sc1
s_mov_b64 exec, -1""")
for i in range(32): a(f"v_cndmask_b32 v{VF[0]+i}, 0, v21, vcc")
zero(O,16)
a(f"s_setprio 3\ns_waitcnt vmcnt({NPRE})\ns_barrier")
stamp()
def koff(g,t): return (g>>1)*10240+(2*(g&1)+t)*1024
def k4off(g): return (g>>1)*10240+4096
def voff(g,u): return (g>>1)*10240+5120+(4*(g&1)+u)*640
on=f"s_mov_b64 exec, s[{VM}:{VM+1}]"; off="s_mov_b64 exec, -1"
def M16(d,k,c): return f"v_mfma_f32_32x32x16_bf16 v[{d}:{d+15}], v[{k}:{k+3}], v[{Q16}:{Q16+3}], {c}"
def M4(d,k): return f"v_mfma_f32_32x32x4_2b_bf16 v[{d}:{d+31}], v[{k}:{k+1}], v[{Q4}:{Q4+1}], v[{d}:{d+31}]"
def SM(v,x): return f"v_smfmac_f32_32x32x32_bf16 v[{O}:{O+15}], v[{v}:{v+3}], v[{x}:{x+7}], v{IDX}"
CMr=f"v[{CM}:{CM+15}]"
a(f"""ds_read_b128 v[{KF[0]}:{KF[0]+3}], v{AK} offset:{koff(0,0)}
ds_read_b128 v[{KF[0]+4}:{KF[0]+7}], v{AK} offset:{koff(0,1)}
ds_read_b128 v[{K4[0]}:{K4[0]+3}], v{AK} offset:{k4off(0)}
ds_read_b128 v[{KF[1]}:{KF[1]+3}], v{AK} offset:{koff(1,0)}
ds_read_b128 v[{KF[1]+4}:{KF[1]+7}], v{AK} offset:{koff(1,1)}
{on}""")
for u in range(4): a(f"ds_read_b128 v[{VF[0]+4*u}:{VF[0]+4*u+3}], v{AV} offset:{voff(0,u)}")
X=SS[0]
a(f"""{off}
s_waitcnt lgkmcnt(6)
{M16(X,KF[0],'0')}
{M16(X+16,KF[0]+4,'0')}
s_nop 9
{M4(X,K4[0])}
s_nop 15
s_nop 3""")
a(f"v_max3_f32 v{T+2}, v{X}, v{X+1}, v{X+2}\nv_max3_f32 v{T+3}, v{X+3}, v{X+4}, v{X+5}")
for i in range(6,32,4):
    a(f"v_max3_f32 v{T+2}, v{T+2}, v{X+i}, v{X+i+1}")
    if i+2<32: a(f"v_max3_f32 v{T+3}, v{T+3}, v{X+i+2}, v{X+i+3}")
a(f"""v_max_f32 v{T+2}, v{T+2}, v{T+3}
v_mov_b32 v{T+3}, v{T+2}
s_nop 1
v_permlane32_swap_b32 v{T+2}, v{T+3}
v_max_f32 v{T+2}, v{T+2}, v{T+3}
v_sub_f32 v{CM}, {hex(f2u(-OFFS))}, v{T+2}""")
for i in range(1,16): a(f"v_mov_b32 v{CM+i}, v{CM}")
a(f"s_waitcnt lgkmcnt(0)\ns_nop 0\n{M16(SS[1],KF[1],CMr)}")
for i in range(32): a(f"v_add_f32 v{X+i}, v{CM}, v{X+i}")
pos=dict(smp=2,mB=5,s0=10,mC=13,s1=21,s2=26,mA=29)
order=sorted(pos,key=lambda k:pos[k])
ndma=NPRE; kbase=0; vbase=0
WOL=0; UL=102400; VL=143360
bg={g:[] for g in range(32)}
bg[8].append([f"s_add_u32 s66, s{TAB}, tab_hid-L_pc",f"s_addc_u32 s67, s{TAB+1}, 0"])
for qd in range(13):
    ops=[f"global_load_dwordx4 v[{TB+4*qd}:{TB+4*qd+3}], v{L16}, s[66:67] offset:{1024*(qd%4)}"]
    if qd%4==3: ops+=["s_add_u32 s66, s66, 4096","s_addc_u32 s67, s67, 0"]
    bg[9+qd//2].append(ops)
bg[20].append([f"s_lshl_b32 m0, s{W}, 10",f"s_mul_i32 s68, s{HG}, 160"])
for n in range(13):
    ops=[dmab(WOA+n%5,WO_,'s68'),bump]
    if n%5==4: ops.append(f"s_add_u32 s68, s68, {256*1280}")
    if n==12: ops=[f"s_cmp_ge_u32 s{W}, 4","s_cbranch_scc1 L_nowo",ops[0],"L_nowo:"]
    bg[20+(n+1)//2].append(ops)
bg[19].append([f"s_cmp_ge_u32 s{W}, 5","s_cbranch_scc0 L_np2",f"s_mov_b32 s6, {WS_F2}",
   f"buffer_load_dword v{PF}, v{PF+2}, {S(WS_)}, s6 offen sc1",f"buffer_load_dword v{PF+1}, v{PF+2}, {S(WS_)}, s6 offen offset:128 sc1","L_np2:"])
bg[28].append([f"s_mul_i32 s6, s{W}, 5120",f"s_add_u32 m0, s6, {UL}"])
for i in range(5): bg[28+(i+1)//3].append([dmab(UA+i,WS_,'0',0,'sc1'),"s_add_u32 m0, m0, 1024"])
for g in range(32):
    X=SS[g%2]; Y=SS[(g+1)%2]; g1=g+1; g2=g+2
    m={}
    m['mA']=M16(X,KF[g2%2],CMr) if g2<32 else None
    m['mB']=M16(Y+16,KF[g1%2]+4,CMr) if g1<32 else None
    m['mC']=M4(Y,K4[(g1//2)%2]+2*(g1%2)) if g1<32 else None
    for i in range(3): m[f's{i}']=SM(VF[g%2]+4*i,X+8*i)
    m['smp']=SM(VF[(g-1)%2]+12,Y+24) if g>0 else "s_nop 0"
    aft={k:[] for k in pos}
    pre=[]
    if g2<32 and k4off(g2)-kbase>=61440:
        pre.append(f"v_add_u32 v{AK}, 61440, v{AK}"); kbase+=61440
    if g1<32 and voff(g1,3)-vbase>=61440:
        pre.append(f"v_add_u32 v{AV}, 61440, v{AV}"); vbase+=61440
    if g==1: aft['smp']+= [f"s_waitcnt vmcnt({ndma-5})","s_barrier"]
    if g==6:
        aft['smp']+= ["s_waitcnt vmcnt(0)","s_barrier",f"s_cmp_eq_u32 s{W}, 7","s_cbranch_scc0 L_nofl2",
            f"s_lshl_b32 s6, s2, 7",f"s_add_u32 s6, s6, {WS_F2}",f"v_mov_b32 v{PF}, s{NON}","s_mov_b64 exec, 1",
            f"buffer_store_dword v{PF}, v{L16}, {S(WS_)}, s6 offen sc1",off,"L_nofl2:"]
    if g==20: aft['smp']+= ["s_barrier"]
    if g==28: aft['smp']+= ["POLL2","s_barrier"]
    if g2<32:
        aft['smp'].append(f"ds_read_b128 v[{KF[g2%2]}:{KF[g2%2]+3}], v{AK} offset:{koff(g2,0)-kbase}")
        aft['mB']+=["s_waitcnt lgkmcnt(1)", f"ds_read_b128 v[{KF[g2%2]+4}:{KF[g2%2]+7}], v{AK} offset:{koff(g2,1)-kbase}"]
        if g2%2==0: aft['mC'].append(f"ds_read_b128 v[{K4[(g2//2)%2]}:{K4[(g2//2)%2]+3}], v{AK} offset:{k4off(g2)-kbase}")
    else:
        aft['smp'].append("s_waitcnt lgkmcnt(0)")
    if g1<32:
        b=VF[g1%2]
        vv=[f"ds_read_b128 v[{b+4*i}:{b+4*i+3}], v{AV} offset:{voff(g1,i)-vbase}" for i in range(4)]
        aft['s0']+=[on,vv[0],vv[1],off]; aft['s1']+=[on,vv[2],vv[3],off]
        aft['s2'].append("s_waitcnt lgkmcnt(2)")
    for k in ['mA','s2','mC','mB']:
        if ndma<20:
            aft[k]+=[dma,bump]; ndma+=1
    assert len(bg[g])<=3
    for k,ops in zip(['mB','s2','mA'][3-len(bg[g]):],bg[g]): aft[k]+=ops
    PR={4:2,5:1, 6:3,14:2,18:1,19:0, 20:3,25:2,27:1, 28:3,30:2,31:1}
    if g in PR: aft['mB' if g in (6,20,28) else 'smp'].append(f"s_setprio {PR[g]}")
    ins={i:[] for i in range(33)}
    ins[0]+=pre
    for k in order:
        if m[k]: ins[pos[k]].append(m[k])
        ins[pos[k]]+=aft[k]
    for i in range(33):
        for x in ins[i]:
            if x=="POLL2": a("s_waitcnt vmcnt(12)"); pollcheck('pu',WS_F2)
            else: a(x)
        if i<32: a(f"v_exp_f32 v{X+i}, v{X+i}")
a("s_nop 1\n"+SM(VF[1]+12,SS[1]+24))
a(f"s_setprio 0\ns_mov_b32 s{SLOW}, 0\nL_check:")
stamp()
a(f"""s_lshl_b32 s6, s{QB}, 1
s_and_b32 s7, s{W}, 1
s_add_u32 s6, s6, s7
s_mul_i32 s68, s6, 40960
s_lshl_b32 s7, s{HG}, 2
s_lshr_b32 s6, s{W}, 1
s_add_u32 s7, s7, s6
s_add_u32 s68, s68, {WS_O}
s_lshl_b32 s69, s7, 8
s_lshl_b32 s7, s7, 10
s_add_u32 s69, s69, s68
s_add_u32 s68, s68, s7
s_add_u32 s69, s69, 32768
v_max3_f32 v{T+2}, |v{O}|, |v{O+1}|, |v{O+2}|
v_max3_f32 v{T+3}, |v{O+3}|, |v{O+4}|, |v{O+5}|
v_max3_f32 v{T+2}, v{T+2}, |v{O+6}|, |v{O+7}|
v_max3_f32 v{T+4}, |v{O+8}|, |v{O+9}|, |v{O+10}|
v_max_f32 v{T+2}, v{T+2}, v{T+3}
v_max3_f32 v{T+4}, v{T+4}, |v{O+11}|, v{T+2}
v_rcp_f32 v{T+5}, v{O+12}
v_cmp_gt_f32 vcc, {hex(f2u(2.0**110))}, v{O+12}
s_mov_b32 s6, 0x7f800000
s_mov_b32 s7, {hex(f2u(2.0**-(OFFS+14)))}
v_cmp_gt_f32 s[66:67], s6, v{T+4}
s_and_b64 vcc, vcc, s[66:67]
v_cmp_lt_f32 s[66:67], s7, v{T+2}
v_lshlrev_b32 v{T+3}, 3, v0
s_and_b64 vcc, vcc, s[66:67]
s_cmp_eq_u64 vcc, -1
s_cbranch_scc0 L_slow
L_store:""")
for i in range(12): a(f"v_mul_f32 v{O+i}, v{T+5}, v{O+i}")
for i in range(6): a(f"v_cvt_pk_bf16_f32 v{12+i}, v{O+2*i}, v{O+2*i+1}")
a(f"""buffer_store_dwordx4 v[12:15], v{L16}, {S(WS_)}, s68 offen sc1
s_mov_b32 exec_hi, 0
buffer_store_dwordx2 v[16:17], v{T+3}, {S(WS_)}, s69 offen sc1
s_mov_b32 exec_hi, -1""")
F=48
a(f"""v_lshrrev_b32 v21, 4, v0
v_bfe_u32 v22, v0, 2, 2
v_lshl_add_u32 v24, v21, 3, v22
v_mul_u32_u24 v24, 0x500, v24
v_bfe_u32 v25, v0, 2, 3
v_xor_b32 v25, s{W}, v25
v_lshl_add_u32 v24, v25, 5, v24
v_and_b32 v25, 3, v0
v_lshl_add_u32 v24, v25, 3, v24
v_add_u32 v24, {UL}, v24
v_and_b32 v26, 15, v0
s_lshl_b32 s6, s{W}, 2
v_or_b32 v27, s6, v21
v_xor_b32 v27, v27, v26
v_mul_u32_u24 v26, 0x500, v26
v_lshl_add_u32 v26, v27, 3, v26
v_add_u32 v26, {VL}, v26
s_waitcnt vmcnt(2)
s_barrier""")
stamp()
for i in range(5):
    for u in range(2): a(f"ds_read_b64_tr_b16 v[{F+4*i+2*u}:{F+4*i+2*u+1}], v24 offset:{256*i+5120*u}")
for i in range(5):
    a(f"s_waitcnt lgkmcnt({8-2*i})\nv_mfma_f32_16x16x32_bf16 v[{F+20+4*i}:{F+23+4*i}], v[{F+4*i}:{F+4*i+3}], v[{MM}:{MM+3}], 0")
a(f"""v_lshl_add_u32 v22, v{HH}, 3, v22
v_mul_u32_u24 v22, 40, v22
v_lshlrev_b32 v25, 3, v25
v_and_b32 v27, 16, v0
v_cmp_ne_u32 vcc, 0, v27
s_mul_i32 s6, s{W}, 2560
s_add_u32 s6, s6, {VL}
v_cndmask_b32 v25, v25, 32, vcc
s_lshl_b32 s7, s{W}, 4
v_add_u32 v22, v22, v25
v_add_u32 v23, 160, v22
v_xor_b32 v22, s7, v22
v_xor_b32 v23, s7, v23
v_add_u32 v28, s6, v22
v_add_u32 v29, s6, v23
v_xor_b32 v30, 8, v28
v_xor_b32 v31, 8, v29""")
for i in range(5):
    d=F+20+4*i
    a(f"v_cvt_pk_bf16_f32 v{d}, v{d}, v{d+1}\nv_cvt_pk_bf16_f32 v{d+1}, v{d+2}, v{d+3}\nds_write_b64 v26, v[{d}:{d+1}] offset:{256*i}")
NF=36
for i in range(8): a(f"v_xor_b32 v{NF+i}, 0x80008000, v{TB+8+i}")
a(f"""s_waitcnt vmcnt(0) lgkmcnt(0)
s_barrier
s_cmp_eq_u32 s{W}, 0
s_cbranch_scc0 L_nofl3
s_lshl_b32 s6, s{QB}, 3
s_add_u32 s6, s6, s{HG}
s_lshl_b32 s6, s6, 7
s_add_u32 s6, s6, {WS_F3}
v_mov_b32 v{PF}, s{NON}
s_mov_b64 exec, 1
buffer_store_dword v{PF}, v{L16}, {S(WS_)}, s6 offen sc1
s_mov_b64 exec, -1
L_nofl3:""")
stamp()
for p in range(2):
    for s in range(2):
        for u in range(2):
            a(f"ds_read_b64_tr_b16 v[{F+8*p+4*s+2*u}:{F+8*p+4*s+2*u+1}], v{28+2*p+u} offset:{1280*p+640*s}")
TR=F+16; TI=F+32
def mm(d,A,B,c): return f"v_mfma_f32_32x32x16_bf16 v[{d}:{d+15}], v[{A}:{A+3}], v[{B}:{B+3}], {c}"
TRr=f"v[{TR}:{TR+15}]"; TIr=f"v[{TI}:{TI+15}]"
a("s_waitcnt lgkmcnt(6)"); a(mm(TR,F,TB,'0')); a(mm(TI,F,TB+8,'0'))
a("s_waitcnt lgkmcnt(4)"); a(mm(TR,F+4,TB+4,TRr)); a(mm(TI,F+4,TB+12,TIr))
a("s_waitcnt lgkmcnt(2)"); a(mm(TR,F+8,NF,TRr)); a(mm(TI,F+8,TB,TIr))
a("s_waitcnt lgkmcnt(0)"); a(mm(TR,F+12,NF+4,TRr)); a(mm(TI,F+12,TB+4,TIr))
def grp_bytes(k0): return ((k0&~7)+((k0>>2)&1))
tabs=[]
for kind in range(2):
    for u in range(2):
        vals=[grp_bytes(20*(g>>1)+12*(g&1)+4*u) if kind==0 else grp_bytes(20*(4*u+g)+8) for g in range(4)]
        tabs.append(sum(v<<(8*g) for g,v in enumerate(vals)))
a(f"""v_bfe_u32 v22, v0, 2, 2
v_mul_u32_u24 v22, 320, v22
v_and_b32 v23, 3, v0
v_lshl_add_u32 v22, v23, 3, v22
s_and_b32 s6, s{W}, 3
s_lshl_b32 s6, s6, 5
v_add_u32 v22, s6, v22
v_lshlrev_b32 v23, 3, v21
s_movk_i32 s7, 160""")
for i in range(4):
    a(f"v_mov_b32 v24, {hex(tabs[i])}\nv_bfe_u32 v24, v24, v23, 8\nv_mad_u32_u24 v{12+i}, v24, s7, v22")
WRr=TB+16; WI=TB+28; GG=TB+40; P=16
for i in range(12):
    a(f"""v_mul_f32 v{P}, v{TI+i}, v{WI+i}
    v_mul_f32 v{P+1}, v{TR+i}, v{WI+i}
    v_fma_f32 v{TR+i}, v{TR+i}, v{WRr+i}, -v{P}
    v_fma_f32 v{TI+i}, v{TI+i}, v{WRr+i}, v{P+1}""")
for j in range(3):
    a(f"""v_cvt_pk_bf16_f32 v{F+4*j}, v{TR+4*j}, v{TR+4*j+1}
    v_cvt_pk_bf16_f32 v{F+4*j+1}, v{TR+4*j+2}, v{TR+4*j+3}
    v_cvt_pk_bf16_f32 v{F+4*j+2}, v{TI+4*j}, v{TI+4*j+1}
    v_cvt_pk_bf16_f32 v{F+4*j+3}, v{TI+4*j+2}, v{TI+4*j+3}""")
Y=28
a("s_nop 1")
a(mm(Y,F,GG,'0')); a(mm(Y,F+4,GG+4,f"v[{Y}:{Y+15}]")); a(mm(Y,F+8,GG+8,f"v[{Y}:{Y+15}]"))
WA=92; WX=172
def wo_reads(base, add):
    n=0
    for half in range(2):
        for st in range(8*half,8*half+8):
            for u in range(2):
                a(f"ds_read_b64_tr_b16 v[{base+4*st+2*u}:{base+4*st+2*u+1}], v{add+u} offset:{6400*(st-8*half)}")
        for st in range(2*half,2*half+2):
            for u in range(2):
                a(f"ds_read_b64_tr_b16 v[{base+64+4*st+2*u}:{base+64+4*st+2*u+1}], v{add+2+u} offset:{25600*(st-2*half)}")
        if half==0:
            for i in range(4): a(f"v_add_u32 v{add+i}, 51200, v{add+i}")
wo_reads(WA,12)
a(f"""s_lshl_b32 s6, s{W}, 7
s_add_u32 s6, s6, s{T0}
s_mul_i32 s6, s6, 2560
v_lshlrev_b32 v22, 6, v0
v_and_b32 v22, 0x7c0, v22
v_lshl_add_u32 v22, v{HH}, 5, v22""")
for i in range(8): a(f"v_cvt_pk_bf16_f32 v{48+i}, v{Y+2*i}, v{Y+2*i+1}")
a(f"""{on}
buffer_store_dwordx4 v[48:51], v22, {S(OUT_)}, s6 offen
buffer_store_dwordx4 v[52:55], v22, {S(OUT_)}, s6 offen offset:16
{off}
s_add_u32 s6, s{W}, 2
s_bitcmp1_b32 s6, 2
s_cselect_b32 s{CH}, 0, 1
s_cbranch_scc1 L_noex1
s_and_b32 s6, s{W}, 3
s_lshl_b32 s6, s6, 5
s_sub_u32 s6, {(128-51200)&0xffffffff}, s6""")
for i in range(4): a(f"v_add_u32 v{12+i}, s6, v{12+i}")
wo_reads(WX,12)
a("L_noex1:")
OLB=0; STG=81920
a(f"""s_lshr_b32 s6, s{W}, 2
s_mul_i32 s7, s6, 40960
v_and_b32 v22, 15, v0
v_lshlrev_b32 v23, 4, v22
v_lshl_add_u32 v23, v21, 9, v23
v_add_u32 v16, s7, v23
v_lshrrev_b32 v23, 1, v23
s_add_u32 s7, s7, 32768
v_add_u32 v17, s7, v23
s_mul_i32 s6, s6, {32*176}
s_add_u32 s6, s6, {STG}
v_mul_u32_u24 v22, 176, v22
v_lshl_add_u32 v22, v21, 3, v22
v_add_u32 v18, s6, v22
s_lshl_b32 s6, s{QB}, 1
s_lshr_b32 s7, s{W}, 2
s_add_u32 s6, s6, s7
s_mul_i32 s68, s6, 40960
s_mul_i32 s7, s7, 40960
s_and_b32 s6, s{W}, 3
s_lshl_b32 s6, s6, 10
s_add_u32 m0, s7, s6
s_add_u32 s68, s68, s6
s_add_u32 s68, s68, {WS_O}""")
zero(24,12)
a(f"""s_cmp_eq_u32 s{W}, 2
s_cbranch_scc0 L_pook
s_lshl_b32 s6, s{QB}, 10
s_add_u32 s6, s6, {WS_F3}
v_and_b32 v22, 7, v0
v_lshlrev_b32 v22, 7, v22
s_mov_b32 s{CNT}, 0
L_po:
buffer_load_dword v23, v22, {S(WS_)}, s6 offen sc1
s_add_u32 s{CNT}, s{CNT}, 1
s_waitcnt vmcnt(0)
v_cmp_ne_u32 vcc, s{NON}, v23
s_cmp_gt_u32 s{CNT}, {SPIN}
s_cbranch_scc1 L_pook
s_cbranch_vccnz L_po
L_pook:
s_waitcnt lgkmcnt(0)
s_barrier""")
stamp()
def odma(): a(f"{dmab(L16,WS_,'s68',0,'sc1')}\ns_add_u32 m0, m0, 4096\ns_add_u32 s68, s68, 4096")
for n in range(6): odma()
BF=[36,60]
BF=[36,60]
def oreads(c):
    b=36 if c%2==0 else 60
    return b
BB=[36,52,68]
def rd(hc):
    b=BB[hc%3]
    for k in range(2):
        st=2*hc+k
        for qt in range(2):
            r=b+8*k+4*qt
            if st<16: a(f"ds_read_b128 v[{r}:{r+3}], v16 offset:{2048*st+256*qt}")
            else:
                for u in range(2): a(f"ds_read_b64 v[{r+2*u}:{r+2*u+1}], v17 offset:{2048*(st-16)+1024*u+128*qt}")
def mmo(hc,tag):
    b=BB[hc%3]
    for k in range(2):
        st=2*hc+k
        for qt in range(2):
            r=b+8*k+4*qt
            a(f"v_mfma_f32_16x16x32_bf16 v[{24+4*qt}:{27+4*qt}], v[{WA+4*st}:{WA+4*st+3}], v[{r}:{r+3}], v[{24+4*qt}:{27+4*qt}]")
    a(f"s_cmp_eq_u32 s{CH}, 0\ns_cbranch_scc1 L_nx{tag}\ns_bitcmp1_b32 s{W}, 0\ns_cbranch_scc1 L_x1{tag}")
    for qt in range(2):
        for k in range(2):
            st=2*hc+k; r=b+8*k+4*qt
            a(f"v_mfma_f32_16x16x32_bf16 v[32:35], v[{WX+4*st}:{WX+4*st+3}], v[{r}:{r+3}], v[32:35]")
        if qt==0: a(f"s_branch L_nx{tag}\nL_x1{tag}:")
    a(f"L_nx{tag}:")
issued=6
for c in range(5):
    a(f"s_waitcnt vmcnt({issued-2*c-2})\ns_barrier")
    rd(2*c); rd(2*c+1)
    if c>0: mmo(2*c-1,f"a{c}")
    nr=4 if c<4 else 8
    a(f"s_waitcnt lgkmcnt({nr})")
    mmo(2*c,f"b{c}")
    if issued<10: odma(); odma(); issued+=2
    a("s_waitcnt lgkmcnt(0)")
mmo(9,"z")
stamp()
a(f"""s_lshl_b32 s6, s{W}, 6
v_add_u32 v21, s6, v0
v_mul_u32_u24 v22, 0x667, v21
v_lshrrev_b32 v22, 14, v22
v_mul_u32_u24 v23, 10, v22
v_sub_u32 v23, v21, v23
v_lshlrev_b32 v23, 4, v23
v_mul_u32_u24 v12, 176, v22
v_mul_u32_u24 v13, 0xa00, v22
v_add_u32 v12, v12, v23
v_add_u32 v13, v13, v23
v_add_u32 v21, 512, v21
v_mul_u32_u24 v22, 0x667, v21
v_lshrrev_b32 v22, 14, v22
v_mul_u32_u24 v23, 10, v22
v_sub_u32 v23, v21, v23
v_lshlrev_b32 v23, 4, v23
v_mul_u32_u24 v14, 176, v22
v_mul_u32_u24 v15, 0xa00, v22
v_add_u32 v14, v14, v23
v_add_u32 v15, v15, v23
s_and_b32 s6, s{W}, 3
s_lshl_b32 s6, s6, 5
v_add_u32 v19, s6, v18
s_and_b32 s6, s{W}, 1
s_mul_i32 s6, s6, {16*176}
v_add_u32 v18, s6, v18
v_add_u32 v12, {STG}, v12
v_add_u32 v14, {STG}, v14""")
for i in range(6): a(f"v_cvt_pk_bf16_f32 v{36+i}, v{24+2*i}, v{25+2*i}")
a(f"""ds_write_b64 v19, v[36:37]
ds_write_b64 v19, v[38:39] offset:{16*176}
s_cmp_eq_u32 s{CH}, 0
s_cbranch_scc1 L_noex2
ds_write_b64 v18, v[40:41] offset:128
L_noex2:
s_mul_i32 s6, s{QB}, {64*2560}
s_mul_i32 s7, s{HG}, 160
s_add_u32 s6, s6, s7
s_add_u32 s6, s6, 1280
s_waitcnt lgkmcnt(0)
s_barrier
ds_read_b128 v[24:27], v12
s_cmp_ge_u32 s{W}, 2
s_cbranch_scc1 L_one
ds_read_b128 v[28:31], v14
s_waitcnt lgkmcnt(0)
buffer_store_dwordx4 v[28:31], v15, {S(OUT_)}, s6 offen
L_one:
s_waitcnt lgkmcnt(0)
buffer_store_dwordx4 v[24:27], v13, {S(OUT_)}, s6 offen""")
if STAMP:
    a("s_waitcnt vmcnt(0)"); stamp()
    a(f"""s_lshl_b32 s6, s2, 3
    s_add_u32 s6, s6, s{W}
    s_lshl_b32 s6, s6, 6
    s_add_u32 s6, s6, {WS_ST}
    v_mov_b32 v21, 0
    s_waitcnt lgkmcnt(0)""")
    for i in range(nstamp[0]): a(f"v_mov_b32 v22, s{STB+2*i}\nbuffer_store_dword v22, v21, {S(WS_)}, s6 offen offset:{4*i}")
a("L_end:\ns_endpgm")
X=SS[0]
a(f"""L_slow:
s_cmp_lg_u32 s{SLOW}, 0
s_cbranch_scc1 L_store
s_mov_b32 s{SLOW}, 1
v_mov_b32 v{T+2}, 0xff800000
v_mad_u32_u24 v{AV}, v{HH}, 20, v{T}
v_lshlrev_b32 v{AV}, 4, v{AV}""")
zero(CM,16); zero(O,16)
a(f"""L_pass:
s_mov_b32 s{CNT}, 0
L_sl:
s_lshr_b32 s66, s{CNT}, 1
s_mul_i32 s66, s66, 10240
s_and_b32 s6, s{CNT}, 1
s_mul_i32 s7, s6, 2048
s_add_u32 s7, s7, s66
buffer_load_dwordx4 v[{KF[0]}:{KF[0]+3}], v{L16}, {S(WS_)}, s7 offen sc1
buffer_load_dwordx4 v[{KF[0]+4}:{KF[0]+7}], v{L16}, {S(WS_)}, s7 offen offset:1024 sc1
s_lshl_b32 s7, s6, 3
s_add_u32 s7, s7, s66
s_add_u32 s7, s7, 4096
buffer_load_dwordx2 v[{K4[0]}:{K4[0]+1}], v{L16}, {S(WS_)}, s7 offen sc1
s_mul_i32 s7, s6, 2560
s_add_u32 s7, s7, s66
s_add_u32 s7, s7, 5120
{on}""")
for u in range(4): a(f"buffer_load_dwordx4 v[{VF[0]+4*u}:{VF[0]+4*u+3}], v{AV}, {S(WS_)}, s7 offen offset:{640*u} sc1")
a(f"""{off}
s_waitcnt vmcnt(0)
{M16(X,KF[0],CMr)}
{M16(X+16,KF[0]+4,CMr)}
s_nop 9
{M4(X,K4[0])}
s_nop 15
s_nop 3
s_cmp_eq_u32 s{SLOW}, 1
s_cbranch_scc0 L_p2""")
for i in range(0,32,2): a(f"v_max3_f32 v{T+2}, v{T+2}, v{X+i}, v{X+i+1}")
a("s_branch L_nx\nL_p2:")
for i in range(32): a(f"v_exp_f32 v{X+i}, v{X+i}")
a("s_nop 1")
for u in range(4): a(SM(VF[0]+4*u,X+8*u))
a(f"""L_nx:
s_add_u32 s{CNT}, s{CNT}, 1
s_cmp_lt_u32 s{CNT}, 32
s_cbranch_scc1 L_sl
s_cmp_eq_u32 s{SLOW}, 1
s_cbranch_scc0 L_check
s_mov_b32 s{SLOW}, 2
v_mov_b32 v{T+3}, v{T+2}
s_nop 1
v_permlane32_swap_b32 v{T+2}, v{T+3}
v_max_f32 v{T+2}, v{T+2}, v{T+3}""")
for i in range(16): a(f"v_sub_f32 v{CM+i}, 0, v{T+2}")
a("s_branch L_pass")

hdr=open('concat_heads__spectral_fnet__grouped_kv_mqa__prompt.s.ref').read().split('; Override launch')[0]
s=hdr+"; @launch grid=(256,1,1) block=(512,1,1) lds=163840\n"
s+='.amdgcn_target "amdgcn-amd-amdhsa--gfx950"\n.text\n'+khead(KN)+a.text()
s+=emit_table('tab_hid',table_hid())+emit_table('tab_f128',table_f128())
s+='.section .rodata,"a"\n'+kdesc(KN,256,102)
open(OUTF,'w').write(s)
print('wrote',OUTF,len(s),'stamps',nstamp[0])
```

```python
import sys, math, struct
import numpy as np
sys.path.insert(0,'gen')
from asmlib import *

STAMP = '--stamp' in sys.argv
XP = dict((a[4:].split(':')+[''])[:2] for a in sys.argv if a.startswith('--x='))
OUTF = [a for a in sys.argv[1:] if not a.startswith('--')]
OUTF = OUTF[0] if OUTF else 'concat_heads__spectral_fnet__grouped_kv_mqa__prompt.s'
KN='concat_heads__spectral_fnet__grouped_kv_mqa__prompt_kernel'

WS_KV = 0x000000
WS_F1 = 0x040000
WS_F2 = 0x050000
WS_F3 = 0x060000
WS_O  = 0x100000
WS_U  = 0x400000
WS_ST = 0x900000
WS_SZ = 0x1000000
CSCALE = (20**-0.5)*math.log2(math.e)
OFFS = 100.0
SPIN = 200000
def f2u(x): return struct.unpack('<I',struct.pack('<f',x))[0]
def fh(x): return hex(f2u(x))
def bf(x):
    u=np.asarray(x,np.float32).view(np.uint32)
    return ((u+0x7fff+((u>>16)&1))>>16).astype(np.uint32)
def pack(vals):
    b=bf(vals); return b[...,0::2]|(b[...,1::2]<<16)
def sig(n): return 16*((n>>2)&1)+4*(n>>3)+(n&3)
def table_hid():
    out=np.zeros((13,64,4),np.uint32)
    for l in range(64):
        n=l&31; h=l>>5; k1=sig(n)
        for s in range(2):
            d1=np.arange(8)+16*s+8*h
            out[s,l]=pack(np.cos(2*np.pi*d1*k1/32))
            out[2+s,l]=pack(-np.sin(2*np.pi*d1*k1/32))
        for j in range(3):
            d2=8*j+4*h+np.arange(4); ok=(d2<20)
            out[4+j,l]=(np.cos(2*np.pi*d2*k1/640)*ok).astype(np.float32).view(np.uint32)
            out[7+j,l]=(-np.sin(2*np.pi*d2*k1/640)*ok).astype(np.float32).view(np.uint32)
            k2=n if n<20 else 0
            out[10+j,l]=pack(np.concatenate([np.cos(2*np.pi*d2*k2/20)*ok, np.sin(2*np.pi*d2*k2/20)*ok]))
    return out.reshape(-1)
XBL=25600; RB=107520; NONL=158720
WOL=0; UL=102400; VL=143360; OL=81920; STG=0; FL=143360; FSL=153600
def grp_rows(k0): return ((k0&~7)+((k0>>2)&1))
NQW=14
def table_wave():
    t=np.zeros((8,NQW,64,4),np.uint32)
    for w in range(8):
        for l in range(64):
            n=l&15; g=l>>4; r=(l>>2)&3; c=l&3; h=l>>5
            kidx=16*w+n; u=kidx>>1; q=kidx&1
            for s in range(4):
                sh=32*s+8*g+np.arange(8)
                v=np.cos(np.pi*sh) if kidx==1 else (np.cos(2*np.pi*u*sh/128) if q==0 else -np.sin(2*np.pi*u*sh/128))
                t[w,s,l]=pack(v)
            rb=FL+(8*g+r)*80; sb=FSL+1280*w
            t[w,4,l]=[rb+16*c, rb+8*(c&1), sb+80*n+16*g, sb+80*n+8*g]
            t[w,5,l]=[sb+16*l,0,0,0]
            ur=UL+5120*w+(2*r+(g&1))*160+(g>>1)*80+8*c
            vw=[VL+n*1280+8*((20*w+4*i+g)^n) for i in range(5)]
            t[w,6,l]=[51200+r*320+(w&3)*32+8*c+160*(grp_rows(20*(g>>1)+12*(g&1)+4*uu) if kind==0 else grp_rows(20*(4*uu+g)+8)) for kind in range(2) for uu in range(2)]
            t[w,7,l]=[ur,ur+(2480 if c>=2 else 0),vw[0],vw[1]]
            t[w,8,l]=[vw[2],vw[3],vw[4],8*l]
            col=32 if (g&1) else 8*c
            t[w,9,l]=[VL+2560*w+((((8*h+4*uu+r)*40)+col)^(16*w+8*p)) for p in range(2) for uu in range(2)]
            qh=w>>2; n0=n+16*(w&1); n1=n0^16; ob=OL+qh*40960
            t[w,10,l]=[ob+512*g+16*n0, ob+512*g+16*n1, ob+32768+256*g+8*n0, ob+32768+256*g+8*n1]
            t[w,11,l]=[STG+(32*qh+n0)*176+8*g+32*(w&3), STG+(32*qh+n1)*176+8*g+32*(w&3), STG+(32*qh+n0)*176+8*g+128, 64*(l&31)+32*h]
            c0=64*w+l; c1=min(c0+512,639)
            t[w,12,l]=[STG+(c0+c0//10)*16, c0*16+(c0//10)*2400, STG+(c1+c1//10)*16, c1*16+(c1//10)*2400]
            t[w,13,l]=[128*(l&7),0,0,0]
    return t.reshape(-1)
def emit_table(name, arr):
    s=f".p2align 8\n.type {name},@object\n{name}:\n"
    for i in range(0,len(arr),8):
        s+=".long "+",".join(hex(int(x)) for x in arr[i:i+8])+"\n"
    s+=f".size {name}, {4*len(arr)}\n"
    return s

W=3; QB=4; HG=5
XB_=8; WQ_=12; KV_=16; WS_=20; XA_=24; WO_=28; OUT_=32; LD_=36
DBG=40; TAB=42; NON=44; R0=45; J=46; RBA=47; RBB=48
SA=49; SB=50; SSTR=51; LA=52; LB=53; LSTR=54; CH=55
PB=56; UU=57; QT=58; T0=59; MIR=60; SLOW=61; CNT=62
VM=64
STB=70
def S(r,n=4): return f"s[{r}:{r+n-1}]"
a=Asm()
nstamp=[0]; stnames=[]
def stamp(name):
    if STAMP:
        assert nstamp[0]<16
        a(f"{'s_memtime' if 'cyc' in XP else 's_memrealtime'} s[{STB+2*nstamp[0]}:{STB+1+2*nstamp[0]}]"); nstamp[0]+=1; stnames.append(name)
def zero(base,n):
    for i in range(n): a(f"v_mov_b32 v{base+i}, 0")
def dmab(v,srd,soff,off=0,fl=''):
    return f"buffer_load_dwordx4 v{v}, {S(srd)}, {soff} offen{' offset:%d'%off if off else ''} {fl} lds"
def mod5(d,s,t):
    a(f"s_mul_i32 s{t}, s{s}, 0x3334\ns_lshr_b32 s{t}, s{t}, 16\ns_mul_i32 s{t}, s{t}, 5\ns_sub_u32 s{d}, s{s}, s{t}")

L16=2
TB=174
WOA=226; UA=227; WAD=228; UR=232; VW=[234,235,244,245,246]; L8=247
MM=236; PF=240; FA=243; P1A=244; VR=252
TW_=WQ_

stamp('start')
a(f"""s_cmp_ge_u32 s2, 256
s_cbranch_scc1 L_end
s_load_dwordx8 s[48:55], s[0:1], 40
s_load_dwordx8 s[56:63], s[0:1], 72
s_load_dwordx2 s[24:25], s[0:1], 0
s_memrealtime s[94:95]
s_getpc_b64 s[{TAB}:{TAB+1}]
L_pc:
v_lshrrev_b32 v1, 6, v0
v_and_b32 v0, 63, v0
s_and_b32 s{QB}, s2, 7
v_readfirstlane_b32 s{W}, v1
s_lshl_b32 s{QB}, s{QB}, 2
s_bfe_u32 s6, s2, 0x20003
s_add_u32 s{QB}, s{QB}, s6
s_lshr_b32 s{HG}, s2, 5
v_lshlrev_b32 v{L16}, 4, v0
s_mul_i32 s7, s{W}, 3072
v_lshl_add_u32 v21, v0, 7, s7
s_mov_b64 exec, 0xffffff
global_load_dword v255, v21, s[{TAB}:{TAB+1}]
s_mov_b64 exec, -1
s_add_u32 s{R0}, s6, s{HG}""")
mod5(R0,R0,7)
a(f"""v_lshrrev_b32 v21, 3, v0
v_lshrrev_b32 v23, 4, v0
v_and_b32 v24, 7, v0
v_xor_b32 v23, v23, v24
v_mul_u32_u24 v21, 0x500, v21
v_lshl_add_u32 v3, v23, 4, v21
v_xor_b32 v4, 64, v3
s_and_b32 s{J}, s{HG}, 3
s_max_u32 s6, s{W}, 4
s_add_u32 s6, s6, s{J}
s_and_b32 s6, s6, 3
s_lshl_b32 s7, s6, 1
s_cmp_lt_u32 s{HG}, 4
s_cselect_b32 s{RBA}, s6, s7
s_cselect_b32 s7, 4, 1
s_add_u32 s69, s{RBA}, s7
s_bitcmp1_b32 s{RBA}, 0
s_cselect_b64 vcc, -1, 0
v_cndmask_b32 v5, v3, v4, vcc
s_bitcmp1_b32 s69, 0
s_cselect_b64 vcc, -1, 0
v_cndmask_b32 v6, v3, v4, vcc
s_add_u32 s64, s{R0}, s{W}""")
mod5(64,64,7)
a(f"""s_mul_i32 s65, s64, 5120
s_mul_i32 s66, s{W}, 5120
s_mov_b32 m0, s66
s_lshl_b32 s64, s64, 8
s_lshl_b32 s67, s{W}, 14
s_mov_b32 s{KV_+2}, 25600
s_mov_b32 s{KV_+3}, 0x20000
s_mov_b32 s{XB_+2}, 2621440
s_mov_b32 s{XB_+3}, 0x20000
s_cmp_lt_u32 s{HG}, 4
s_waitcnt lgkmcnt(0)
s_cselect_b32 s{KV_}, s52, s54
s_cselect_b32 s{KV_+1}, s53, s55
s_cmp_ge_u32 s{W}, 5
s_cbranch_scc1 L_nowk""")
for p in range(4): a(dmab(L16,KV_,'s65',1024*p))
a(f"""s_add_u32 m0, m0, 4096
s_add_u32 s65, s65, 4096
{dmab(L16,KV_,'s65')}
L_nowk:
s_mov_b32 s{XB_}, s48
s_mov_b32 s{XB_+1}, s49
s_mov_b32 s{WQ_}, s50
s_mov_b32 s{WQ_+1}, s51
s_mov_b32 s{RBB}, s69
s_lshl_b32 s6, s{QB}, 3
s_add_u32 s7, s6, s{RBA}
s_mul_i32 s{SA}, s7, 10240
s_add_u32 s7, s6, s{RBB}
s_mul_i32 s{SB}, s7, 10240
s_lshl_b32 s{LA}, s{RBA}, 10
s_lshl_b32 s{LB}, s{RBB}, 10
s_add_u32 s{LA}, s{LA}, {XBL}
s_add_u32 s{LB}, s{LB}, {XBL}
s_lshl_b32 s{CH}, s{R0}, 1
s_cmp_ge_u32 s{W}, 5
s_cbranch_scc1 L_noxk
s_add_u32 m0, s{LA}, s67
s_add_u32 s7, s{SA}, s64
{dmab(5,XB_,'s7')}
s_add_u32 m0, m0, {8192-128}
s_add_u32 s6, s{SB}, s64
{dmab(5,XB_,'s7',128)}
s_add_u32 m0, s{LB}, s67
s_nop 0
{dmab(6,XB_,'s6')}
s_add_u32 m0, m0, {8192-128}
s_nop 0
{dmab(6,XB_,'s6',128)}
L_noxk:""")
def mksrd(d,lo,size):
    if lo!=d: a(f"s_mov_b32 s{d}, s{lo}\ns_mov_b32 s{d+1}, s{lo+1}")
    a(f"s_mov_b32 s{d+2}, {size}\ns_mov_b32 s{d+3}, 0x20000")
mksrd(WO_,56,819200); mksrd(OUT_,58,5242880); mksrd(WS_,62,WS_SZ); mksrd(XA_,XA_,2621440)
a(f"s_mov_b32 s{DBG}, s60\ns_mov_b32 s{DBG+1}, s61\nv_mov_b32 v17, 0")
a(f"""s_lshl_b32 s6, s2, 3
s_add_u32 s6, s6, s{W}
s_cmp_eq_u32 s6, 5
s_cbranch_scc0 L_nonon
s_or_b32 s94, s94, 1
v_mov_b32 v23, s94
s_mov_b64 exec, 1
global_store_dword v17, v23, s[{DBG}:{DBG+1}] sc1
s_mov_b64 exec, -1
L_nonon:""")
a(f"""s_lshl_b32 s6, s{W}, 6
v_add_u32 v21, s6, v0
v_mul_u32_u24 v23, 0x667, v21
v_lshrrev_b32 v23, 14, v23
v_mul_u32_u24 v24, 10, v23
v_sub_u32 v24, v21, v24
v_mul_u32_u24 v25, 10240, v23
v_lshl_add_u32 v{UA}, v24, 4, v25
v_and_b32 v25, 0x38, v23
v_bfe_u32 v26, v23, 1, 2
v_and_b32 v23, 1, v23
v_lshl_add_u32 v23, v23, 2, v26
v_add_u32 v23, v23, v25
v_mul_u32_u24 v23, 0x500, v23
v_lshl_add_u32 v{WOA}, v24, 4, v23
s_cmp_ge_u32 s{W}, 5
s_cbranch_scc1 L_xrole
s_and_b32 s64, s{RBA}, 1
s_lshl_b32 s64, s64, 6
s_add_u32 s64, s64, s{LA}
s_and_b32 s65, s{RBB}, 1
s_lshl_b32 s65, s65, 6
s_add_u32 s65, s65, s{LB}
s_mul_i32 s6, s{HG}, 160
v_add_u32 v5, s6, v{WOA}
v_add_u32 v6, {32*1280}, v5
s_mov_b32 s{LD_}, s{WQ_}
s_mov_b32 s{LD_+1}, s{WQ_+1}
s_mov_b32 s{LD_+2}, 819200
s_mov_b32 s{SSTR}, {64*1280}
s_lshl_b32 s{LA}, s{W}, 10
s_add_u32 s{LA}, s{LA}, {RB}
s_mov_b32 s{LB}, 5120
s_mov_b32 s{LSTR}, 10240
s_mov_b32 s{SB}, 51200
s_branch L_roled
L_xrole:
v_add_u32 v5, s{SA}, v5
v_add_u32 v6, s{SB}, v6
s_mov_b32 s{LD_}, s{XB_}
s_mov_b32 s{LD_+1}, s{XB_+1}
s_mov_b32 s{LD_+2}, 2621440
s_mov_b32 s{SSTR}, 128
s_sub_u32 s{LB}, s{LB}, s{LA}
s_mov_b32 s{LSTR}, 8192
s_mov_b32 s{SB}, 0
L_roled:
s_mov_b32 s{LD_+3}, 0x20000
s_mul_i32 s{CH}, s{CH}, s{SSTR}
s_mul_i32 s{SA}, s{SSTR}, 10""")
def issueA(i):
    return ([f"s_sub_u32 s{LA}, s{LA}, s{SB}"] if i==5 else [])+[f"s_mov_b32 m0, s{LA}",f"s_add_u32 s{LA}, s{LA}, s{LSTR}",dmab(5,LD_,f's{CH}'),f"s_add_u32 m0, m0, s{LB}"]
def issueB(i):
    return [dmab(6,LD_,f's{CH}'),f"s_add_u32 s{CH}, s{CH}, s{SSTR}",f"s_cmp_eq_u32 s{CH}, s{SA}",f"s_cselect_b32 s{CH}, 0, s{CH}"]
def issue_chunk(i,_=None):
    for x in issueA(i)+["s_nop 0"]+issueB(i): a(x)
issue_chunk(0,0); issue_chunk(1,1)
XR=8; WR=12
ACC=112; FR=48
a(f"""s_and_b32 s6, s{W}, 1
s_lshl_b32 s6, s6, 5
v_and_b32 v21, 31, v0
v_add_u32 v21, s6, v21
v_bfe_u32 v22, v21, 1, 3
v_lshrrev_b32 v23, 5, v0
v_xor_b32 v22, v22, v23
v_lshlrev_b32 v21, 7, v21
v_add_u32 v21, {XBL}, v21""")
for s in range(4): a(f"v_xor_b32 v24, {2*s}, v22\nv_lshl_add_u32 v{XR+s}, v24, 4, v21")
a(f"""v_bfe_u32 v21, v0, 2, 2
v_lshl_add_u32 v21, v23, 2, v21
v_mul_u32_u24 v21, 320, v21
v_mov_b32 v24, 0x18081000
v_and_b32 v26, 16, v0
v_cmp_ne_u32 vcc, 0, v26
v_and_b32 v26, 3, v0
v_lshlrev_b32 v26, 3, v26
v_bfe_u32 v24, v24, v26, 8
v_cndmask_b32 v24, v24, 32, vcc
s_lshr_b32 s6, s{W}, 1
s_mul_i32 s6, s6, 40
s_add_u32 s6, s6, {RB}
v_add3_u32 v{WR}, v21, v24, s6""")

a(f"""s_lshl_b32 s7, s{W}, 6
v_add_u32 v21, s7, v0
v_mul_u32_u24 v22, 0xccd, v21
v_lshrrev_b32 v22, 14, v22
v_mul_u32_u24 v22, {16*1280-80}, v22
v_lshl_add_u32 v{FA}, v21, 4, v22
s_and_b32 s6, s{W}, 1
s_xor_b32 s6, s6, 1
s_lshl_b32 s6, s6, 14
v_lshl_add_u32 v{PF+2}, v0, 8, s6""")
a(f"s_cmp_ge_u32 s{W}, 5\ns_cbranch_scc1 L_nokv")
a(f"""v_and_b32 v22, 7, v0
v_lshrrev_b32 v21, 4, v0
v_lshrrev_b32 v24, 1, v22
v_xor_b32 v24, v24, v21
v_lshlrev_b32 v24, 4, v24
v_lshl_add_u32 v24, v22, 7, v24
v_mov_b32 v25, s64
v_mov_b32 v26, s65
v_and_b32 v27, 8, v0
v_cmp_ne_u32 vcc, 0, v27
v_add_u32 v24, s67, v24
v_bfe_u32 v22, v0, 2, 2
v_cndmask_b32 v25, v25, v26, vcc
v_add_u32 v7, v24, v25
v_lshl_add_u32 v22, v21, 3, v22
v_mul_u32_u24 v22, 40, v22
v_add_u32 v22, s66, v22
v_and_b32 v23, 3, v0
v_lshl_add_u32 v23, v23, 3, v22
v_xor_b32 v24, 64, v7
v_and_b32 v25, 15, v0
s_cmp_ge_u32 s{HG}, 4
s_cbranch_scc1 L_saV
v_lshrrev_b32 v26, 3, v25
v_and_b32 v27, 7, v25
v_lshlrev_b32 v27, 5, v27
v_lshl_add_u32 v28, v26, 9, v27
v_lshrrev_b32 v29, 1, v21
v_lshl_add_u32 v28, v29, 8, v28
v_and_b32 v29, 1, v21
v_lshl_add_u32 v28, v29, 4, v28
v_lshl_add_u32 v27, v26, 4, v27
v_add_u32 v27, 1024, v27
s_mov_b32 s64, 0xffff
s_mov_b32 s65, 0
s_branch L_saE
L_saV:
v_lshrrev_b32 v29, 1, v21
v_mul_u32_u24 v29, 640, v29
v_and_b32 v26, 1, v21
v_lshl_add_u32 v29, v26, 4, v29
v_and_b32 v26, 3, v25
v_lshl_add_u32 v29, v26, 5, v29
v_add_u32 v27, {12*32}, v29
v_and_b32 v26, 12, v25
v_lshlrev_b32 v26, 1, v26
v_mov_b32 v28, 0x04100800
v_bfe_u32 v26, v28, v26, 8
v_lshl_add_u32 v28, v26, 5, v29
s_mov_b32 s64, 0x000f000f
s_mov_b32 s65, 0x000f000f
L_saE:
v_add_u32 v28, s66, v28
v_add_u32 v27, s66, v27
s_waitcnt vmcnt(4)""")
stamp('kvland')
for st in range(4):
    f=FR+12*st
    a(f"ds_read_b128 v[{f}:{f+3}], v{7 if st%2==0 else 24} offset:{8192*(st//2)}")
    for u in range(2): a(f"ds_read_b64_tr_b16 v[{f+4+2*u}:{f+5+2*u}], v23 offset:{(32*st+4*u)*40}")
    for u in range(2): a(f"ds_read_b64_tr_b16 v[{f+8+2*u}:{f+9+2*u}], v22 offset:{(32*st+4*u)*40+32}")
    if st==2: a("s_waitcnt lgkmcnt(10)")
D0=100; D1=104
def kvmm(isK):
    for st in range(4):
        f=FR+12*st
        if st>0: a(f"s_waitcnt lgkmcnt({15-5*st})")
        for D,o in ((D0,4),(D1,8)):
            c='0' if st==0 else f"v[{D}:{D+3}]"
            A,B=(f+o,f) if isK else (f,f+o)
            a(f"v_mfma_f32_16x16x32_bf16 v[{D}:{D+3}], v[{A}:{A+3}], v[{B}:{B+3}], {c}")
a(f"s_cmp_ge_u32 s{HG}, 4\ns_cbranch_scc1 L_kvV")
kvmm(True)
a("s_branch L_kvW\nL_kvV:")
kvmm(False)
a(f"""L_kvW:
s_nop 6
ds_write_b128 v28, v[{D0}:{D0+3}]
s_mov_b64 exec, s[64:65]
ds_write_b128 v27, v[{D1}:{D1+3}]
s_mov_b64 exec, -1
s_waitcnt lgkmcnt(0)
s_barrier""")
issue_chunk(2,2); issue_chunk(3,3)
a("s_branch L_kvE\nL_nokv:")
issue_chunk(2,2); issue_chunk(3,3)
a(f"""s_lshr_b32 s6, s{QB}, 1
s_mul_i32 s6, s6, 10240
s_and_b32 s7, s{QB}, 1
s_cmp_ge_u32 s{HG}, 4
s_cbranch_scc1 L_raV
v_and_b32 v21, 7, v0
v_lshlrev_b32 v21, 4, v21
v_bfe_u32 v22, v0, 3, 1
v_lshl_add_u32 v21, v22, 9, v21
v_lshrrev_b32 v22, 4, v0
v_lshl_add_u32 v21, v22, 11, v21
s_lshl_b32 s66, s7, 10
s_lshl_b32 s67, s7, 9
v_mov_b32 v22, s66
v_mov_b32 v23, s67
v_cmp_gt_u32 vcc, 32, v0
s_lshl_b32 s7, s{J}, 7
s_add_u32 s6, s6, s7
v_cndmask_b32 v22, v23, v22, vcc
v_add3_u32 v15, v21, v22, s6
s_branch L_raE
L_raV:
s_lshr_b32 s66, s{J}, 1
s_lshl_b32 s66, s66, 1
s_add_u32 s66, s66, s7
s_lshl_b32 s66, s66, 1
s_and_b32 s7, s{J}, 1
s_add_u32 s66, s66, s7
s_mul_i32 s66, s66, 640
s_add_u32 s6, s6, s66
s_add_u32 s6, s6, 5120
v_add_u32 v15, s6, v{L16}
L_raE:
v_lshlrev_b32 v21, 5, v0
s_barrier
s_cmp_eq_u32 s{W}, 7
s_cbranch_scc0 L_kvE
s_mov_b32 exec_hi, 0xff""")
for p in range(5):
    for hh in range(2): a(f"ds_read_b128 v[{132+8*p+4*hh}:{135+8*p+4*hh}], v21 offset:{5120*p+16*hh}")
a(f"global_load_dword v16, v17, s[{DBG}:{DBG+1}] sc1")
for p in range(1,5):
    a(f"s_waitcnt lgkmcnt({8-2*p})")
    for r in range(8): a(f"v_add_f32 v{132+r}, v{132+r}, v{132+8*p+r}")
for r in range(4): a(f"v_cvt_pk_bf16_f32 v{140+r}, v{132+2*r}, v{133+2*r}")
a(f"""buffer_store_dwordx4 v[140:143], v15, {S(WS_)}, 0 offen sc1
s_mov_b32 exec_hi, -1
L_kvE:""")
stamp('kvpub')
Q16=4; Q4=8; IDX=10; AK=3; AV=1; HH=11
CM=12; O=28; SS=[44,76]; KF=[108,116]; K4=[124,128]; VF=[132,148]; T=164
FT=174; PFR=190; PD=[214,218,222]
def lines(t): return [x.strip() for x in t.split("\n") if x.strip()]
def pre_m():
    o=[lines(f"""s_and_b32 s{UU}, s2, 7
    s_lshl_b32 s{UU}, s{UU}, 3
    s_bfe_u32 s6, s2, 0x30003
    s_add_u32 s{UU}, s{UU}, s6
    s_lshr_b32 s{QT}, s2, 6
    s_lshr_b32 s{MIR}, s{QT}, 1
    s_sub_u32 s6, 128, s{UU}"""),lines(f"""s_cmp_eq_u32 s{UU}, 0
    s_cselect_b32 s6, 64, s6
    s_cselect_b32 s66, 0, 512
    s_mul_i32 s7, s66, 3
    s_cmp_eq_u32 s{MIR}, 0
    s_cselect_b32 s{T0}, s{UU}, s6
    s_cselect_b32 s66, s7, s66"""),lines(f"""s_and_b32 s6, s{QT}, 1
    s_lshl_b32 s6, s6, 10
    s_add_u32 s{T0}, s{T0}, s6
    v_lshrrev_b32 v23, 5, v0
    v_cmp_eq_u32 vcc, s{MIR}, v23
    v_bfe_u32 v21, v0, 1, 3"""),lines(f"""v_lshl_add_u32 v21, v21, 7, s{T0}
    v_and_b32 v22, 1, v0
    v_lshlrev_b32 v22, 9, v22
    v_mad_u32_u24 v22, v23, s66, v22
    v_bfe_u32 v24, v0, 4, 1"""),lines(f"""v_mad_u32_u24 v22, v24, v21, v22
    v_cvt_f32_u32 v21, v21
    v_cvt_f32_u32 v22, v22
    v_mul_f32 v21, {fh(1/1024)}, v21
    v_mul_f32 v22, {fh(1/2048)}, v22
    s_cmp_eq_u32 s{UU}, 0
    s_cselect_b64 vcc, vcc, -1""")]
    for i in range(4):
        o.append(lines(f"""v_cos_f32 v25, v22
        v_add_f32 v22, v22, v21
        v_cos_f32 v26, v22
        v_add_f32 v22, v22, v21
        v_cvt_pk_bf16_f32 v24, v25, v26
        v_cndmask_b32 v{MM+i}, 0, v24, vcc"""))
    return o
def att_init():
    o=[lines(f"""v_and_b32 v21, 27, v0
    v_cmp_eq_u32 vcc, 24, v21
    v_mov_b32 v21, 0x3f803f80
    s_mov_b32 s{VM}, 0xfffff
    s_mov_b32 s{VM+1}, 0xfffff
    v_cndmask_b32 v{VF[0]}, 0, v21, vcc
    v_cndmask_b32 v{VF[0]+1}, 0, v21, vcc""")]
    mv=[f"v_mov_b64 v[{VF[0]+2*i}:{VF[0]+2*i+1}], v[{VF[0]}:{VF[0]+1}]" for i in range(1,16)]+[f"v_mov_b64 v[{O+2*i}:{O+2*i+1}], 0" for i in range(8)]
    for k in range(0,len(mv),4): o.append(mv[k:k+4])
    o.append(lines(f"""v_mov_b32 v{AK}, v{L16}
    v_lshrrev_b32 v21, 5, v0
    v_and_b32 v{T}, 31, v0
    v_mad_u32_u24 v{AV}, v21, 20, v{T}
    v_lshlrev_b32 v{AV}, 4, v{AV}"""))
    o.append(lines(f"""s_and_b32 s6, s2, 7
    s_lshl_b32 s6, s6, 1
    s_bfe_u32 s7, s2, 0x10003
    s_add_u32 s6, s6, s7
    s_lshr_b32 s7, s2, 4
    s_lshl_b32 s{PB}, s7, 4
    s_add_u32 s{PB}, s{PB}, s6
    s_mul_i32 s6, s6, 1280
    s_mul_i32 s7, s7, 80
    s_add_u32 s69, s6, s7"""))
    o.append(lines(f"""s_lshl_b32 s{PB}, s{PB}, 3
    s_add_u32 s{PB}, s{PB}, s{W}
    s_mul_i32 s{PB}, s{PB}, 1280
    s_add_u32 s{PB}, s{PB}, {WS_U}
    s_mul_i32 s6, s{W}, {NQW*1024}
    s_add_u32 s6, s6, tab_wave-L_pc
    s_add_u32 s{WQ_}, s{TAB}, s6
    s_addc_u32 s{WQ_+1}, s{TAB+1}, 0"""))
    return o
def polls(base):
    return [f"s_mov_b32 s6, {base}",f"buffer_load_dword v{PF}, v{PF+2}, {S(WS_)}, s6 offen sc1",f"buffer_load_dword v{PF+1}, v{PF+2}, {S(WS_)}, s6 offen offset:128 sc1"]
def pollcheck(tag, base, n):
    a(f"""s_sub_u32 s6, s{W}, 5
    s_cmp_lt_u32 s6, 2
    s_cbranch_scc0 L_{tag}ok
    s_mov_b32 s{CNT}, 0
    s_mov_b32 s6, {base}
    s_waitcnt vmcnt({n})
    L_{tag}:
    v_cmp_ne_u32 vcc, s{NON}, v{PF}
    v_cmp_ne_u32 s[66:67], s{NON}, v{PF+1}
    s_add_u32 s{CNT}, s{CNT}, 1
    s_or_b64 vcc, vcc, s[66:67]
    s_cbranch_scc0 L_{tag}ok
    s_cmp_gt_u32 s{CNT}, {SPIN}
    s_cbranch_scc1 L_{tag}ok
    buffer_load_dword v{PF}, v{PF+2}, {S(WS_)}, s6 offen sc1
    buffer_load_dword v{PF+1}, v{PF+2}, {S(WS_)}, s6 offen offset:128 sc1
    s_waitcnt vmcnt(0)
    s_branch L_{tag}
    L_{tag}ok:""")

dma=f"buffer_load_dwordx4 v{L16}, {S(WS_)}, m0 offen sc1 lds"
bump="s_add_u32 m0, m0, 8192"
NPRE=3
def qmm(i,s):
    f=FR+32*(i%2)+8*s
    c='0' if (i==0 and s==0) else f"v[{ACC}:{ACC+15}]"
    a(f"v_mfma_f32_32x32x16_bf16 v[{ACC}:{ACC+15}], v[{f+4}:{f+7}], v[{f}:{f+3}], {c}")
NW=[6,6,6,6,6,6,6,4,2,0]
FLAGB=int(XP.get('flagb',2)); POLLI=int(XP.get('polli',7))
fill=pre_m()+att_init()
for i in range(10):
    a(f"s_waitcnt vmcnt({NW[i]})")
    if i==FLAGB:
        a(f"""s_cmp_eq_u32 s{W}, 7
        s_cbranch_scc0 L_nofl1
        s_mov_b32 s{CNT}, 0
        s_waitcnt vmcnt({2*i})
        L_non:
        v_readfirstlane_b32 s{NON}, v16
        s_add_u32 s{CNT}, s{CNT}, 1
        s_cmp_gt_u32 s{CNT}, {SPIN}
        s_cbranch_scc1 L_gotnon
        s_cmp_lg_u32 s{NON}, 0
        s_cbranch_scc1 L_gotnon
        global_load_dword v16, v17, s[{DBG}:{DBG+1}] sc1
        s_waitcnt vmcnt(0)
        s_branch L_non
        L_gotnon:
        s_lshl_b32 s6, s2, 7
        s_add_u32 s6, s6, {WS_F1}
        v_mov_b32 v18, {NONL}
        s_mov_b64 exec, 1
        buffer_store_dword v16, v17, {S(WS_)}, s6 offen sc1
        ds_write_b32 v18, v16
        s_mov_b64 exec, -1
        s_waitcnt lgkmcnt(0)
        L_nofl1:""")
    if i==9: stamp('b9pre'); pollcheck('pk',WS_F1,0)
    a("s_barrier")
    if i in (0,3,6,9): stamp(f'b{i}')
    if i==9:
        a(f"s_lshl_b32 m0, s{W}, 10\ns_nop 0")
        for k in range(NPRE): a(dma+"\n"+bump+"\ns_nop 0")
    if i==4: a(f"v_mov_b32 v18, {NONL}\nds_read_b32 v16, v18")
    if i==5: a(f"v_readfirstlane_b32 s{NON}, v16")
    for s in range(4):
        f=FR+32*(i%2)+8*s
        a(f"""ds_read_b128 v[{f}:{f+3}], v{XR+s} offset:{(8192*i)&0xffff}
        ds_read_b64_tr_b16 v[{f+4}:{f+5}], v{WR} offset:{(i%5)*10240+16*s*160}
        ds_read_b64_tr_b16 v[{f+6}:{f+7}], v{WR} offset:{(i%5)*10240+(16*s+1)*160}""")
        if i>0: qmm(i-1,s)
        if i==7: a(f"v_add_u32 v{XR+s}, 0x10000, v{XR+s}")
        DA,DB=(int(XP.get('da',3)),int(XP.get('db',3)))
        if i<6 and s==DA:
            for x in issueA(i+4): a(x)
            if DA==DB: a("s_nop 0")
        if i<6 and s==DB:
            for x in issueB(i+4): a(x)
        if i<9 and fill and (i>=6 or s not in (DA,DB)):
            for x in fill.pop(0): a(x)
    if i==POLLI:
        a(f"s_sub_u32 s6, s{W}, 5\ns_cmp_lt_u32 s6, 2\ns_cbranch_scc0 L_np1")
        for x in polls(WS_F1): a(x)
        a("L_np1:")
    a("s_waitcnt lgkmcnt(0)")
assert not fill
for s in range(4): qmm(9,s)
a(f"""v_lshrrev_b32 v{HH}, 5, v0
v_mov_b32 v{IDX}, 0xdddddddd
s_mov_b32 s7, {fh(CSCALE)}
s_setprio 3
s_waitcnt vmcnt(0)
s_barrier""")
stamp('att')
def koff(g,t): return (g>>1)*10240+(2*(g&1)+t)*1024
def k4off(g): return (g>>1)*10240+4096
def voff(g,u): return (g>>1)*10240+5120+(4*(g&1)+u)*640
on=f"s_mov_b64 exec, s[{VM}:{VM+1}]"; off="s_mov_b64 exec, -1"
def M16(d,k,c): return f"v_mfma_f32_32x32x16_bf16 v[{d}:{d+15}], v[{k}:{k+3}], v[{Q16}:{Q16+3}], {c}"
def M4(d,k): return f"v_mfma_f32_32x32x4_2b_bf16 v[{d}:{d+31}], v[{k}:{k+1}], v[{Q4}:{Q4+1}], v[{d}:{d+31}]"
def SM(v,x): return f"v_smfmac_f32_32x32x32_bf16 v[{O}:{O+15}], v[{v}:{v+3}], v[{x}:{x+7}], v{IDX}"
CMr=f"v[{CM}:{CM+15}]"
KT=[SS[1]+16,SS[1]+20]
a(f"""ds_read_b128 v[{KT[0]}:{KT[0]+3}], v{AK} offset:{koff(0,0)}
ds_read_b128 v[{KT[1]}:{KT[1]+3}], v{AK} offset:{koff(0,1)}
{on}""")
for u in range(4): a(f"ds_read_b128 v[{VF[0]+4*u}:{VF[0]+4*u+3}], v{AV} offset:{voff(0,u)}")
a(off)
for i in range(12): a(f"v_mul_f32 v{CM+i}, s7, v{ACC+i}")
a(f"""ds_read_b128 v[{K4[0]}:{K4[0]+3}], v{AK} offset:{k4off(0)}
ds_read_b128 v[{KF[1]}:{KF[1]+3}], v{AK} offset:{koff(1,0)}
ds_read_b128 v[{KF[1]+4}:{KF[1]+7}], v{AK} offset:{koff(1,1)}""")
for i in range(6): a(f"v_cvt_pk_bf16_f32 v{Q16+i}, v{CM+2*i}, v{CM+2*i+1}")
X=SS[0]
nl=[0]
def role04(ops):
    nl[0]+=1
    return [f"s_cmp_ge_u32 s{W}, 5",f"s_cbranch_scc1 L_r{nl[0]}"]+ops+[f"L_r{nl[0]}:"]
a(f"""s_waitcnt lgkmcnt(2)
{M16(X,KT[0],'0')}
{M16(X+16,KT[1],'0')}
{dma}
{bump}
s_nop 0
{dma}
{bump}
s_nop 4
{M4(X,K4[0])}""")
for x in role04([f"s_add_u32 m0, m0, {FL-5*8192}","s_nop 0",dmab(FA,XA_,'s69'),"s_add_u32 m0, m0, 5120",f"s_add_u32 s69, s69, {64*16*1280}",dmab(FA,XA_,'s69'),f"s_sub_u32 m0, m0, {FL-5*8192+5120}"]): a(x)
a("s_nop 15\ns_nop 1")
a(f"v_max3_f32 v{T+2}, v{X}, v{X+1}, v{X+2}\nv_max3_f32 v{T+3}, v{X+3}, v{X+4}, v{X+5}")
for i in range(6,32,4):
    a(f"v_max3_f32 v{T+2}, v{T+2}, v{X+i}, v{X+i+1}")
    if i+2<32: a(f"v_max3_f32 v{T+3}, v{T+3}, v{X+i+2}, v{X+i+3}")
a(f"""v_max_f32 v{T+2}, v{T+2}, v{T+3}
v_mov_b32 v{T+3}, v{T+2}
s_nop 1
v_permlane32_swap_b32 v{T+2}, v{T+3}
v_max_f32 v{T+2}, v{T+2}, v{T+3}
v_sub_f32 v{CM}, {fh(-OFFS)}, v{T+2}
v_sub_f32 v{CM+1}, {fh(-OFFS)}, v{T+2}""")
for i in range(1,8): a(f"v_mov_b64 v[{CM+2*i}:{CM+2*i+1}], v[{CM}:{CM+1}]")
a(f"s_waitcnt lgkmcnt(0)\ns_nop 0\n{M16(SS[1],KF[1],CMr)}")
for i in range(16): a(f"v_pk_add_f32 v[{X+2*i}:{X+2*i+1}], v[{X+2*i}:{X+2*i+1}], v[{CM}:{CM+1}]")
pos=dict(smp=2,mB=5,s0=10,mC=13,s1=21,s2=26,mA=29)
order=sorted(pos,key=lambda k:pos[k])
kbase=0; vbase=0
bg={g:{k:[] for k in pos} for g in range(32)}
at={g:{} for g in range(32)}
sync={}
KVD=[dma,bump]
def tw(q,r,n=4):
    op={4:'dwordx4',1:'dword'}[n]
    return f"global_load_{op} {vr(r,n)}, v{L16}, s[{TW_}:{TW_+1}] offset:{1024*q-twb[0]}"
twb=[0]
def twadv(n):
    twb[0]+=n
    return [f"s_add_u32 s{TW_}, s{TW_}, {n}",f"s_addc_u32 s{TW_+1}, s{TW_+1}, 0"]
for k in ['mB','s2','mA']: bg[0][k]+=KVD
bg[0]['mC']+=twadv(3072)
bg[1]['mB']+=[tw(4,P1A)]; bg[1]['s2']+=[tw(5,P1A+4,1)]; bg[1]['mA']+=[tw(0,FT)]
sync[2]=["s_waitcnt vmcnt(3)","s_barrier"]
bg[2]['mB']+=[tw(1,FT+4)]; bg[2]['mC']+=[tw(2,FT+8)]; bg[2]['s2']+=[tw(3,FT+12)]; bg[2]['mA']+=KVD
for g in range(3,7):
    bg[g]['mB']+=KVD; bg[g]['mC']+=KVD
bg[3]['s2']+=["s_waitcnt vmcnt(3)"]
for half in range(2):
    for k,s_ in (('s2',2*half),('mA',2*half+1)):
        f=PFR+12*(s_&1)
        for Tt in range(3):
            for u in range(2):
                ad,co=(P1A,8*Tt) if Tt<2 else (P1A+1,64)
                bg[3+half][k].append(f"ds_read_b64_tr_b16 v[{f+4*Tt+2*u}:{f+4*Tt+2*u+1}], v{ad} offset:{(32*s_+4*u)*80+co}")
    for j,p_ in enumerate([7,8,19,20,23,24]):
        s_=2*half+j//3; Tt=j%3; f=PFR+12*(s_&1)
        c='0' if s_==0 else f"v[{PD[Tt]}:{PD[Tt]+3}]"
        at[4+half][p_]=[f"v_mfma_f32_16x16x32_bf16 v[{PD[Tt]}:{PD[Tt]+3}], v[{f+4*Tt}:{f+4*Tt+3}], v[{FT+4*s_}:{FT+3+4*s_}], {c}"]
d=PD[0]
at[6][8]=[f"v_cvt_pk_bf16_f32 v{d+i}, v{d+2*i}, v{d+2*i+1}" for i in range(6)]
bg[6]['s2']+=[f"ds_write_b128 v{P1A+2}, v[{d}:{d+3}]","s_mov_b32 exec_hi, 0",f"ds_write_b64 v{P1A+3}, v[{d+4}:{d+5}] offset:64","s_mov_b32 exec_hi, -1"]
bg[6]['mA']+=[f"ds_read_b128 v[{PFR}:{PFR+3}], v{P1A+4}",f"ds_read_b128 v[{PFR+4}:{PFR+7}], v{P1A+4} offset:1024"]
bg[7]['mB']+=[f"buffer_store_dwordx4 v[{PFR}:{PFR+3}], v{L16}, {S(WS_)}, s{PB} offen sc1"]
bg[7]['mC']+=["s_mov_b64 exec, 0xffff",f"buffer_store_dwordx4 v[{PFR+4}:{PFR+7}], v{L16}, {S(WS_)}, s{PB} offen offset:1024 sc1",off]
sync[10]=["s_waitcnt vmcnt(0)","s_barrier",f"s_cmp_eq_u32 s{W}, 7","s_cbranch_scc0 L_nofl2",
    f"s_lshl_b32 s6, s2, 7",f"s_add_u32 s6, s6, {WS_F2}",f"v_mov_b32 v{PF}, s{NON}","s_mov_b64 exec, 1",
    f"buffer_store_dword v{PF}, v{L16}, {S(WS_)}, s6 offen sc1",off,"L_nofl2:"]
for k in ['mB','s2','mA']: bg[10][k]+=KVD
bg[10]['mC']+=[f"s_add_u32 s66, s{TAB}, tab_hid-L_pc",f"s_addc_u32 s67, s{TAB+1}, 0"]+twadv(7168)
lds_=[]
for qd in range(13):
    ops=[f"global_load_dwordx4 v[{TB+4*qd}:{TB+4*qd+3}], v{L16}, s[66:67] offset:{1024*(qd%4)}"]
    if qd%4==3: ops+=["s_add_u32 s66, s66, 4096","s_addc_u32 s67, s67, 0"]
    lds_.append(ops)
lds_+=[[tw(6,WAD)],[tw(7,UR)],[tw(8,244)],[tw(9,VR)]]
for j,ops in enumerate(lds_): bg[11+j//3][['mB','s2','mA'][j%3]]+=ops
bg[19]['mA']+=[f"s_lshl_b32 m0, s{W}, 10",f"s_mul_i32 s68, s{HG}, 160"]
sync[20]=["s_waitcnt vmcnt(0)","s_barrier"]
wo1=[dmab(WOA,WO_,'s68'),"s_add_u32 m0, m0, 5120",f"s_add_u32 s68, s68, {32*1280}"]
for n in range(20): bg[20+n//3][['mB','s2','mA'][n%3]]+=role04(wo1)
bg[24]['mC']+=[f"s_sub_u32 s6, s{W}, 5","s_cmp_lt_u32 s6, 2","s_cbranch_scc0 L_np2"]+polls(WS_F2)+["L_np2:"]
bg[27]['mA']+=[f"s_mul_i32 s68, s{UU}, 160",f"s_add_u32 s68, s68, {WS_U}"]
sync[28]=["POLL2","s_barrier"]
u1=[dmab(UA,WS_,'s68',0,'sc1'),"s_add_u32 m0, m0, 5120",f"s_add_u32 s68, s68, {32*10240}"]
for n in range(8): bg[28+n//4][['mB','mC','s2','mA'][n%4]]+=role04(u1)
bg[30]['s2']+=lines(f"""s_lshl_b32 s6, s{QB}, 1
s_and_b32 s7, s{W}, 1
s_add_u32 s6, s6, s7
s_mul_i32 s{SA}, s6, 40960
s_lshl_b32 s7, s{HG}, 2
s_lshr_b32 s6, s{W}, 1
s_add_u32 s7, s7, s6""")
bg[31]['s0']+=lines(f"""s_add_u32 s{SA}, s{SA}, {WS_O}
s_lshl_b32 s{SB}, s7, 8
s_lshl_b32 s7, s7, 10
s_add_u32 s{SB}, s{SB}, s{SA}
s_add_u32 s{SA}, s{SA}, s7
s_add_u32 s{SB}, s{SB}, 32768""")
bg[31]['s1']+=lines(f"""s_lshr_b32 s6, s{W}, 2
s_mul_i32 s7, s6, 40960
s_lshl_b32 s68, s{QB}, 1
s_add_u32 s6, s6, s68
s_mul_i32 s68, s6, 40960
s_and_b32 s6, s{W}, 3""")
bg[31]['s2']+=lines(f"""s_lshl_b32 s69, s6, 5
s_lshl_b32 s6, s6, 10
s_add_u32 s7, s7, s6
s_add_u32 m0, s7, {OL}
s_add_u32 s68, s68, s6
s_add_u32 s68, s68, {WS_O}
s_sub_u32 s69, 128, s69""")
PR={1:2, 2:3,7:2,9:1, 10:3,16:2,18:1,19:0, 20:3,25:2,27:1, 28:3,30:2,31:1}
for g in range(32):
    X=SS[g%2]; Y=SS[(g+1)%2]; g1=g+1; g2=g+2
    m={}
    m['mA']=M16(X,KF[g2%2],CMr) if g2<32 else None
    m['mB']=M16(Y+16,KF[g1%2]+4,CMr) if g1<32 else None
    m['mC']=M4(Y,K4[(g1//2)%2]+2*(g1%2)) if g1<32 else None
    for i in range(3): m[f's{i}']=SM(VF[g%2]+4*i,X+8*i)
    m['smp']=SM(VF[(g-1)%2]+12,Y+24) if g>0 else "s_nop 0"
    aft={k:[] for k in pos}
    pre=[]
    if g2<32 and k4off(g2)-kbase>=61440:
        pre.append(f"v_add_u32 v{AK}, 61440, v{AK}"); kbase+=61440
    if g1<32 and voff(g1,3)-vbase>=61440:
        pre.append(f"v_add_u32 v{AV}, 61440, v{AV}"); vbase+=61440
    if g in sync: aft['smp']+=sync[g]
    if g2<32:
        aft['smp'].append(f"ds_read_b128 v[{KF[g2%2]}:{KF[g2%2]+3}], v{AK} offset:{koff(g2,0)-kbase}")
        aft['mB']+=["s_waitcnt lgkmcnt(1)", f"ds_read_b128 v[{KF[g2%2]+4}:{KF[g2%2]+7}], v{AK} offset:{koff(g2,1)-kbase}"]
        if g2%2==0: aft['mC'].append(f"ds_read_b128 v[{K4[(g2//2)%2]}:{K4[(g2//2)%2]+3}], v{AK} offset:{k4off(g2)-kbase}")
    else:
        aft['smp'].append("s_waitcnt lgkmcnt(0)")
    if g1<32:
        b=VF[g1%2]
        vv=[f"ds_read_b128 v[{b+4*i}:{b+4*i+3}], v{AV} offset:{voff(g1,i)-vbase}" for i in range(4)]
        aft['s0']+=[on,vv[0],vv[1],off]; aft['s1']+=[on,vv[2],vv[3],off]
        aft['s2'].append("s_waitcnt lgkmcnt(2)")
    for k in pos: aft[k]+=bg[g][k]
    if g in PR: aft['mB' if g in sync else 'smp'].append(f"s_setprio {PR[g]}")
    ins={i:[] for i in range(33)}
    ins[0]+=pre
    for k in order:
        if m[k]: ins[pos[k]].append(m[k])
        ins[pos[k]]+=aft[k]
    for p_,ops in at[g].items(): ins[p_]+=ops
    for i in range(33):
        for x in ins[i]:
            if x=="POLL2": pollcheck('pu',WS_F2,0)
            else: a(x)
        if i<32: a(f"v_exp_f32 v{X+i}, v{X+i}")
a("s_nop 1\n"+SM(VF[1]+12,SS[1]+24))
a(f"s_setprio 2\ns_mov_b32 s{SLOW}, 0\nL_check:")
stamp('loopend')
a(f"""s_mov_b32 s6, 0x7f800000
s_mov_b32 s7, {fh(2.0**-(OFFS+14))}
s_nop 7
v_rcp_f32 v{T+5}, v{O+12}
v_max3_f32 v{T+2}, |v{O}|, |v{O+1}|, |v{O+2}|
v_max3_f32 v{T+3}, |v{O+3}|, |v{O+4}|, |v{O+5}|
v_max3_f32 v{T+2}, v{T+2}, |v{O+6}|, |v{O+7}|
v_max3_f32 v{T+4}, |v{O+8}|, |v{O+9}|, |v{O+10}|
v_max_f32 v{T+2}, v{T+2}, v{T+3}
v_max3_f32 v{T+4}, v{T+4}, |v{O+11}|, v{T+2}
v_cmp_gt_f32 vcc, {fh(2.0**110)}, v{O+12}
v_cmp_gt_f32 s[66:67], s6, v{T+4}
v_cmp_lt_f32 s[6:7], s7, v{T+2}
s_and_b64 vcc, vcc, s[66:67]
s_and_b64 vcc, vcc, s[6:7]
s_cmp_eq_u64 vcc, -1
s_cbranch_scc0 L_slow
L_store:""")
for i in range(8): a(f"v_mul_f32 v{O+i}, v{T+5}, v{O+i}")
for i in range(4): a(f"v_cvt_pk_bf16_f32 v{84+i}, v{O+2*i}, v{O+2*i+1}")
a(f"buffer_store_dwordx4 v[84:87], v{L16}, {S(WS_)}, s{SA} offen sc1")
for i in range(8,12): a(f"v_mul_f32 v{O+i}, v{T+5}, v{O+i}")
for i in range(4,6): a(f"v_cvt_pk_bf16_f32 v{84+i}, v{O+2*i}, v{O+2*i+1}")
OA=12; SG=16; FN=20; PA=1
a(f"""s_mov_b32 exec_hi, 0
buffer_store_dwordx2 v[88:89], v{L8}, {S(WS_)}, s{SB} offen sc1
s_mov_b32 exec_hi, -1
s_setprio 0
{tw(10,OA)}
{tw(11,SG)}
{tw(12,FN)}
{tw(13,PA,1)}
s_waitcnt vmcnt(6)
s_barrier""")
stamp('T-1')
F=44
for i in range(5):
    for u in range(2): a(f"ds_read_b64_tr_b16 v[{F+4*i+2*u}:{F+4*i+2*u+1}], v{UR+(i==2)} offset:{32*i+1280*u+(2480 if i>2 else 0)}")
LATE=list(range(12))+[16,17,18]; EARLY=[12,13,14,15,19]
SLOT={st:i for i,st in enumerate(LATE+EARLY)}
WA=92; WX=172
def wo_read(base,add,st):
    r=base+4*SLOT[st]; o=[]
    for u in range(2):
        if st<16: o.append(f"ds_read_b64_tr_b16 v[{r+2*u}:{r+2*u+1}], v{add+u} offset:{6400*(st%8)}")
        else: o.append(f"ds_read_b64_tr_b16 v[{r+2*u}:{r+2*u+1}], v{add+2+u} offset:{25600*(st%2)}")
    return o
UP=[8,9,10,11,18]; LOW=list(range(8))+[16,17]
NF=36
for i in range(4): a(f"v_add_u32 v{24+i}, s69, v{WAD+i}")
a(f"""v_mov_b32 v3, s{NON}
s_add_u32 s6, s{W}, 2
s_bitcmp1_b32 s6, 2
s_cselect_b32 s{CH}, 0, 1""")
for i in range(5):
    a(f"s_waitcnt lgkmcnt(8)\nv_mfma_f32_16x16x32_bf16 v[{F+20+4*i}:{F+23+4*i}], v[{F+4*i}:{F+4*i+3}], v[{MM}:{MM+3}], 0")
    for x in wo_read(WA,WAD,EARLY[i]): a(x)
for i in range(5):
    d=F+20+4*i
    a(f"v_cvt_pk_bf16_f32 v{d}, v{d}, v{d+1}\nv_cvt_pk_bf16_f32 v{d+1}, v{d+2}, v{d+3}\nds_write_b64 v{VW[i]}, v[{d}:{d+1}]")
for i in range(8): a(f"v_xor_b32 v{NF+i}, 0x80008000, v{TB+8+i}")
a(f"""s_lshl_b32 s6, s{QB}, 3
s_add_u32 s6, s6, s{HG}
s_lshl_b32 s6, s6, 7
s_add_u32 s6, s6, {WS_F3}
s_cmp_eq_u32 s{W}, 2
s_waitcnt vmcnt(4) lgkmcnt(0)
s_barrier
s_cbranch_scc0 L_nofl3
s_mov_b64 exec, 1
buffer_store_dword v3, v{L16}, {S(WS_)}, s6 offen sc1
s_mov_b64 exec, -1
L_nofl3:""")
stamp('T0')
for p in range(2):
    for s in range(2):
        for u in range(2):
            a(f"ds_read_b64_tr_b16 v[{F+8*p+4*s+2*u}:{F+8*p+4*s+2*u+1}], v{VR+2*p+u} offset:{1280*p+640*s}")
TR=F+16; TI=F+32
def mm(d,A,B,c): return f"v_mfma_f32_32x32x16_bf16 v[{d}:{d+15}], v[{A}:{A+3}], v[{B}:{B+3}], {c}"
TRr=f"v[{TR}:{TR+15}]"; TIr=f"v[{TI}:{TI+15}]"
rest=sum([wo_read(WA,WAD,st) for st in UP],[])+[f"v_subrev_u32 v{WAD+i}, 51200, v{WAD+i}" for i in range(4)]+sum([wo_read(WA,WAD,st) for st in LOW],[])
mms=[mm(TR,F,TB,'0'),mm(TI,F,TB+8,'0'),mm(TR,F+4,TB+4,TRr),mm(TI,F+4,TB+12,TIr),mm(TR,F+8,NF,TRr),mm(TI,F+8,TB,TIr),mm(TR,F+12,NF+4,TRr),mm(TI,F+12,TB+4,TIr)]
a("s_waitcnt lgkmcnt(6)"); a(mms[0]); a(mms[1]); a("s_waitcnt lgkmcnt(0)")
for j in range(2,8):
    a(mms[j])
    for x in rest[:4]: a(x)
    rest=rest[4:]
for x in rest: a(x)
a(f"s_cmp_eq_u32 s{CH}, 0\ns_cbranch_scc1 L_noex0")
for st in EARLY:
    for x in wo_read(WX,24,st): a(x)
a("L_noex0:")
WRr=TB+16; WI=TB+28; GG=TB+40; P=4
def twid(lo,hi):
    for i in range(lo,hi,2):
        a(f"""v_mul_f32 v{P}, v{TI+i}, v{WI+i}
        v_mul_f32 v{P+1}, v{TR+i}, v{WI+i}
        v_mul_f32 v{P+2}, v{TI+i+1}, v{WI+i+1}
        v_mul_f32 v{P+3}, v{TR+i+1}, v{WI+i+1}
        v_fma_f32 v{TR+i}, v{TR+i}, v{WRr+i}, -v{P}
        v_fma_f32 v{TI+i}, v{TI+i}, v{WRr+i}, v{P+1}
        v_fma_f32 v{TR+i+1}, v{TR+i+1}, v{WRr+i+1}, -v{P+2}
        v_fma_f32 v{TI+i+1}, v{TI+i+1}, v{WRr+i+1}, v{P+3}
        v_cvt_pk_bf16_f32 v{F+4*(i//4)+(i%4)//2}, v{TR+i}, v{TR+i+1}
        v_cvt_pk_bf16_f32 v{F+4*(i//4)+2+(i%4)//2}, v{TI+i}, v{TI+i+1}""")
TWP=int(XP.get('twp',0)); TW=int(XP.get('tw',12))
twid(0,TWP)
a(f"""s_lshl_b32 s67, s{QB}, 10
s_add_u32 s67, s67, {WS_F3}
s_cmp_eq_u32 s{W}, 3
s_cbranch_scc0 L_nop3
s_waitcnt vmcnt(0)
buffer_load_dword v3, v{PA}, {S(WS_)}, s67 offen sc1
L_nop3:""")
twid(TWP,TW)
a(f"""s_cmp_eq_u32 s{W}, 3
s_cbranch_scc0 L_pook
s_mov_b32 s{CNT}, 0
L_po:
s_waitcnt vmcnt(0)
v_cmp_ne_u32 vcc, s{NON}, v3
s_add_u32 s{CNT}, s{CNT}, 1
s_cmp_gt_u32 s{CNT}, {SPIN}
s_cbranch_scc1 L_pook
s_cbranch_vccz L_pook
buffer_load_dword v3, v{PA}, {S(WS_)}, s67 offen sc1
s_branch L_po
L_pook:
s_waitcnt lgkmcnt(0)
s_barrier""")
stamp('T1')
od=[dmab(L16,WS_,'s68',0,'sc1'),"s_add_u32 m0, m0, 4096","s_add_u32 s68, s68, 4096"]
def odma():
    for x in od: a(x)
N0=int(XP.get('n0',4))
odma()
twid(TW,12)
Y=28
a("s_nop 1")
a(mm(Y,F,GG,'0')); odma(); a(mm(Y,F+4,GG+4,f"v[{Y}:{Y+15}]")); odma(); a(mm(Y,F+8,GG+8,f"v[{Y}:{Y+15}]"))
for n in range(N0-3): odma()
a(f"s_cmp_eq_u32 s{CH}, 0\ns_cbranch_scc1 L_noex1")
for st in UP:
    for x in wo_read(WX,24,st): a(x)
for i in range(4): a(f"v_subrev_u32 v{24+i}, 51200, v{24+i}")
for st in LOW:
    for x in wo_read(WX,24,st): a(x)
a(f"""L_noex1:
s_lshl_b32 s6, s{W}, 7
s_add_u32 s6, s6, s{T0}
s_mul_i32 s67, s6, 2560
s_nop 6""")
for i in range(8): a(f"v_cvt_pk_bf16_f32 v{4+i}, v{Y+2*i}, v{Y+2*i+1}")
fst=[on,f"buffer_store_dwordx4 v[4:7], v{SG+3}, {S(OUT_)}, s67 offen",f"buffer_store_dwordx4 v[8:11], v{SG+3}, {S(OUT_)}, s67 offen offset:16",off]
BB=[36,52,68]; AC=24
def rd(hc):
    b=BB[hc%3]; o=[]
    for k in range(2):
        st=2*hc+k
        for qt in range(2):
            r=b+8*k+4*qt
            if st<16: o.append([f"ds_read_b128 v[{r}:{r+3}], v{OA+qt} offset:{2048*st}"])
            else: o.append([f"ds_read_b64 v[{r+2*u}:{r+2*u+1}], v{OA+2+qt} offset:{2048*(st-16)+1024*u}" for u in range(2)])
    return o
def mmo(hc,ex):
    b=BB[hc%3]; o=[]
    for k in range(2):
        st=2*hc+k
        for (d,w_,qt) in [(AC,WA,0),(AC+4,WA,1)]+([(AC+8,WX,0)] if ex else []):
            r=b+8*k+4*qt; c='0' if st==0 else f"v[{d}:{d+3}]"
            o.append(f"v_mfma_f32_16x16x32_bf16 v[{d}:{d+3}], v[{w_+4*SLOT[st]}:{w_+4*SLOT[st]+3}], v[{r}:{r+3}], {c}")
    return o
SYNC={0:2,2:4,4:7,7:10}
def ogemm(ex):
    issued=N0
    for hc in range(12):
        if hc in SYNC:
            assert issued>=SYNC[hc]
            a(f"s_waitcnt vmcnt({issued-SYNC[hc]})"+(" lgkmcnt(0)" if hc==0 else "")+"\ns_barrier")
        R=rd(hc) if hc<10 else []
        M=mmo(hc-2,ex) if hc>=2 else []
        if M: a(f"s_waitcnt lgkmcnt({0 if hc==11 else (4 if hc-1<8 else 8)})")
        for j in range(max(len(R),len(M))):
            if j<len(M): a(M[j])
            if j<len(R):
                for x in R[j]: a(x)
        if issued<10:
            odma(); issued+=1
            if hc<2 and issued<10: odma(); issued+=1
        if hc==7:
            for x in fst: a(x)
a(f"s_cmp_eq_u32 s{CH}, 0\ns_cbranch_scc1 L_g0")
ogemm(True)
a("s_branch L_ge\nL_g0:")
ogemm(False)
a("L_ge:")
stamp('gemm')
a(f"""s_mul_i32 s6, s{QB}, {64*2560}
s_mul_i32 s7, s{HG}, 160
s_add_u32 s6, s6, s7
s_add_u32 s6, s6, 1280
s_cmp_eq_u32 s{CH}, 0
s_nop 2""")
for i in range(4): a(f"v_cvt_pk_bf16_f32 v{36+i}, v{AC+2*i}, v{AC+1+2*i}")
a(f"""ds_write_b64 v{SG}, v[36:37]
ds_write_b64 v{SG+1}, v[38:39]
s_cbranch_scc1 L_noex2
v_cvt_pk_bf16_f32 v40, v{AC+8}, v{AC+9}
v_cvt_pk_bf16_f32 v41, v{AC+10}, v{AC+11}
ds_write_b64 v{SG+2}, v[40:41]
L_noex2:
s_cmp_ge_u32 s{W}, 2
s_waitcnt lgkmcnt(0)
s_barrier
ds_read_b128 v[24:27], v{FN}
s_cbranch_scc1 L_one
ds_read_b128 v[28:31], v{FN+2}
s_waitcnt lgkmcnt(0)
buffer_store_dwordx4 v[28:31], v{FN+3}, {S(OUT_)}, s6 offen
L_one:
s_waitcnt lgkmcnt(0)
buffer_store_dwordx4 v[24:27], v{FN+1}, {S(OUT_)}, s6 offen""")
if STAMP:
    a("s_waitcnt vmcnt(0)"); stamp('end')
    a(f"""s_lshl_b32 s6, s2, 3
    s_add_u32 s6, s6, s{W}
    s_lshl_b32 s6, s6, 6
    s_add_u32 s6, s6, {WS_ST}
    v_mov_b32 v21, 0
    s_waitcnt lgkmcnt(0)""")
    for i in range(nstamp[0]): a(f"v_mov_b32 v22, s{STB+2*i}\nbuffer_store_dword v22, v21, {S(WS_)}, s6 offen offset:{4*i}")
a("L_end:\ns_endpgm")
X=SS[0]
a(f"""L_slow:
s_cmp_lg_u32 s{SLOW}, 0
s_cbranch_scc1 L_store
s_mov_b32 s{SLOW}, 1
v_mov_b32 v{T+2}, 0xff800000
v_mad_u32_u24 v{AV}, v{HH}, 20, v{T}
v_lshlrev_b32 v{AV}, 4, v{AV}""")
zero(CM,16); zero(O,16)
a(f"""L_pass:
s_mov_b32 s{CNT}, 0
L_sl:
s_lshr_b32 s66, s{CNT}, 1
s_mul_i32 s66, s66, 10240
s_and_b32 s6, s{CNT}, 1
s_mul_i32 s7, s6, 2048
s_add_u32 s7, s7, s66
buffer_load_dwordx4 v[{KF[0]}:{KF[0]+3}], v{L16}, {S(WS_)}, s7 offen sc1
buffer_load_dwordx4 v[{KF[0]+4}:{KF[0]+7}], v{L16}, {S(WS_)}, s7 offen offset:1024 sc1
s_lshl_b32 s7, s6, 3
s_add_u32 s7, s7, s66
s_add_u32 s7, s7, 4096
buffer_load_dwordx2 v[{K4[0]}:{K4[0]+1}], v{L16}, {S(WS_)}, s7 offen sc1
s_mul_i32 s7, s6, 2560
s_add_u32 s7, s7, s66
s_add_u32 s7, s7, 5120
{on}""")
for u in range(4): a(f"buffer_load_dwordx4 v[{VF[0]+4*u}:{VF[0]+4*u+3}], v{AV}, {S(WS_)}, s7 offen offset:{640*u} sc1")
a(f"""{off}
s_waitcnt vmcnt(0)
{M16(X,KF[0],CMr)}
{M16(X+16,KF[0]+4,CMr)}
s_nop 9
{M4(X,K4[0])}
s_nop 15
s_nop 3
s_cmp_eq_u32 s{SLOW}, 1
s_cbranch_scc0 L_p2""")
for i in range(0,32,2): a(f"v_max3_f32 v{T+2}, v{T+2}, v{X+i}, v{X+i+1}")
a("s_branch L_nx\nL_p2:")
for i in range(32): a(f"v_exp_f32 v{X+i}, v{X+i}")
a("s_nop 1")
for u in range(4): a(SM(VF[0]+4*u,X+8*u))
a(f"""L_nx:
s_add_u32 s{CNT}, s{CNT}, 1
s_cmp_lt_u32 s{CNT}, 32
s_cbranch_scc1 L_sl
s_cmp_eq_u32 s{SLOW}, 1
s_cbranch_scc0 L_check
s_mov_b32 s{SLOW}, 2
v_mov_b32 v{T+3}, v{T+2}
s_nop 1
v_permlane32_swap_b32 v{T+2}, v{T+3}
v_max_f32 v{T+2}, v{T+2}, v{T+3}""")
for i in range(16): a(f"v_sub_f32 v{CM+i}, 0, v{T+2}")
a("s_branch L_pass")

hdr=open('concat_heads__spectral_fnet__grouped_kv_mqa__prompt.s.ref').read().split('; Override launch')[0]
s=hdr+"; @launch grid=(256,1,1) block=(512,1,1) lds=163840\n"
if STAMP: s+="; stamps: "+" ".join(stnames)+"\n"
s+='.amdgcn_target "amdgcn-amd-amdhsa--gfx950"\n.text\n'+khead(KN)+a.text()
s+=emit_table('tab_hid',table_hid())+emit_table('tab_wave',table_wave())
s+='.section .rodata,"a"\n'+kdesc(KN,256,102)
open(OUTF,'w').write(s)
print('wrote',OUTF,len(s),'stamps',nstamp[0],stnames)
```

```python
import sys, math, struct
import numpy as np
sys.path.insert(0,'gen')
from asmlib import *

STAMP = '--stamp' in sys.argv
XP = dict((a[4:].split(':')+[''])[:2] for a in sys.argv if a.startswith('--x='))
OUTF = [a for a in sys.argv[1:] if not a.startswith('--')]
OUTF = OUTF[0] if OUTF else 'concat_heads__spectral_fnet__grouped_kv_mqa__prompt.s'
KN='concat_heads__spectral_fnet__grouped_kv_mqa__prompt_kernel'

WS_KV = 0x000000
WS_F1 = 0x040000
WS_F2 = 0x050000
WS_F3 = 0x060000
WS_O  = 0x100000
WS_U  = 0x400000
WS_ST = 0x900000
WS_SZ = 0x1000000
CSCALE = (20**-0.5)*math.log2(math.e)
OFFS = 100.0
SPIN = 200000
def f2u(x): return struct.unpack('<I',struct.pack('<f',x))[0]
def fh(x): return hex(f2u(x))
def bf(x):
    u=np.asarray(x,np.float32).view(np.uint32)
    return ((u+0x7fff+((u>>16)&1))>>16).astype(np.uint32)
def pack(vals):
    b=bf(vals); return b[...,0::2]|(b[...,1::2]<<16)
def sig(n): return 16*((n>>2)&1)+4*(n>>3)+(n&3)
def table_hid():
    out=np.zeros((13,64,4),np.uint32)
    for l in range(64):
        n=l&31; h=l>>5; k1=sig(n)
        for s in range(2):
            d1=np.arange(8)+16*s+8*h
            out[s,l]=pack(np.cos(2*np.pi*d1*k1/32))
            out[2+s,l]=pack(-np.sin(2*np.pi*d1*k1/32))
        for j in range(3):
            d2=8*j+4*h+np.arange(4); ok=(d2<20)
            out[4+j,l]=(np.cos(2*np.pi*d2*k1/640)*ok).astype(np.float32).view(np.uint32)
            out[7+j,l]=(-np.sin(2*np.pi*d2*k1/640)*ok).astype(np.float32).view(np.uint32)
            k2=n if n<20 else 0
            out[10+j,l]=pack(np.concatenate([np.cos(2*np.pi*d2*k2/20)*ok, np.sin(2*np.pi*d2*k2/20)*ok]))
    return out.reshape(-1)
XBL=25600; RB=107520; NONL=158720
WOL=0; UL=102400; VL=143360; OL=81920; STG=0
FLF=0; FSF=10240; FS=32; QSL=RB; QP=168
def grp_rows(k0): return ((k0&~7)+((k0>>2)&1))
def table_p1():
    t=np.zeros((8,5,64,4),np.uint32)
    for w in range(8):
        for l in range(64):
            n=l&15; g=l>>4; r=(l>>2)&3; c=l&3
            j=np.arange(8)
            kidx=16*w+n; u=kidx>>1; q=kidx&1
            for s in range(4):
                sh=32*s+8*g+2*(j&3)+(j>>2)
                v=np.cos(np.pi*sh) if kidx==1 else (np.cos(2*np.pi*u*sh/128) if q==0 else -np.sin(2*np.pi*u*sh/128))
                t[w,s,l]=pack(v)
            rb=FLF+(8*g+2*r)*80; sb=FSF+1280*w
            t[w,4,l]=[rb+8*c, rb+64+8*(c&1), sb+80*n+8*g, sb+16*l]
    return t.reshape(-1)
NQW=8
def table_wave():
    t=np.zeros((8,NQW,64,4),np.uint32)
    for w in range(8):
        for l in range(64):
            n=l&15; g=l>>4; r=(l>>2)&3; c=l&3; h=l>>5
            cell=64*min(w,4)+l; pos=cell//10; cc=cell%10
            krow=(pos&~7)|((pos>>1)&3)|((pos&1)<<2)
            t[w,0,l]=[krow*1280+cc*16, pos*10240+cc*16, FS*(l+128*((w&1)^1)), (cell//5)*20480+(cell%5)*16]
            t[w,1,l]=[51200+r*320+(w&3)*32+8*c+160*(grp_rows(20*(g>>1)+4*(g&1)+8*uu) if kind==0 else grp_rows(20*(4*uu+g)+16)) for kind in range(2) for uu in range(2)]
            ur=UL+5120*w+(2*r+(g&1))*160+(g>>1)*80+8*c
            vw=[VL+n*1280+8*((20*w+4*i+g)^n) for i in range(5)]
            t[w,2,l]=[ur,ur+(2480 if c>=2 else 0),vw[0],vw[1]]
            t[w,3,l]=[vw[2],vw[3],vw[4],8*l]
            col=32 if (g&1) else 8*c
            t[w,4,l]=[VL+2560*w+((((8*h+4*uu+r)*40)+col)^(16*w+8*p)) for p in range(2) for uu in range(2)]
            qh=w>>2; n0=n+16*(w&1); n1=n0^16; ob=OL+qh*40960
            t[w,5,l]=[ob+512*g+16*n0, ob+512*g+16*n1, ob+32768+256*g+8*n0, ob+32768+256*g+8*n1]
            t[w,6,l]=[STG+(32*qh+n0)*176+8*g+32*(w&3), STG+(32*qh+n1)*176+8*g+32*(w&3), STG+(32*qh+n0)*176+8*g+128, 64*(l&31)+32*h]
            c0=64*w+l; c1=min(c0+512,639)
            t[w,7,l]=[STG+(c0+c0//10)*16, c0*16+(c0//10)*2400, STG+(c1+c1//10)*16, c1*16+(c1//10)*2400]
    return t.reshape(-1)
def emit_table(name, arr):
    s=f".p2align 8\n.type {name},@object\n{name}:\n"
    for i in range(0,len(arr),8):
        s+=".long "+",".join(hex(int(x)) for x in arr[i:i+8])+"\n"
    s+=f".size {name}, {4*len(arr)}\n"
    return s

W=3; QB=4; HG=5
XB_=8; TW_=12; KV_=16; WS_=20; XA_=24; WO_=28; OUT_=32
DBG=40; TAB=42; NON=44; R0=45; J=46; RBA=47; RBD=65
SA=49; SB=50; CH=55; FLG=48; RET=52
PB=56; UU=57; QT=58; T0=59; MIR=60; SLOW=61; CNT=62
VM=64
STB=70
def S(r,n=4): return f"s[{r}:{r+n-1}]"
a=Asm()
nstamp=[0]; stnames=[]
def stamp(name):
    sel=XP.get('st','')
    front=['kvland','kvpub','b0','b3','b6','b9pre','b9']
    if sel!='tail' and name.startswith('o_'): return
    if sel!='loop' and name.startswith('g_'): return
    if sel!='front' and name.startswith('f_'): return
    if sel=='front' and name in ['loopend','T0','T1','gemm']: return
    if sel and sel!='front' and name in front: return
    if name in stnames:
        i=stnames.index(name); a(f"{'s_memtime' if 'cyc' in XP else 's_memrealtime'} s[{STB+2*i}:{STB+1+2*i}]"); return
    if STAMP:
        assert nstamp[0]<16
        a(f"{'s_memtime' if 'cyc' in XP else 's_memrealtime'} s[{STB+2*nstamp[0]}:{STB+1+2*nstamp[0]}]"); nstamp[0]+=1; stnames.append(name)
def zero(base,n):
    for i in range(n): a(f"v_mov_b32 v{base+i}, 0")
def dmab(v,srd,soff,off=0,fl=''):
    return f"buffer_load_dwordx4 v{v}, {S(srd)}, {soff} offen{' offset:%d'%off if off else ''} {fl} lds"
def mod5(d,s,t):
    a(f"s_mul_i32 s{t}, s{s}, 0x3334\ns_lshr_b32 s{t}, s{t}, 16\ns_mul_i32 s{t}, s{t}, 5\ns_sub_u32 s{d}, s{s}, s{t}")


L16=2
TB=174
WAD=228; UR=232; VW=[234,235,244,245,246]; L8=247
MM=236; PF=240; WOA=248; UA=249; PA2=250; FA=251; VR=252
Q16=4; Q4=8; IDX=10; AK=3; AV=1
CM=12; O=28; SS=[44,76]; KF=[108,116]; K4=[124,128]; VF=[132,148]; T=164
XR=8; WR=9; QW=13; QR=14; FR=44; ACC=164; FT=174; PFR=190; PD=[214,218,222]; P1A=170
def lines(t): return [x.strip() for x in t.split("\n") if x.strip()]
def pre_m():
    o=[lines(f"""s_and_b32 s{UU}, s2, 7
    s_lshl_b32 s{UU}, s{UU}, 3
    s_bfe_u32 s6, s2, 0x30003
    s_add_u32 s{UU}, s{UU}, s6
    s_lshr_b32 s{QT}, s2, 6
    s_lshr_b32 s{MIR}, s{QT}, 1
    s_sub_u32 s6, 128, s{UU}"""),lines(f"""s_cmp_eq_u32 s{UU}, 0
    s_cselect_b32 s6, 64, s6
    s_cselect_b32 s66, 0, 512
    s_mul_i32 s7, s66, 3
    s_cmp_eq_u32 s{MIR}, 0
    s_cselect_b32 s{T0}, s{UU}, s6
    s_cselect_b32 s66, s7, s66"""),lines(f"""s_and_b32 s6, s{QT}, 1
    s_lshl_b32 s6, s6, 10
    s_add_u32 s{T0}, s{T0}, s6
    v_lshrrev_b32 v23, 5, v0
    v_cmp_eq_u32 vcc, s{MIR}, v23
    v_bfe_u32 v21, v0, 1, 3"""),lines(f"""v_lshl_add_u32 v21, v21, 7, s{T0}
    v_and_b32 v22, 1, v0
    v_lshlrev_b32 v22, 9, v22
    v_mad_u32_u24 v22, v23, s66, v22
    v_bfe_u32 v24, v0, 4, 1"""),lines(f"""v_mad_u32_u24 v22, v24, v21, v22
    v_cvt_f32_u32 v21, v21
    v_cvt_f32_u32 v22, v22
    v_mul_f32 v21, {fh(1/1024)}, v21
    v_mul_f32 v22, {fh(1/2048)}, v22
    s_cmp_eq_u32 s{UU}, 0
    s_cselect_b64 vcc, vcc, -1""")]
    for i in range(4):
        o.append(lines(f"""v_cos_f32 v25, v22
        v_add_f32 v22, v22, v21
        v_cos_f32 v26, v22
        v_add_f32 v22, v22, v21
        v_cvt_pk_bf16_f32 v24, v25, v26
        v_cndmask_b32 v{MM+i}, 0, v24, vcc"""))
    return o

def chunks(l,n): return [l[k:k+n] for k in range(0,len(l),n)]
def att_init():
    o=lines(f"""v_and_b32 v21, 27, v0
    v_cmp_eq_u32 vcc, 24, v21
    v_mov_b32 v21, 0x3f803f80
    s_mov_b32 s{VM}, 0xfffff
    s_mov_b32 s{VM+1}, 0xfffff
    v_cndmask_b32 v{VF[0]}, 0, v21, vcc
    v_cndmask_b32 v{VF[0]+1}, 0, v21, vcc""")
    mv=[f"v_mov_b64 v[{VF[0]+2*i}:{VF[0]+2*i+1}], v[{VF[0]}:{VF[0]+1}]" for i in range(1,16)]+[f"v_mov_b64 v[{O+2*i}:{O+2*i+1}], 0" for i in range(8)]
    sc=lines(f"""s_mov_b32 s{WO_+2}, 819200
    s_mov_b32 s{WO_+3}, 0x20000
    s_mov_b32 s{OUT_+2}, 5242880
    s_mov_b32 s{OUT_+3}, 0x20000
    s_and_b32 s66, s{W}, 1
    s_mul_i32 s66, s66, {32*QP}
    s_lshr_b32 s67, s{W}, 1
    s_mul_i32 s67, s67, 40
    s_add_u32 s66, s66, s67
    s_add_u32 s66, s66, {QSL}
    s_mul_i32 s67, s{W}, {NQW*1024}
    s_add_u32 s67, s67, tab_wave-L_pc+4096""")
    for k,x in enumerate(mv):
        o.append(x)
        if k<len(sc): o.append(sc[k])
    o=chunks(o,6)
    o.append(lines(f"""s_add_u32 s{TW_}, s{TAB}, s67
    s_addc_u32 s{TW_+1}, s{TAB+1}, 0
    v_and_b32 v21, 31, v0
    v_cmp_gt_u32 vcc, 16, v21
    v_lshrrev_b32 v22, 5, v0
    v_mov_b32 v23, 0x180
    v_cndmask_b32 v23, 64, v23, vcc"""))
    o.append(lines(f"""v_mul_u32_u24 v23, v22, v23
    v_lshl_add_u32 v{AV}, v21, 4, v23
    v_mul_u32_u24 v21, {QP}, v21
    v_add_u32 v{QR+1}, s66, v21
    v_lshl_add_u32 v{QR}, v22, 4, v{QR+1}
    v_mov_b32 v{AK}, v{L16}"""))
    return o
def p1_scal():
    return lines(f"""s_and_b32 s6, s2, 7
    s_lshl_b32 s6, s6, 1
    s_bfe_u32 s7, s2, 0x10003
    s_add_u32 s6, s6, s7
    s_lshr_b32 s7, s2, 4
    s_lshl_b32 s{PB}, s7, 4
    s_add_u32 s{PB}, s{PB}, s6
    s_mul_i32 s6, s6, 1280
    s_mul_i32 s7, s7, 80
    s_add_u32 s69, s6, s7
    s_lshl_b32 s{PB}, s{PB}, 3
    s_add_u32 s{PB}, s{PB}, s{W}
    s_mul_i32 s{PB}, s{PB}, 1280
    s_add_u32 s{PB}, s{PB}, {WS_U}
    s_mov_b32 s{XA_+2}, 2621440
    s_mov_b32 s{XA_+3}, 0x20000
    s_mul_i32 s6, s{W}, 5120
    s_add_u32 s6, s6, tab_p1-L_pc+1024
    s_add_u32 s66, s{TAB}, s6
    s_addc_u32 s67, s{TAB+1}, 0""")
def em(l):
    for x in l:
        if isinstance(x,list): em(x)
        else: a(x)
def wrap(d,s,inc,lim):
    a(f"s_add_u32 s{d}, s{s}, {inc}\ns_sub_u32 s7, s{d}, {lim}\ns_min_u32 s{d}, s{d}, s7")

def polls(base):
    return [f"s_mov_b32 s6, {base}",f"buffer_load_dword v{PF}, v{PA2}, {S(WS_)}, s6 offen sc1",f"buffer_load_dword v{PF+1}, v{PA2}, {S(WS_)}, s6 offen offset:{64*FS} sc1"]
def pollcheck(tag, base, n):
    a(f"""s_sub_u32 s6, s{W}, 5
    s_cmp_lt_u32 s6, 2
    s_cbranch_scc0 L_{tag}ok
    s_mov_b32 s{CNT}, 0
    s_mov_b32 s6, {base}
    s_waitcnt vmcnt({n})
    L_{tag}:
    v_cmp_ne_u32 vcc, s{NON}, v{PF}
    v_cmp_ne_u32 s[66:67], s{NON}, v{PF+1}
    s_add_u32 s{CNT}, s{CNT}, 1
    s_or_b64 vcc, vcc, s[66:67]
    s_cbranch_scc0 L_{tag}ok
    s_cmp_gt_u32 s{CNT}, {SPIN}
    s_cbranch_scc1 L_{tag}ok
    buffer_load_dword v{PF}, v{PA2}, {S(WS_)}, s6 offen sc1
    buffer_load_dword v{PF+1}, v{PA2}, {S(WS_)}, s6 offen offset:{64*FS} sc1
    s_waitcnt vmcnt(0)
    s_branch L_{tag}
    L_{tag}ok:""")

stamp('start')
a(f"""s_cmp_ge_u32 s2, 256
s_cbranch_scc1 L_end
s_load_dwordx8 s[48:55], s[0:1], 40
s_load_dwordx8 s[56:63], s[0:1], 72
s_load_dwordx2 s[24:25], s[0:1], 0
s_memrealtime s[68:69]
s_getpc_b64 s[{TAB}:{TAB+1}]
L_pc:
v_lshrrev_b32 v1, 6, v0
v_and_b32 v0, 63, v0
s_and_b32 s{QB}, s2, 7
v_readfirstlane_b32 s{W}, v1
s_lshl_b32 s{QB}, s{QB}, 2
v_lshlrev_b32 v{L16}, 4, v0
s_bfe_u32 s6, s2, 0x20003
v_lshrrev_b32 v21, 3, v0
s_add_u32 s{QB}, s{QB}, s6
v_lshrrev_b32 v23, 4, v0
s_lshr_b32 s{HG}, s2, 5
v_and_b32 v24, 7, v0
s_and_b32 s7, s2, 0xf8
s_add_u32 s7, s7, s{W}
s_lshl_b32 s7, s7, 7
v_lshl_add_u32 v22, v0, 15, s7
s_add_u32 s{R0}, s6, s{HG}
s_mov_b64 exec, {int(XP.get('pf',15))}
global_load_dword v255, v22, s[{TAB}:{TAB+1}]
s_mov_b64 exec, -1
v_xor_b32 v23, v23, v24
s_mul_i32 s7, s{R0}, 0x3334
v_mul_u32_u24 v21, 0x500, v21
s_lshr_b32 s7, s7, 16
v_lshl_add_u32 v3, v23, 4, v21
s_mul_i32 s7, s7, 5
v_mov_b32 v17, 0
s_sub_u32 s{R0}, s{R0}, s7
s_and_b32 s{J}, s{HG}, 3
s_lshl_b32 s7, s{J}, 1
s_cmp_lt_u32 s{HG}, 4
s_cselect_b32 s{RBA}, s{J}, s7
s_cselect_b32 s{RBD}, 4, 1
s_mov_b32 s{XB_+2}, 2621440
s_mov_b32 s{XB_+3}, 0x20000
s_mov_b32 s{WS_+2}, {WS_SZ}
s_mov_b32 s{WS_+3}, 0x20000
s_cmp_ge_u32 s{W}, 4
s_cbranch_scc1 L_loader
s_and_b32 s6, s{W}, 1
s_mul_i32 s6, s6, s{RBD}
s_add_u32 s6, s6, s{RBA}
s_and_b32 s7, s6, 1
s_lshl_b32 s7, s7, 6
v_xor_b32 v4, s7, v3
s_lshl_b32 s7, s{QB}, 3
s_add_u32 s7, s7, s6
s_mul_i32 s7, s7, 10240
v_add_u32 v4, s7, v4
s_lshr_b32 s36, s{W}, 1
s_lshl_b32 s35, s36, 3
s_add_u32 s35, s35, s6
s_lshl_b32 s35, s35, 10
s_add_u32 s35, s35, {XBL}
s_lshl_b32 s36, s36, 7
s_lshl_b32 s6, s{R0}, 8
s_add_u32 s36, s36, s6
s_lshl_b32 m0, s{W}, 10
s_mul_i32 s6, s{R0}, 5120
s_add_u32 s37, m0, s6
s_mov_b32 s{KV_+2}, 25600
s_mov_b32 s{KV_+3}, 0x20000
s_cmp_lt_u32 s{HG}, 4""")
stamp('f_ka0')
a(f"""s_waitcnt lgkmcnt(0)
s_cselect_b32 s{KV_}, s52, s54
s_cselect_b32 s{KV_+1}, s53, s55""")
for t in range(6):
    a(dmab(L16,KV_,'s37')); a("s_add_u32 m0, m0, 4096"); wrap(37,37,4096,25600)
    if t==0: a(f"s_mov_b32 s{XB_}, s48\ns_mov_b32 s{XB_+1}, s49")
a(f"""s_cmp_lg_u32 s{W}, 0
s_cbranch_scc1 L_nw0
{dmab(L16,KV_,'s37')}
L_nw0:
s_mov_b32 m0, s35
s_nop 0""")
for t in range(5):
    a(dmab(4,XB_,'s36'))
    if t<4: a("s_add_u32 m0, m0, 16384"); wrap(36,36,256,1280)
stamp('f_kvi')
cpy=f"""s_mov_b32 s{WO_}, s56
s_mov_b32 s{WO_+1}, s57
s_mov_b32 s{OUT_}, s58
s_mov_b32 s{OUT_+1}, s59
s_mov_b32 s{DBG}, s60
s_mov_b32 s{DBG+1}, s61
s_mov_b32 s{WS_}, s62
s_mov_b32 s{WS_+1}, s63"""
a(cpy)
a(f"""v_and_b32 v21, 15, v0
v_lshrrev_b32 v22, 4, v0
s_and_b32 s6, s{W}, 1
s_lshl_b32 s7, s6, 12
s_add_u32 s7, s7, {XBL}
v_lshrrev_b32 v24, 1, v21
v_xor_b32 v23, v22, v24
v_lshl_add_u32 v24, v21, 7, s7
v_lshl_add_u32 v{XR}, v23, 4, v24
v_xor_b32 v7, 64, v{XR}
s_lshr_b32 s66, s{W}, 1
s_mul_i32 s66, s66, 96
s_add_u32 s7, s66, {RB}
v_lshrrev_b32 v23, 2, v0
v_mul_u32_u24 v23, 320, v23
v_and_b32 v25, 3, v0
v_lshl_add_u32 v23, v25, 3, v23
v_and_b32 v24, 1, v22
v_mul_u32_u24 v24, 160, v24
v_add3_u32 v{WR}, v23, v24, s7
s_add_u32 s7, s7, 160
v_sub_u32 v23, v23, v24
v_add_u32 v{WR+1}, s7, v23
s_mul_i32 s7, s6, {32*QP}
s_add_u32 s7, s7, s66
s_add_u32 s7, s7, {QSL}
v_mul_u32_u24 v23, {QP}, v21
v_lshl_add_u32 v23, v22, 3, v23
v_add_u32 v{QW}, s7, v23
s_mov_b32 s{FLG}, 1
s_cmp_lt_u32 s{W}, 2
s_cbranch_scc1 L_nokv""")
a(f"""s_mov_b32 s{FLG}, 0
v_lshrrev_b32 v26, 3, v21
v_and_b32 v27, 7, v21
v_mul_u32_u24 v23, s{RBD}, v26
v_add_u32 v23, s{RBA}, v23
v_and_b32 v24, 1, v23
v_lshlrev_b32 v23, 10, v23
v_lshl_add_u32 v23, v24, 6, v23
v_lshl_add_u32 v23, v27, 7, v23
v_lshrrev_b32 v24, 1, v27
v_xor_b32 v24, v24, v22
v_lshl_add_u32 v23, v24, 4, v23
v_add_u32 v18, {XBL}, v23
v_xor_b32 v19, 64, v18
v_bfe_u32 v23, v0, 2, 2
v_lshl_add_u32 v23, v22, 3, v23
v_mul_u32_u24 v23, 40, v23
s_cmp_eq_u32 s6, 0
s_cselect_b64 vcc, -1, 0
v_cndmask_b32 v25, 4, v25, vcc
v_lshl_add_u32 v20, v25, 3, v23
s_lshr_b32 s66, s{QB}, 1
s_mul_i32 s66, s66, 10240
s_and_b32 s67, s{QB}, 1
v_lshrrev_b32 v24, 1, v22
v_and_b32 v25, 1, v22
s_cmp_ge_u32 s{HG}, 4
s_cbranch_scc1 L_kvV""")
def kvgemm(isK):
    a("s_waitcnt vmcnt(0)\ns_barrier")
    stamp('kvland')
    NB=5
    def rd(st):
        f=FR+8*(st%NB)
        if st==16: a("v_add_u32 v18, 0x10000, v18\nv_add_u32 v19, 0x10000, v19")
        a(f"""ds_read_b128 v[{f}:{f+3}], v{18+st%2} offset:{(8192*(st//2))&0xffff}
        ds_read_b64_tr_b16 v[{f+4}:{f+5}], v20 offset:{1280*st}
        ds_read_b64_tr_b16 v[{f+6}:{f+7}], v20 offset:{1280*st+160}""")
    for st in range(NB-1): rd(st)
    for st in range(20):
        if st+NB-1<20: rd(st+NB-1)
        f=FR+8*(st%NB); A,B=(f+4,f) if isK else (f,f+4)
        a(f"s_waitcnt lgkmcnt({3*min(NB-1,19-st)})\nv_mfma_f32_16x16x32_bf16 v[28:31], v[{A}:{A+3}], v[{B}:{B+3}], {'0' if st==0 else 'v[28:31]'}")
a(f"""v_lshlrev_b32 v27, 4, v27
v_lshl_add_u32 v23, v26, 11, v27
v_lshl_add_u32 v23, v24, 9, v23
v_lshl_add_u32 v23, v25, 3, v23
v_lshl_add_u32 v27, v26, 3, v27
v_cndmask_b32 v15, v27, v23, vcc
s_lshl_b32 s7, s67, 9
s_add_u32 s7, s7, 4096
s_lshl_b32 s67, s67, 10
s_cmp_eq_u32 s6, 0
s_cselect_b32 s67, s67, s7
s_cselect_b32 s64, -1, 0xffff
s_cselect_b32 s65, -1, 0
s_lshl_b32 s7, s{J}, 7
s_add_u32 s66, s66, s7
s_add_u32 s66, s66, s67""")
kvgemm(True)
a(f"""s_branch L_kvW
L_kvV:
s_cmp_eq_u32 s6, 0
s_cselect_b32 s7, 0x180, 64
s_cselect_b32 s64, -1, 0x000f000f
s_mov_b32 s65, s64
v_mul_u32_u24 v24, s7, v24
v_lshl_add_u32 v24, v21, 4, v24
v_lshl_add_u32 v15, v25, 3, v24
s_and_b32 s7, s{J}, 2
s_add_u32 s67, s67, s7
s_lshl_b32 s67, s67, 1
s_and_b32 s7, s{J}, 1
s_add_u32 s67, s67, s7
s_mul_i32 s67, s67, 640
s_lshl_b32 s7, s6, 8
s_add_u32 s66, s66, s7
s_add_u32 s66, s66, s67
s_add_u32 s66, s66, 5120""")
kvgemm(False)
a(f"""L_kvW:
global_load_dword v16, v17, s[{DBG}:{DBG+1}] sc1
s_nop 6
v_cvt_pk_bf16_f32 v28, v28, v29
v_cvt_pk_bf16_f32 v29, v30, v31
s_mov_b64 exec, s[64:65]
buffer_store_dwordx2 v[28:29], v15, {S(WS_)}, s66 offen sc1
s_mov_b64 exec, -1
s_branch L_kvE
L_nokv:""")
a("s_waitcnt vmcnt(0)\ns_barrier")
stamp('kvland')
a("L_kvE:")
stamp('kvpub')
def qmm(i,k,ct,qt):
    f=FR+40*(i%2)+20*k; d=ACC+8*ct+4*qt
    c='0' if (i==0 and k==0) else f"v[{d}:{d+3}]"
    return f"v_mfma_f32_16x16x32_bf16 v[{d}:{d+3}], v[{f+8+4*ct}:{f+11+4*ct}], v[{f+4*qt}:{f+4*qt+3}], {c}"
def qrx(i,k,qt):
    f=FR+40*(i%2)+20*k; return f"ds_read_b128 v[{f+4*qt}:{f+4*qt+3}], v{[XR,7][k]} offset:{((8192*i)&0xffff)+2048*qt}"
def qrw(i,k,ct,u):
    f=FR+40*(i%2)+20*k+8+4*ct+2*u; return f"ds_read_b64_tr_b16 v[{f}:{f+1}], v{WR+u} offset:{(i%5)*10240+5120*k+32*ct}"
def weave(R,M):
    n=max(len(M),1); k=0
    for j in range(n):
        t=(len(R)*(j+1))//n
        em(R[k:t]); k=t
        if M: a(M[j])
fill=pre_m()+att_init()+[p1_scal()[:10],p1_scal()[10:]]
quota=[round(len(fill)*(i+1)/9) for i in range(9)]; done=0
FORCE=int(XP.get('force',5))
for i in range(10):
    a("s_barrier")
    if i in (0,3,6,9): stamp(f'b{i}')
    if i==FORCE+1: a(f"v_mov_b32 v18, {NONL}\nds_read_b32 v16, v18")
    if i==FORCE+2: a(f"v_readfirstlane_b32 s{NON}, v16")
    R=[x for k in range(2) for x in [qrx(i,k,0),qrx(i,k,1)]+[qrw(i,k,ct,u) for ct in range(2) for u in range(2)]]
    M=[qmm(i-1,k,ct,qt) for k in range(2) for ct in range(2) for qt in range(2)] if i>0 else []
    weave(R,M)
    a(f"s_cmp_ge_u32 s{W}, 2\ns_cbranch_scc1 L_c{i}")
    weave([qrw(i,k,2,u) for k in range(2) for u in range(2)],[qmm(i-1,k,2,qt) for k in range(2) for qt in range(2)] if i>0 else [])
    a(f"L_c{i}:")
    if i==7: a(f"v_add_u32 v{XR}, 0x10000, v{XR}\nv_add_u32 v7, 0x10000, v7")
    if i<9: em(fill[done:quota[i]]); done=quota[i]
    if i<=FORCE:
        if i<FORCE: a(f"s_getreg_b32 s68, hwreg(HW_REG_IB_STS, 0, 4)\ns_or_b32 s68, s68, s{FLG}")
        else: a(f"s_cmp_lg_u32 s{FLG}, 0")
        a(f"s_cbranch_scc1 L_nf{i}\ns_call_b64 s[{RET}:{RET+1}], L_flag1\nL_nf{i}:")
    a("s_waitcnt lgkmcnt(0)")
def qst(ct):
    for qt in range(2):
        d=ACC+8*ct+4*qt
        a(f"""v_pk_mul_f32 v[{d}:{d+1}], v[{d}:{d+1}], s[6:7]
        v_pk_mul_f32 v[{d+2}:{d+3}], v[{d+2}:{d+3}], s[6:7]
        v_cvt_pk_bf16_f32 v{d}, v{d}, v{d+1}
        v_cvt_pk_bf16_f32 v{d+1}, v{d+2}, v{d+3}
        ds_write_b64 v{QW}, v[{d}:{d+1}] offset:{16*QP*qt+32*ct}""")
a(f"s_mov_b32 s6, {fh(CSCALE)}\ns_mov_b32 s7, {fh(CSCALE)}")
em([qmm(9,k,ct,qt) for ct in range(2) for k in range(2) for qt in range(2)])
a(f"s_cmp_ge_u32 s{W}, 2\ns_cbranch_scc1 L_c10")
em([qmm(9,k,2,qt) for k in range(2) for qt in range(2)])
a(f"L_c10:\nv_mov_b32 v{IDX}, 0xdddddddd")
qst(0); qst(1)
a("s_cbranch_scc1 L_c11")
qst(2)
a("L_c11:\ns_waitcnt lgkmcnt(0)")
stamp('f_qst')
a("s_branch L_att")
a(f"""L_flag1:
s_mov_b32 s{CNT}, 0
L_non:
s_waitcnt vmcnt(0)
v_readfirstlane_b32 s{NON}, v16
s_add_u32 s{CNT}, s{CNT}, 1
s_cmp_gt_u32 s{CNT}, {SPIN}
s_cbranch_scc1 L_gotnon
s_cmp_lg_u32 s{NON}, 0
s_cbranch_scc1 L_gotnon
global_load_dword v16, v17, s[{DBG}:{DBG+1}] sc1
s_branch L_non
L_gotnon:
s_lshl_b32 s68, s{QB}, 3
s_add_u32 s68, s68, s{HG}
s_mul_i32 s68, s68, {FS//4}
s_add_u32 s68, s68, s{W}
s_lshl_b32 s68, s68, 2
s_add_u32 s68, s68, {WS_F1-8}
v_mov_b32 v18, {NONL}
s_mov_b64 exec, 1
buffer_store_dword v16, v17, {S(WS_)}, s68 offen sc1
ds_write_b32 v18, v16
s_mov_b64 exec, -1
s_mov_b32 s{FLG}, 1""")
stamp('f_flag')
a(f"s_setpc_b64 s[{RET}:{RET+1}]")

a("L_loader:")
ST=[dict(srd=36,v=5,G=16,GS=17,GL=18,L=19,LD=30,LS=31,LW=34),dict(srd=12,v=7,G=26,GS=27,GL=35,L=44,LD=64,LS=66,LW=67)]
for k,st in enumerate(ST):
    a(f"""s_lshl_b32 s47, s{W}, 1
    s_sub_u32 s47, s47, {8-k}
    s_mov_b32 s{st['srd']+3}, 0x20000
    s_cmp_ge_u32 s47, 5
    s_cbranch_scc1 L_sx{k}
    s_lshl_b32 s6, s47, 6
    v_add_u32 v21, s6, v0
    v_mul_u32_u24 v23, 0x667, v21
    v_lshrrev_b32 v23, 14, v23
    s_mov_b32 s{st['srd']+2}, 819200
    v_mul_u32_u24 v24, 10, v23
    s_mov_b32 s{st['GS']}, {64*1280}
    v_sub_u32 v24, v21, v24
    s_lshl_b32 s{st['L']}, s47, 10
    v_lshrrev_b32 v25, 3, v23
    s_add_u32 s{st['L']}, s{st['L']}, {RB}
    v_xor_b32 v26, v25, v23
    s_mov_b32 s{st['LD']}, 5120
    v_and_b32 v26, 1, v26
    s_mov_b32 s{st['LS']}, 10240
    v_lshl_add_u32 v25, v25, 1, v26
    s_mov_b32 s{st['LW']}, 51200
    v_bfe_u32 v26, v23, 1, 2
    s_mul_i32 s6, s{HG}, 160
    v_lshl_add_u32 v25, v25, 2, v26
    v_mul_u32_u24 v25, 0x500, v25
    v_lshl_add_u32 v24, v24, 4, s6
    v_add_u32 v{st['v']}, v24, v25
    v_add_u32 v{st['v']+1}, {32*1280}, v{st['v']}
    s_branch L_se{k}
    L_sx{k}:
    s_add_u32 s6, s47, s{J}
    s_and_b32 s6, s6, 3
    s_lshr_b32 s7, s{HG}, 2
    s_lshl_b32 s6, s6, s7
    s_lshl_b32 s{st['L']}, s6, 10
    s_add_u32 s{st['L']}, s{st['L']}, {XBL}
    s_lshl_b32 s{st['LD']}, s{RBD}, 10
    s_and_b32 s47, s6, 1
    s_lshl_b32 s47, s47, 6
    v_xor_b32 v21, s47, v3
    s_lshl_b32 s7, s7, 6
    v_xor_b32 v22, s7, v21
    s_lshl_b32 s7, s{QB}, 3
    s_add_u32 s6, s6, s7
    s_mul_i32 s7, s6, 10240
    v_add_u32 v{st['v']}, s7, v21
    s_add_u32 s6, s6, s{RBD}
    s_mul_i32 s7, s6, 10240
    v_add_u32 v{st['v']+1}, s7, v22
    s_mov_b32 s{st['srd']+2}, 2621440
    s_mov_b32 s{st['GS']}, 128
    s_mov_b32 s{st['LS']}, 8192
    s_mov_b32 s{st['LW']}, 0
    L_se{k}:
    s_lshl_b32 s6, s{R0}, 1
    s_mul_i32 s{st['G']}, s6, s{st['GS']}
    s_mul_i32 s{st['GL']}, s{st['GS']}, 10""")
a(f"""s_and_b32 s6, s{W}, 3
s_lshl_b32 s6, s6, 6
v_add_u32 v21, s6, v0
v_mul_u32_u24 v47, {FS}, v0
v_mul_u32_u24 v48, {FS}, v21""")
stamp('f_ka0')
a(f"""s_waitcnt lgkmcnt(0)
s_cmp_ge_u32 s{W}, 7
s_cselect_b32 s36, s48, s50
s_cselect_b32 s37, s49, s51
s_cmp_ge_u32 s{W}, 6
s_cselect_b32 s12, s48, s50
s_cselect_b32 s13, s49, s51""")
a(cpy)
a(f"""s_lshl_b32 s6, s2, 3
s_add_u32 s6, s6, s{W}
s_cmp_eq_u32 s6, 7
s_cbranch_scc0 L_nonon
s_or_b32 s68, s68, 1
v_mov_b32 v23, s68
s_mov_b64 exec, 1
global_store_dword v17, v23, s[{DBG}:{DBG+1}] sc1
s_mov_b64 exec, -1
L_nonon:""")
def issue(i):
    for st in ST:
        if i==5: a(f"s_sub_u32 s{st['L']}, s{st['L']}, s{st['LW']}")
        a(f"""s_mov_b32 m0, s{st['L']}
        s_add_u32 s{st['L']}, s{st['L']}, s{st['LS']}
        {dmab(st['v'],st['srd'],'s%d'%st['G'])}
        s_add_u32 m0, m0, s{st['LD']}
        s_add_u32 s6, s{st['G']}, s{st['GS']}
        {dmab(st['v']+1,st['srd'],'s%d'%st['G'])}
        s_cmp_eq_u32 s6, s{st['GL']}
        s_cselect_b32 s{st['G']}, 0, s6""")
KB=int(XP.get('kb',2))
for i in range(KB): issue(i)
stamp('f_kvi')
a("s_barrier")
for i in range(KB,3): issue(i)
POLLI=int(XP.get('polli',8))
fillL=pre_m()+att_init()+[p1_scal()]
def lpolls():
    a(f"buffer_load_dwordx2 v[50:51], v47, {S(WS_)}, s68 offen sc1\nbuffer_load_dwordx2 v[52:53], v48, {S(WS_)}, s68 offen sc1")
for i in range(10):
    n=4*min(2,9-i)+(2 if i>POLLI else 0)
    a(f"s_waitcnt vmcnt({n})\ns_barrier")
    if i<7: issue(i+3)
    if i==7: a(f"v_mov_b32 v18, {NONL}\nds_read_b32 v16, v18\ns_mov_b32 s68, {WS_F1}")
    if i==POLLI: lpolls()
    if i==7: em(fillL[:5])
    if i==8: em(fillL[5:9])
fillL=fillL[9:]
a(f"""s_waitcnt lgkmcnt(0)
v_readfirstlane_b32 s{NON}, v16
v_mov_b32 v{IDX}, 0xdddddddd
s_mov_b32 s{CNT}, 0
s_and_b32 s6, s{W}, 3
s_lshl_b32 m0, s6, 10""")
if POLLI>9: lpolls()
a(f"""L_pk:
s_waitcnt vmcnt(0)
v_xor_b32 v50, s{NON}, v50
v_xor_b32 v51, s{NON}, v51
v_xor_b32 v52, s{NON}, v52
v_xor_b32 v53, s{NON}, v53
v_or3_b32 v50, v50, v51, v52
v_or_b32 v50, v50, v53
v_cmp_ne_u32 vcc, 0, v50
s_add_u32 s{CNT}, s{CNT}, 1
s_cmp_gt_u32 s{CNT}, {SPIN}
s_cbranch_scc1 L_pkok
s_cbranch_vccz L_pkok""")
lpolls()
a("s_branch L_pk\nL_pkok:")
dma=f"buffer_load_dwordx4 v{L16}, {S(WS_)}, m0 offen sc1 lds"
bump="s_add_u32 m0, m0, 8192"
stamp('f_qst')
for k in range(6): a(dma+"\ns_add_u32 m0, m0, 4096\ns_nop 0")
em(fillL)
stamp('f_flag')
a("s_waitcnt vmcnt(0)")
stamp('f_p1')
a(f"""s_waitcnt vmcnt(0)
L_att:
s_lshl_b32 m0, s{W}, 10
s_add_u32 m0, m0, 24576
s_setprio 3
s_barrier""")
stamp('att')
def koff(g,t): return (g>>1)*10240+(2*(g&1)+t)*1024
def k4off(g): return (g>>1)*10240+4096
def voff(g,u): return (g>>1)*10240+5120+(4*(g&1)+u)*640
on=f"s_mov_b64 exec, s[{VM}:{VM+1}]"; off="s_mov_b64 exec, -1"
def M16(d,k,c): return f"v_mfma_f32_32x32x16_bf16 v[{d}:{d+15}], v[{k}:{k+3}], v[{Q16}:{Q16+3}], {c}"
def M4(d,k): return f"v_mfma_f32_32x32x4_2b_bf16 v[{d}:{d+31}], v[{k}:{k+1}], v[{Q4}:{Q4+1}], v[{d}:{d+31}]"
def SM(v,x): return f"v_smfmac_f32_32x32x32_bf16 v[{O}:{O+15}], v[{v}:{v+3}], v[{x}:{x+7}], v{IDX}"
CMr=f"v[{CM}:{CM+15}]"
a(f"""ds_read_b64 v[{Q16}:{Q16+1}], v{QR}
ds_read_b64 v[{Q16+2}:{Q16+3}], v{QR} offset:8
ds_read_b64 v[{Q4}:{Q4+1}], v{QR+1} offset:32
ds_read_b128 v[{KF[0]}:{KF[0]+3}], v{AK} offset:{koff(0,0)}
ds_read_b128 v[{KF[0]+4}:{KF[0]+7}], v{AK} offset:{koff(0,1)}
ds_read_b128 v[{K4[0]}:{K4[0]+3}], v{AK} offset:{k4off(0)}
ds_read_b128 v[{KF[1]}:{KF[1]+3}], v{AK} offset:{koff(1,0)}
ds_read_b128 v[{KF[1]+4}:{KF[1]+7}], v{AK} offset:{koff(1,1)}""")
X=SS[0]
nl=[0]
def role04(ops):
    nl[0]+=1
    return [f"s_cmp_ge_u32 s{W}, 5",f"s_cbranch_scc1 L_r{nl[0]}"]+ops+[f"L_r{nl[0]}:"]
a(f"""s_waitcnt lgkmcnt(4)
{M16(X,KF[0],'0')}
s_waitcnt lgkmcnt(3)
{M16(X+16,KF[0]+4,'0')}
{on}""")
for u in range(4): a(f"ds_read_b128 v[{VF[0]+4*u}:{VF[0]+4*u+3}], v{AV} offset:{voff(0,u)}")
a(f"""{off}
s_waitcnt lgkmcnt(6)
s_nop 2
{M4(X,K4[0])}
{dma}
{bump}
s_nop 0
{dma}
{bump}
s_nop 14""")
a(f"v_max3_f32 v{T+2}, v{X}, v{X+1}, v{X+2}\nv_max3_f32 v{T+3}, v{X+3}, v{X+4}, v{X+5}")
for i in range(6,32,4):
    a(f"v_max3_f32 v{T+2}, v{T+2}, v{X+i}, v{X+i+1}")
    if i+2<32: a(f"v_max3_f32 v{T+3}, v{T+3}, v{X+i+2}, v{X+i+3}")
a(f"""v_max_f32 v{T+2}, v{T+2}, v{T+3}
v_mov_b32 v{T+3}, v{T+2}
s_nop 1
v_permlane32_swap_b32 v{T+2}, v{T+3}
v_max_f32 v{T+2}, v{T+2}, v{T+3}
v_sub_f32 v{CM}, {fh(-OFFS)}, v{T+2}
v_sub_f32 v{CM+1}, {fh(-OFFS)}, v{T+2}""")
for i in range(1,8): a(f"v_mov_b64 v[{CM+2*i}:{CM+2*i+1}], v[{CM}:{CM+1}]")
a(f"s_waitcnt lgkmcnt(0)\ns_nop 0\n{M16(SS[1],KF[1],CMr)}")
for i in range(16): a(f"v_pk_add_f32 v[{X+2*i}:{X+2*i+1}], v[{X+2*i}:{X+2*i+1}], v[{CM}:{CM+1}]")
pos=dict(smp=2,mB=5,s0=10,mC=13,s1=21,s2=26,mA=29)
order=sorted(pos,key=lambda k:pos[k])
kbase=0; vbase=0
bg={g:{k:[] for k in pos} for g in range(32)}
at={g:{} for g in range(32)}
sync={}
KVD=[dma,bump]
def tw(q,r,n=4):
    op={4:'dwordx4',1:'dword'}[n]
    return f"global_load_{op} {vr(r,n)}, v{L16}, s[{TW_}:{TW_+1}] offset:{1024*q-twb[0]}"
twb=[4096]
def twadv(n):
    twb[0]+=n
    return [f"s_add_u32 s{TW_}, s{TW_}, {n}",f"s_addc_u32 s{TW_+1}, s{TW_+1}, 0"]
for k in ['mB','s2','mA']: bg[0][k]+=KVD
for g in range(1,7):
    bg[g]['mB']+=KVD; bg[g]['mA']+=KVD
bg[0]['mC']+=[tw(0,WOA)]
sync[2]=["s_waitcnt vmcnt(2)","s_barrier"]
bg[2]['mC']+=role04([f"s_mov_b32 s6, m0",f"s_lshl_b32 m0, s{W}, 10",f"s_add_u32 s7, s69, {64*16*1280}",dmab(FA,XA_,'s69'),"s_add_u32 m0, m0, 5120","s_nop 0",dmab(FA,XA_,'s7'),"s_mov_b32 m0, s6"])
for q,r_ in enumerate([FT,FT+4,FT+8,FT+12,P1A]): bg[3+q]['s2']+=[f"global_load_dwordx4 v[{r_}:{r_+3}], v{L16}, s[66:67] offset:{1024*q-1024}"]
for j,ops in enumerate([[tw(1,WAD)],[tw(2,UR)],[tw(3,244)],[tw(4,VR)]]): bg[3+j]['mC']+=ops
sync[10]=["s_waitcnt vmcnt(0)","s_barrier"]
for s_ in range(4):
    f=PFR+12*(s_&1)
    for Tt in range(3):
        for u in range(2):
            bg[10+s_][['mC','s2','mA'][Tt]].append(f"ds_read_b64_tr_b16 v[{f+4*Tt+2*u}:{f+4*Tt+2*u+1}], v{P1A+(Tt==2)} offset:{(32*s_+u)*80+(32 if Tt==1 else 0)}")
        c='0' if s_==0 else f"v[{PD[Tt]}:{PD[Tt]+3}]"
        at[11+s_][[8,24,32][Tt]]=[f"v_mfma_f32_16x16x32_bf16 v[{PD[Tt]}:{PD[Tt]+3}], v[{f+4*Tt}:{f+4*Tt+3}], v[{FT+4*s_}:{FT+3+4*s_}], {c}"]
at[15][8]=[f"v_cvt_pk_bf16_f32 v{PD[Tt]+k}, v{PD[Tt]+2*k}, v{PD[Tt]+2*k+1}" for Tt in range(3) for k in range(2)]
bg[15]['mC']+=[f"ds_write_b64 v{P1A+2}, v[{PD[0]}:{PD[0]+1}]",f"ds_write_b64 v{P1A+2}, v[{PD[1]}:{PD[1]+1}] offset:32"]
bg[15]['s2']+=["s_mov_b32 exec_hi, 0",f"ds_write_b64 v{P1A+2}, v[{PD[2]}:{PD[2]+1}] offset:64","s_mov_b32 exec_hi, -1"]
bg[15]['mA']+=[f"ds_read_b128 v[{PFR}:{PFR+3}], v{P1A+3}",f"ds_read_b128 v[{PFR+4}:{PFR+7}], v{P1A+3} offset:1024"]
bg[16]['mB']+=[f"buffer_store_dwordx4 v[{PFR}:{PFR+3}], v{L16}, {S(WS_)}, s{PB} offen sc1"]
bg[16]['mC']+=["s_mov_b64 exec, 0xffff",f"buffer_store_dwordx4 v[{PFR+4}:{PFR+7}], v{L16}, {S(WS_)}, s{PB} offen offset:1024 sc1",off]
bg[16]['s2']+=[f"s_add_u32 s{RET}, s{TAB}, tab_hid-L_pc",f"s_addc_u32 s{RET+1}, s{TAB+1}, 0"]
for qd in range(13):
    ops=[f"global_load_dwordx4 v[{TB+4*qd}:{TB+4*qd+3}], v{L16}, s[{RET}:{RET+1}] offset:{1024*(qd%4)}"]
    if qd%4==3: ops+=[f"s_add_u32 s{RET}, s{RET}, 4096",f"s_addc_u32 s{RET+1}, s{RET+1}, 0"]
    bg[20+qd//2][['mC','s2'][qd%2]]+=ops
bg[19]['mA']+=[f"s_lshl_b32 m0, s{W}, 10",f"s_mul_i32 s68, s{HG}, 160"]
sync[20]=["s_waitcnt vmcnt(0)","s_barrier",f"s_cmp_eq_u32 s{W}, 7","s_cbranch_scc0 L_nofl2",
    f"s_mul_i32 s6, s2, {FS}",f"s_add_u32 s6, s6, {WS_F2}",f"v_mov_b32 v{PF}, s{NON}","s_mov_b64 exec, 1",
    f"buffer_store_dword v{PF}, v{L16}, {S(WS_)}, s6 offen sc1",off,"L_nofl2:"]
wo1=[dmab(WOA,WO_,'s68'),"s_add_u32 m0, m0, 5120",f"s_add_u32 s68, s68, {32*1280}"]
WCL=int(XP.get('wcl',2))
for n in range(20//WCL): bg[20+(n*WCL*7)//20][['mB','mA'][n%2]]+=role04(wo1*WCL)
bg[26]['s2']+=[f"s_sub_u32 s6, s{W}, 5","s_cmp_lt_u32 s6, 2","s_cbranch_scc0 L_np2"]+polls(WS_F2)+["L_np2:"]
bg[27]['mA']+=[f"s_mul_i32 s68, s{UU}, 160",f"s_add_u32 s68, s68, {WS_U}"]
sync[28]=["POLL2","s_barrier"]
u1=[dmab(UA,WS_,'s68',0,'sc1'),"s_add_u32 m0, m0, 5120",f"s_add_u32 s68, s68, {32*10240}"]
for n in range(4): bg[28+n//2][['mB','s2'][n%2]]+=role04(u1+u1)
bg[30]['s2']+=lines(f"""s_lshl_b32 s6, s{QB}, 1
s_and_b32 s7, s{W}, 1
s_add_u32 s6, s6, s7
s_mul_i32 s{SA}, s6, 40960
s_lshl_b32 s7, s{HG}, 2
s_lshr_b32 s6, s{W}, 1
s_add_u32 s7, s7, s6""")
bg[31]['s0']+=lines(f"""s_add_u32 s{SA}, s{SA}, {WS_O}
s_lshl_b32 s{SB}, s7, 8
s_lshl_b32 s7, s7, 10
s_add_u32 s{SB}, s{SB}, s{SA}
s_add_u32 s{SA}, s{SA}, s7
s_add_u32 s{SB}, s{SB}, 32768""")
bg[31]['s1']+=lines(f"""s_lshr_b32 s6, s{W}, 2
s_mul_i32 s7, s6, 40960
s_lshl_b32 s68, s{QB}, 1
s_add_u32 s6, s6, s68
s_mul_i32 s68, s6, 40960
s_and_b32 s6, s{W}, 3""")
bg[31]['s2']+=lines(f"""s_lshl_b32 s69, s6, 5
s_lshl_b32 s6, s6, 10
s_add_u32 s7, s7, s6
s_add_u32 m0, s7, {OL}
s_add_u32 s68, s68, s6
s_add_u32 s68, s68, {WS_O}
s_sub_u32 s69, 128, s69""")
PR={1:2, 2:3,7:2,9:1, 10:3,16:2,18:1,19:0, 20:3,25:2,27:1, 28:3,30:2,31:1}
for g in range(32):
    X=SS[g%2]; Y=SS[(g+1)%2]; g1=g+1; g2=g+2
    m={}
    m['mA']=M16(X,KF[g2%2],CMr) if g2<32 else None
    m['mB']=M16(Y+16,KF[g1%2]+4,CMr) if g1<32 else None
    m['mC']=M4(Y,K4[(g1//2)%2]+2*(g1%2)) if g1<32 else None
    for i in range(3): m[f's{i}']=SM(VF[g%2]+4*i,X+8*i)
    m['smp']=SM(VF[(g-1)%2]+12,Y+24) if g>0 else "s_nop 0"
    aft={k:[] for k in pos}
    pre=[]
    if g2<32 and k4off(g2)-kbase>=61440:
        pre.append(f"v_add_u32 v{AK}, 61440, v{AK}"); kbase+=61440
    if g1<32 and voff(g1,3)-vbase>=61440:
        pre.append(f"v_add_u32 v{AV}, 61440, v{AV}"); vbase+=61440
    if g in sync: aft['smp']+=sync[g]
    if g2<32:
        aft['smp'].append(f"ds_read_b128 v[{KF[g2%2]}:{KF[g2%2]+3}], v{AK} offset:{koff(g2,0)-kbase}")
        aft['mB']+=["s_waitcnt lgkmcnt(1)", f"ds_read_b128 v[{KF[g2%2]+4}:{KF[g2%2]+7}], v{AK} offset:{koff(g2,1)-kbase}"]
        if g2%2==0: aft['mC'].append(f"ds_read_b128 v[{K4[(g2//2)%2]}:{K4[(g2//2)%2]+3}], v{AK} offset:{k4off(g2)-kbase}")
    else:
        aft['smp'].append("s_waitcnt lgkmcnt(0)")
    if g1<32:
        b=VF[g1%2]
        vv=[f"ds_read_b128 v[{b+4*i}:{b+4*i+3}], v{AV} offset:{voff(g1,i)-vbase}" for i in range(4)]
        aft['s0']+=[on,vv[0],vv[1],off]; aft['s1']+=[on,vv[2],vv[3],off]
        aft['s2'].append("s_waitcnt lgkmcnt(2)")
    for k in pos: aft[k]+=bg[g][k]
    if g in PR: aft['mB' if g in sync else 'smp'].append(f"s_setprio {PR[g]}")
    ins={i:[] for i in range(33)}
    ins[0]+=pre
    for k in order:
        if m[k]: ins[pos[k]].append(m[k])
        ins[pos[k]]+=aft[k]
    for p_,ops in at[g].items(): ins[p_]+=ops
    if g in (0,3,10,11,20,21,28,29): stamp(f'g_{g}')
    for i in range(33):
        for x in ins[i]:
            if x=="POLL2": pollcheck('pu',WS_F2,0); continue
            if 'notab' in XP and g>=11 and x.startswith('global_load') and 's[66:67]' in x: continue
            if 'nowo' in XP and g>=20 and x.startswith('buffer_load_dwordx4'): continue
            if 'nop1' in XP and g<10 and (x.startswith('ds_read_b64_tr') or x.startswith('v_mfma_f32_16x16') or x.startswith('v_cvt') or x.startswith('ds_write') or x.startswith('buffer_store_dwordx4') or (x.startswith('global_load') and 'v[1' in x)): continue
            if 'nobar' in XP and g>=20 and x=='s_barrier': continue
            if 'noprio' in XP and x.startswith('s_setprio'): continue
            a(x)
        if i<32: a(f"v_exp_f32 v{X+i}, v{X+i}")
a("s_nop 1\n"+SM(VF[1]+12,SS[1]+24))
a(f"s_setprio 2\ns_mov_b32 s{SLOW}, 0\nL_check:")
stamp('loopend')
a(f"""s_mov_b32 s6, 0x7f800000
s_mov_b32 s7, {fh(2.0**-(OFFS+14))}
s_nop 7
v_rcp_f32 v{T+5}, v{O+12}
v_max3_f32 v{T+2}, |v{O}|, |v{O+1}|, |v{O+2}|
v_max3_f32 v{T+3}, |v{O+3}|, |v{O+4}|, |v{O+5}|
v_max3_f32 v{T+2}, v{T+2}, |v{O+6}|, |v{O+7}|
v_max3_f32 v{T+4}, |v{O+8}|, |v{O+9}|, |v{O+10}|
v_max_f32 v{T+2}, v{T+2}, v{T+3}
v_max3_f32 v{T+4}, v{T+4}, |v{O+11}|, v{T+2}
v_cmp_gt_f32 vcc, {fh(2.0**110)}, v{O+12}
v_cmp_gt_f32 s[66:67], s6, v{T+4}
v_cmp_lt_f32 s[6:7], s7, v{T+2}
s_and_b64 vcc, vcc, s[66:67]
s_and_b64 vcc, vcc, s[6:7]
s_cmp_eq_u64 vcc, -1
s_cbranch_scc0 L_slow
L_store:""")
for i in range(8): a(f"v_mul_f32 v{O+i}, v{T+5}, v{O+i}")
for i in range(4): a(f"v_cvt_pk_bf16_f32 v{84+i}, v{O+2*i}, v{O+2*i+1}")
a(f"buffer_store_dwordx4 v[84:87], v{L16}, {S(WS_)}, s{SA} offen sc1")
for i in range(8,12): a(f"v_mul_f32 v{O+i}, v{T+5}, v{O+i}")
for i in range(4,6): a(f"v_cvt_pk_bf16_f32 v{84+i}, v{O+2*i}, v{O+2*i+1}")
OA=12; SG=16; FN=20; PA=1
a(f"""s_mov_b32 exec_hi, 0
buffer_store_dwordx2 v[88:89], v{L8}, {S(WS_)}, s{SB} offen sc1
s_mov_b32 exec_hi, -1
s_setprio 0
{tw(5,OA)}
{tw(6,SG)}
{tw(7,FN)}
v_and_b32 v{PA}, 7, v0
v_lshlrev_b32 v{PA}, 7, v{PA}
s_waitcnt vmcnt(5)
s_barrier""")
stamp('T-1')
F=44
for i in range(5):
    for u in range(2): a(f"ds_read_b64_tr_b16 v[{F+4*i+2*u}:{F+4*i+2*u+1}], v{UR+(i==2)} offset:{32*i+1280*u+(2480 if i>2 else 0)}")
LATE=list(range(12))+[16,17,18]; EARLY=[12,13,14,15,19]
SLOT={st:i for i,st in enumerate(LATE+EARLY)}
WA=92; WX=172
def wo_read(base,add,st):
    r=base+4*SLOT[st]; o=[]
    for u in range(2):
        if st<16: o.append(f"ds_read_b64_tr_b16 v[{r+2*u}:{r+2*u+1}], v{add+u} offset:{6400*(st%8)}")
        else: o.append(f"ds_read_b64_tr_b16 v[{r+2*u}:{r+2*u+1}], v{add+2+u} offset:{25600*(st%2)}")
    return o
UP=[8,9,10,11,18]; LOW=list(range(8))+[16,17]
NF=36
for i in range(4): a(f"v_add_u32 v{24+i}, s69, v{WAD+i}")
a(f"""v_mov_b32 v3, s{NON}
s_add_u32 s6, s{W}, 2
s_bitcmp1_b32 s6, 2
s_cselect_b32 s{CH}, 0, 1""")
for i in range(5):
    a(f"s_waitcnt lgkmcnt(8)\nv_mfma_f32_16x16x32_bf16 v[{F+20+4*i}:{F+23+4*i}], v[{F+4*i}:{F+4*i+3}], v[{MM}:{MM+3}], 0")
    for x in wo_read(WA,WAD,EARLY[i]): a(x)
for i in range(5):
    d=F+20+4*i
    a(f"v_cvt_pk_bf16_f32 v{d}, v{d}, v{d+1}\nv_cvt_pk_bf16_f32 v{d+1}, v{d+2}, v{d+3}\nds_write_b64 v{VW[i]}, v[{d}:{d+1}]")
for i in range(8): a(f"v_xor_b32 v{NF+i}, 0x80008000, v{TB+8+i}")
a(f"""s_lshl_b32 s6, s{QB}, 3
s_add_u32 s6, s6, s{HG}
s_lshl_b32 s6, s6, 7
s_add_u32 s6, s6, {WS_F3}
s_cmp_eq_u32 s{W}, 2
s_waitcnt vmcnt(3) lgkmcnt(0)
s_barrier
s_cbranch_scc0 L_nofl3
s_mov_b64 exec, 1
buffer_store_dword v3, v{L16}, {S(WS_)}, s6 offen sc1
s_mov_b64 exec, -1
L_nofl3:""")
stamp('T0')
for p in range(2):
    for s in range(2):
        for u in range(2):
            a(f"ds_read_b64_tr_b16 v[{F+8*p+4*s+2*u}:{F+8*p+4*s+2*u+1}], v{VR+2*p+u} offset:{1280*p+640*s}")
TR=F+16; TI=F+32
def mm(d,A,B,c): return f"v_mfma_f32_32x32x16_bf16 v[{d}:{d+15}], v[{A}:{A+3}], v[{B}:{B+3}], {c}"
TRr=f"v[{TR}:{TR+15}]"; TIr=f"v[{TI}:{TI+15}]"
rest=sum([wo_read(WA,WAD,st) for st in UP],[])+[f"v_subrev_u32 v{WAD+i}, 51200, v{WAD+i}" for i in range(4)]+sum([wo_read(WA,WAD,st) for st in LOW],[])
mms=[mm(TR,F,TB,'0'),mm(TI,F,TB+8,'0'),mm(TR,F+4,TB+4,TRr),mm(TI,F+4,TB+12,TIr),mm(TR,F+8,NF,TRr),mm(TI,F+8,TB,TIr),mm(TR,F+12,NF+4,TRr),mm(TI,F+12,TB+4,TIr)]
a("s_waitcnt lgkmcnt(6)"); a(mms[0]); a(mms[1]); a("s_waitcnt lgkmcnt(0)")
for j in range(2,8):
    a(mms[j])
    for x in rest[:4]: a(x)
    rest=rest[4:]
for x in rest: a(x)
a(f"s_cmp_eq_u32 s{CH}, 0\ns_cbranch_scc1 L_noex0")
for st in EARLY:
    for x in wo_read(WX,24,st): a(x)
a("L_noex0:")
WRr=TB+16; WI=TB+28; GG=TB+40; P=4
def twid(lo,hi):
    for i in range(lo,hi,2):
        a(f"""v_mul_f32 v{P}, v{TI+i}, v{WI+i}
        v_mul_f32 v{P+1}, v{TR+i}, v{WI+i}
        v_mul_f32 v{P+2}, v{TI+i+1}, v{WI+i+1}
        v_mul_f32 v{P+3}, v{TR+i+1}, v{WI+i+1}
        v_fma_f32 v{TR+i}, v{TR+i}, v{WRr+i}, -v{P}
        v_fma_f32 v{TI+i}, v{TI+i}, v{WRr+i}, v{P+1}
        v_fma_f32 v{TR+i+1}, v{TR+i+1}, v{WRr+i+1}, -v{P+2}
        v_fma_f32 v{TI+i+1}, v{TI+i+1}, v{WRr+i+1}, v{P+3}
        v_cvt_pk_bf16_f32 v{F+4*(i//4)+(i%4)//2}, v{TR+i}, v{TR+i+1}
        v_cvt_pk_bf16_f32 v{F+4*(i//4)+2+(i%4)//2}, v{TI+i}, v{TI+i+1}""")
TWP=int(XP.get('twp',0)); TW=int(XP.get('tw',12))
twid(0,TWP)
a(f"""s_lshl_b32 s67, s{QB}, 10
s_add_u32 s67, s67, {WS_F3}
s_cmp_eq_u32 s{W}, 3
s_cbranch_scc0 L_nop3
s_waitcnt vmcnt(0)
buffer_load_dword v3, v{PA}, {S(WS_)}, s67 offen sc1
L_nop3:""")
twid(TWP,TW)
a(f"""s_cmp_eq_u32 s{W}, 3
s_cbranch_scc0 L_pook
s_mov_b32 s{CNT}, 0
L_po:
s_waitcnt vmcnt(0)
v_cmp_ne_u32 vcc, s{NON}, v3
s_add_u32 s{CNT}, s{CNT}, 1
s_cmp_gt_u32 s{CNT}, {SPIN}
s_cbranch_scc1 L_pook
s_cbranch_vccz L_pook
buffer_load_dword v3, v{PA}, {S(WS_)}, s67 offen sc1
s_branch L_po
L_pook:
s_waitcnt lgkmcnt(0)
s_barrier""")
stamp('T1')
od=[dmab(L16,WS_,'s68',0,'sc1'),"s_add_u32 m0, m0, 4096","s_add_u32 s68, s68, 4096"]
def odma():
    for x in od: a(x)
N0=int(XP.get('n0',4))
odma()
twid(TW,12)
Y=28
a("s_nop 1")
a(mm(Y,F,GG,'0')); odma(); a(mm(Y,F+4,GG+4,f"v[{Y}:{Y+15}]")); odma(); a(mm(Y,F+8,GG+8,f"v[{Y}:{Y+15}]"))
for n in range(N0-3): odma()
a(f"s_cmp_eq_u32 s{CH}, 0\ns_cbranch_scc1 L_noex1")
for st in UP:
    for x in wo_read(WX,24,st): a(x)
for i in range(4): a(f"v_subrev_u32 v{24+i}, 51200, v{24+i}")
for st in LOW:
    for x in wo_read(WX,24,st): a(x)
a(f"""L_noex1:
s_lshl_b32 s6, s{W}, 7
s_add_u32 s6, s6, s{T0}
s_mul_i32 s67, s6, 2560
s_nop 6""")
for i in range(8): a(f"v_cvt_pk_bf16_f32 v{4+i}, v{Y+2*i}, v{Y+2*i+1}")
fst=[on,f"buffer_store_dwordx4 v[4:7], v{SG+3}, {S(OUT_)}, s67 offen",f"buffer_store_dwordx4 v[8:11], v{SG+3}, {S(OUT_)}, s67 offen offset:16",off]
BB=[36,52,68]; AC=24
def rd(hc):
    b=BB[hc%3]; o=[]
    for k in range(2):
        st=2*hc+k
        for qt in range(2):
            r=b+8*k+4*qt
            if st<16: o.append([f"ds_read_b128 v[{r}:{r+3}], v{OA+qt} offset:{2048*st}"])
            else: o.append([f"ds_read_b64 v[{r+2*u}:{r+2*u+1}], v{OA+2+qt} offset:{2048*(st-16)+1024*u}" for u in range(2)])
    return o
def mmo(hc,ex):
    b=BB[hc%3]; o=[]
    for k in range(2):
        st=2*hc+k
        for (d,w_,qt) in [(AC,WA,0),(AC+4,WA,1)]+([(AC+8,WX,0)] if ex else []):
            r=b+8*k+4*qt; c='0' if st==0 else f"v[{d}:{d+3}]"
            o.append(f"v_mfma_f32_16x16x32_bf16 v[{d}:{d+3}], v[{w_+4*SLOT[st]}:{w_+4*SLOT[st]+3}], v[{r}:{r+3}], {c}")
    return o
SYNC={0:2,2:4,4:7,7:10}
def ogemm(ex):
    issued=N0
    for hc in range(12):
        if hc in SYNC:
            assert issued>=SYNC[hc]
            stamp(f'o_a{hc}')
            a(f"s_waitcnt vmcnt({issued-SYNC[hc]})"+(" lgkmcnt(0)" if hc==0 else "")+"\ns_barrier")
            stamp(f'o_b{hc}')
        R=rd(hc) if hc<10 else []
        M=mmo(hc-2,ex) if hc>=2 else []
        if M: a(f"s_waitcnt lgkmcnt({0 if hc==11 else (4 if hc-1<8 else 8)})")
        for j in range(max(len(R),len(M))):
            if j<len(M): a(M[j])
            if j<len(R):
                for x in R[j]: a(x)
        if issued<10:
            odma(); issued+=1
            if hc<2 and issued<10: odma(); issued+=1
        if hc==7:
            for x in fst: a(x)
a(f"s_cmp_eq_u32 s{CH}, 0\ns_cbranch_scc1 L_g0")
ogemm(True)
a("s_branch L_ge\nL_g0:")
ogemm(False)
a("L_ge:")
stamp('gemm')
a(f"""s_mul_i32 s6, s{QB}, {64*2560}
s_mul_i32 s7, s{HG}, 160
s_add_u32 s6, s6, s7
s_add_u32 s6, s6, 1280
s_cmp_eq_u32 s{CH}, 0
s_nop 2""")
for i in range(4): a(f"v_cvt_pk_bf16_f32 v{36+i}, v{AC+2*i}, v{AC+1+2*i}")
a(f"""ds_write_b64 v{SG}, v[36:37]
ds_write_b64 v{SG+1}, v[38:39]
s_cbranch_scc1 L_noex2
v_cvt_pk_bf16_f32 v40, v{AC+8}, v{AC+9}
v_cvt_pk_bf16_f32 v41, v{AC+10}, v{AC+11}
ds_write_b64 v{SG+2}, v[40:41]
L_noex2:
s_cmp_ge_u32 s{W}, 2
s_waitcnt lgkmcnt(0)
s_barrier
ds_read_b128 v[24:27], v{FN}
s_cbranch_scc1 L_one
ds_read_b128 v[28:31], v{FN+2}
s_waitcnt lgkmcnt(0)
buffer_store_dwordx4 v[28:31], v{FN+3}, {S(OUT_)}, s6 offen
L_one:
s_waitcnt lgkmcnt(0)
buffer_store_dwordx4 v[24:27], v{FN+1}, {S(OUT_)}, s6 offen""")
if STAMP:
    a("s_waitcnt vmcnt(0)"); stamp('end')
    a(f"""s_lshl_b32 s6, s2, 3
    s_add_u32 s6, s6, s{W}
    s_lshl_b32 s6, s6, 6
    s_add_u32 s6, s6, {WS_ST}
    v_mov_b32 v21, 0
    s_waitcnt lgkmcnt(0)""")
    for i in range(nstamp[0]): a(f"v_mov_b32 v22, s{STB+2*i}\nbuffer_store_dword v22, v21, {S(WS_)}, s6 offen offset:{4*i}")
a("L_end:\ns_endpgm")
X=SS[0]
a(f"""L_slow:
s_cmp_lg_u32 s{SLOW}, 0
s_cbranch_scc1 L_store
s_mov_b32 s{SLOW}, 1
v_mov_b32 v{T+2}, 0xff800000
v_subrev_u32 v{AV}, {vbase}, v{AV}""")
zero(CM,16); zero(O,16)
a(f"""L_pass:
s_mov_b32 s{CNT}, 0
L_sl:
s_lshr_b32 s66, s{CNT}, 1
s_mul_i32 s66, s66, 10240
s_and_b32 s6, s{CNT}, 1
s_mul_i32 s7, s6, 2048
s_add_u32 s7, s7, s66
buffer_load_dwordx4 v[{KF[0]}:{KF[0]+3}], v{L16}, {S(WS_)}, s7 offen sc1
buffer_load_dwordx4 v[{KF[0]+4}:{KF[0]+7}], v{L16}, {S(WS_)}, s7 offen offset:1024 sc1
s_lshl_b32 s7, s6, 3
s_add_u32 s7, s7, s66
s_add_u32 s7, s7, 4096
buffer_load_dwordx2 v[{K4[0]}:{K4[0]+1}], v{L16}, {S(WS_)}, s7 offen sc1
s_mul_i32 s7, s6, 2560
s_add_u32 s7, s7, s66
s_add_u32 s7, s7, 5120
{on}""")
for u in range(4): a(f"buffer_load_dwordx4 v[{VF[0]+4*u}:{VF[0]+4*u+3}], v{AV}, {S(WS_)}, s7 offen offset:{640*u} sc1")
a(f"""{off}
s_waitcnt vmcnt(0)
{M16(X,KF[0],CMr)}
{M16(X+16,KF[0]+4,CMr)}
s_nop 9
{M4(X,K4[0])}
s_nop 15
s_nop 3
s_cmp_eq_u32 s{SLOW}, 1
s_cbranch_scc0 L_p2""")
for i in range(0,32,2): a(f"v_max3_f32 v{T+2}, v{T+2}, v{X+i}, v{X+i+1}")
a("s_branch L_nx\nL_p2:")
for i in range(32): a(f"v_exp_f32 v{X+i}, v{X+i}")
a("s_nop 1")
for u in range(4): a(SM(VF[0]+4*u,X+8*u))
a(f"""L_nx:
s_add_u32 s{CNT}, s{CNT}, 1
s_cmp_lt_u32 s{CNT}, 32
s_cbranch_scc1 L_sl
s_cmp_eq_u32 s{SLOW}, 1
s_cbranch_scc0 L_check
s_mov_b32 s{SLOW}, 2
v_mov_b32 v{T+3}, v{T+2}
s_nop 1
v_permlane32_swap_b32 v{T+2}, v{T+3}
v_max_f32 v{T+2}, v{T+2}, v{T+3}""")
for i in range(16): a(f"v_sub_f32 v{CM+i}, 0, v{T+2}")
a("s_branch L_pass")

hdr=open('concat_heads__spectral_fnet__grouped_kv_mqa__prompt.s.ref').read().split('; Override launch')[0]
s=hdr+"; @launch grid=(256,1,1) block=(512,1,1) lds=163840\n"
if STAMP: s+="; stamps: "+" ".join(stnames)+"\n"
s+='.amdgcn_target "amdgcn-amd-amdhsa--gfx950"\n.text\n'+khead(KN)+a.text()
s+=emit_table('tab_p1',table_p1())+emit_table('tab_hid',table_hid())+emit_table('tab_wave',table_wave())
s+='.section .rodata,"a"\n'+kdesc(KN,256,102)
open(OUTF,'w').write(s)
print('wrote',OUTF,len(s),'stamps',nstamp[0],stnames)
```

```python
import sys, math, struct
import numpy as np
sys.path.insert(0,'gen')
from asmlib import *

STAMP = '--stamp' in sys.argv
XP = dict((a[4:].split(':')+[''])[:2] for a in sys.argv if a.startswith('--x='))
OUTF = [a for a in sys.argv[1:] if not a.startswith('--')]
OUTF = OUTF[0] if OUTF else 'concat_heads__spectral_fnet__grouped_kv_mqa__prompt.s'
KN='concat_heads__spectral_fnet__grouped_kv_mqa__prompt_kernel'

WS_KV = 0x000000
WS_F1 = 0x040000
WS_F2 = 0x050000
WS_F3 = 0x060000
WS_O  = 0x100000
WS_U  = 0x400000
WS_ST = 0x900000
WS_SZ = 0x1000000
CSCALE = (20**-0.5)*math.log2(math.e)
OFFS = 100.0
SPIN = 200000
def f2u(x): return struct.unpack('<I',struct.pack('<f',x))[0]
def fh(x): return hex(f2u(x))
def bf(x):
    u=np.asarray(x,np.float32).view(np.uint32)
    return ((u+0x7fff+((u>>16)&1))>>16).astype(np.uint32)
def pack(vals):
    b=bf(vals); return b[...,0::2]|(b[...,1::2]<<16)
def sig(n): return 16*((n>>2)&1)+4*(n>>3)+(n&3)
def table_hid():
    out=np.zeros((13,64,4),np.uint32)
    for l in range(64):
        n=l&31; h=l>>5; k1=sig(n)
        for s in range(2):
            d1=np.arange(8)+16*s+8*h
            out[s,l]=pack(np.cos(2*np.pi*d1*k1/32))
            out[2+s,l]=pack(-np.sin(2*np.pi*d1*k1/32))
        for j in range(3):
            d2=8*j+4*h+np.arange(4); ok=(d2<20)
            out[4+j,l]=(np.cos(2*np.pi*d2*k1/640)*ok).astype(np.float32).view(np.uint32)
            out[7+j,l]=(-np.sin(2*np.pi*d2*k1/640)*ok).astype(np.float32).view(np.uint32)
            k2=n if n<20 else 0
            out[10+j,l]=pack(np.concatenate([np.cos(2*np.pi*d2*k2/20)*ok, np.sin(2*np.pi*d2*k2/20)*ok]))
    return out.reshape(-1)
XBL=25600; RB=107520; NONL=158720
WOL=0; UL=102400; VL=143360; OL=81920; STG=0
FLF=0; FSF=10240; FS=32; QSL=RB; QP=168
def grp_rows(k0): return ((k0&~7)+((k0>>2)&1))
def table_p1():
    t=np.zeros((8,5,64,4),np.uint32)
    for w in range(8):
        for l in range(64):
            n=l&15; g=l>>4; r=(l>>2)&3; c=l&3
            j=np.arange(8)
            kidx=16*w+n; u=kidx>>1; q=kidx&1
            for s in range(4):
                sh=32*s+8*g+2*(j&3)+(j>>2)
                v=np.cos(np.pi*sh) if kidx==1 else (np.cos(2*np.pi*u*sh/128) if q==0 else -np.sin(2*np.pi*u*sh/128))
                t[w,s,l]=pack(v)
            rb=FLF+(8*g+2*r)*80; sb=FSF+1280*w
            t[w,4,l]=[rb+8*c, rb+64+8*(c&1), sb+80*n+8*g, sb+16*l]
    return t.reshape(-1)
NQW=8
def table_wave():
    t=np.zeros((8,NQW,64,4),np.uint32)
    for w in range(8):
        for l in range(64):
            n=l&15; g=l>>4; r=(l>>2)&3; c=l&3; h=l>>5
            cell=64*min(w,4)+l; pos=cell//10; cc=cell%10
            krow=(pos&~7)|((pos>>1)&3)|((pos&1)<<2)
            t[w,0,l]=[krow*1280+cc*16, pos*10240+cc*16, FS*(l+128*((w&1)^1)), (cell//5)*20480+(cell%5)*16]
            t[w,1,l]=[51200+r*320+(w&3)*32+8*c+160*(grp_rows(20*(g>>1)+4*(g&1)+8*uu) if kind==0 else grp_rows(20*(4*uu+g)+16)) for kind in range(2) for uu in range(2)]
            ur=UL+5120*w+(2*r+(g&1))*160+(g>>1)*80+8*c
            vw=[VL+n*1280+8*((20*w+4*i+g)^n) for i in range(5)]
            t[w,2,l]=[ur,ur+(2480 if c>=2 else 0),vw[0],vw[1]]
            t[w,3,l]=[vw[2],vw[3],vw[4],8*l]
            col=32 if (g&1) else 8*c
            t[w,4,l]=[VL+2560*w+((((8*h+4*uu+r)*40)+col)^(16*w+8*p)) for p in range(2) for uu in range(2)]
            qh=w>>2; n0=n+16*(w&1); n1=n0^16; ob=OL+qh*40960
            t[w,5,l]=[ob+512*g+16*n0, ob+512*g+16*n1, ob+32768+256*g+8*n0, ob+32768+256*g+8*n1]
            t[w,6,l]=[STG+(32*qh+n0)*176+8*g+32*(w&3), STG+(32*qh+n1)*176+8*g+32*(w&3), STG+(32*qh+n0)*176+8*g+128, 64*(l&31)+32*h]
            c0=64*w+l; c1=min(c0+512,639)
            t[w,7,l]=[STG+(c0+c0//10)*16, c0*16+(c0//10)*2400, STG+(c1+c1//10)*16, c1*16+(c1//10)*2400]
    return t.reshape(-1)
def emit_table(name, arr):
    s=f".p2align 8\n.type {name},@object\n{name}:\n"
    for i in range(0,len(arr),8):
        s+=".long "+",".join(hex(int(x)) for x in arr[i:i+8])+"\n"
    s+=f".size {name}, {4*len(arr)}\n"
    return s

W=3; QB=4; HG=5
XB_=8; TW_=12; KV_=16; WS_=20; XA_=24; WO_=28; OUT_=32
DBG=40; TAB=42; NON=44; R0=45; J=46; RBA=47; RBD=65
SA=49; SB=50; CH=55; FLG=48; RET=52
PB=56; UU=57; QT=58; T0=59; MIR=60; SLOW=61; CNT=62
VM=64
STB=70
def S(r,n=4): return f"s[{r}:{r+n-1}]"
a=Asm()
nstamp=[0]; stnames=[]
def stamp(name):
    sel=XP.get('st','')
    front=['kvland','kvpub','b0','b3','b6','b9pre','b9']
    if sel!='tail' and name.startswith('o_'): return
    if sel!='loop' and name.startswith('g_'): return
    if sel!='front' and name.startswith('f_'): return
    if sel=='front' and name in ['loopend','T0','T1','gemm']: return
    if sel and sel!='front' and name in front: return
    if name in stnames:
        i=stnames.index(name); a(f"{'s_memtime' if 'cyc' in XP else 's_memrealtime'} s[{STB+2*i}:{STB+1+2*i}]"); return
    if STAMP:
        assert nstamp[0]<16
        a(f"{'s_memtime' if 'cyc' in XP else 's_memrealtime'} s[{STB+2*nstamp[0]}:{STB+1+2*nstamp[0]}]"); nstamp[0]+=1; stnames.append(name)
def zero(base,n):
    for i in range(n): a(f"v_mov_b32 v{base+i}, 0")
def dmab(v,srd,soff,off=0,fl=''):
    return f"buffer_load_dwordx4 v{v}, {S(srd)}, {soff} offen{' offset:%d'%off if off else ''} {fl} lds"
def mod5(d,s,t):
    a(f"s_mul_i32 s{t}, s{s}, 0x3334\ns_lshr_b32 s{t}, s{t}, 16\ns_mul_i32 s{t}, s{t}, 5\ns_sub_u32 s{d}, s{s}, s{t}")


L16=2
TB=174
WAD=228; UR=232; VW=[234,235,244,245,246]; L8=247
MM=236; PF=240; WOA=248; UA=249; PA2=250; FA=251; VR=252
Q16=4; Q4=8; IDX=10; AK=3; AV=1
CM=12; O=28; SS=[44,76]; KF=[108,116]; K4=[124,128]; VF=[132,148]; T=164
XR=8; WR=9; QW=13; QR=14; FR=44; ACC=164; FT=174; PFR=190; PD=[214,218,222]; P1A=170
def lines(t): return [x.strip() for x in t.split("\n") if x.strip()]
def pre_m():
    o=[lines(f"""s_and_b32 s{UU}, s2, 7
    s_lshl_b32 s{UU}, s{UU}, 3
    s_bfe_u32 s6, s2, 0x30003
    s_add_u32 s{UU}, s{UU}, s6
    s_lshr_b32 s{QT}, s2, 6
    s_lshr_b32 s{MIR}, s{QT}, 1
    s_sub_u32 s6, 128, s{UU}"""),lines(f"""s_cmp_eq_u32 s{UU}, 0
    s_cselect_b32 s6, 64, s6
    s_cselect_b32 s66, 0, 512
    s_mul_i32 s7, s66, 3
    s_cmp_eq_u32 s{MIR}, 0
    s_cselect_b32 s{T0}, s{UU}, s6
    s_cselect_b32 s66, s7, s66"""),lines(f"""s_and_b32 s6, s{QT}, 1
    s_lshl_b32 s6, s6, 10
    s_add_u32 s{T0}, s{T0}, s6
    v_lshrrev_b32 v23, 5, v0
    v_cmp_eq_u32 vcc, s{MIR}, v23
    v_bfe_u32 v21, v0, 1, 3"""),lines(f"""v_lshl_add_u32 v21, v21, 7, s{T0}
    v_and_b32 v22, 1, v0
    v_lshlrev_b32 v22, 9, v22
    v_mad_u32_u24 v22, v23, s66, v22
    v_bfe_u32 v24, v0, 4, 1"""),lines(f"""v_mad_u32_u24 v22, v24, v21, v22
    v_cvt_f32_u32 v21, v21
    v_cvt_f32_u32 v22, v22
    v_mul_f32 v21, {fh(1/1024)}, v21
    v_mul_f32 v22, {fh(1/2048)}, v22
    s_cmp_eq_u32 s{UU}, 0
    s_cselect_b64 vcc, vcc, -1""")]
    for i in range(4):
        o.append(lines(f"""v_cos_f32 v25, v22
        v_add_f32 v22, v22, v21
        v_cos_f32 v26, v22
        v_add_f32 v22, v22, v21
        v_cvt_pk_bf16_f32 v24, v25, v26
        v_cndmask_b32 v{MM+i}, 0, v24, vcc"""))
    return o

def chunks(l,n): return [l[k:k+n] for k in range(0,len(l),n)]
def att_init():
    o=lines(f"""v_and_b32 v21, 27, v0
    v_cmp_eq_u32 vcc, 24, v21
    v_mov_b32 v21, 0x3f803f80
    s_mov_b32 s{VM}, 0xfffff
    s_mov_b32 s{VM+1}, 0xfffff
    v_cndmask_b32 v{VF[0]}, 0, v21, vcc
    v_cndmask_b32 v{VF[0]+1}, 0, v21, vcc""")
    mv=[f"v_mov_b64 v[{VF[0]+2*i}:{VF[0]+2*i+1}], v[{VF[0]}:{VF[0]+1}]" for i in range(1,16)]+[f"v_mov_b64 v[{O+2*i}:{O+2*i+1}], 0" for i in range(8)]
    sc=lines(f"""s_mov_b32 s{WO_+2}, 819200
    s_mov_b32 s{WO_+3}, 0x20000
    s_mov_b32 s{OUT_+2}, 5242880
    s_mov_b32 s{OUT_+3}, 0x20000
    s_and_b32 s66, s{W}, 1
    s_mul_i32 s66, s66, {32*QP}
    s_lshr_b32 s67, s{W}, 1
    s_mul_i32 s67, s67, 40
    s_add_u32 s66, s66, s67
    s_add_u32 s66, s66, {QSL}
    s_mul_i32 s67, s{W}, {NQW*1024}
    s_add_u32 s67, s67, tab_wave-L_pc+4096""")
    for k,x in enumerate(mv):
        o.append(x)
        if k<len(sc): o.append(sc[k])
    o=chunks(o,6)
    o.append(lines(f"""s_add_u32 s{TW_}, s{TAB}, s67
    s_addc_u32 s{TW_+1}, s{TAB+1}, 0
    v_and_b32 v21, 31, v0
    v_cmp_gt_u32 vcc, 16, v21
    v_lshrrev_b32 v22, 5, v0
    v_mov_b32 v23, 0x180
    v_cndmask_b32 v23, 64, v23, vcc"""))
    o.append(lines(f"""v_mul_u32_u24 v23, v22, v23
    v_lshl_add_u32 v{AV}, v21, 4, v23
    v_mul_u32_u24 v21, {QP}, v21
    v_add_u32 v{QR+1}, s66, v21
    v_lshl_add_u32 v{QR}, v22, 4, v{QR+1}
    v_mov_b32 v{AK}, v{L16}"""))
    return o
def p1_scal():
    return lines(f"""s_and_b32 s6, s2, 7
    s_lshl_b32 s6, s6, 1
    s_bfe_u32 s7, s2, 0x10003
    s_add_u32 s6, s6, s7
    s_lshr_b32 s7, s2, 4
    s_lshl_b32 s{PB}, s7, 4
    s_add_u32 s{PB}, s{PB}, s6
    s_mul_i32 s6, s6, 1280
    s_mul_i32 s7, s7, 80
    s_add_u32 s69, s6, s7
    s_lshl_b32 s{PB}, s{PB}, 3
    s_add_u32 s{PB}, s{PB}, s{W}
    s_mul_i32 s{PB}, s{PB}, 1280
    s_add_u32 s{PB}, s{PB}, {WS_U}
    s_mov_b32 s{XA_+2}, 2621440
    s_mov_b32 s{XA_+3}, 0x20000
    s_mul_i32 s6, s{W}, 5120
    s_add_u32 s6, s6, tab_p1-L_pc+1024
    s_add_u32 s66, s{TAB}, s6
    s_addc_u32 s67, s{TAB+1}, 0""")
def em(l):
    for x in l:
        if isinstance(x,list): em(x)
        else: a(x)
def wrap(d,s,inc,lim):
    a(f"s_add_u32 s{d}, s{s}, {inc}\ns_sub_u32 s7, s{d}, {lim}\ns_min_u32 s{d}, s{d}, s7")

def polls(base):
    return [f"s_mov_b32 s6, {base}",f"buffer_load_dword v{PF}, v{PA2}, {S(WS_)}, s6 offen sc1",f"buffer_load_dword v{PF+1}, v{PA2}, {S(WS_)}, s6 offen offset:{64*FS} sc1"]
def pollcheck(tag, base, n):
    a(f"""s_sub_u32 s6, s{W}, 5
    s_cmp_lt_u32 s6, 2
    s_cbranch_scc0 L_{tag}ok
    s_mov_b32 s{CNT}, 0
    s_mov_b32 s6, {base}
    s_waitcnt vmcnt({n})
    L_{tag}:
    v_cmp_ne_u32 vcc, s{NON}, v{PF}
    v_cmp_ne_u32 s[66:67], s{NON}, v{PF+1}
    s_add_u32 s{CNT}, s{CNT}, 1
    s_or_b64 vcc, vcc, s[66:67]
    s_cbranch_scc0 L_{tag}ok
    s_cmp_gt_u32 s{CNT}, {SPIN}
    s_cbranch_scc1 L_{tag}ok
    buffer_load_dword v{PF}, v{PA2}, {S(WS_)}, s6 offen sc1
    buffer_load_dword v{PF+1}, v{PA2}, {S(WS_)}, s6 offen offset:{64*FS} sc1
    s_waitcnt vmcnt(0)
    s_branch L_{tag}
    L_{tag}ok:""")

stamp('start')
a(f"""s_cmp_ge_u32 s2, 256
s_cbranch_scc1 L_end
s_load_dwordx8 s[48:55], s[0:1], 40
s_load_dwordx8 s[56:63], s[0:1], 72
s_load_dwordx2 s[24:25], s[0:1], 0
s_memrealtime s[68:69]
s_getpc_b64 s[{TAB}:{TAB+1}]
L_pc:
v_lshrrev_b32 v1, 6, v0
v_and_b32 v0, 63, v0
s_and_b32 s{QB}, s2, 7
v_readfirstlane_b32 s{W}, v1
s_lshl_b32 s{QB}, s{QB}, 2
v_lshlrev_b32 v{L16}, 4, v0
s_bfe_u32 s6, s2, 0x20003
v_lshrrev_b32 v21, 3, v0
s_add_u32 s{QB}, s{QB}, s6
v_lshrrev_b32 v23, 4, v0
s_lshr_b32 s{HG}, s2, 5
v_and_b32 v24, 7, v0
s_and_b32 s7, s2, 0xf8
s_add_u32 s7, s7, s{W}
s_lshl_b32 s7, s7, 7
v_lshl_add_u32 v22, v0, 15, s7
s_add_u32 s{R0}, s6, s{HG}
s_mov_b64 exec, {int(XP.get('pf',15))}
global_load_dword v255, v22, s[{TAB}:{TAB+1}]
s_mov_b64 exec, -1
v_xor_b32 v23, v23, v24
s_mul_i32 s7, s{R0}, 0x3334
v_mul_u32_u24 v21, 0x500, v21
s_lshr_b32 s7, s7, 16
v_lshl_add_u32 v3, v23, 4, v21
s_mul_i32 s7, s7, 5
v_mov_b32 v17, 0
s_sub_u32 s{R0}, s{R0}, s7
s_and_b32 s{J}, s{HG}, 3
s_lshl_b32 s7, s{J}, 1
s_cmp_lt_u32 s{HG}, 4
s_cselect_b32 s{RBA}, s{J}, s7
s_cselect_b32 s{RBD}, 4, 1
s_mov_b32 s{XB_+2}, 2621440
s_mov_b32 s{XB_+3}, 0x20000
s_mov_b32 s{WS_+2}, {WS_SZ}
s_mov_b32 s{WS_+3}, 0x20000
s_cmp_ge_u32 s{W}, 4
s_cbranch_scc1 L_loader
s_and_b32 s6, s{W}, 1
s_mul_i32 s6, s6, s{RBD}
s_add_u32 s6, s6, s{RBA}
s_and_b32 s7, s6, 1
s_lshl_b32 s7, s7, 6
v_xor_b32 v4, s7, v3
s_lshl_b32 s7, s{QB}, 3
s_add_u32 s7, s7, s6
s_mul_i32 s7, s7, 10240
v_add_u32 v4, s7, v4
s_lshr_b32 s36, s{W}, 1
s_lshl_b32 s35, s36, 3
s_add_u32 s35, s35, s6
s_lshl_b32 s35, s35, 10
s_add_u32 s35, s35, {XBL}
s_lshl_b32 s36, s36, 7
s_lshl_b32 s6, s{R0}, 8
s_add_u32 s36, s36, s6
s_lshl_b32 m0, s{W}, 10
s_mul_i32 s6, s{R0}, 5120
s_add_u32 s37, m0, s6
s_mov_b32 s{KV_+2}, 25600
s_mov_b32 s{KV_+3}, 0x20000
s_cmp_lt_u32 s{HG}, 4""")
stamp('f_ka0')
a(f"""s_waitcnt lgkmcnt(0)
s_cselect_b32 s{KV_}, s52, s54
s_cselect_b32 s{KV_+1}, s53, s55""")
for t in range(6):
    a(dmab(L16,KV_,'s37')); a("s_add_u32 m0, m0, 4096"); wrap(37,37,4096,25600)
    if t==0: a(f"s_mov_b32 s{XB_}, s48\ns_mov_b32 s{XB_+1}, s49")
a(f"""s_cmp_lg_u32 s{W}, 0
s_cbranch_scc1 L_nw0
{dmab(L16,KV_,'s37')}
L_nw0:
s_mov_b32 m0, s35
s_nop 0""")
for t in range(5):
    a(dmab(4,XB_,'s36'))
    if t<4: a("s_add_u32 m0, m0, 16384"); wrap(36,36,256,1280)
stamp('f_kvi')
cpy=f"""s_mov_b32 s{WO_}, s56
s_mov_b32 s{WO_+1}, s57
s_mov_b32 s{OUT_}, s58
s_mov_b32 s{OUT_+1}, s59
s_mov_b32 s{DBG}, s60
s_mov_b32 s{DBG+1}, s61
s_mov_b32 s{WS_}, s62
s_mov_b32 s{WS_+1}, s63"""
a(cpy)
a(f"""v_and_b32 v21, 15, v0
v_lshrrev_b32 v22, 4, v0
s_and_b32 s6, s{W}, 1
s_lshl_b32 s7, s6, 12
s_add_u32 s7, s7, {XBL}
v_lshrrev_b32 v24, 1, v21
v_xor_b32 v23, v22, v24
v_lshl_add_u32 v24, v21, 7, s7
v_lshl_add_u32 v{XR}, v23, 4, v24
v_xor_b32 v7, 64, v{XR}
s_lshr_b32 s66, s{W}, 1
s_mul_i32 s66, s66, 96
s_add_u32 s7, s66, {RB}
v_lshrrev_b32 v23, 2, v0
v_mul_u32_u24 v23, 320, v23
v_and_b32 v25, 3, v0
v_lshl_add_u32 v23, v25, 3, v23
v_and_b32 v24, 1, v22
v_mul_u32_u24 v24, 160, v24
v_add3_u32 v{WR}, v23, v24, s7
s_add_u32 s7, s7, 160
v_sub_u32 v23, v23, v24
v_add_u32 v{WR+1}, s7, v23
s_mul_i32 s7, s6, {32*QP}
s_add_u32 s7, s7, s66
s_add_u32 s7, s7, {QSL}
v_mul_u32_u24 v23, {QP}, v21
v_lshl_add_u32 v23, v22, 3, v23
v_add_u32 v{QW}, s7, v23
s_mov_b32 s{FLG}, 1
s_cmp_lt_u32 s{W}, 2
s_cbranch_scc1 L_nokv""")
a(f"""s_mov_b32 s{FLG}, 0
v_lshrrev_b32 v26, 3, v21
v_and_b32 v27, 7, v21
v_mul_u32_u24 v23, s{RBD}, v26
v_add_u32 v23, s{RBA}, v23
v_and_b32 v24, 1, v23
v_lshlrev_b32 v23, 10, v23
v_lshl_add_u32 v23, v24, 6, v23
v_lshl_add_u32 v23, v27, 7, v23
v_lshrrev_b32 v24, 1, v27
v_xor_b32 v24, v24, v22
v_lshl_add_u32 v23, v24, 4, v23
v_add_u32 v18, {XBL}, v23
v_xor_b32 v19, 64, v18
v_bfe_u32 v23, v0, 2, 2
v_lshl_add_u32 v23, v22, 3, v23
v_mul_u32_u24 v23, 40, v23
s_cmp_eq_u32 s6, 0
s_cselect_b64 vcc, -1, 0
v_cndmask_b32 v25, 4, v25, vcc
v_lshl_add_u32 v20, v25, 3, v23
s_lshr_b32 s66, s{QB}, 1
s_mul_i32 s66, s66, 10240
s_and_b32 s67, s{QB}, 1
v_lshrrev_b32 v24, 1, v22
v_and_b32 v25, 1, v22
s_cmp_ge_u32 s{HG}, 4
s_cbranch_scc1 L_kvV""")
def kvgemm(isK):
    a("s_waitcnt vmcnt(0)\ns_barrier")
    stamp('kvland')
    NB=5
    def rd(st):
        f=FR+8*(st%NB)
        if st==16: a("v_add_u32 v18, 0x10000, v18\nv_add_u32 v19, 0x10000, v19")
        a(f"""ds_read_b128 v[{f}:{f+3}], v{18+st%2} offset:{(8192*(st//2))&0xffff}
        ds_read_b64_tr_b16 v[{f+4}:{f+5}], v20 offset:{1280*st}
        ds_read_b64_tr_b16 v[{f+6}:{f+7}], v20 offset:{1280*st+160}""")
    for st in range(NB-1): rd(st)
    for st in range(20):
        if st+NB-1<20: rd(st+NB-1)
        f=FR+8*(st%NB); A,B=(f+4,f) if isK else (f,f+4)
        a(f"s_waitcnt lgkmcnt({3*min(NB-1,19-st)})\nv_mfma_f32_16x16x32_bf16 v[28:31], v[{A}:{A+3}], v[{B}:{B+3}], {'0' if st==0 else 'v[28:31]'}")
a(f"""v_lshlrev_b32 v27, 4, v27
v_lshl_add_u32 v23, v26, 11, v27
v_lshl_add_u32 v23, v24, 9, v23
v_lshl_add_u32 v23, v25, 3, v23
v_lshl_add_u32 v27, v26, 3, v27
v_cndmask_b32 v15, v27, v23, vcc
s_lshl_b32 s7, s67, 9
s_add_u32 s7, s7, 4096
s_lshl_b32 s67, s67, 10
s_cmp_eq_u32 s6, 0
s_cselect_b32 s67, s67, s7
s_cselect_b32 s64, -1, 0xffff
s_cselect_b32 s65, -1, 0
s_lshl_b32 s7, s{J}, 7
s_add_u32 s66, s66, s7
s_add_u32 s66, s66, s67""")
kvgemm(True)
a(f"""s_branch L_kvW
L_kvV:
s_cmp_eq_u32 s6, 0
s_cselect_b32 s7, 0x180, 64
s_cselect_b32 s64, -1, 0x000f000f
s_mov_b32 s65, s64
v_mul_u32_u24 v24, s7, v24
v_lshl_add_u32 v24, v21, 4, v24
v_lshl_add_u32 v15, v25, 3, v24
s_and_b32 s7, s{J}, 2
s_add_u32 s67, s67, s7
s_lshl_b32 s67, s67, 1
s_and_b32 s7, s{J}, 1
s_add_u32 s67, s67, s7
s_mul_i32 s67, s67, 640
s_lshl_b32 s7, s6, 8
s_add_u32 s66, s66, s7
s_add_u32 s66, s66, s67
s_add_u32 s66, s66, 5120""")
kvgemm(False)
a(f"""L_kvW:
global_load_dword v16, v17, s[{DBG}:{DBG+1}] sc1
s_nop 6
v_cvt_pk_bf16_f32 v28, v28, v29
v_cvt_pk_bf16_f32 v29, v30, v31
s_mov_b64 exec, s[64:65]
buffer_store_dwordx2 v[28:29], v15, {S(WS_)}, s66 offen sc1
s_mov_b64 exec, -1
s_branch L_kvE
L_nokv:""")
a("s_waitcnt vmcnt(0)\ns_barrier")
stamp('kvland')
a("L_kvE:")
stamp('kvpub')
def qmm(i,k,ct,qt):
    f=FR+40*(i%2)+20*k; d=ACC+8*ct+4*qt
    c='0' if (i==0 and k==0) else f"v[{d}:{d+3}]"
    return f"v_mfma_f32_16x16x32_bf16 v[{d}:{d+3}], v[{f+8+4*ct}:{f+11+4*ct}], v[{f+4*qt}:{f+4*qt+3}], {c}"
def qrx(i,k,qt):
    f=FR+40*(i%2)+20*k; return f"ds_read_b128 v[{f+4*qt}:{f+4*qt+3}], v{[XR,7][k]} offset:{((8192*i)&0xffff)+2048*qt}"
def qrw(i,k,ct,u):
    f=FR+40*(i%2)+20*k+8+4*ct+2*u; return f"ds_read_b64_tr_b16 v[{f}:{f+1}], v{WR+u} offset:{(i%5)*10240+5120*k+32*ct}"
def weave(R,M):
    n=max(len(M),1); k=0
    for j in range(n):
        t=(len(R)*(j+1))//n
        em(R[k:t]); k=t
        if M: a(M[j])
fill=pre_m()+att_init()+[p1_scal()[:10],p1_scal()[10:]]
quota=[round(len(fill)*(i+1)/9) for i in range(9)]; done=0
FORCE=int(XP.get('force',5))
for i in range(10):
    a("s_barrier")
    if i in (0,3,6,9): stamp(f'b{i}')
    if i==FORCE+1: a(f"v_mov_b32 v18, {NONL}\nds_read_b32 v16, v18")
    if i==FORCE+2: a(f"v_readfirstlane_b32 s{NON}, v16")
    R=[x for k in range(2) for x in [qrx(i,k,0),qrx(i,k,1)]+[qrw(i,k,ct,u) for ct in range(2) for u in range(2)]]
    M=[qmm(i-1,k,ct,qt) for k in range(2) for ct in range(2) for qt in range(2)] if i>0 else []
    weave(R,M)
    a(f"s_cmp_ge_u32 s{W}, 2\ns_cbranch_scc1 L_c{i}")
    weave([qrw(i,k,2,u) for k in range(2) for u in range(2)],[qmm(i-1,k,2,qt) for k in range(2) for qt in range(2)] if i>0 else [])
    a(f"L_c{i}:")
    if i==7: a(f"v_add_u32 v{XR}, 0x10000, v{XR}\nv_add_u32 v7, 0x10000, v7")
    if i<9: em(fill[done:quota[i]]); done=quota[i]
    if i<=FORCE:
        if i<FORCE: a(f"s_getreg_b32 s68, hwreg(HW_REG_IB_STS, 0, 4)\ns_or_b32 s68, s68, s{FLG}")
        else: a(f"s_cmp_lg_u32 s{FLG}, 0")
        a(f"s_cbranch_scc1 L_nf{i}\ns_call_b64 s[{RET}:{RET+1}], L_flag1\nL_nf{i}:")
    a("s_waitcnt lgkmcnt(0)")
def qst(ct):
    for qt in range(2):
        d=ACC+8*ct+4*qt
        a(f"""v_pk_mul_f32 v[{d}:{d+1}], v[{d}:{d+1}], s[6:7]
        v_pk_mul_f32 v[{d+2}:{d+3}], v[{d+2}:{d+3}], s[6:7]
        v_cvt_pk_bf16_f32 v{d}, v{d}, v{d+1}
        v_cvt_pk_bf16_f32 v{d+1}, v{d+2}, v{d+3}
        ds_write_b64 v{QW}, v[{d}:{d+1}] offset:{16*QP*qt+32*ct}""")
a(f"s_mov_b32 s6, {fh(CSCALE)}\ns_mov_b32 s7, {fh(CSCALE)}")
em([qmm(9,k,ct,qt) for ct in range(2) for k in range(2) for qt in range(2)])
a(f"s_cmp_ge_u32 s{W}, 2\ns_cbranch_scc1 L_c10")
em([qmm(9,k,2,qt) for k in range(2) for qt in range(2)])
a(f"L_c10:\nv_mov_b32 v{IDX}, 0xdddddddd")
qst(0); qst(1)
a("s_cbranch_scc1 L_c11")
qst(2)
a("L_c11:\ns_waitcnt lgkmcnt(0)")
stamp('f_qst')
a("s_branch L_att")
a(f"""L_flag1:
s_mov_b32 s{CNT}, 0
L_non:
s_waitcnt vmcnt(0)
v_readfirstlane_b32 s{NON}, v16
s_add_u32 s{CNT}, s{CNT}, 1
s_cmp_gt_u32 s{CNT}, {SPIN}
s_cbranch_scc1 L_gotnon
s_cmp_lg_u32 s{NON}, 0
s_cbranch_scc1 L_gotnon
global_load_dword v16, v17, s[{DBG}:{DBG+1}] sc1
s_branch L_non
L_gotnon:
s_lshl_b32 s68, s{QB}, 3
s_add_u32 s68, s68, s{HG}
s_mul_i32 s68, s68, {FS//4}
s_add_u32 s68, s68, s{W}
s_lshl_b32 s68, s68, 2
s_add_u32 s68, s68, {WS_F1-8}
v_mov_b32 v18, {NONL}
s_mov_b64 exec, 1
buffer_store_dword v16, v17, {S(WS_)}, s68 offen sc1
ds_write_b32 v18, v16
s_mov_b64 exec, -1
s_mov_b32 s{FLG}, 1""")
stamp('f_flag')
a(f"s_setpc_b64 s[{RET}:{RET+1}]")

a("L_loader:")
ST=[dict(srd=36,v=5,G=16,GS=17,GL=18,L=19,LD=30,LS=31,LW=34),dict(srd=12,v=7,G=26,GS=27,GL=35,L=44,LD=64,LS=66,LW=67)]
for k,st in enumerate(ST):
    a(f"""s_lshl_b32 s47, s{W}, 1
    s_sub_u32 s47, s47, {8-k}
    s_mov_b32 s{st['srd']+3}, 0x20000
    s_cmp_ge_u32 s47, 5
    s_cbranch_scc1 L_sx{k}
    s_lshl_b32 s6, s47, 6
    v_add_u32 v21, s6, v0
    v_mul_u32_u24 v23, 0x667, v21
    v_lshrrev_b32 v23, 14, v23
    s_mov_b32 s{st['srd']+2}, 819200
    v_mul_u32_u24 v24, 10, v23
    s_mov_b32 s{st['GS']}, {64*1280}
    v_sub_u32 v24, v21, v24
    s_lshl_b32 s{st['L']}, s47, 10
    v_lshrrev_b32 v25, 3, v23
    s_add_u32 s{st['L']}, s{st['L']}, {RB}
    v_xor_b32 v26, v25, v23
    s_mov_b32 s{st['LD']}, 5120
    v_and_b32 v26, 1, v26
    s_mov_b32 s{st['LS']}, 10240
    v_lshl_add_u32 v25, v25, 1, v26
    s_mov_b32 s{st['LW']}, 51200
    v_bfe_u32 v26, v23, 1, 2
    s_mul_i32 s6, s{HG}, 160
    v_lshl_add_u32 v25, v25, 2, v26
    v_mul_u32_u24 v25, 0x500, v25
    v_lshl_add_u32 v24, v24, 4, s6
    v_add_u32 v{st['v']}, v24, v25
    v_add_u32 v{st['v']+1}, {32*1280}, v{st['v']}
    s_branch L_se{k}
    L_sx{k}:
    s_add_u32 s6, s47, s{J}
    s_and_b32 s6, s6, 3
    s_lshr_b32 s7, s{HG}, 2
    s_lshl_b32 s6, s6, s7
    s_lshl_b32 s{st['L']}, s6, 10
    s_add_u32 s{st['L']}, s{st['L']}, {XBL}
    s_lshl_b32 s{st['LD']}, s{RBD}, 10
    s_and_b32 s47, s6, 1
    s_lshl_b32 s47, s47, 6
    v_xor_b32 v21, s47, v3
    s_lshl_b32 s7, s7, 6
    v_xor_b32 v22, s7, v21
    s_lshl_b32 s7, s{QB}, 3
    s_add_u32 s6, s6, s7
    s_mul_i32 s7, s6, 10240
    v_add_u32 v{st['v']}, s7, v21
    s_add_u32 s6, s6, s{RBD}
    s_mul_i32 s7, s6, 10240
    v_add_u32 v{st['v']+1}, s7, v22
    s_mov_b32 s{st['srd']+2}, 2621440
    s_mov_b32 s{st['GS']}, 128
    s_mov_b32 s{st['LS']}, 8192
    s_mov_b32 s{st['LW']}, 0
    L_se{k}:
    s_lshl_b32 s6, s{R0}, 1
    s_mul_i32 s{st['G']}, s6, s{st['GS']}
    s_mul_i32 s{st['GL']}, s{st['GS']}, 10""")
a(f"""s_and_b32 s6, s{W}, 3
s_lshl_b32 s6, s6, 6
v_add_u32 v21, s6, v0
v_mul_u32_u24 v47, {FS}, v0
v_mul_u32_u24 v48, {FS}, v21""")
stamp('f_ka0')
a(f"""s_waitcnt lgkmcnt(0)
s_cmp_ge_u32 s{W}, 7
s_cselect_b32 s36, s48, s50
s_cselect_b32 s37, s49, s51
s_cmp_ge_u32 s{W}, 6
s_cselect_b32 s12, s48, s50
s_cselect_b32 s13, s49, s51""")
a(cpy)
a(f"""s_lshl_b32 s6, s2, 3
s_add_u32 s6, s6, s{W}
s_cmp_eq_u32 s6, 7
s_cbranch_scc0 L_nonon
s_or_b32 s68, s68, 1
v_mov_b32 v23, s68
s_mov_b64 exec, 1
global_store_dword v17, v23, s[{DBG}:{DBG+1}] sc1
s_mov_b64 exec, -1
L_nonon:""")
def issue(i):
    for st in ST:
        if i==5: a(f"s_sub_u32 s{st['L']}, s{st['L']}, s{st['LW']}")
        a(f"""s_mov_b32 m0, s{st['L']}
        s_add_u32 s{st['L']}, s{st['L']}, s{st['LS']}
        {dmab(st['v'],st['srd'],'s%d'%st['G'])}
        s_add_u32 m0, m0, s{st['LD']}
        s_add_u32 s6, s{st['G']}, s{st['GS']}
        {dmab(st['v']+1,st['srd'],'s%d'%st['G'])}
        s_cmp_eq_u32 s6, s{st['GL']}
        s_cselect_b32 s{st['G']}, 0, s6""")
KB=int(XP.get('kb',2))
for i in range(KB): issue(i)
stamp('f_kvi')
a("s_barrier")
for i in range(KB,3): issue(i)
POLLI=int(XP.get('polli',8))
fillL=pre_m()+att_init()+[p1_scal()]
def lpolls():
    a(f"buffer_load_dwordx2 v[50:51], v47, {S(WS_)}, s68 offen sc1\nbuffer_load_dwordx2 v[52:53], v48, {S(WS_)}, s68 offen sc1")
for i in range(10):
    n=4*min(2,9-i)+(2 if i>POLLI else 0)
    a(f"s_waitcnt vmcnt({n})\ns_barrier")
    if i<7: issue(i+3)
    if i==7: a(f"v_mov_b32 v18, {NONL}\nds_read_b32 v16, v18\ns_mov_b32 s68, {WS_F1}")
    if i==POLLI: lpolls()
    if i==7: em(fillL[:5])
    if i==8: em(fillL[5:9])
fillL=fillL[9:]
a(f"""s_waitcnt lgkmcnt(0)
v_readfirstlane_b32 s{NON}, v16
v_mov_b32 v{IDX}, 0xdddddddd
s_mov_b32 s{CNT}, 0
s_and_b32 s6, s{W}, 3
s_lshl_b32 m0, s6, 10""")
if POLLI>9: lpolls()
a(f"""L_pk:
s_waitcnt vmcnt(0)
v_xor_b32 v50, s{NON}, v50
v_xor_b32 v51, s{NON}, v51
v_xor_b32 v52, s{NON}, v52
v_xor_b32 v53, s{NON}, v53
v_or3_b32 v50, v50, v51, v52
v_or_b32 v50, v50, v53
v_cmp_ne_u32 vcc, 0, v50
s_add_u32 s{CNT}, s{CNT}, 1
s_cmp_gt_u32 s{CNT}, {SPIN}
s_cbranch_scc1 L_pkok
s_cbranch_vccz L_pkok""")
lpolls()
a("s_branch L_pk\nL_pkok:")
dma=f"buffer_load_dwordx4 v{L16}, {S(WS_)}, m0 offen sc1 lds"
bump="s_add_u32 m0, m0, 8192"
stamp('f_qst')
for k in range(6): a(dma+"\ns_add_u32 m0, m0, 4096\ns_nop 0")
em(fillL)
stamp('f_flag')
a("s_waitcnt vmcnt(0)")
stamp('f_p1')
a(f"""s_waitcnt vmcnt(0)
L_att:
s_lshl_b32 m0, s{W}, 10
s_add_u32 m0, m0, 24576
s_setprio 3
s_barrier""")
stamp('att')
def koff(g,t): return (g>>1)*10240+(2*(g&1)+t)*1024
def k4off(g): return (g>>1)*10240+4096
def voff(g,u): return (g>>1)*10240+5120+(4*(g&1)+u)*640
on=f"s_mov_b64 exec, s[{VM}:{VM+1}]"; off="s_mov_b64 exec, -1"
def M16(d,k,c): return f"v_mfma_f32_32x32x16_bf16 v[{d}:{d+15}], v[{k}:{k+3}], v[{Q16}:{Q16+3}], {c}"
def M4(d,k): return f"v_mfma_f32_32x32x4_2b_bf16 v[{d}:{d+31}], v[{k}:{k+1}], v[{Q4}:{Q4+1}], v[{d}:{d+31}]"
def SM(v,x): return f"v_smfmac_f32_32x32x32_bf16 v[{O}:{O+15}], v[{v}:{v+3}], v[{x}:{x+7}], v{IDX}"
CMr=f"v[{CM}:{CM+15}]"
a(f"""ds_read_b64 v[{Q16}:{Q16+1}], v{QR}
ds_read_b64 v[{Q16+2}:{Q16+3}], v{QR} offset:8
ds_read_b64 v[{Q4}:{Q4+1}], v{QR+1} offset:32
ds_read_b128 v[{KF[0]}:{KF[0]+3}], v{AK} offset:{koff(0,0)}
ds_read_b128 v[{KF[0]+4}:{KF[0]+7}], v{AK} offset:{koff(0,1)}
ds_read_b128 v[{K4[0]}:{K4[0]+3}], v{AK} offset:{k4off(0)}
ds_read_b128 v[{KF[1]}:{KF[1]+3}], v{AK} offset:{koff(1,0)}
ds_read_b128 v[{KF[1]+4}:{KF[1]+7}], v{AK} offset:{koff(1,1)}""")
X=SS[0]
nl=[0]
def role04(ops):
    nl[0]+=1
    return [f"s_cmp_ge_u32 s{W}, 5",f"s_cbranch_scc1 L_r{nl[0]}"]+ops+[f"L_r{nl[0]}:"]
a(f"""s_waitcnt lgkmcnt(4)
{M16(X,KF[0],'0')}
s_waitcnt lgkmcnt(3)
{M16(X+16,KF[0]+4,'0')}
{on}""")
for u in range(4): a(f"ds_read_b128 v[{VF[0]+4*u}:{VF[0]+4*u+3}], v{AV} offset:{voff(0,u)}")
a(f"""{off}
s_waitcnt lgkmcnt(6)
s_nop 2
{M4(X,K4[0])}
{dma}
{bump}
s_nop 0
{dma}
{bump}
s_nop 14""")
a(f"v_max3_f32 v{T+2}, v{X}, v{X+1}, v{X+2}\nv_max3_f32 v{T+3}, v{X+3}, v{X+4}, v{X+5}")
for i in range(6,32,4):
    a(f"v_max3_f32 v{T+2}, v{T+2}, v{X+i}, v{X+i+1}")
    if i+2<32: a(f"v_max3_f32 v{T+3}, v{T+3}, v{X+i+2}, v{X+i+3}")
a(f"""v_max_f32 v{T+2}, v{T+2}, v{T+3}
v_mov_b32 v{T+3}, v{T+2}
s_nop 1
v_permlane32_swap_b32 v{T+2}, v{T+3}
v_max_f32 v{T+2}, v{T+2}, v{T+3}
v_sub_f32 v{CM}, {fh(-OFFS)}, v{T+2}
v_sub_f32 v{CM+1}, {fh(-OFFS)}, v{T+2}""")
for i in range(1,8): a(f"v_mov_b64 v[{CM+2*i}:{CM+2*i+1}], v[{CM}:{CM+1}]")
a(f"s_waitcnt lgkmcnt(0)\ns_nop 0\n{M16(SS[1],KF[1],CMr)}")
for i in range(16): a(f"v_pk_add_f32 v[{X+2*i}:{X+2*i+1}], v[{X+2*i}:{X+2*i+1}], v[{CM}:{CM+1}]")
pos=dict(smp=2,mB=5,s0=10,mC=13,s1=21,s2=26,mA=29)
order=sorted(pos,key=lambda k:pos[k])
kbase=0; vbase=0
bg={g:{k:[] for k in pos} for g in range(32)}
at={g:{} for g in range(32)}
sync={}
KVD=[dma,bump]
def tw(q,r,n=4):
    op={4:'dwordx4',1:'dword'}[n]
    return f"global_load_{op} {vr(r,n)}, v{L16}, s[{TW_}:{TW_+1}] offset:{1024*q-twb[0]}"
twb=[4096]
def twadv(n):
    twb[0]+=n
    return [f"s_add_u32 s{TW_}, s{TW_}, {n}",f"s_addc_u32 s{TW_+1}, s{TW_+1}, 0"]
for k in ['mB','s2','mA']: bg[0][k]+=KVD
for g in range(1,7):
    bg[g]['mB']+=KVD; bg[g]['mA']+=KVD
bg[0]['mC']+=[tw(0,WOA)]
sync[2]=["s_waitcnt vmcnt(2)","s_barrier"]
bg[2]['mC']+=role04([f"s_mov_b32 s6, m0",f"s_lshl_b32 m0, s{W}, 10",f"s_add_u32 s7, s69, {64*16*1280}",dmab(FA,XA_,'s69'),"s_add_u32 m0, m0, 5120","s_nop 0",dmab(FA,XA_,'s7'),"s_mov_b32 m0, s6"])
for q,r_ in enumerate([FT,FT+4,FT+8,FT+12,P1A]): bg[3+q]['s2']+=[f"global_load_dwordx4 v[{r_}:{r_+3}], v{L16}, s[66:67] offset:{1024*q-1024}"]
for j,ops in enumerate([[tw(1,WAD)],[tw(2,UR)],[tw(3,244)],[tw(4,VR)]]): bg[3+j]['mC']+=ops
sync[10]=["s_waitcnt vmcnt(0)","s_barrier"]
for s_ in range(4):
    f=PFR+12*(s_&1)
    for Tt in range(3):
        for u in range(2):
            bg[10+s_][['mC','s2','mA'][Tt]].append(f"ds_read_b64_tr_b16 v[{f+4*Tt+2*u}:{f+4*Tt+2*u+1}], v{P1A+(Tt==2)} offset:{(32*s_+u)*80+(32 if Tt==1 else 0)}")
        c='0' if s_==0 else f"v[{PD[Tt]}:{PD[Tt]+3}]"
        at[11+s_][[8,24,32][Tt]]=[f"v_mfma_f32_16x16x32_bf16 v[{PD[Tt]}:{PD[Tt]+3}], v[{f+4*Tt}:{f+4*Tt+3}], v[{FT+4*s_}:{FT+3+4*s_}], {c}"]
at[15][8]=[f"v_cvt_pk_bf16_f32 v{PD[Tt]+k}, v{PD[Tt]+2*k}, v{PD[Tt]+2*k+1}" for Tt in range(3) for k in range(2)]
bg[15]['mC']+=[f"ds_write_b64 v{P1A+2}, v[{PD[0]}:{PD[0]+1}]",f"ds_write_b64 v{P1A+2}, v[{PD[1]}:{PD[1]+1}] offset:32"]
bg[15]['s2']+=["s_mov_b32 exec_hi, 0",f"ds_write_b64 v{P1A+2}, v[{PD[2]}:{PD[2]+1}] offset:64","s_mov_b32 exec_hi, -1"]
bg[15]['mA']+=[f"ds_read_b128 v[{PFR}:{PFR+3}], v{P1A+3}",f"ds_read_b128 v[{PFR+4}:{PFR+7}], v{P1A+3} offset:1024"]
bg[16]['mB']+=[f"buffer_store_dwordx4 v[{PFR}:{PFR+3}], v{L16}, {S(WS_)}, s{PB} offen sc1"]
bg[16]['mC']+=["s_mov_b64 exec, 0xffff",f"buffer_store_dwordx4 v[{PFR+4}:{PFR+7}], v{L16}, {S(WS_)}, s{PB} offen offset:1024 sc1",off]
bg[16]['s2']+=[f"s_add_u32 s{RET}, s{TAB}, tab_hid-L_pc",f"s_addc_u32 s{RET+1}, s{TAB+1}, 0"]
for qd in range(13):
    ops=[f"global_load_dwordx4 v[{TB+4*qd}:{TB+4*qd+3}], v{L16}, s[{RET}:{RET+1}] offset:{1024*(qd%4)}"]
    if qd%4==3: ops+=[f"s_add_u32 s{RET}, s{RET}, 4096",f"s_addc_u32 s{RET+1}, s{RET+1}, 0"]
    bg[20+qd//2][['mC','s2'][qd%2]]+=ops
bg[19]['mA']+=[f"s_lshl_b32 m0, s{W}, 10",f"s_mul_i32 s68, s{HG}, 160"]
sync[20]=["s_waitcnt vmcnt(0)","s_barrier",f"s_cmp_eq_u32 s{W}, 7","s_cbranch_scc0 L_nofl2",
    f"s_mul_i32 s6, s2, {FS}",f"s_add_u32 s6, s6, {WS_F2}",f"v_mov_b32 v{PF}, s{NON}","s_mov_b64 exec, 1",
    f"buffer_store_dword v{PF}, v{L16}, {S(WS_)}, s6 offen sc1",off,"L_nofl2:"]
wo1=[dmab(WOA,WO_,'s68'),"s_add_u32 m0, m0, 5120",f"s_add_u32 s68, s68, {32*1280}"]
WCL=int(XP.get('wcl',2))
for n in range(20//WCL): bg[20+(n*WCL*7)//20][['mB','mA'][n%2]]+=role04(wo1*WCL)
bg[26]['s2']+=[f"s_sub_u32 s6, s{W}, 5","s_cmp_lt_u32 s6, 2","s_cbranch_scc0 L_np2"]+polls(WS_F2)+["L_np2:"]
bg[27]['mA']+=[f"s_mul_i32 s68, s{UU}, 160",f"s_add_u32 s68, s68, {WS_U}"]
sync[28]=["POLL2","s_barrier"]
u1=[dmab(UA,WS_,'s68',0,'sc1'),"s_add_u32 m0, m0, 5120",f"s_add_u32 s68, s68, {32*10240}"]
for n in range(4): bg[28+n//2][['mB','s2'][n%2]]+=role04(u1+u1)
bg[17]['s2']+=lines(f"""s_lshl_b32 s6, s{QB}, 1
s_and_b32 s7, s{W}, 1
s_add_u32 s6, s6, s7
s_mul_i32 s{SA}, s6, 40960
s_lshl_b32 s7, s{HG}, 2
s_lshr_b32 s6, s{W}, 1
s_add_u32 s7, s7, s6""")
bg[17]['mA']+=lines(f"""s_add_u32 s{SA}, s{SA}, {WS_O}
s_lshl_b32 s{SB}, s7, 8
s_lshl_b32 s7, s7, 10
s_add_u32 s{SB}, s{SB}, s{SA}
s_add_u32 s{SA}, s{SA}, s7
s_add_u32 s{SB}, s{SB}, 32768""")
bg[31]['s1']+=lines(f"""s_lshr_b32 s6, s{W}, 2
s_mul_i32 s7, s6, 40960
s_lshl_b32 s68, s{QB}, 1
s_add_u32 s6, s6, s68
s_mul_i32 s68, s6, 40960
s_and_b32 s6, s{W}, 3""")
bg[31]['s2']+=lines(f"""s_lshl_b32 s69, s6, 5
s_lshl_b32 s6, s6, 10
s_add_u32 s7, s7, s6
s_add_u32 m0, s7, {OL}
s_add_u32 s68, s68, s6
s_add_u32 s68, s68, {WS_O}
s_sub_u32 s69, 128, s69""")
PA=11
at[17][8]=[f"v_and_b32 v{PA}, 7, v0",f"v_lshlrev_b32 v{PA}, 7, v{PA}"]
def touchO(r): return ["s_mov_b64 exec, 0xff",f"buffer_load_dword v{r}, v{PA}, {S(WS_)}, s{SA} offen sc1","s_mov_b64 exec, 3",f"buffer_load_dword v{r}, v{PA}, {S(WS_)}, s{SB} offen sc1",off]
if 'pto' in XP: bg[27]['mB']+=touchO(243)
if 'ptout' in XP:
    bg[27]['mC']+=[f"s_lshl_b32 s6, s{W}, 7",f"s_add_u32 s6, s6, s{T0}","s_mul_i32 s6, s6, 2560",f"s_mul_i32 s7, s{QB}, {64*2560}","s_mov_b64 exec, 1",
        f"buffer_load_dword v243, v{L16}, {S(OUT_)}, s6 offen sc1",f"buffer_load_dword v243, v{L16}, {S(OUT_)}, s7 offen sc1",off]
if 'ptwo' in XP:
    bg[12]['mB']+=[f"s_and_b32 s6, s2, 0xf8",f"s_add_u32 s6, s6, s{W}","s_mul_i32 s6, s6, 3200",f"v_lshlrev_b32 v243, 7, v0","s_mov_b64 exec, 0x1ffffff",
        f"buffer_load_dword v243, v243, {S(WO_)}, s6 offen",off]
PR={1:2, 2:3,7:2,9:1, 10:3,16:2,18:1,19:0, 20:3,25:2,27:1, 28:3,30:2,31:1}
for g in range(32):
    X=SS[g%2]; Y=SS[(g+1)%2]; g1=g+1; g2=g+2
    m={}
    m['mA']=M16(X,KF[g2%2],CMr) if g2<32 else None
    m['mB']=M16(Y+16,KF[g1%2]+4,CMr) if g1<32 else None
    m['mC']=M4(Y,K4[(g1//2)%2]+2*(g1%2)) if g1<32 else None
    for i in range(3): m[f's{i}']=SM(VF[g%2]+4*i,X+8*i)
    m['smp']=SM(VF[(g-1)%2]+12,Y+24) if g>0 else "s_nop 0"
    aft={k:[] for k in pos}
    pre=[]
    if g2<32 and k4off(g2)-kbase>=61440:
        pre.append(f"v_add_u32 v{AK}, 61440, v{AK}"); kbase+=61440
    if g1<32 and voff(g1,3)-vbase>=61440:
        pre.append(f"v_add_u32 v{AV}, 61440, v{AV}"); vbase+=61440
    if g in sync: aft['smp']+=sync[g]
    if g2<32:
        aft['smp'].append(f"ds_read_b128 v[{KF[g2%2]}:{KF[g2%2]+3}], v{AK} offset:{koff(g2,0)-kbase}")
        aft['mB']+=["s_waitcnt lgkmcnt(1)", f"ds_read_b128 v[{KF[g2%2]+4}:{KF[g2%2]+7}], v{AK} offset:{koff(g2,1)-kbase}"]
        if g2%2==0: aft['mC'].append(f"ds_read_b128 v[{K4[(g2//2)%2]}:{K4[(g2//2)%2]+3}], v{AK} offset:{k4off(g2)-kbase}")
    else:
        aft['smp'].append("s_waitcnt lgkmcnt(0)")
    if g1<32:
        b=VF[g1%2]
        vv=[f"ds_read_b128 v[{b+4*i}:{b+4*i+3}], v{AV} offset:{voff(g1,i)-vbase}" for i in range(4)]
        aft['s0']+=[on,vv[0],vv[1],off]; aft['s1']+=[on,vv[2],vv[3],off]
        aft['s2'].append("s_waitcnt lgkmcnt(2)")
    for k in pos: aft[k]+=bg[g][k]
    if g in PR: aft['mB' if g in sync else 'smp'].append(f"s_setprio {PR[g]}")
    ins={i:[] for i in range(33)}
    ins[0]+=pre
    for k in order:
        if m[k]: ins[pos[k]].append(m[k])
        ins[pos[k]]+=aft[k]
    for p_,ops in at[g].items(): ins[p_]+=ops
    if g in (0,3,10,11,20,21,28,29): stamp(f'g_{g}')
    for i in range(33):
        for x in ins[i]:
            if x=="POLL2": pollcheck('pu',WS_F2,0); continue
            if 'notab' in XP and g>=11 and x.startswith('global_load') and 's[66:67]' in x: continue
            if 'nowo' in XP and g>=20 and x.startswith('buffer_load_dwordx4'): continue
            if 'nop1' in XP and g<10 and (x.startswith('ds_read_b64_tr') or x.startswith('v_mfma_f32_16x16') or x.startswith('v_cvt') or x.startswith('ds_write') or x.startswith('buffer_store_dwordx4') or (x.startswith('global_load') and 'v[1' in x)): continue
            if 'nobar' in XP and g>=20 and x=='s_barrier': continue
            if 'noprio' in XP and x.startswith('s_setprio'): continue
            a(x)
        if i<32: a(f"v_exp_f32 v{X+i}, v{X+i}")
a("s_nop 1\n"+SM(VF[1]+12,SS[1]+24))
a(f"s_setprio 2\ns_mov_b32 s{SLOW}, 0\nL_check:")
stamp('loopend')
a(f"""s_mov_b32 s6, 0x7f800000
s_mov_b32 s7, {fh(2.0**-(OFFS+14))}
s_nop 7
v_rcp_f32 v{T+4}, v{O+12}
v_max3_f32 v{T+2}, |v{O}|, |v{O+1}|, |v{O+2}|""")
def nrm(i): a(f"v_pk_mul_f32 v[{44+2*i}:{45+2*i}], v[{O+2*i}:{O+2*i+1}], v[{T+4}:{T+5}] op_sel_hi:[1,0]")
for i in range(4): nrm(i)
for i in range(4): a(f"v_cvt_pk_bf16_f32 v{84+i}, v{44+2*i}, v{45+2*i}")
a(f"buffer_store_dwordx4 v[84:87], v{L16}, {S(WS_)}, s{SA} offen sc1")
for i in range(4,6): nrm(i)
for i in range(4,6): a(f"v_cvt_pk_bf16_f32 v{84+i}, v{44+2*i}, v{45+2*i}")
OA=12; SG=16; FN=20
a(f"""s_mov_b32 exec_hi, 0
buffer_store_dwordx2 v[88:89], v{L8}, {S(WS_)}, s{SB} offen sc1
s_mov_b32 exec_hi, -1
s_setprio 0
v_max3_f32 v{T+3}, |v{O+3}|, |v{O+4}|, |v{O+5}|
v_max3_f32 v{T+2}, v{T+2}, |v{O+6}|, |v{O+7}|
v_max3_f32 v{T+4}, |v{O+8}|, |v{O+9}|, |v{O+10}|
v_max_f32 v{T+2}, v{T+2}, v{T+3}
v_max3_f32 v{T+4}, v{T+4}, |v{O+11}|, v{T+2}
v_cmp_gt_f32 vcc, {fh(2.0**110)}, v{O+12}
v_cmp_gt_f32 s[66:67], s6, v{T+4}
v_cmp_lt_f32 s[6:7], s7, v{T+2}
s_and_b64 vcc, vcc, s[66:67]
s_and_b64 vcc, vcc, s[6:7]
s_cmp_eq_u64 vcc, -1
s_cbranch_scc0 L_slow
L_store:
{tw(5,OA)}
{tw(6,SG)}
{tw(7,FN)}
s_waitcnt vmcnt(5)
s_barrier""")
stamp('T-1')
F=44
for i in range(5):
    for u in range(2): a(f"ds_read_b64_tr_b16 v[{F+4*i+2*u}:{F+4*i+2*u+1}], v{UR+(i==2)} offset:{32*i+1280*u+(2480 if i>2 else 0)}")
LATE=list(range(12))+[16,17,18]; EARLY=[12,13,14,15,19]
SLOT={st:i for i,st in enumerate(LATE+EARLY)}
WA=92; WX=172
def wo_read(base,add,st):
    r=base+4*SLOT[st]; o=[]
    for u in range(2):
        if st<16: o.append(f"ds_read_b64_tr_b16 v[{r+2*u}:{r+2*u+1}], v{add+u} offset:{6400*(st%8)}")
        else: o.append(f"ds_read_b64_tr_b16 v[{r+2*u}:{r+2*u+1}], v{add+2+u} offset:{25600*(st%2)}")
    return o
UP=[8,9,10,11,18]; LOW=list(range(8))+[16,17]
NF=36
for i in range(4): a(f"v_add_u32 v{24+i}, s69, v{WAD+i}")
a(f"""v_mov_b32 v3, s{NON}
s_add_u32 s6, s{W}, 2
s_bitcmp1_b32 s6, 2
s_cselect_b32 s{CH}, 0, 1""")
for i in range(5):
    a(f"s_waitcnt lgkmcnt(8)\nv_mfma_f32_16x16x32_bf16 v[{F+20+4*i}:{F+23+4*i}], v[{F+4*i}:{F+4*i+3}], v[{MM}:{MM+3}], 0")
    for x in wo_read(WA,WAD,EARLY[i]): a(x)
for i in range(5):
    d=F+20+4*i
    a(f"v_cvt_pk_bf16_f32 v{d}, v{d}, v{d+1}\nv_cvt_pk_bf16_f32 v{d+1}, v{d+2}, v{d+3}\nds_write_b64 v{VW[i]}, v[{d}:{d+1}]")
for i in range(8): a(f"v_xor_b32 v{NF+i}, 0x80008000, v{TB+8+i}")
a(f"""s_lshl_b32 s6, s{QB}, 3
s_add_u32 s6, s6, s{HG}
s_lshl_b32 s6, s6, 7
s_add_u32 s6, s6, {WS_F3}
s_cmp_eq_u32 s{W}, 2
s_waitcnt vmcnt(3) lgkmcnt(0)
s_barrier
s_cbranch_scc0 L_nofl3
s_mov_b64 exec, 1
buffer_store_dword v3, v{L16}, {S(WS_)}, s6 offen sc1
s_mov_b64 exec, -1
L_nofl3:""")
if 'nosp' not in XP: em(touchO(1))
stamp('T0')
for p in range(2):
    for s in range(2):
        for u in range(2):
            a(f"ds_read_b64_tr_b16 v[{F+8*p+4*s+2*u}:{F+8*p+4*s+2*u+1}], v{VR+2*p+u} offset:{1280*p+640*s}")
TR=F+16; TI=F+32
def mm(d,A,B,c): return f"v_mfma_f32_32x32x16_bf16 v[{d}:{d+15}], v[{A}:{A+3}], v[{B}:{B+3}], {c}"
TRr=f"v[{TR}:{TR+15}]"; TIr=f"v[{TI}:{TI+15}]"
rest=sum([wo_read(WA,WAD,st) for st in UP],[])+[f"v_subrev_u32 v{WAD+i}, 51200, v{WAD+i}" for i in range(4)]+sum([wo_read(WA,WAD,st) for st in LOW],[])
mms=[mm(TR,F,TB,'0'),mm(TI,F,TB+8,'0'),mm(TR,F+4,TB+4,TRr),mm(TI,F+4,TB+12,TIr),mm(TR,F+8,NF,TRr),mm(TI,F+8,TB,TIr),mm(TR,F+12,NF+4,TRr),mm(TI,F+12,TB+4,TIr)]
a("s_waitcnt lgkmcnt(6)"); a(mms[0]); a(mms[1]); a("s_waitcnt lgkmcnt(0)")
for j in range(2,8):
    a(mms[j])
    for x in rest[:4]: a(x)
    rest=rest[4:]
for x in rest: a(x)
a(f"s_cmp_eq_u32 s{CH}, 0\ns_cbranch_scc1 L_noex0")
for st in EARLY:
    for x in wo_read(WX,24,st): a(x)
a("L_noex0:")
WRr=TB+16; WI=TB+28; GG=TB+40; P=4
def twid(lo,hi):
    for i in range(lo,hi,2):
        a(f"""v_mul_f32 v{P}, v{TI+i}, v{WI+i}
        v_mul_f32 v{P+1}, v{TR+i}, v{WI+i}
        v_mul_f32 v{P+2}, v{TI+i+1}, v{WI+i+1}
        v_mul_f32 v{P+3}, v{TR+i+1}, v{WI+i+1}
        v_fma_f32 v{TR+i}, v{TR+i}, v{WRr+i}, -v{P}
        v_fma_f32 v{TI+i}, v{TI+i}, v{WRr+i}, v{P+1}
        v_fma_f32 v{TR+i+1}, v{TR+i+1}, v{WRr+i+1}, -v{P+2}
        v_fma_f32 v{TI+i+1}, v{TI+i+1}, v{WRr+i+1}, v{P+3}
        v_cvt_pk_bf16_f32 v{F+4*(i//4)+(i%4)//2}, v{TR+i}, v{TR+i+1}
        v_cvt_pk_bf16_f32 v{F+4*(i//4)+2+(i%4)//2}, v{TI+i}, v{TI+i+1}""")
TWP=int(XP.get('twp',0)); TW=int(XP.get('tw',12))
twid(0,TWP)
a(f"""s_lshl_b32 s67, s{QB}, 10
s_add_u32 s67, s67, {WS_F3}
s_cmp_eq_u32 s{W}, 3
s_cbranch_scc0 L_nop3
buffer_load_dword v3, v{PA}, {S(WS_)}, s67 offen sc1
L_nop3:""")
twid(TWP,TW)
a(f"""s_cmp_eq_u32 s{W}, 3
s_cbranch_scc0 L_pook
s_mov_b32 s{CNT}, 0
L_po:
s_waitcnt vmcnt(0)
v_cmp_ne_u32 vcc, s{NON}, v3
s_add_u32 s{CNT}, s{CNT}, 1
s_cmp_gt_u32 s{CNT}, {SPIN}
s_cbranch_scc1 L_pook
s_cbranch_vccz L_pook
buffer_load_dword v3, v{PA}, {S(WS_)}, s67 offen sc1
s_branch L_po
L_pook:
s_waitcnt lgkmcnt(0)
s_barrier""")
stamp('T1')
od=[dmab(L16,WS_,'s68',0,'sc1'),"s_add_u32 m0, m0, 4096","s_add_u32 s68, s68, 4096"]
def odma():
    for x in od: a(x)
N0=int(XP.get('n0',4))
odma()
twid(TW,12)
Y=28
a("s_nop 1")
a(mm(Y,F,GG,'0')); odma(); a(mm(Y,F+4,GG+4,f"v[{Y}:{Y+15}]")); odma(); a(mm(Y,F+8,GG+8,f"v[{Y}:{Y+15}]"))
for n in range(N0-3): odma()
a(f"s_cmp_eq_u32 s{CH}, 0\ns_cbranch_scc1 L_noex1")
for st in UP:
    for x in wo_read(WX,24,st): a(x)
for i in range(4): a(f"v_subrev_u32 v{24+i}, 51200, v{24+i}")
for st in LOW:
    for x in wo_read(WX,24,st): a(x)
a("L_noex1:")
N1=int(XP.get('n1',0))
for n in range(N1): odma()
N0+=N1
a(f"""
s_lshl_b32 s6, s{W}, 7
s_add_u32 s6, s6, s{T0}
s_mul_i32 s67, s6, 2560
s_nop 6""")
for i in range(8): a(f"v_cvt_pk_bf16_f32 v{4+i}, v{Y+2*i}, v{Y+2*i+1}")
fst=[on,f"buffer_store_dwordx4 v[4:7], v{SG+3}, {S(OUT_)}, s67 offen nt",f"buffer_store_dwordx4 v[8:11], v{SG+3}, {S(OUT_)}, s67 offen offset:16 nt",off]
BB=[36,52,68]; AC=24
def rd(hc):
    b=BB[hc%3]; o=[]
    for k in range(2):
        st=2*hc+k
        for qt in range(2):
            r=b+8*k+4*qt
            if st<16: o.append([f"ds_read_b128 v[{r}:{r+3}], v{OA+qt} offset:{2048*st}"])
            else: o.append([f"ds_read_b64 v[{r+2*u}:{r+2*u+1}], v{OA+2+qt} offset:{2048*(st-16)+1024*u}" for u in range(2)])
    return o
def mmo(hc,ex):
    b=BB[hc%3]; o=[]
    for k in range(2):
        st=2*hc+k
        for (d,w_,qt) in [(AC,WA,0),(AC+4,WA,1)]+([(AC+8,WX,0)] if ex else []):
            r=b+8*k+4*qt; c='0' if st==0 else f"v[{d}:{d+3}]"
            o.append(f"v_mfma_f32_16x16x32_bf16 v[{d}:{d+3}], v[{w_+4*SLOT[st]}:{w_+4*SLOT[st]+3}], v[{r}:{r+3}], {c}")
    return o
SYNC=eval(XP.get('sync','{0/2,2/4,4/7,7/10}').replace('/',':'))
def ogemm(ex):
    issued=N0
    for hc in range(12):
        if hc in SYNC:
            assert issued>=SYNC[hc]
            stamp(f'o_a{hc}')
            a(f"s_waitcnt vmcnt({issued-SYNC[hc]})"+(" lgkmcnt(0)" if hc==0 else "")+"\ns_barrier")
            stamp(f'o_b{hc}')
        R=rd(hc) if hc<10 else []
        M=mmo(hc-2,ex) if hc>=2 else []
        if M: a(f"s_waitcnt lgkmcnt({0 if hc==11 else (4 if hc-1<8 else 8)})")
        for j in range(max(len(R),len(M))):
            if j<len(M): a(M[j])
            if j<len(R):
                for x in R[j]: a(x)
        if issued<10:
            odma(); issued+=1
            if hc<2 and issued<10: odma(); issued+=1
        if hc==7:
            for x in fst: a(x)
a(f"s_cmp_eq_u32 s{CH}, 0\ns_cbranch_scc1 L_g0")
ogemm(True)
a("s_branch L_ge\nL_g0:")
ogemm(False)
a("L_ge:")
stamp('gemm')
a(f"""s_mul_i32 s6, s{QB}, {64*2560}
s_mul_i32 s7, s{HG}, 160
s_add_u32 s6, s6, s7
s_add_u32 s6, s6, 1280
s_cmp_eq_u32 s{CH}, 0
s_nop 2""")
for i in range(4): a(f"v_cvt_pk_bf16_f32 v{36+i}, v{AC+2*i}, v{AC+1+2*i}")
a(f"""ds_write_b64 v{SG}, v[36:37]
ds_write_b64 v{SG+1}, v[38:39]
s_cbranch_scc1 L_noex2
v_cvt_pk_bf16_f32 v40, v{AC+8}, v{AC+9}
v_cvt_pk_bf16_f32 v41, v{AC+10}, v{AC+11}
ds_write_b64 v{SG+2}, v[40:41]
L_noex2:
s_cmp_ge_u32 s{W}, 2
s_waitcnt lgkmcnt(0)
s_barrier
ds_read_b128 v[24:27], v{FN}
s_cbranch_scc1 L_one
ds_read_b128 v[28:31], v{FN+2}
s_waitcnt lgkmcnt(0)
buffer_store_dwordx4 v[28:31], v{FN+3}, {S(OUT_)}, s6 offen nt
L_one:
s_waitcnt lgkmcnt(0)
buffer_store_dwordx4 v[24:27], v{FN+1}, {S(OUT_)}, s6 offen nt""")
if STAMP:
    a("s_waitcnt vmcnt(0)"); stamp('end')
    a(f"""s_lshl_b32 s6, s2, 3
    s_add_u32 s6, s6, s{W}
    s_lshl_b32 s6, s6, 6
    s_add_u32 s6, s6, {WS_ST}
    v_mov_b32 v21, 0
    s_waitcnt lgkmcnt(0)""")
    for i in range(nstamp[0]): a(f"v_mov_b32 v22, s{STB+2*i}\nbuffer_store_dword v22, v21, {S(WS_)}, s6 offen offset:{4*i}")
a("L_end:\ns_endpgm")
X=SS[0]
a(f"""L_slow:
s_cmp_lg_u32 s{SLOW}, 0
s_cbranch_scc1 L_store
s_mov_b32 s{SLOW}, 1
v_mov_b32 v{T+2}, 0xff800000
v_subrev_u32 v{AV}, {vbase}, v{AV}""")
zero(CM,16); zero(O,16)
a(f"""L_pass:
s_mov_b32 s{CNT}, 0
L_sl:
s_lshr_b32 s66, s{CNT}, 1
s_mul_i32 s66, s66, 10240
s_and_b32 s6, s{CNT}, 1
s_mul_i32 s7, s6, 2048
s_add_u32 s7, s7, s66
buffer_load_dwordx4 v[{KF[0]}:{KF[0]+3}], v{L16}, {S(WS_)}, s7 offen sc1
buffer_load_dwordx4 v[{KF[0]+4}:{KF[0]+7}], v{L16}, {S(WS_)}, s7 offen offset:1024 sc1
s_lshl_b32 s7, s6, 3
s_add_u32 s7, s7, s66
s_add_u32 s7, s7, 4096
buffer_load_dwordx2 v[{K4[0]}:{K4[0]+1}], v{L16}, {S(WS_)}, s7 offen sc1
s_mul_i32 s7, s6, 2560
s_add_u32 s7, s7, s66
s_add_u32 s7, s7, 5120
{on}""")
for u in range(4): a(f"buffer_load_dwordx4 v[{VF[0]+4*u}:{VF[0]+4*u+3}], v{AV}, {S(WS_)}, s7 offen offset:{640*u} sc1")
a(f"""{off}
s_waitcnt vmcnt(0)
{M16(X,KF[0],CMr)}
{M16(X+16,KF[0]+4,CMr)}
s_nop 9
{M4(X,K4[0])}
s_nop 15
s_nop 3
s_cmp_eq_u32 s{SLOW}, 1
s_cbranch_scc0 L_p2""")
for i in range(0,32,2): a(f"v_max3_f32 v{T+2}, v{T+2}, v{X+i}, v{X+i+1}")
a("s_branch L_nx\nL_p2:")
for i in range(32): a(f"v_exp_f32 v{X+i}, v{X+i}")
a("s_nop 1")
for u in range(4): a(SM(VF[0]+4*u,X+8*u))
a(f"""L_nx:
s_add_u32 s{CNT}, s{CNT}, 1
s_cmp_lt_u32 s{CNT}, 32
s_cbranch_scc1 L_sl
s_cmp_eq_u32 s{SLOW}, 1
s_cbranch_scc0 L_check
s_mov_b32 s{SLOW}, 2
v_mov_b32 v{T+3}, v{T+2}
s_nop 1
v_permlane32_swap_b32 v{T+2}, v{T+3}
v_max_f32 v{T+2}, v{T+2}, v{T+3}""")
for i in range(16): a(f"v_sub_f32 v{CM+i}, 0, v{T+2}")
a("s_branch L_pass")

hdr=open('concat_heads__spectral_fnet__grouped_kv_mqa__prompt.s.ref').read().split('; Override launch')[0]
s=hdr+"; @launch grid=(256,1,1) block=(512,1,1) lds=163840\n"
if STAMP: s+="; stamps: "+" ".join(stnames)+"\n"
s+='.amdgcn_target "amdgcn-amd-amdhsa--gfx950"\n.text\n'+khead(KN)+a.text()
s+=emit_table('tab_p1',table_p1())+emit_table('tab_hid',table_hid())+emit_table('tab_wave',table_wave())
s+='.section .rodata,"a"\n'+kdesc(KN,256,102)
open(OUTF,'w').write(s)
print('wrote',OUTF,len(s),'stamps',nstamp[0],stnames)
```

```python
import sys, math, struct
import numpy as np
sys.path.insert(0,'gen')
from asmlib import *

STAMP = '--stamp' in sys.argv
XP = dict((a[4:].split(':')+[''])[:2] for a in sys.argv if a.startswith('--x='))
OUTF = [a for a in sys.argv[1:] if not a.startswith('--')]
OUTF = OUTF[0] if OUTF else 'concat_heads__spectral_fnet__grouped_kv_mqa__prompt.s'
KN='concat_heads__spectral_fnet__grouped_kv_mqa__prompt_kernel'

WS_KV = 0x000000
WS_F1 = 0x040000
WS_F2 = 0x050000
WS_F3 = 0x060000
WS_O  = 0x100000
WS_U  = 0x400000
WS_ST = 0x900000
WS_SZ = 0x1000000
CSCALE = (20**-0.5)*math.log2(math.e)
OFFS = 100.0
SPIN = 200000
def f2u(x): return struct.unpack('<I',struct.pack('<f',x))[0]
def fh(x): return hex(f2u(x))
def bf(x):
    u=np.asarray(x,np.float32).view(np.uint32)
    return ((u+0x7fff+((u>>16)&1))>>16).astype(np.uint32)
def pack(vals):
    b=bf(vals); return b[...,0::2]|(b[...,1::2]<<16)
def sig(n): return 16*((n>>2)&1)+4*(n>>3)+(n&3)
def table_hid():
    out=np.zeros((13,64,4),np.uint32)
    for l in range(64):
        n=l&31; h=l>>5; k1=sig(n)
        for s in range(2):
            d1=np.arange(8)+16*s+8*h
            out[s,l]=pack(np.cos(2*np.pi*d1*k1/32))
            out[2+s,l]=pack(-np.sin(2*np.pi*d1*k1/32))
        for j in range(3):
            d2=8*j+4*h+np.arange(4); ok=(d2<20)
            out[4+j,l]=(np.cos(2*np.pi*d2*k1/640)*ok).astype(np.float32).view(np.uint32)
            out[7+j,l]=(-np.sin(2*np.pi*d2*k1/640)*ok).astype(np.float32).view(np.uint32)
            k2=n if n<20 else 0
            out[10+j,l]=pack(np.concatenate([np.cos(2*np.pi*d2*k2/20)*ok, np.sin(2*np.pi*d2*k2/20)*ok]))
    return out.reshape(-1)
XBL=25600; RB=107520; NONL=158720
WOL=0; UL=102400; VL=143360; OL=81920; STG=0
FLF=0; FSF=10240; FS=32; QSL=RB; QP=168
def grp_rows(k0): return ((k0&~7)+((k0>>2)&1))
def table_p1():
    t=np.zeros((8,5,64,4),np.uint32)
    for w in range(8):
        for l in range(64):
            n=l&15; g=l>>4; r=(l>>2)&3; c=l&3
            j=np.arange(8)
            kidx=16*w+n; u=kidx>>1; q=kidx&1
            for s in range(4):
                sh=32*s+8*g+2*(j&3)+(j>>2)
                v=np.cos(np.pi*sh) if kidx==1 else (np.cos(2*np.pi*u*sh/128) if q==0 else -np.sin(2*np.pi*u*sh/128))
                t[w,s,l]=pack(v)
            rb=FLF+(8*g+2*r)*80; sb=FSF+1280*w
            t[w,4,l]=[rb+8*c, rb+64+8*(c&1), sb+80*n+8*g, sb+16*l]
    return t.reshape(-1)
NQW=8
def table_wave():
    t=np.zeros((8,NQW,64,4),np.uint32)
    for w in range(8):
        for l in range(64):
            n=l&15; g=l>>4; r=(l>>2)&3; c=l&3; h=l>>5
            cell=64*min(w,4)+l; pos=cell//10; cc=cell%10
            krow=(pos&~7)|((pos>>1)&3)|((pos&1)<<2)
            t[w,0,l]=[krow*1280+cc*16, pos*10240+cc*16, FS*(l+128*((w&1)^1)), (cell//5)*20480+(cell%5)*16]
            t[w,1,l]=[51200+r*320+(w&3)*32+8*c+160*(grp_rows(20*(g>>1)+4*(g&1)+8*uu) if kind==0 else grp_rows(20*(4*uu+g)+16)) for kind in range(2) for uu in range(2)]
            ur=UL+5120*w+(2*r+(g&1))*160+(g>>1)*80+8*c
            vw=[VL+n*1280+8*((20*w+4*i+g)^n) for i in range(5)]
            t[w,2,l]=[ur,ur+(2480 if c>=2 else 0),vw[0],vw[1]]
            t[w,3,l]=[vw[2],vw[3],vw[4],8*l]
            col=32 if (g&1) else 8*c
            t[w,4,l]=[VL+2560*w+((((8*h+4*uu+r)*40)+col)^(16*w+8*p)) for p in range(2) for uu in range(2)]
            qh=w>>2; n0=n+16*(w&1); n1=n0^16; ob=OL+qh*40960
            t[w,5,l]=[ob+512*g+16*n0, ob+512*g+16*n1, ob+32768+256*g+8*n0, ob+32768+256*g+8*n1]
            t[w,6,l]=[STG+(32*qh+n0)*176+8*g+32*(w&3), STG+(32*qh+n1)*176+8*g+32*(w&3), STG+(32*qh+n0)*176+8*g+128, 64*(l&31)+32*h]
            c0=64*w+l; c1=min(c0+512,639)
            t[w,7,l]=[STG+(c0+c0//10)*16, c0*16+(c0//10)*2400, STG+(c1+c1//10)*16, c1*16+(c1//10)*2400]
    return t.reshape(-1)
def emit_table(name, arr):
    s=f".p2align 8\n.type {name},@object\n{name}:\n"
    for i in range(0,len(arr),8):
        s+=".long "+",".join(hex(int(x)) for x in arr[i:i+8])+"\n"
    s+=f".size {name}, {4*len(arr)}\n"
    return s

W=3; QB=4; HG=5
XB_=8; TW_=12; KV_=16; WS_=20; XA_=24; WO_=28; OUT_=32
DBG=40; TAB=42; NON=44; R0=45; J=46; RBA=47; RBD=65
SA=49; SB=50; CH=55; FLG=48; RET=52
PB=56; UU=57; QT=58; T0=59; MIR=60; SLOW=61; CNT=62
VM=64
STB=70
def S(r,n=4): return f"s[{r}:{r+n-1}]"
a=Asm()
nstamp=[0]; stnames=[]
def stamp(name):
    sel=XP.get('st','')
    front=['kvland','kvpub','b0','b3','b6','b9pre','b9']
    if sel!='tail' and name.startswith('o_'): return
    if sel!='loop' and name.startswith('g_'): return
    if sel!='front' and name.startswith('f_'): return
    if sel=='front' and name in ['loopend','T0','T1','gemm']: return
    if sel and sel!='front' and name in front: return
    if name in stnames:
        i=stnames.index(name); a(f"{'s_memtime' if 'cyc' in XP else 's_memrealtime'} s[{STB+2*i}:{STB+1+2*i}]"); return
    if STAMP:
        assert nstamp[0]<16
        a(f"{'s_memtime' if 'cyc' in XP else 's_memrealtime'} s[{STB+2*nstamp[0]}:{STB+1+2*nstamp[0]}]"); nstamp[0]+=1; stnames.append(name)
def zero(base,n):
    for i in range(n): a(f"v_mov_b32 v{base+i}, 0")
def dmab(v,srd,soff,off=0,fl=''):
    return f"buffer_load_dwordx4 v{v}, {S(srd)}, {soff} offen{' offset:%d'%off if off else ''} {fl} lds"
def mod5(d,s,t):
    a(f"s_mul_i32 s{t}, s{s}, 0x3334\ns_lshr_b32 s{t}, s{t}, 16\ns_mul_i32 s{t}, s{t}, 5\ns_sub_u32 s{d}, s{s}, s{t}")


L16=2
TB=174
WAD=228; UR=232; VW=[234,235,244,245,246]; L8=247
MM=236; PF=240; WOA=248; UA=249; PA2=250; FA=251; VR=252
Q16=4; Q4=8; IDX=10; AK=3; AV=1
CM=12; O=28; SS=[44,76]; KF=[108,116]; K4=[124,128]; VF=[132,148]; T=164
XR=8; WR=9; QW=13; QR=14; FR=44; ACC=164; FT=174; PFR=190; PD=[214,218,222]; P1A=170
def lines(t): return [x.strip() for x in t.split("\n") if x.strip()]
def pre_m():
    o=[lines(f"""s_and_b32 s{UU}, s2, 7
    s_lshl_b32 s{UU}, s{UU}, 3
    s_bfe_u32 s6, s2, 0x30003
    s_add_u32 s{UU}, s{UU}, s6
    s_lshr_b32 s{QT}, s2, 6
    s_lshr_b32 s{MIR}, s{QT}, 1
    s_sub_u32 s6, 128, s{UU}"""),lines(f"""s_cmp_eq_u32 s{UU}, 0
    s_cselect_b32 s6, 64, s6
    s_cselect_b32 s66, 0, 512
    s_mul_i32 s7, s66, 3
    s_cmp_eq_u32 s{MIR}, 0
    s_cselect_b32 s{T0}, s{UU}, s6
    s_cselect_b32 s66, s7, s66"""),lines(f"""s_and_b32 s6, s{QT}, 1
    s_lshl_b32 s6, s6, 10
    s_add_u32 s{T0}, s{T0}, s6
    v_lshrrev_b32 v23, 5, v0
    v_cmp_eq_u32 vcc, s{MIR}, v23
    v_bfe_u32 v21, v0, 1, 3"""),lines(f"""v_lshl_add_u32 v21, v21, 7, s{T0}
    v_and_b32 v22, 1, v0
    v_lshlrev_b32 v22, 9, v22
    v_mad_u32_u24 v22, v23, s66, v22
    v_bfe_u32 v24, v0, 4, 1"""),lines(f"""v_mad_u32_u24 v22, v24, v21, v22
    v_cvt_f32_u32 v21, v21
    v_cvt_f32_u32 v22, v22
    v_mul_f32 v21, {fh(1/1024)}, v21
    v_mul_f32 v22, {fh(1/2048)}, v22
    s_cmp_eq_u32 s{UU}, 0
    s_cselect_b64 vcc, vcc, -1""")]
    for i in range(4):
        o.append(lines(f"""v_cos_f32 v25, v22
        v_add_f32 v22, v22, v21
        v_cos_f32 v26, v22
        v_add_f32 v22, v22, v21
        v_cvt_pk_bf16_f32 v24, v25, v26
        v_cndmask_b32 v{MM+i}, 0, v24, vcc"""))
    return o

def chunks(l,n): return [l[k:k+n] for k in range(0,len(l),n)]
def att_init():
    o=lines(f"""v_and_b32 v21, 27, v0
    v_cmp_eq_u32 vcc, 24, v21
    v_mov_b32 v21, 0x3f803f80
    s_mov_b32 s{VM}, 0xfffff
    s_mov_b32 s{VM+1}, 0xfffff
    v_cndmask_b32 v{VF[0]}, 0, v21, vcc
    v_cndmask_b32 v{VF[0]+1}, 0, v21, vcc""")
    mv=[f"v_mov_b64 v[{VF[0]+2*i}:{VF[0]+2*i+1}], v[{VF[0]}:{VF[0]+1}]" for i in range(1,16)]+[f"v_mov_b64 v[{O+2*i}:{O+2*i+1}], 0" for i in range(8)]
    sc=lines(f"""s_mov_b32 s{WO_+2}, 819200
    s_mov_b32 s{WO_+3}, 0x20000
    s_mov_b32 s{OUT_+2}, 5242880
    s_mov_b32 s{OUT_+3}, 0x20000
    s_and_b32 s66, s{W}, 1
    s_mul_i32 s66, s66, {32*QP}
    s_lshr_b32 s67, s{W}, 1
    s_mul_i32 s67, s67, 40
    s_add_u32 s66, s66, s67
    s_add_u32 s66, s66, {QSL}
    s_mul_i32 s67, s{W}, {NQW*1024}
    s_add_u32 s67, s67, tab_wave-L_pc+4096""")
    for k,x in enumerate(mv):
        o.append(x)
        if k<len(sc): o.append(sc[k])
    o=chunks(o,6)
    o.append(lines(f"""s_add_u32 s{TW_}, s{TAB}, s67
    s_addc_u32 s{TW_+1}, s{TAB+1}, 0
    v_and_b32 v21, 31, v0
    v_cmp_gt_u32 vcc, 16, v21
    v_lshrrev_b32 v22, 5, v0
    v_mov_b32 v23, 0x180
    v_cndmask_b32 v23, 64, v23, vcc"""))
    o.append(lines(f"""v_mul_u32_u24 v23, v22, v23
    v_lshl_add_u32 v{AV}, v21, 4, v23
    v_mul_u32_u24 v21, {QP}, v21
    v_add_u32 v{QR+1}, s66, v21
    v_lshl_add_u32 v{QR}, v22, 4, v{QR+1}
    v_mov_b32 v{AK}, v{L16}"""))
    return o
def p1_scal():
    return lines(f"""s_and_b32 s6, s2, 7
    s_lshl_b32 s6, s6, 1
    s_bfe_u32 s7, s2, 0x10003
    s_add_u32 s6, s6, s7
    s_lshr_b32 s7, s2, 4
    s_lshl_b32 s{PB}, s7, 4
    s_add_u32 s{PB}, s{PB}, s6
    s_mul_i32 s6, s6, 1280
    s_mul_i32 s7, s7, 80
    s_add_u32 s69, s6, s7
    s_lshl_b32 s{PB}, s{PB}, 3
    s_add_u32 s{PB}, s{PB}, s{W}
    s_mul_i32 s{PB}, s{PB}, 1280
    s_add_u32 s{PB}, s{PB}, {WS_U}
    s_mov_b32 s{XA_+2}, 2621440
    s_mov_b32 s{XA_+3}, 0x20000
    s_mul_i32 s6, s{W}, 5120
    s_add_u32 s6, s6, tab_p1-L_pc+1024
    s_add_u32 s66, s{TAB}, s6
    s_addc_u32 s67, s{TAB+1}, 0""")
def em(l):
    for x in l:
        if isinstance(x,list): em(x)
        else: a(x)
def wrap(d,s,inc,lim):
    a(f"s_add_u32 s{d}, s{s}, {inc}\ns_sub_u32 s7, s{d}, {lim}\ns_min_u32 s{d}, s{d}, s7")

def polls(base):
    return [f"s_mov_b32 s6, {base}",f"buffer_load_dword v{PF}, v{PA2}, {S(WS_)}, s6 offen sc1",f"buffer_load_dword v{PF+1}, v{PA2}, {S(WS_)}, s6 offen offset:{64*FS} sc1"]
def pollcheck(tag, base, n):
    a(f"""s_sub_u32 s6, s{W}, 5
    s_cmp_lt_u32 s6, 2
    s_cbranch_scc0 L_{tag}ok
    s_mov_b32 s{CNT}, 0
    s_mov_b32 s6, {base}
    s_waitcnt vmcnt({n})
    L_{tag}:
    v_cmp_ne_u32 vcc, s{NON}, v{PF}
    v_cmp_ne_u32 s[66:67], s{NON}, v{PF+1}
    s_add_u32 s{CNT}, s{CNT}, 1
    s_or_b64 vcc, vcc, s[66:67]
    s_cbranch_scc0 L_{tag}ok
    s_cmp_gt_u32 s{CNT}, {SPIN}
    s_cbranch_scc1 L_{tag}ok
    buffer_load_dword v{PF}, v{PA2}, {S(WS_)}, s6 offen sc1
    buffer_load_dword v{PF+1}, v{PA2}, {S(WS_)}, s6 offen offset:{64*FS} sc1
    s_waitcnt vmcnt(0)
    s_branch L_{tag}
    L_{tag}ok:""")

stamp('start')
a(f"""s_cmp_ge_u32 s2, 256
s_cbranch_scc1 L_end
s_load_dwordx8 s[48:55], s[0:1], 40
s_load_dwordx8 s[56:63], s[0:1], 72
s_load_dwordx2 s[24:25], s[0:1], 0
s_memrealtime s[68:69]
s_getpc_b64 s[{TAB}:{TAB+1}]
L_pc:
v_lshrrev_b32 v1, 6, v0
v_and_b32 v0, 63, v0
s_and_b32 s{QB}, s2, 7
v_readfirstlane_b32 s{W}, v1
s_lshl_b32 s{QB}, s{QB}, 2
v_lshlrev_b32 v{L16}, 4, v0
s_bfe_u32 s6, s2, 0x20003
v_lshrrev_b32 v21, 3, v0
s_add_u32 s{QB}, s{QB}, s6
v_lshrrev_b32 v23, 4, v0
s_lshr_b32 s{HG}, s2, 5
v_and_b32 v24, 7, v0
s_and_b32 s7, s2, 0xf8
s_add_u32 s7, s7, s{W}
s_lshl_b32 s7, s7, 7
v_lshl_add_u32 v22, v0, 15, s7
s_add_u32 s{R0}, s6, s{HG}
s_mov_b64 exec, {int(XP.get('pf',15))}
global_load_dword v255, v22, s[{TAB}:{TAB+1}]
s_mov_b64 exec, -1
v_xor_b32 v23, v23, v24
s_mul_i32 s7, s{R0}, 0x3334
v_mul_u32_u24 v21, 0x500, v21
s_lshr_b32 s7, s7, 16
v_lshl_add_u32 v3, v23, 4, v21
s_mul_i32 s7, s7, 5
v_mov_b32 v17, 0
s_sub_u32 s{R0}, s{R0}, s7
s_and_b32 s{J}, s{HG}, 3
s_lshl_b32 s7, s{J}, 1
s_cmp_lt_u32 s{HG}, 4
s_cselect_b32 s{RBA}, s{J}, s7
s_cselect_b32 s{RBD}, 4, 1
s_mov_b32 s{XB_+2}, 2621440
s_mov_b32 s{XB_+3}, 0x20000
s_mov_b32 s{WS_+2}, {WS_SZ}
s_mov_b32 s{WS_+3}, 0x20000
s_cmp_ge_u32 s{W}, 4
s_cbranch_scc1 L_loader
s_and_b32 s6, s{W}, 1
s_mul_i32 s6, s6, s{RBD}
s_add_u32 s6, s6, s{RBA}
s_and_b32 s7, s6, 1
s_lshl_b32 s7, s7, 6
v_xor_b32 v4, s7, v3
s_lshl_b32 s7, s{QB}, 3
s_add_u32 s7, s7, s6
s_mul_i32 s7, s7, 10240
v_add_u32 v4, s7, v4
s_lshr_b32 s36, s{W}, 1
s_lshl_b32 s35, s36, 3
s_add_u32 s35, s35, s6
s_lshl_b32 s35, s35, 10
s_add_u32 s35, s35, {XBL}
s_lshl_b32 s36, s36, 7
s_lshl_b32 s6, s{R0}, 8
s_add_u32 s36, s36, s6
s_lshl_b32 m0, s{W}, 10
s_mul_i32 s6, s{R0}, 5120
s_add_u32 s37, m0, s6
s_mov_b32 s{KV_+2}, 25600
s_mov_b32 s{KV_+3}, 0x20000
s_cmp_lt_u32 s{HG}, 4""")
stamp('f_ka0')
a(f"""s_waitcnt lgkmcnt(0)
s_cselect_b32 s{KV_}, s52, s54
s_cselect_b32 s{KV_+1}, s53, s55""")
for t in range(6):
    a(dmab(L16,KV_,'s37')); a("s_add_u32 m0, m0, 4096"); wrap(37,37,4096,25600)
    if t==0: a(f"s_mov_b32 s{XB_}, s48\ns_mov_b32 s{XB_+1}, s49")
a(f"""s_cmp_lg_u32 s{W}, 0
s_cbranch_scc1 L_nw0
{dmab(L16,KV_,'s37')}
L_nw0:
s_mov_b32 m0, s35
s_nop 0""")
for t in range(5):
    a(dmab(4,XB_,'s36'))
    if t<4: a("s_add_u32 m0, m0, 16384"); wrap(36,36,256,1280)
stamp('f_kvi')
cpy=f"""s_mov_b32 s{WO_}, s56
s_mov_b32 s{WO_+1}, s57
s_mov_b32 s{OUT_}, s58
s_mov_b32 s{OUT_+1}, s59
s_mov_b32 s{DBG}, s60
s_mov_b32 s{DBG+1}, s61
s_mov_b32 s{WS_}, s62
s_mov_b32 s{WS_+1}, s63"""
a(cpy)
a(f"""v_and_b32 v21, 15, v0
v_lshrrev_b32 v22, 4, v0
s_and_b32 s6, s{W}, 1
s_lshl_b32 s7, s6, 12
s_add_u32 s7, s7, {XBL}
v_lshrrev_b32 v24, 1, v21
v_xor_b32 v23, v22, v24
v_lshl_add_u32 v24, v21, 7, s7
v_lshl_add_u32 v{XR}, v23, 4, v24
v_xor_b32 v7, 64, v{XR}
s_lshr_b32 s66, s{W}, 1
s_mul_i32 s66, s66, 96
s_add_u32 s7, s66, {RB}
v_lshrrev_b32 v23, 2, v0
v_mul_u32_u24 v23, 320, v23
v_and_b32 v25, 3, v0
v_lshl_add_u32 v23, v25, 3, v23
v_and_b32 v24, 1, v22
v_mul_u32_u24 v24, 160, v24
v_add3_u32 v{WR}, v23, v24, s7
s_add_u32 s7, s7, 160
v_sub_u32 v23, v23, v24
v_add_u32 v{WR+1}, s7, v23
s_mul_i32 s7, s6, {32*QP}
s_add_u32 s7, s7, s66
s_add_u32 s7, s7, {QSL}
v_mul_u32_u24 v23, {QP}, v21
v_lshl_add_u32 v23, v22, 3, v23
v_add_u32 v{QW}, s7, v23
s_mov_b32 s{FLG}, 1
s_cmp_lt_u32 s{W}, 2
s_cbranch_scc1 L_nokv""")
a(f"""s_mov_b32 s{FLG}, 0
v_lshrrev_b32 v26, 3, v21
v_and_b32 v27, 7, v21
v_mul_u32_u24 v23, s{RBD}, v26
v_add_u32 v23, s{RBA}, v23
v_and_b32 v24, 1, v23
v_lshlrev_b32 v23, 10, v23
v_lshl_add_u32 v23, v24, 6, v23
v_lshl_add_u32 v23, v27, 7, v23
v_lshrrev_b32 v24, 1, v27
v_xor_b32 v24, v24, v22
v_lshl_add_u32 v23, v24, 4, v23
v_add_u32 v18, {XBL}, v23
v_xor_b32 v19, 64, v18
v_bfe_u32 v23, v0, 2, 2
v_lshl_add_u32 v23, v22, 3, v23
v_mul_u32_u24 v23, 40, v23
s_cmp_eq_u32 s6, 0
s_cselect_b64 vcc, -1, 0
v_cndmask_b32 v25, 4, v25, vcc
v_lshl_add_u32 v20, v25, 3, v23
s_lshr_b32 s66, s{QB}, 1
s_mul_i32 s66, s66, 10240
s_and_b32 s67, s{QB}, 1
v_lshrrev_b32 v24, 1, v22
v_and_b32 v25, 1, v22
s_cmp_ge_u32 s{HG}, 4
s_cbranch_scc1 L_kvV""")
def kvgemm(isK):
    a("s_waitcnt vmcnt(0)\ns_barrier")
    stamp('kvland')
    NB=5
    def rd(st):
        f=FR+8*(st%NB)
        if st==16: a("v_add_u32 v18, 0x10000, v18\nv_add_u32 v19, 0x10000, v19")
        a(f"""ds_read_b128 v[{f}:{f+3}], v{18+st%2} offset:{(8192*(st//2))&0xffff}
        ds_read_b64_tr_b16 v[{f+4}:{f+5}], v20 offset:{1280*st}
        ds_read_b64_tr_b16 v[{f+6}:{f+7}], v20 offset:{1280*st+160}""")
    for st in range(NB-1): rd(st)
    for st in range(20):
        if st+NB-1<20: rd(st+NB-1)
        f=FR+8*(st%NB); A,B=(f+4,f) if isK else (f,f+4)
        a(f"s_waitcnt lgkmcnt({3*min(NB-1,19-st)})\nv_mfma_f32_16x16x32_bf16 v[28:31], v[{A}:{A+3}], v[{B}:{B+3}], {'0' if st==0 else 'v[28:31]'}")
a(f"""v_lshlrev_b32 v27, 4, v27
v_lshl_add_u32 v23, v26, 11, v27
v_lshl_add_u32 v23, v24, 9, v23
v_lshl_add_u32 v23, v25, 3, v23
v_lshl_add_u32 v27, v26, 3, v27
v_cndmask_b32 v15, v27, v23, vcc
s_lshl_b32 s7, s67, 9
s_add_u32 s7, s7, 4096
s_lshl_b32 s67, s67, 10
s_cmp_eq_u32 s6, 0
s_cselect_b32 s67, s67, s7
s_cselect_b32 s64, -1, 0xffff
s_cselect_b32 s65, -1, 0
s_lshl_b32 s7, s{J}, 7
s_add_u32 s66, s66, s7
s_add_u32 s66, s66, s67""")
kvgemm(True)
a(f"""s_branch L_kvW
L_kvV:
s_cmp_eq_u32 s6, 0
s_cselect_b32 s7, 0x180, 64
s_cselect_b32 s64, -1, 0x000f000f
s_mov_b32 s65, s64
v_mul_u32_u24 v24, s7, v24
v_lshl_add_u32 v24, v21, 4, v24
v_lshl_add_u32 v15, v25, 3, v24
s_and_b32 s7, s{J}, 2
s_add_u32 s67, s67, s7
s_lshl_b32 s67, s67, 1
s_and_b32 s7, s{J}, 1
s_add_u32 s67, s67, s7
s_mul_i32 s67, s67, 640
s_lshl_b32 s7, s6, 8
s_add_u32 s66, s66, s7
s_add_u32 s66, s66, s67
s_add_u32 s66, s66, 5120""")
kvgemm(False)
a(f"""L_kvW:
global_load_dword v16, v17, s[{DBG}:{DBG+1}] sc1
s_nop 6
v_cvt_pk_bf16_f32 v28, v28, v29
v_cvt_pk_bf16_f32 v29, v30, v31
s_mov_b64 exec, s[64:65]
buffer_store_dwordx2 v[28:29], v15, {S(WS_)}, s66 offen sc1
s_mov_b64 exec, -1
s_branch L_kvE
L_nokv:""")
a("s_waitcnt vmcnt(0)\ns_barrier")
stamp('kvland')
a("L_kvE:")
stamp('kvpub')
def qmm(i,k,ct,qt):
    f=FR+40*(i%2)+20*k; d=ACC+8*ct+4*qt
    c='0' if (i==0 and k==0) else f"v[{d}:{d+3}]"
    return f"v_mfma_f32_16x16x32_bf16 v[{d}:{d+3}], v[{f+8+4*ct}:{f+11+4*ct}], v[{f+4*qt}:{f+4*qt+3}], {c}"
def qrx(i,k,qt):
    f=FR+40*(i%2)+20*k; return f"ds_read_b128 v[{f+4*qt}:{f+4*qt+3}], v{[XR,7][k]} offset:{((8192*i)&0xffff)+2048*qt}"
def qrw(i,k,ct,u):
    f=FR+40*(i%2)+20*k+8+4*ct+2*u; return f"ds_read_b64_tr_b16 v[{f}:{f+1}], v{WR+u} offset:{(i%5)*10240+5120*k+32*ct}"
def weave(R,M):
    n=max(len(M),1); k=0
    for j in range(n):
        t=(len(R)*(j+1))//n
        em(R[k:t]); k=t
        if M: a(M[j])
fill=pre_m()+att_init()+[p1_scal()[:10],p1_scal()[10:]]
quota=[round(len(fill)*(i+1)/9) for i in range(9)]; done=0
FORCE=int(XP.get('force',5))
for i in range(10):
    a("s_barrier")
    if i in (0,3,6,9): stamp(f'b{i}')
    if i==FORCE+1: a(f"v_mov_b32 v18, {NONL}\nds_read_b32 v16, v18")
    if i==FORCE+2: a(f"v_readfirstlane_b32 s{NON}, v16")
    R=[x for k in range(2) for x in [qrx(i,k,0),qrx(i,k,1)]+[qrw(i,k,ct,u) for ct in range(2) for u in range(2)]]
    M=[qmm(i-1,k,ct,qt) for k in range(2) for ct in range(2) for qt in range(2)] if i>0 else []
    weave(R,M)
    a(f"s_cmp_ge_u32 s{W}, 2\ns_cbranch_scc1 L_c{i}")
    weave([qrw(i,k,2,u) for k in range(2) for u in range(2)],[qmm(i-1,k,2,qt) for k in range(2) for qt in range(2)] if i>0 else [])
    a(f"L_c{i}:")
    if i==7: a(f"v_add_u32 v{XR}, 0x10000, v{XR}\nv_add_u32 v7, 0x10000, v7")
    if i<9: em(fill[done:quota[i]]); done=quota[i]
    if i<=FORCE:
        if i<FORCE: a(f"s_getreg_b32 s68, hwreg(HW_REG_IB_STS, 0, 4)\ns_or_b32 s68, s68, s{FLG}")
        else: a(f"s_cmp_lg_u32 s{FLG}, 0")
        a(f"s_cbranch_scc1 L_nf{i}\ns_call_b64 s[{RET}:{RET+1}], L_flag1\nL_nf{i}:")
    a("s_waitcnt lgkmcnt(0)")
def qst(ct):
    for qt in range(2):
        d=ACC+8*ct+4*qt
        a(f"""v_pk_mul_f32 v[{d}:{d+1}], v[{d}:{d+1}], s[6:7]
        v_pk_mul_f32 v[{d+2}:{d+3}], v[{d+2}:{d+3}], s[6:7]
        v_cvt_pk_bf16_f32 v{d}, v{d}, v{d+1}
        v_cvt_pk_bf16_f32 v{d+1}, v{d+2}, v{d+3}
        ds_write_b64 v{QW}, v[{d}:{d+1}] offset:{16*QP*qt+32*ct}""")
a(f"s_mov_b32 s6, {fh(CSCALE)}\ns_mov_b32 s7, {fh(CSCALE)}")
em([qmm(9,k,ct,qt) for ct in range(2) for k in range(2) for qt in range(2)])
a(f"s_cmp_ge_u32 s{W}, 2\ns_cbranch_scc1 L_c10")
em([qmm(9,k,2,qt) for k in range(2) for qt in range(2)])
a(f"L_c10:\nv_mov_b32 v{IDX}, 0xdddddddd")
qst(0); qst(1)
a("s_cbranch_scc1 L_c11")
qst(2)
a("L_c11:\ns_waitcnt lgkmcnt(0)")
stamp('f_qst')
a("s_branch L_att")
a(f"""L_flag1:
s_mov_b32 s{CNT}, 0
L_non:
s_waitcnt vmcnt(0)
v_readfirstlane_b32 s{NON}, v16
s_add_u32 s{CNT}, s{CNT}, 1
s_cmp_gt_u32 s{CNT}, {SPIN}
s_cbranch_scc1 L_gotnon
s_cmp_lg_u32 s{NON}, 0
s_cbranch_scc1 L_gotnon
global_load_dword v16, v17, s[{DBG}:{DBG+1}] sc1
s_branch L_non
L_gotnon:
s_lshl_b32 s68, s{QB}, 3
s_add_u32 s68, s68, s{HG}
s_mul_i32 s68, s68, {FS//4}
s_add_u32 s68, s68, s{W}
s_lshl_b32 s68, s68, 2
s_add_u32 s68, s68, {WS_F1-8}
v_mov_b32 v18, {NONL}
s_mov_b64 exec, 1
buffer_store_dword v16, v17, {S(WS_)}, s68 offen sc1
ds_write_b32 v18, v16
s_mov_b64 exec, -1
s_mov_b32 s{FLG}, 1""")
stamp('f_flag')
a(f"s_setpc_b64 s[{RET}:{RET+1}]")

a("L_loader:")
ST=[dict(srd=36,v=5,G=16,GS=17,GL=18,L=19,LD=30,LS=31,LW=34),dict(srd=12,v=7,G=26,GS=27,GL=35,L=44,LD=64,LS=66,LW=67)]
for k,st in enumerate(ST):
    a(f"""s_lshl_b32 s47, s{W}, 1
    s_sub_u32 s47, s47, {8-k}
    s_mov_b32 s{st['srd']+3}, 0x20000
    s_cmp_ge_u32 s47, 5
    s_cbranch_scc1 L_sx{k}
    s_lshl_b32 s6, s47, 6
    v_add_u32 v21, s6, v0
    v_mul_u32_u24 v23, 0x667, v21
    v_lshrrev_b32 v23, 14, v23
    s_mov_b32 s{st['srd']+2}, 819200
    v_mul_u32_u24 v24, 10, v23
    s_mov_b32 s{st['GS']}, {64*1280}
    v_sub_u32 v24, v21, v24
    s_lshl_b32 s{st['L']}, s47, 10
    v_lshrrev_b32 v25, 3, v23
    s_add_u32 s{st['L']}, s{st['L']}, {RB}
    v_xor_b32 v26, v25, v23
    s_mov_b32 s{st['LD']}, 5120
    v_and_b32 v26, 1, v26
    s_mov_b32 s{st['LS']}, 10240
    v_lshl_add_u32 v25, v25, 1, v26
    s_mov_b32 s{st['LW']}, 51200
    v_bfe_u32 v26, v23, 1, 2
    s_mul_i32 s6, s{HG}, 160
    v_lshl_add_u32 v25, v25, 2, v26
    v_mul_u32_u24 v25, 0x500, v25
    v_lshl_add_u32 v24, v24, 4, s6
    v_add_u32 v{st['v']}, v24, v25
    v_add_u32 v{st['v']+1}, {32*1280}, v{st['v']}
    s_branch L_se{k}
    L_sx{k}:
    s_add_u32 s6, s47, s{J}
    s_and_b32 s6, s6, 3
    s_lshr_b32 s7, s{HG}, 2
    s_lshl_b32 s6, s6, s7
    s_lshl_b32 s{st['L']}, s6, 10
    s_add_u32 s{st['L']}, s{st['L']}, {XBL}
    s_lshl_b32 s{st['LD']}, s{RBD}, 10
    s_and_b32 s47, s6, 1
    s_lshl_b32 s47, s47, 6
    v_xor_b32 v21, s47, v3
    s_lshl_b32 s7, s7, 6
    v_xor_b32 v22, s7, v21
    s_lshl_b32 s7, s{QB}, 3
    s_add_u32 s6, s6, s7
    s_mul_i32 s7, s6, 10240
    v_add_u32 v{st['v']}, s7, v21
    s_add_u32 s6, s6, s{RBD}
    s_mul_i32 s7, s6, 10240
    v_add_u32 v{st['v']+1}, s7, v22
    s_mov_b32 s{st['srd']+2}, 2621440
    s_mov_b32 s{st['GS']}, 128
    s_mov_b32 s{st['LS']}, 8192
    s_mov_b32 s{st['LW']}, 0
    L_se{k}:
    s_lshl_b32 s6, s{R0}, 1
    s_mul_i32 s{st['G']}, s6, s{st['GS']}
    s_mul_i32 s{st['GL']}, s{st['GS']}, 10""")
a(f"""s_and_b32 s6, s{W}, 3
s_lshl_b32 s6, s6, 6
v_add_u32 v21, s6, v0
v_mul_u32_u24 v47, {FS}, v0
v_mul_u32_u24 v48, {FS}, v21""")
stamp('f_ka0')
a(f"""s_waitcnt lgkmcnt(0)
s_cmp_ge_u32 s{W}, 7
s_cselect_b32 s36, s48, s50
s_cselect_b32 s37, s49, s51
s_cmp_ge_u32 s{W}, 6
s_cselect_b32 s12, s48, s50
s_cselect_b32 s13, s49, s51""")
a(cpy)
a(f"""s_lshl_b32 s6, s2, 3
s_add_u32 s6, s6, s{W}
s_cmp_eq_u32 s6, 7
s_cbranch_scc0 L_nonon
s_or_b32 s68, s68, 1
v_mov_b32 v23, s68
s_mov_b64 exec, 1
global_store_dword v17, v23, s[{DBG}:{DBG+1}] sc1
s_mov_b64 exec, -1
L_nonon:""")
def issue(i):
    for st in ST:
        if i==5: a(f"s_sub_u32 s{st['L']}, s{st['L']}, s{st['LW']}")
        a(f"""s_mov_b32 m0, s{st['L']}
        s_add_u32 s{st['L']}, s{st['L']}, s{st['LS']}
        {dmab(st['v'],st['srd'],'s%d'%st['G'])}
        s_add_u32 m0, m0, s{st['LD']}
        s_add_u32 s6, s{st['G']}, s{st['GS']}
        {dmab(st['v']+1,st['srd'],'s%d'%st['G'])}
        s_cmp_eq_u32 s6, s{st['GL']}
        s_cselect_b32 s{st['G']}, 0, s6""")
KB=int(XP.get('kb',2))
for i in range(KB): issue(i)
stamp('f_kvi')
a("s_barrier")
for i in range(KB,3): issue(i)
POLLI=int(XP.get('polli',8))
fillL=pre_m()+att_init()+[p1_scal()]
def lpolls():
    a(f"buffer_load_dwordx2 v[50:51], v47, {S(WS_)}, s68 offen sc1\nbuffer_load_dwordx2 v[52:53], v48, {S(WS_)}, s68 offen sc1")
for i in range(10):
    n=4*min(2,9-i)+(2 if i>POLLI else 0)
    a(f"s_waitcnt vmcnt({n})\ns_barrier")
    if i<7: issue(i+3)
    if i==7: a(f"v_mov_b32 v18, {NONL}\nds_read_b32 v16, v18\ns_mov_b32 s68, {WS_F1}")
    if i==POLLI: lpolls()
    if i==7: em(fillL[:5])
    if i==8: em(fillL[5:9])
fillL=fillL[9:]
a(f"""s_waitcnt lgkmcnt(0)
v_readfirstlane_b32 s{NON}, v16
v_mov_b32 v{IDX}, 0xdddddddd
s_mov_b32 s{CNT}, 0
s_and_b32 s6, s{W}, 3
s_lshl_b32 m0, s6, 10""")
if POLLI>9: lpolls()
a(f"""L_pk:
s_waitcnt vmcnt(0)
v_xor_b32 v50, s{NON}, v50
v_xor_b32 v51, s{NON}, v51
v_xor_b32 v52, s{NON}, v52
v_xor_b32 v53, s{NON}, v53
v_or3_b32 v50, v50, v51, v52
v_or_b32 v50, v50, v53
v_cmp_ne_u32 vcc, 0, v50
s_add_u32 s{CNT}, s{CNT}, 1
s_cmp_gt_u32 s{CNT}, {SPIN}
s_cbranch_scc1 L_pkok
s_cbranch_vccz L_pkok""")
lpolls()
a("s_branch L_pk\nL_pkok:")
dma=f"buffer_load_dwordx4 v{L16}, {S(WS_)}, m0 offen sc1 lds"
bump="s_add_u32 m0, m0, 8192"
stamp('f_qst')
for k in range(6): a(dma+"\ns_add_u32 m0, m0, 4096\ns_nop 0")
em(fillL)
stamp('f_flag')
a("s_waitcnt vmcnt(0)")
stamp('f_p1')
a(f"""s_waitcnt vmcnt(0)
L_att:
s_lshl_b32 m0, s{W}, 10
s_add_u32 m0, m0, 24576
s_setprio 3
s_barrier""")
stamp('att')
def koff(g,t): return (g>>1)*10240+(2*(g&1)+t)*1024
def k4off(g): return (g>>1)*10240+4096
def voff(g,u): return (g>>1)*10240+5120+(4*(g&1)+u)*640
on=f"s_mov_b64 exec, s[{VM}:{VM+1}]"; off="s_mov_b64 exec, -1"
def M16(d,k,c): return f"v_mfma_f32_32x32x16_bf16 v[{d}:{d+15}], v[{k}:{k+3}], v[{Q16}:{Q16+3}], {c}"
def M4(d,k): return f"v_mfma_f32_32x32x4_2b_bf16 v[{d}:{d+31}], v[{k}:{k+1}], v[{Q4}:{Q4+1}], v[{d}:{d+31}]"
def SM(v,x): return f"v_smfmac_f32_32x32x32_bf16 v[{O}:{O+15}], v[{v}:{v+3}], v[{x}:{x+7}], v{IDX}"
CMr=f"v[{CM}:{CM+15}]"
a(f"""ds_read_b64 v[{Q16}:{Q16+1}], v{QR}
ds_read_b64 v[{Q16+2}:{Q16+3}], v{QR} offset:8
ds_read_b64 v[{Q4}:{Q4+1}], v{QR+1} offset:32
ds_read_b128 v[{KF[0]}:{KF[0]+3}], v{AK} offset:{koff(0,0)}
ds_read_b128 v[{KF[0]+4}:{KF[0]+7}], v{AK} offset:{koff(0,1)}
ds_read_b128 v[{K4[0]}:{K4[0]+3}], v{AK} offset:{k4off(0)}
ds_read_b128 v[{KF[1]}:{KF[1]+3}], v{AK} offset:{koff(1,0)}
ds_read_b128 v[{KF[1]+4}:{KF[1]+7}], v{AK} offset:{koff(1,1)}""")
X=SS[0]
nl=[0]
def role04(ops):
    nl[0]+=1
    return [f"s_cmp_ge_u32 s{W}, 5",f"s_cbranch_scc1 L_r{nl[0]}"]+ops+[f"L_r{nl[0]}:"]
a(f"""s_waitcnt lgkmcnt(4)
{M16(X,KF[0],'0')}
s_waitcnt lgkmcnt(3)
{M16(X+16,KF[0]+4,'0')}
{on}""")
for u in range(4): a(f"ds_read_b128 v[{VF[0]+4*u}:{VF[0]+4*u+3}], v{AV} offset:{voff(0,u)}")
a(f"""{off}
s_waitcnt lgkmcnt(6)
s_nop 2
{M4(X,K4[0])}
{dma}
{bump}
s_nop 0
{dma}
{bump}
s_nop 14""")
a(f"v_max3_f32 v{T+2}, v{X}, v{X+1}, v{X+2}\nv_max3_f32 v{T+3}, v{X+3}, v{X+4}, v{X+5}")
for i in range(6,32,4):
    a(f"v_max3_f32 v{T+2}, v{T+2}, v{X+i}, v{X+i+1}")
    if i+2<32: a(f"v_max3_f32 v{T+3}, v{T+3}, v{X+i+2}, v{X+i+3}")
a(f"""v_max_f32 v{T+2}, v{T+2}, v{T+3}
v_mov_b32 v{T+3}, v{T+2}
s_nop 1
v_permlane32_swap_b32 v{T+2}, v{T+3}
v_max_f32 v{T+2}, v{T+2}, v{T+3}
v_sub_f32 v{CM}, {fh(-OFFS)}, v{T+2}
v_sub_f32 v{CM+1}, {fh(-OFFS)}, v{T+2}""")
for i in range(1,8): a(f"v_mov_b64 v[{CM+2*i}:{CM+2*i+1}], v[{CM}:{CM+1}]")
a(f"s_waitcnt lgkmcnt(0)\ns_nop 0\n{M16(SS[1],KF[1],CMr)}")
for i in range(16): a(f"v_pk_add_f32 v[{X+2*i}:{X+2*i+1}], v[{X+2*i}:{X+2*i+1}], v[{CM}:{CM+1}]")
pos=dict(smp=2,mB=5,s0=10,mC=13,s1=21,s2=26,mA=29)
order=sorted(pos,key=lambda k:pos[k])
kbase=0; vbase=0
bg={g:{k:[] for k in pos} for g in range(32)}
at={g:{} for g in range(32)}
sync={}
KVD=[dma,bump]
def tw(q,r,n=4):
    op={4:'dwordx4',1:'dword'}[n]
    return f"global_load_{op} {vr(r,n)}, v{L16}, s[{TW_}:{TW_+1}] offset:{1024*q-twb[0]}"
twb=[4096]
def twadv(n):
    twb[0]+=n
    return [f"s_add_u32 s{TW_}, s{TW_}, {n}",f"s_addc_u32 s{TW_+1}, s{TW_+1}, 0"]
for k in ['mB','s2','mA']: bg[0][k]+=KVD
for g in range(1,7):
    bg[g]['mB']+=KVD; bg[g]['mA']+=KVD
bg[0]['mC']+=[tw(0,WOA)]
sync[2]=["s_waitcnt vmcnt(2)","s_barrier"]
bg[2]['mC']+=role04([f"s_mov_b32 s6, m0",f"s_lshl_b32 m0, s{W}, 10",f"s_add_u32 s7, s69, {64*16*1280}",dmab(FA,XA_,'s69'),"s_add_u32 m0, m0, 5120","s_nop 0",dmab(FA,XA_,'s7'),"s_mov_b32 m0, s6"])
for q,r_ in enumerate([FT,FT+4,FT+8,FT+12,P1A]): bg[3+q]['s2']+=[f"global_load_dwordx4 v[{r_}:{r_+3}], v{L16}, s[66:67] offset:{1024*q-1024}"]
for j,ops in enumerate([[tw(1,WAD)],[tw(2,UR)],[tw(3,244)],[tw(4,VR)]]): bg[3+j]['mC']+=ops
sync[10]=["s_waitcnt vmcnt(0)","s_barrier"]
for s_ in range(4):
    f=PFR+12*(s_&1)
    for Tt in range(3):
        for u in range(2):
            bg[10+s_][['mC','s2','mA'][Tt]].append(f"ds_read_b64_tr_b16 v[{f+4*Tt+2*u}:{f+4*Tt+2*u+1}], v{P1A+(Tt==2)} offset:{(32*s_+u)*80+(32 if Tt==1 else 0)}")
        c='0' if s_==0 else f"v[{PD[Tt]}:{PD[Tt]+3}]"
        at[11+s_][[8,24,32][Tt]]=[f"v_mfma_f32_16x16x32_bf16 v[{PD[Tt]}:{PD[Tt]+3}], v[{f+4*Tt}:{f+4*Tt+3}], v[{FT+4*s_}:{FT+3+4*s_}], {c}"]
at[15][8]=[f"v_cvt_pk_bf16_f32 v{PD[Tt]+k}, v{PD[Tt]+2*k}, v{PD[Tt]+2*k+1}" for Tt in range(3) for k in range(2)]
bg[15]['mC']+=[f"ds_write_b64 v{P1A+2}, v[{PD[0]}:{PD[0]+1}]",f"ds_write_b64 v{P1A+2}, v[{PD[1]}:{PD[1]+1}] offset:32"]
bg[15]['s2']+=["s_mov_b32 exec_hi, 0",f"ds_write_b64 v{P1A+2}, v[{PD[2]}:{PD[2]+1}] offset:64","s_mov_b32 exec_hi, -1"]
bg[15]['mA']+=[f"ds_read_b128 v[{PFR}:{PFR+3}], v{P1A+3}",f"ds_read_b128 v[{PFR+4}:{PFR+7}], v{P1A+3} offset:1024"]
bg[16]['mB']+=[f"buffer_store_dwordx4 v[{PFR}:{PFR+3}], v{L16}, {S(WS_)}, s{PB} offen sc1"]
bg[16]['mC']+=["s_mov_b64 exec, 0xffff",f"buffer_store_dwordx4 v[{PFR+4}:{PFR+7}], v{L16}, {S(WS_)}, s{PB} offen offset:1024 sc1",off]
bg[16]['s2']+=[f"s_add_u32 s{RET}, s{TAB}, tab_hid-L_pc",f"s_addc_u32 s{RET+1}, s{TAB+1}, 0"]
for qd in range(13):
    ops=[f"global_load_dwordx4 v[{TB+4*qd}:{TB+4*qd+3}], v{L16}, s[{RET}:{RET+1}] offset:{1024*(qd%4)}"]
    if qd%4==3: ops+=[f"s_add_u32 s{RET}, s{RET}, 4096",f"s_addc_u32 s{RET+1}, s{RET+1}, 0"]
    bg[20+qd//2][['mC','s2'][qd%2]]+=ops
bg[19]['mA']+=[f"s_lshl_b32 m0, s{W}, 10",f"s_mul_i32 s68, s{HG}, 160"]
sync[20]=["s_waitcnt vmcnt(0)","s_barrier",f"s_cmp_eq_u32 s{W}, 7","s_cbranch_scc0 L_nofl2",
    f"s_mul_i32 s6, s2, {FS}",f"s_add_u32 s6, s6, {WS_F2}",f"v_mov_b32 v{PF}, s{NON}","s_mov_b64 exec, 1",
    f"buffer_store_dword v{PF}, v{L16}, {S(WS_)}, s6 offen sc1",off,"L_nofl2:"]
wo1=[dmab(WOA,WO_,'s68'),"s_add_u32 m0, m0, 5120",f"s_add_u32 s68, s68, {32*1280}"]
WCL=int(XP.get('wcl',2))
for n in range(20//WCL): bg[20+(n*WCL*7)//20][['mB','mA'][n%2]]+=role04(wo1*WCL)
bg[26]['s2']+=[f"s_sub_u32 s6, s{W}, 5","s_cmp_lt_u32 s6, 2","s_cbranch_scc0 L_np2"]+polls(WS_F2)+["L_np2:"]
bg[27]['mA']+=[f"s_mul_i32 s68, s{UU}, 160",f"s_add_u32 s68, s68, {WS_U}"]
sync[28]=["POLL2","s_barrier"]
u1=[dmab(UA,WS_,'s68',0,'sc1'),"s_add_u32 m0, m0, 5120",f"s_add_u32 s68, s68, {32*10240}"]
for n in range(4): bg[28+n//2][['mB','s2'][n%2]]+=role04(u1+u1)
bg[17]['s2']+=lines(f"""s_lshl_b32 s6, s{QB}, 1
s_and_b32 s7, s{W}, 1
s_add_u32 s6, s6, s7
s_mul_i32 s{SA}, s6, 40960
s_lshl_b32 s7, s{HG}, 2
s_lshr_b32 s6, s{W}, 1
s_add_u32 s7, s7, s6""")
bg[17]['mA']+=lines(f"""s_add_u32 s{SA}, s{SA}, {WS_O}
s_lshl_b32 s{SB}, s7, 8
s_lshl_b32 s7, s7, 10
s_add_u32 s{SB}, s{SB}, s{SA}
s_add_u32 s{SA}, s{SA}, s7
s_add_u32 s{SB}, s{SB}, 32768""")
bg[31]['s1']+=lines(f"""s_lshr_b32 s6, s{W}, 2
s_mul_i32 s7, s6, 40960
s_lshl_b32 s68, s{QB}, 1
s_add_u32 s6, s6, s68
s_mul_i32 s68, s6, 40960
s_and_b32 s6, s{W}, 3""")
bg[31]['s2']+=lines(f"""s_lshl_b32 s69, s6, 5
s_lshl_b32 s6, s6, 10
s_add_u32 s7, s7, s6
s_add_u32 m0, s7, {OL}
s_add_u32 s68, s68, s6
s_add_u32 s68, s68, {WS_O}
s_sub_u32 s69, 128, s69""")
PA=11
at[17][8]=[f"v_and_b32 v{PA}, 7, v0",f"v_lshlrev_b32 v{PA}, 7, v{PA}"]
def touchO(r): return ["s_mov_b64 exec, 0xff",f"buffer_load_dword v{r}, v{PA}, {S(WS_)}, s{SA} offen sc1","s_mov_b64 exec, 3",f"buffer_load_dword v{r}, v{PA}, {S(WS_)}, s{SB} offen sc1",off]
if 'pto' in XP: bg[27]['mB']+=touchO(243)
if 'ptout' in XP:
    bg[27]['mC']+=[f"s_lshl_b32 s6, s{W}, 7",f"s_add_u32 s6, s6, s{T0}","s_mul_i32 s6, s6, 2560",f"s_mul_i32 s7, s{QB}, {64*2560}","s_mov_b64 exec, 1",
        f"buffer_load_dword v243, v{L16}, {S(OUT_)}, s6 offen sc1",f"buffer_load_dword v243, v{L16}, {S(OUT_)}, s7 offen sc1",off]
if 'ptwo' in XP:
    bg[12]['mB']+=[f"s_and_b32 s6, s2, 0xf8",f"s_add_u32 s6, s6, s{W}","s_mul_i32 s6, s6, 3200",f"v_lshlrev_b32 v243, 7, v0","s_mov_b64 exec, 0x1ffffff",
        f"buffer_load_dword v243, v243, {S(WO_)}, s6 offen",off]
PR={1:2, 2:3,7:2,9:1, 10:3,16:2,18:1,19:0, 20:3,25:2,27:1, 28:3,30:2,31:1}
for g in range(32):
    X=SS[g%2]; Y=SS[(g+1)%2]; g1=g+1; g2=g+2
    m={}
    m['mA']=M16(X,KF[g2%2],CMr) if g2<32 else None
    m['mB']=M16(Y+16,KF[g1%2]+4,CMr) if g1<32 else None
    m['mC']=M4(Y,K4[(g1//2)%2]+2*(g1%2)) if g1<32 else None
    for i in range(3): m[f's{i}']=SM(VF[g%2]+4*i,X+8*i)
    m['smp']=SM(VF[(g-1)%2]+12,Y+24) if g>0 else "s_nop 0"
    aft={k:[] for k in pos}
    pre=[]
    if g2<32 and k4off(g2)-kbase>=61440:
        pre.append(f"v_add_u32 v{AK}, 61440, v{AK}"); kbase+=61440
    if g1<32 and voff(g1,3)-vbase>=61440:
        pre.append(f"v_add_u32 v{AV}, 61440, v{AV}"); vbase+=61440
    if g in sync: aft['smp']+=sync[g]
    if g2<32:
        aft['smp'].append(f"ds_read_b128 v[{KF[g2%2]}:{KF[g2%2]+3}], v{AK} offset:{koff(g2,0)-kbase}")
        aft['mB']+=["s_waitcnt lgkmcnt(1)", f"ds_read_b128 v[{KF[g2%2]+4}:{KF[g2%2]+7}], v{AK} offset:{koff(g2,1)-kbase}"]
        if g2%2==0: aft['mC'].append(f"ds_read_b128 v[{K4[(g2//2)%2]}:{K4[(g2//2)%2]+3}], v{AK} offset:{k4off(g2)-kbase}")
    else:
        aft['smp'].append("s_waitcnt lgkmcnt(0)")
    if g1<32:
        b=VF[g1%2]
        vv=[f"ds_read_b128 v[{b+4*i}:{b+4*i+3}], v{AV} offset:{voff(g1,i)-vbase}" for i in range(4)]
        aft['s0']+=[on,vv[0],vv[1],off]; aft['s1']+=[on,vv[2],vv[3],off]
        aft['s2'].append("s_waitcnt lgkmcnt(2)")
    for k in pos: aft[k]+=bg[g][k]
    if g in PR: aft['mB' if g in sync else 'smp'].append(f"s_setprio {PR[g]}")
    ins={i:[] for i in range(33)}
    ins[0]+=pre
    for k in order:
        if m[k]: ins[pos[k]].append(m[k])
        ins[pos[k]]+=aft[k]
    for p_,ops in at[g].items(): ins[p_]+=ops
    if g in (0,3,10,11,20,21,28,29): stamp(f'g_{g}')
    for i in range(33):
        for x in ins[i]:
            if x=="POLL2": pollcheck('pu',WS_F2,0); continue
            if 'notab' in XP and g>=11 and x.startswith('global_load') and 's[66:67]' in x: continue
            if 'nowo' in XP and g>=20 and x.startswith('buffer_load_dwordx4'): continue
            if 'nop1' in XP and g<10 and (x.startswith('ds_read_b64_tr') or x.startswith('v_mfma_f32_16x16') or x.startswith('v_cvt') or x.startswith('ds_write') or x.startswith('buffer_store_dwordx4') or (x.startswith('global_load') and 'v[1' in x)): continue
            if 'nobar' in XP and g>=20 and x=='s_barrier': continue
            if 'noprio' in XP and x.startswith('s_setprio'): continue
            a(x)
        if i<32: a(f"v_exp_f32 v{X+i}, v{X+i}")
a("s_nop 1\n"+SM(VF[1]+12,SS[1]+24))
a(f"s_setprio 2\ns_mov_b32 s{SLOW}, 0\nL_check:")
stamp('loopend')
a(f"""s_mov_b32 s6, 0x7f800000
s_mov_b32 s7, {fh(2.0**-(OFFS+14))}
s_nop 7
v_rcp_f32 v{T+4}, v{O+12}
v_max3_f32 v{T+2}, |v{O}|, |v{O+1}|, |v{O+2}|""")
def nrm(i): a(f"v_pk_mul_f32 v[{44+2*i}:{45+2*i}], v[{O+2*i}:{O+2*i+1}], v[{T+4}:{T+5}] op_sel_hi:[1,0]")
for i in range(4): nrm(i)
for i in range(4): a(f"v_cvt_pk_bf16_f32 v{84+i}, v{44+2*i}, v{45+2*i}")
a(f"buffer_store_dwordx4 v[84:87], v{L16}, {S(WS_)}, s{SA} offen sc1")
for i in range(4,6): nrm(i)
for i in range(4,6): a(f"v_cvt_pk_bf16_f32 v{84+i}, v{44+2*i}, v{45+2*i}")
OA=12; SG=16; FN=20
a(f"""s_mov_b32 exec_hi, 0
buffer_store_dwordx2 v[88:89], v{L8}, {S(WS_)}, s{SB} offen sc1
s_mov_b32 exec_hi, -1
s_setprio 0
v_max3_f32 v{T+3}, |v{O+3}|, |v{O+4}|, |v{O+5}|
v_max3_f32 v{T+2}, v{T+2}, |v{O+6}|, |v{O+7}|
v_max3_f32 v{T+4}, |v{O+8}|, |v{O+9}|, |v{O+10}|
v_max_f32 v{T+2}, v{T+2}, v{T+3}
v_max3_f32 v{T+4}, v{T+4}, |v{O+11}|, v{T+2}
v_cmp_gt_f32 vcc, {fh(2.0**110)}, v{O+12}
v_cmp_gt_f32 s[66:67], s6, v{T+4}
v_cmp_lt_f32 s[6:7], s7, v{T+2}
s_and_b64 vcc, vcc, s[66:67]
s_and_b64 vcc, vcc, s[6:7]
s_cmp_eq_u64 vcc, -1
s_cbranch_scc0 L_slow
L_store:
{tw(5,OA)}
{tw(6,SG)}
{tw(7,FN)}
s_waitcnt vmcnt(5)
s_barrier""")
stamp('T-1')
F=44
for i in range(5):
    for u in range(2): a(f"ds_read_b64_tr_b16 v[{F+4*i+2*u}:{F+4*i+2*u+1}], v{UR+(i==2)} offset:{32*i+1280*u+(2480 if i>2 else 0)}")
LATE=list(range(12))+[16,17,18]; EARLY=[12,13,14,15,19]
SLOT={st:i for i,st in enumerate(LATE+EARLY)}
WA=92; WX=172
def wo_read(base,add,st):
    r=base+4*SLOT[st]; o=[]
    for u in range(2):
        if st<16: o.append(f"ds_read_b64_tr_b16 v[{r+2*u}:{r+2*u+1}], v{add+u} offset:{6400*(st%8)}")
        else: o.append(f"ds_read_b64_tr_b16 v[{r+2*u}:{r+2*u+1}], v{add+2+u} offset:{25600*(st%2)}")
    return o
UP=[8,9,10,11,18]; LOW=list(range(8))+[16,17]
NF=36
for i in range(4): a(f"v_add_u32 v{24+i}, s69, v{WAD+i}")
a(f"""v_mov_b32 v3, s{NON}
s_add_u32 s6, s{W}, 2
s_bitcmp1_b32 s6, 2
s_cselect_b32 s{CH}, 0, 1""")
for i in range(5):
    a(f"s_waitcnt lgkmcnt(8)\nv_mfma_f32_16x16x32_bf16 v[{F+20+4*i}:{F+23+4*i}], v[{F+4*i}:{F+4*i+3}], v[{MM}:{MM+3}], 0")
    for x in wo_read(WA,WAD,EARLY[i]): a(x)
for i in range(5):
    d=F+20+4*i
    a(f"v_cvt_pk_bf16_f32 v{d}, v{d}, v{d+1}\nv_cvt_pk_bf16_f32 v{d+1}, v{d+2}, v{d+3}\nds_write_b64 v{VW[i]}, v[{d}:{d+1}]")
for i in range(8): a(f"v_xor_b32 v{NF+i}, 0x80008000, v{TB+8+i}")
a(f"""s_lshl_b32 s6, s{QB}, 3
s_add_u32 s6, s6, s{HG}
s_lshl_b32 s6, s6, 7
s_add_u32 s6, s6, {WS_F3}
s_cmp_eq_u32 s{W}, 2
s_waitcnt vmcnt(3) lgkmcnt(0)
s_barrier
s_cbranch_scc0 L_nofl3
s_mov_b64 exec, 1
buffer_store_dword v3, v{L16}, {S(WS_)}, s6 offen sc1
s_mov_b64 exec, -1
L_nofl3:""")
if 'nosp' not in XP: em(touchO(1))
stamp('T0')
for p in range(2):
    for s in range(2):
        for u in range(2):
            a(f"ds_read_b64_tr_b16 v[{F+8*p+4*s+2*u}:{F+8*p+4*s+2*u+1}], v{VR+2*p+u} offset:{1280*p+640*s}")
TR=F+16; TI=F+32
def mm(d,A,B,c): return f"v_mfma_f32_32x32x16_bf16 v[{d}:{d+15}], v[{A}:{A+3}], v[{B}:{B+3}], {c}"
TRr=f"v[{TR}:{TR+15}]"; TIr=f"v[{TI}:{TI+15}]"
rest=sum([wo_read(WA,WAD,st) for st in UP],[])+[f"v_subrev_u32 v{WAD+i}, 51200, v{WAD+i}" for i in range(4)]+sum([wo_read(WA,WAD,st) for st in LOW],[])
mms=[mm(TR,F,TB,'0'),mm(TI,F,TB+8,'0'),mm(TR,F+4,TB+4,TRr),mm(TI,F+4,TB+12,TIr),mm(TR,F+8,NF,TRr),mm(TI,F+8,TB,TIr),mm(TR,F+12,NF+4,TRr),mm(TI,F+12,TB+4,TIr)]
a("s_waitcnt lgkmcnt(6)"); a(mms[0]); a(mms[1]); a("s_waitcnt lgkmcnt(0)")
for j in range(2,8):
    a(mms[j])
    for x in rest[:4]: a(x)
    rest=rest[4:]
for x in rest: a(x)
a(f"s_cmp_eq_u32 s{CH}, 0\ns_cbranch_scc1 L_noex0")
for st in EARLY:
    for x in wo_read(WX,24,st): a(x)
a("L_noex0:")
WRr=TB+16; WI=TB+28; GG=TB+40; P=4
def twid(lo,hi):
    for i in range(lo,hi,2):
        a(f"""v_mul_f32 v{P}, v{TI+i}, v{WI+i}
        v_mul_f32 v{P+1}, v{TR+i}, v{WI+i}
        v_mul_f32 v{P+2}, v{TI+i+1}, v{WI+i+1}
        v_mul_f32 v{P+3}, v{TR+i+1}, v{WI+i+1}
        v_fma_f32 v{TR+i}, v{TR+i}, v{WRr+i}, -v{P}
        v_fma_f32 v{TI+i}, v{TI+i}, v{WRr+i}, v{P+1}
        v_fma_f32 v{TR+i+1}, v{TR+i+1}, v{WRr+i+1}, -v{P+2}
        v_fma_f32 v{TI+i+1}, v{TI+i+1}, v{WRr+i+1}, v{P+3}
        v_cvt_pk_bf16_f32 v{F+4*(i//4)+(i%4)//2}, v{TR+i}, v{TR+i+1}
        v_cvt_pk_bf16_f32 v{F+4*(i//4)+2+(i%4)//2}, v{TI+i}, v{TI+i+1}""")
TWP=int(XP.get('twp',0)); TW=int(XP.get('tw',12))
twid(0,TWP)
a(f"""s_lshl_b32 s67, s{QB}, 10
s_add_u32 s67, s67, {WS_F3}
s_cmp_eq_u32 s{W}, 3
s_cbranch_scc0 L_nop3
buffer_load_dword v3, v{PA}, {S(WS_)}, s67 offen sc1
L_nop3:""")
twid(TWP,TW)
a(f"""s_cmp_eq_u32 s{W}, 3
s_cbranch_scc0 L_pook
s_mov_b32 s{CNT}, 0
L_po:
s_waitcnt vmcnt(0)
v_cmp_ne_u32 vcc, s{NON}, v3
s_add_u32 s{CNT}, s{CNT}, 1
s_cmp_gt_u32 s{CNT}, {SPIN}
s_cbranch_scc1 L_pook
s_cbranch_vccz L_pook
buffer_load_dword v3, v{PA}, {S(WS_)}, s67 offen sc1
s_branch L_po
L_pook:
s_waitcnt lgkmcnt(0)
s_barrier""")
stamp('T1')
od=[dmab(L16,WS_,'s68',0,'sc1'),"s_add_u32 m0, m0, 4096","s_add_u32 s68, s68, 4096"]
def odma():
    for x in od: a(x)
N0=int(XP.get('n0',4))
odma()
twid(TW,12)
Y=28
a("s_nop 1")
a(mm(Y,F,GG,'0')); odma(); a(mm(Y,F+4,GG+4,f"v[{Y}:{Y+15}]")); odma(); a(mm(Y,F+8,GG+8,f"v[{Y}:{Y+15}]"))
for n in range(N0-3): odma()
a(f"s_cmp_eq_u32 s{CH}, 0\ns_cbranch_scc1 L_noex1")
for st in UP:
    for x in wo_read(WX,24,st): a(x)
for i in range(4): a(f"v_subrev_u32 v{24+i}, 51200, v{24+i}")
for st in LOW:
    for x in wo_read(WX,24,st): a(x)
a("L_noex1:")
N1=int(XP.get('n1',0))
for n in range(N1): odma()
N0+=N1
a(f"""
s_lshl_b32 s6, s{W}, 7
s_add_u32 s6, s6, s{T0}
s_mul_i32 s67, s6, 2560
s_nop 6""")
for i in range(8): a(f"v_cvt_pk_bf16_f32 v{4+i}, v{Y+2*i}, v{Y+2*i+1}")
FF=XP.get('ff','nt'); OF=XP.get('of','nt').replace('+',' '); FF=FF.replace('+',' ')
FSH=int(XP.get('fsh',3))
a(f"""s_mul_i32 s6, s{W}, 1280
s_add_u32 s6, s6, 16384
v_add_u32 v3, s6, v{L16}""")
fstw=[f"v_add_u32 v{SG+3}, s6, v{SG+3}",on,f"ds_write_b128 v{SG+3}, v[4:7]",f"ds_write_b128 v{SG+3}, v[8:11] offset:16",off,"ds_read_b128 v[84:87], v3","ds_read_b128 v[88:91], v3 offset:1024"]
fst=[f"buffer_store_dwordx4 v[84:87], v{L16}, {S(OUT_)}, s67 offen {FF}","s_mov_b64 exec, 0xffff",f"buffer_store_dwordx4 v[88:91], v{L16}, {S(OUT_)}, s67 offen offset:1024 {FF}",off]
BB=[36,52,68]; AC=24
def rd(hc):
    b=BB[hc%3]; o=[]
    for k in range(2):
        st=2*hc+k
        for qt in range(2):
            r=b+8*k+4*qt
            if st<16: o.append([f"ds_read_b128 v[{r}:{r+3}], v{OA+qt} offset:{2048*st}"])
            else: o.append([f"ds_read_b64 v[{r+2*u}:{r+2*u+1}], v{OA+2+qt} offset:{2048*(st-16)+1024*u}" for u in range(2)])
    return o
def mmo(hc,ex):
    b=BB[hc%3]; o=[]
    for k in range(2):
        st=2*hc+k
        for (d,w_,qt) in [(AC,WA,0),(AC+4,WA,1)]+([(AC+8,WX,0)] if ex else []):
            r=b+8*k+4*qt; c='0' if st==0 else f"v[{d}:{d+3}]"
            o.append(f"v_mfma_f32_16x16x32_bf16 v[{d}:{d+3}], v[{w_+4*SLOT[st]}:{w_+4*SLOT[st]+3}], v[{r}:{r+3}], {c}")
    return o
SYNC=eval(XP.get('sync','{0/2,2/4,4/7,7/10}').replace('/',':'))
def ogemm(ex):
    issued=N0
    for hc in range(12):
        if hc in SYNC:
            assert issued>=SYNC[hc]
            stamp(f'o_a{hc}')
            a(f"s_waitcnt vmcnt({issued-SYNC[hc]+(2 if hc>FSH else 0)})"+(" lgkmcnt(0)" if hc==0 else "")+"\ns_barrier")
            stamp(f'o_b{hc}')
        R=rd(hc) if hc<10 else []
        M=mmo(hc-2,ex) if hc>=2 else []
        if M: a(f"s_waitcnt lgkmcnt({0 if hc==11 else (4 if hc-1<8 else 8)})")
        for j in range(max(len(R),len(M))):
            if j<len(M): a(M[j])
            if j<len(R):
                for x in R[j]: a(x)
        if issued<10:
            odma(); issued+=1
            if hc<2 and issued<10: odma(); issued+=1
        if hc==0: em(fstw)
        if hc==FSH:
            assert issued==10
            em(fst)
a(f"s_cmp_eq_u32 s{CH}, 0\ns_cbranch_scc1 L_g0")
ogemm(True)
a("s_branch L_ge\nL_g0:")
ogemm(False)
a("L_ge:")
stamp('gemm')
a(f"""s_mul_i32 s6, s{QB}, {64*2560}
s_mul_i32 s7, s{HG}, 160
s_add_u32 s6, s6, s7
s_add_u32 s6, s6, 1280
s_cmp_eq_u32 s{CH}, 0
s_nop 2""")
for i in range(4): a(f"v_cvt_pk_bf16_f32 v{36+i}, v{AC+2*i}, v{AC+1+2*i}")
a(f"""ds_write_b64 v{SG}, v[36:37]
ds_write_b64 v{SG+1}, v[38:39]
s_cbranch_scc1 L_noex2
v_cvt_pk_bf16_f32 v40, v{AC+8}, v{AC+9}
v_cvt_pk_bf16_f32 v41, v{AC+10}, v{AC+11}
ds_write_b64 v{SG+2}, v[40:41]
L_noex2:
s_cmp_ge_u32 s{W}, 2
s_waitcnt lgkmcnt(0)
s_barrier
ds_read_b128 v[24:27], v{FN}
s_cbranch_scc1 L_one
ds_read_b128 v[28:31], v{FN+2}
s_waitcnt lgkmcnt(0)
buffer_store_dwordx4 v[28:31], v{FN+3}, {S(OUT_)}, s6 offen {OF}
L_one:
s_waitcnt lgkmcnt(0)
buffer_store_dwordx4 v[24:27], v{FN+1}, {S(OUT_)}, s6 offen {OF}""")
if STAMP:
    a("s_waitcnt vmcnt(0)"); stamp('end')
    a(f"""s_lshl_b32 s6, s2, 3
    s_add_u32 s6, s6, s{W}
    s_lshl_b32 s6, s6, 6
    s_add_u32 s6, s6, {WS_ST}
    v_mov_b32 v21, 0
    s_waitcnt lgkmcnt(0)""")
    for i in range(nstamp[0]): a(f"v_mov_b32 v22, s{STB+2*i}\nbuffer_store_dword v22, v21, {S(WS_)}, s6 offen offset:{4*i}")
a("L_end:\ns_endpgm")
X=SS[0]
a(f"""L_slow:
s_cmp_lg_u32 s{SLOW}, 0
s_cbranch_scc1 L_store
s_mov_b32 s{SLOW}, 1
v_mov_b32 v{T+2}, 0xff800000
v_subrev_u32 v{AV}, {vbase}, v{AV}""")
zero(CM,16); zero(O,16)
a(f"""L_pass:
s_mov_b32 s{CNT}, 0
L_sl:
s_lshr_b32 s66, s{CNT}, 1
s_mul_i32 s66, s66, 10240
s_and_b32 s6, s{CNT}, 1
s_mul_i32 s7, s6, 2048
s_add_u32 s7, s7, s66
buffer_load_dwordx4 v[{KF[0]}:{KF[0]+3}], v{L16}, {S(WS_)}, s7 offen sc1
buffer_load_dwordx4 v[{KF[0]+4}:{KF[0]+7}], v{L16}, {S(WS_)}, s7 offen offset:1024 sc1
s_lshl_b32 s7, s6, 3
s_add_u32 s7, s7, s66
s_add_u32 s7, s7, 4096
buffer_load_dwordx2 v[{K4[0]}:{K4[0]+1}], v{L16}, {S(WS_)}, s7 offen sc1
s_mul_i32 s7, s6, 2560
s_add_u32 s7, s7, s66
s_add_u32 s7, s7, 5120
{on}""")
for u in range(4): a(f"buffer_load_dwordx4 v[{VF[0]+4*u}:{VF[0]+4*u+3}], v{AV}, {S(WS_)}, s7 offen offset:{640*u} sc1")
a(f"""{off}
s_waitcnt vmcnt(0)
{M16(X,KF[0],CMr)}
{M16(X+16,KF[0]+4,CMr)}
s_nop 9
{M4(X,K4[0])}
s_nop 15
s_nop 3
s_cmp_eq_u32 s{SLOW}, 1
s_cbranch_scc0 L_p2""")
for i in range(0,32,2): a(f"v_max3_f32 v{T+2}, v{T+2}, v{X+i}, v{X+i+1}")
a("s_branch L_nx\nL_p2:")
for i in range(32): a(f"v_exp_f32 v{X+i}, v{X+i}")
a("s_nop 1")
for u in range(4): a(SM(VF[0]+4*u,X+8*u))
a(f"""L_nx:
s_add_u32 s{CNT}, s{CNT}, 1
s_cmp_lt_u32 s{CNT}, 32
s_cbranch_scc1 L_sl
s_cmp_eq_u32 s{SLOW}, 1
s_cbranch_scc0 L_check
s_mov_b32 s{SLOW}, 2
v_mov_b32 v{T+3}, v{T+2}
s_nop 1
v_permlane32_swap_b32 v{T+2}, v{T+3}
v_max_f32 v{T+2}, v{T+2}, v{T+3}""")
for i in range(16): a(f"v_sub_f32 v{CM+i}, 0, v{T+2}")
a("s_branch L_pass")

hdr=open('concat_heads__spectral_fnet__grouped_kv_mqa__prompt.s.ref').read().split('; Override launch')[0]
s=hdr+"; @launch grid=(256,1,1) block=(512,1,1) lds=163840\n"
if STAMP: s+="; stamps: "+" ".join(stnames)+"\n"
s+='.amdgcn_target "amdgcn-amd-amdhsa--gfx950"\n.text\n'+khead(KN)+a.text()
s+=emit_table('tab_p1',table_p1())+emit_table('tab_hid',table_hid())+emit_table('tab_wave',table_wave())
s+='.section .rodata,"a"\n'+kdesc(KN,256,102)
open(OUTF,'w').write(s)
print('wrote',OUTF,len(s),'stamps',nstamp[0],stnames)
```

```python
import sys, math, struct
import numpy as np
sys.path.insert(0,'gen')
from asmlib import *

STAMP = '--stamp' in sys.argv
XP = dict((a[4:].split(':')+[''])[:2] for a in sys.argv if a.startswith('--x='))
OUTF = [a for a in sys.argv[1:] if not a.startswith('--')]
OUTF = OUTF[0] if OUTF else 'concat_heads__spectral_fnet__grouped_kv_mqa__prompt.s'
KN='concat_heads__spectral_fnet__grouped_kv_mqa__prompt_kernel'

WS_KV = 0x000000
WS_F1 = 0x040000
WS_F2 = 0x050000
WS_F3 = 0x060000
WS_O  = 0x100000
WS_U  = 0x400000
WS_ST = 0x900000
WS_SZ = 0x1000000
CSCALE = (20**-0.5)*math.log2(math.e)
OFFS = 100.0
SPIN = 200000
def f2u(x): return struct.unpack('<I',struct.pack('<f',x))[0]
def fh(x): return hex(f2u(x))
def bf(x):
    u=np.asarray(x,np.float32).view(np.uint32)
    return ((u+0x7fff+((u>>16)&1))>>16).astype(np.uint32)
def pack(vals):
    b=bf(vals); return b[...,0::2]|(b[...,1::2]<<16)
def sig(n): return 16*((n>>2)&1)+4*(n>>3)+(n&3)
def table_hid():
    out=np.zeros((15,64,4),np.uint32)
    for l in range(64):
        n=l&31; h=l>>5; k1=sig(n)
        for s in range(2):
            d1=np.arange(8)+16*s+8*h
            out[s,l]=pack(np.cos(2*np.pi*d1*k1/32))
            out[2+s,l]=pack(-np.sin(2*np.pi*d1*k1/32))
            out[13+s,l]=out[2+s,l]^0x80008000
        for j in range(3):
            d2=8*j+4*h+np.arange(4); ok=(d2<20)
            out[4+j,l]=(np.cos(2*np.pi*d2*k1/640)*ok).astype(np.float32).view(np.uint32)
            out[7+j,l]=(-np.sin(2*np.pi*d2*k1/640)*ok).astype(np.float32).view(np.uint32)
            k2=n if n<20 else 0
            out[10+j,l]=pack(np.concatenate([np.cos(2*np.pi*d2*k2/20)*ok, np.sin(2*np.pi*d2*k2/20)*ok]))
    return out.reshape(-1)
XBL=25600; RB=107520; NONL=158720
UL=0; OL=0; STG=81920; FSG=81920; WXL=102400; TL=122880; VL=138240; VP=1288
FLF=0; FSF=10240; FS=32; QSL=RB; QP=168
def grp_rows(k0): return ((k0&~7)+((k0>>2)&1))
NQH=17; NQA=3
def fin(w,l):
    c0=64*w+l; c1=min(c0+512,639)
    return [STG+(c0+c0//10)*16, c0*16+(c0//10)*2400, STG+(c1+c1//10)*16, c1*16+(c1//10)*2400]
def table_h():
    t=np.zeros((4,NQH,64,4),np.uint32)
    for w in range(4):
        for l in range(64):
            n=l&15; g=l>>4; r=(l>>2)&3; c=l&3
            j=np.arange(8)
            for nt in range(2):
                kidx=32*w+16*nt+n; u=kidx>>1; q=kidx&1
                for s in range(4):
                    sh=32*s+8*g+2*(j&3)+(j>>2)
                    v=np.cos(np.pi*sh) if kidx==1 else (np.cos(2*np.pi*u*sh/128) if q==0 else -np.sin(2*np.pi*u*sh/128))
                    t[w,4*nt+s,l]=pack(v)
            rb=FLF+(8*g+2*r)*80; sb=FSF+2560*w
            t[w,8,l]=[rb+8*c, rb+64+8*(c&1), sb+80*n+8*g, sb+16*l]
            fa=[]; wo=[]; ua=[]
            for k in range(5):
                cell=64*(w+4*k)+l
                if k<3: cf=min(cell,639); fa.append((cf//5)*20480+(cf%5)*16)
                pos=cell//10; cc=cell%10
                wo.append(((pos&~7)|((pos>>1)&3)|((pos&1)<<2))*1280+cc*16); ua.append(pos*10240+cc*16)
            ur=UL+10240*w+(2*r+(g&1))*160+(g>>1)*80+8*c
            wad=[25600*w+r*320+128+8*c+160*(grp_rows(20*(g>>1)+4*(g&1)+8*uu) if kind==0 else grp_rows(20*(4*uu+g)+16)) for kind in range(2) for uu in range(2)]
            t[w,9:14,l]=np.array(fa+[FS*(64*w+l)]+wo+ua+[ur,ur+(2480 if c>=2 else 0)]+wad).reshape(5,4)
            h=l>>5; qh=w&1; ct=w>>1; cb=r*320+64*ct+32*(g&1)+8*c
            t[w,14,l]=[cb+160*grp_rows(4*h), cb+160*grp_rows(20+4*h), cb+160*grp_rows(20*h+16), VL+n*VP+320*w+8*g]
            t[w,15,l]=[OL+qh*40960+16*l, OL+qh*40960+32768+8*l, STG+(32*qh+(l&31))*176+64*ct+8*h, 128*(l&7)]
            t[w,16,l]=fin(w+4,l)[:2]+[WXL+4096*w+16*l, WXL+16384+1024*w+16*l]
    return t.reshape(-1)
def table_a():
    t=np.zeros((4,NQA,64,4),np.uint32)
    for w in range(4):
        for l in range(64):
            g=l>>4; r=(l>>2)&3; c=l&3; h=l>>5
            t[w,0,l]=[VL+4*w*VP+(8*h+r)*40+(32 if (g&1) else 8*c), FSG+2560*w+16*((4*min(l&31,19)+2*h)^(((l&31)>>1)&3)), 8*(l&31)+40960*h, (l&1)*40960+((l>>1)&7)*128]
            t[w,1,l]=fin(w,l)
            n=l&15
            t[w,2,l]=[OL+(w>>1)*40960+512*g+16*(16*(w&1)+n), OL+(w>>1)*40960+32768+256*g+8*(16*(w&1)+n), STG+(16*w+n)*176+8*g+128, WXL+16*l]
    return t.reshape(-1)
def emit_table(name, arr):
    s=f".p2align 8\n.type {name},@object\n{name}:\n"
    for i in range(0,len(arr),8):
        s+=".long "+",".join(hex(int(x)) for x in arr[i:i+8])+"\n"
    s+=f".size {name}, {4*len(arr)}\n"
    return s

W=3; QB=4; HG=5
XB_=8; TW_=12; KV_=16; WS_=20; XA_=24; WO_=28; OUT_=32
DBG=40; TAB=42; NON=44; R0=45; J=46; RBA=47; RBD=65
SA=49; SB=50; SC=51; SD=54; HA=55; IT=55; FLG=48; RET=52
PB=56; UU=57; QT=58; T0=59; MIR=60; SLOW=61; CNT=62
VM=64
STB=70
def S(r,n=4): return f"s[{r}:{r+n-1}]"
a=Asm()
nstamp=[0]; stnames=[]
def stamp(name):
    sel=XP.get('st','')
    front=['kvland','kvpub','b0','b3','b6','b9pre','b9']
    if sel!='tail' and name.startswith('o_'): return
    if sel!='loop' and name.startswith('g_'): return
    if sel!='epi' and name.startswith('e_'): return
    if sel!='front' and name.startswith('f_'): return
    if sel=='front' and name in ['loopend','T0','T1','gemm']: return
    if sel and sel!='front' and name in front: return
    if name in stnames:
        i=stnames.index(name); a(f"{'s_memtime' if 'cyc' in XP else 's_memrealtime'} s[{STB+2*i}:{STB+1+2*i}]"); return
    if STAMP:
        assert nstamp[0]<16
        a(f"{'s_memtime' if 'cyc' in XP else 's_memrealtime'} s[{STB+2*nstamp[0]}:{STB+1+2*nstamp[0]}]"); nstamp[0]+=1; stnames.append(name)
def zero(base,n):
    for i in range(n): a(f"v_mov_b32 v{base+i}, 0")
def dmab(v,srd,soff,off=0,fl=''):
    return f"buffer_load_dwordx4 v{v}, {S(srd)}, {soff} offen{' offset:%d'%off if off else ''} {fl} lds"
def mod5(d,s,t):
    a(f"s_mul_i32 s{t}, s{s}, 0x3334\ns_lshr_b32 s{t}, s{t}, 16\ns_mul_i32 s{t}, s{t}, 5\ns_sub_u32 s{d}, s{s}, s{t}")


L16=2
Q16=[4,10]; Q4=[8,14]; IDX=16; AK=3; AV=1
CM=[20,36]; O=[52,68]; SS=[84,116]; KF=148; K4=156; VF=[164,180]; QR=196; T=224
XR=8; WR=9; QW=13; FR=84; ACC=200; TA=248
MM=252
def lines(t): return [x.strip() for x in t.split("\n") if x.strip()]
def pre_m():
    o=[lines(f"""s_and_b32 s{UU}, s2, 7
    s_lshl_b32 s{UU}, s{UU}, 3
    s_bfe_u32 s6, s2, 0x30003
    s_add_u32 s{UU}, s{UU}, s6
    s_lshr_b32 s{QT}, s2, 6
    s_lshr_b32 s{MIR}, s{QT}, 1
    s_sub_u32 s6, 128, s{UU}"""),lines(f"""s_cmp_eq_u32 s{UU}, 0
    s_cselect_b32 s6, 64, s6
    s_cselect_b32 s66, 0, 512
    s_mul_i32 s7, s66, 3
    s_cmp_eq_u32 s{MIR}, 0
    s_cselect_b32 s{T0}, s{UU}, s6
    s_cselect_b32 s66, s7, s66"""),lines(f"""s_and_b32 s6, s{QT}, 1
    s_lshl_b32 s6, s6, 10
    s_add_u32 s{T0}, s{T0}, s6
    v_lshrrev_b32 v23, 5, v0
    v_cmp_eq_u32 vcc, s{MIR}, v23
    v_bfe_u32 v21, v0, 1, 3"""),lines(f"""v_lshl_add_u32 v21, v21, 7, s{T0}
    v_and_b32 v22, 1, v0
    v_lshlrev_b32 v22, 9, v22
    v_mad_u32_u24 v22, v23, s66, v22
    v_bfe_u32 v24, v0, 4, 1"""),lines(f"""v_mad_u32_u24 v22, v24, v21, v22
    v_cvt_f32_u32 v21, v21
    v_cvt_f32_u32 v22, v22
    v_mul_f32 v21, {fh(1/1024)}, v21
    v_mul_f32 v22, {fh(1/2048)}, v22
    s_cmp_eq_u32 s{UU}, 0
    s_cselect_b64 vcc, vcc, -1""")]
    for i in range(4):
        o.append(lines(f"""v_cos_f32 v25, v22
        v_add_f32 v22, v22, v21
        v_cos_f32 v26, v22
        v_add_f32 v22, v22, v21
        v_cvt_pk_bf16_f32 v24, v25, v26
        v_cndmask_b32 v{MM+i}, 0, v24, vcc"""))
    return o

def chunks(l,n): return [l[k:k+n] for k in range(0,len(l),n)]
def att_init():
    o=lines(f"""v_and_b32 v21, 27, v0
    v_cmp_eq_u32 vcc, 24, v21
    v_mov_b32 v21, 0x3f803f80
    s_mov_b32 s{VM}, 0xfffff
    s_mov_b32 s{VM+1}, 0xfffff
    v_cndmask_b32 v{VF[0]}, 0, v21, vcc
    v_cndmask_b32 v{VF[0]+1}, 0, v21, vcc""")
    o+=[f"v_mov_b64 v[{VF[0]+2*i}:{VF[0]+2*i+1}], v[{VF[0]}:{VF[0]+1}]" for i in range(1,16)]+[f"v_mov_b64 v[{O[0]+2*i}:{O[0]+2*i+1}], 0" for i in range(16)]
    o=chunks(o,6)
    o.append(lines(f"""s_mov_b32 s{OUT_+2}, 5242880
    s_mov_b32 s{OUT_+3}, 0x20000
    s_mul_i32 s66, s{W}, 40
    s_add_u32 s66, s66, {QSL}
    s_mul_i32 s67, s{W}, {NQA*1024}
    s_add_u32 s67, s67, tab_a-L_pc
    s_add_u32 s{TW_}, s{TAB}, s67
    s_addc_u32 s{TW_+1}, s{TAB+1}, 0"""))
    o.append(lines(f"""v_and_b32 v21, 31, v0
    v_cmp_gt_u32 vcc, 16, v21
    v_lshrrev_b32 v22, 5, v0
    v_mov_b32 v23, 0x180
    v_cndmask_b32 v23, 64, v23, vcc"""))
    o.append(lines(f"""v_mul_u32_u24 v23, v22, v23
    v_lshl_add_u32 v{AV}, v21, 4, v23
    v_mul_u32_u24 v21, {QP}, v21
    v_add_u32 v{QR+1}, s66, v21
    v_lshl_add_u32 v{QR}, v22, 4, v{QR+1}
    v_mov_b32 v{AK}, v{L16}"""))
    o.append(lines(f"""s_mul_i32 s{SA}, s{QB}, 81920
    s_add_u32 s{SA}, s{SA}, {WS_O}
    s_lshl_b32 s7, s{HG}, 2
    s_add_u32 s7, s7, s{W}
    s_lshl_b32 s{SB}, s7, 8
    s_lshl_b32 s7, s7, 10"""))
    o.append(lines(f"""s_add_u32 s{SB}, s{SB}, s{SA}
    s_add_u32 s{SA}, s{SA}, s7
    s_add_u32 s{SB}, s{SB}, 32768
    s_add_u32 s{SC}, s{SA}, 40960
    s_add_u32 s{SD}, s{SB}, 40960"""))
    return o
def p1_scal():
    return lines(f"""s_and_b32 s6, s2, 7
    s_lshl_b32 s6, s6, 1
    s_bfe_u32 s7, s2, 0x10003
    s_add_u32 s6, s6, s7
    s_lshr_b32 s7, s2, 4
    s_lshl_b32 s{PB}, s7, 4
    s_add_u32 s{PB}, s{PB}, s6
    s_mul_i32 s6, s6, 1280
    s_mul_i32 s7, s7, 80
    s_add_u32 s69, s6, s7
    s_and_b32 s{HA}, s{W}, 3
    s_lshl_b32 s{PB}, s{PB}, 2
    s_add_u32 s{PB}, s{PB}, s{HA}
    s_mul_i32 s{PB}, s{PB}, 2560
    s_add_u32 s{PB}, s{PB}, {WS_U}
    s_mov_b32 s{XA_+2}, 2621440
    s_mov_b32 s{XA_+3}, 0x20000
    s_mov_b32 s{WO_+2}, 819200
    s_mov_b32 s{WO_+3}, 0x20000
    s_mov_b32 s{OUT_+2}, 5242880
    s_mov_b32 s{OUT_+3}, 0x20000
    s_mul_i32 s6, s{HA}, {NQH*1024}
    s_add_u32 s6, s6, tab_h-L_pc+4096
    s_add_u32 s{TW_}, s{TAB}, s6
    s_addc_u32 s{TW_+1}, s{TAB+1}, 0
    s_add_u32 s{TW_+2}, s{TW_}, 8192
    s_addc_u32 s{TW_+3}, s{TW_+1}, 0
    s_add_u32 s{RET}, s{TW_}, 16384
    s_addc_u32 s{RET+1}, s{TW_+1}, 0""")
def em(l):
    for x in l:
        if isinstance(x,list): em(x)
        else: a(x)
def wrap(d,s,inc,lim):
    a(f"s_add_u32 s{d}, s{s}, {inc}\ns_sub_u32 s7, s{d}, {lim}\ns_min_u32 s{d}, s{d}, s7")

stamp('start')
a(f"""s_cmp_ge_u32 s2, 256
s_cbranch_scc1 L_end
s_load_dwordx8 s[48:55], s[0:1], 40
s_load_dwordx8 s[56:63], s[0:1], 72
s_load_dwordx2 s[24:25], s[0:1], 0
s_memrealtime s[68:69]
s_getpc_b64 s[{TAB}:{TAB+1}]
L_pc:
v_lshrrev_b32 v1, 6, v0
v_and_b32 v0, 63, v0
s_and_b32 s{QB}, s2, 7
v_readfirstlane_b32 s{W}, v1
s_lshl_b32 s{QB}, s{QB}, 2
v_lshlrev_b32 v{L16}, 4, v0
s_bfe_u32 s6, s2, 0x20003
v_lshrrev_b32 v21, 3, v0
s_add_u32 s{QB}, s{QB}, s6
v_lshrrev_b32 v23, 4, v0
s_lshr_b32 s{HG}, s2, 5
v_and_b32 v24, 7, v0
s_and_b32 s7, s2, 0xf8
s_add_u32 s7, s7, s{W}
s_lshl_b32 s7, s7, 7
v_mul_u32_u24 v22, ((L_tabend-L_pc-32768)/3)&0xffff80, v0
v_add_u32 v22, s7, v22
s_add_u32 s{R0}, s6, s{HG}
s_mov_b64 exec, {int(XP.get('pf',15))}
global_load_dword v255, v22, s[{TAB}:{TAB+1}]
s_mov_b64 exec, -1
v_xor_b32 v23, v23, v24
s_mul_i32 s7, s{R0}, 0x3334
v_mul_u32_u24 v21, 0x500, v21
s_lshr_b32 s7, s7, 16
v_lshl_add_u32 v3, v23, 4, v21
s_mul_i32 s7, s7, 5
v_mov_b32 v17, 0
s_sub_u32 s{R0}, s{R0}, s7
s_and_b32 s{J}, s{HG}, 3
s_lshl_b32 s7, s{J}, 1
s_cmp_lt_u32 s{HG}, 4
s_cselect_b32 s{RBA}, s{J}, s7
s_cselect_b32 s{RBD}, 4, 1
s_mov_b32 s{XB_+2}, 2621440
s_mov_b32 s{XB_+3}, 0x20000
s_mov_b32 s{WS_+2}, {WS_SZ}
s_mov_b32 s{WS_+3}, 0x20000
s_cmp_ge_u32 s{W}, 4
s_cbranch_scc1 L_loader
s_and_b32 s6, s{W}, 1
s_mul_i32 s6, s6, s{RBD}
s_add_u32 s6, s6, s{RBA}
s_and_b32 s7, s6, 1
s_lshl_b32 s7, s7, 6
v_xor_b32 v4, s7, v3
s_lshl_b32 s7, s{QB}, 3
s_add_u32 s7, s7, s6
s_mul_i32 s7, s7, 10240
v_add_u32 v4, s7, v4
s_lshr_b32 s36, s{W}, 1
s_lshl_b32 s35, s36, 3
s_add_u32 s35, s35, s6
s_lshl_b32 s35, s35, 10
s_add_u32 s35, s35, {XBL}
s_lshl_b32 s36, s36, 7
s_lshl_b32 s6, s{R0}, 8
s_add_u32 s36, s36, s6
s_lshl_b32 m0, s{W}, 10
s_mul_i32 s6, s{R0}, 5120
s_add_u32 s37, m0, s6
s_mov_b32 s{KV_+2}, 25600
s_mov_b32 s{KV_+3}, 0x20000
s_cmp_lt_u32 s{HG}, 4""")
stamp('f_ka0')
a(f"""s_waitcnt lgkmcnt(0)
s_cselect_b32 s{KV_}, s52, s54
s_cselect_b32 s{KV_+1}, s53, s55""")
for t in range(6):
    a(dmab(L16,KV_,'s37')); a("s_add_u32 m0, m0, 4096"); wrap(37,37,4096,25600)
    if t==0: a(f"s_mov_b32 s{XB_}, s48\ns_mov_b32 s{XB_+1}, s49")
a(f"""s_cmp_lg_u32 s{W}, 0
s_cbranch_scc1 L_nw0
{dmab(L16,KV_,'s37')}
L_nw0:
s_mov_b32 m0, s35
s_nop 0""")
for t in range(5):
    a(dmab(4,XB_,'s36'))
    if t<4: a("s_add_u32 m0, m0, 16384"); wrap(36,36,256,1280)
stamp('f_kvi')
cpy=f"""s_mov_b32 s{WO_}, s56
s_mov_b32 s{WO_+1}, s57
s_mov_b32 s{OUT_}, s58
s_mov_b32 s{OUT_+1}, s59
s_mov_b32 s{DBG}, s60
s_mov_b32 s{DBG+1}, s61
s_mov_b32 s{WS_}, s62
s_mov_b32 s{WS_+1}, s63"""
a(cpy)
a(f"""v_and_b32 v21, 15, v0
v_lshrrev_b32 v22, 4, v0
s_and_b32 s6, s{W}, 1
s_lshl_b32 s7, s6, 12
s_add_u32 s7, s7, {XBL}
v_lshrrev_b32 v24, 1, v21
v_xor_b32 v23, v22, v24
v_lshl_add_u32 v24, v21, 7, s7
v_lshl_add_u32 v{XR}, v23, 4, v24
v_xor_b32 v7, 64, v{XR}
s_lshr_b32 s66, s{W}, 1
s_mul_i32 s66, s66, 96
s_add_u32 s7, s66, {RB}
v_lshrrev_b32 v23, 2, v0
v_mul_u32_u24 v23, 320, v23
v_and_b32 v25, 3, v0
v_lshl_add_u32 v23, v25, 3, v23
v_and_b32 v24, 1, v22
v_mul_u32_u24 v24, 160, v24
v_add3_u32 v{WR}, v23, v24, s7
s_add_u32 s7, s7, 160
v_sub_u32 v23, v23, v24
v_add_u32 v{WR+1}, s7, v23
s_mul_i32 s7, s6, {32*QP}
s_add_u32 s7, s7, s66
s_add_u32 s7, s7, {QSL}
v_mul_u32_u24 v23, {QP}, v21
v_lshl_add_u32 v23, v22, 3, v23
v_add_u32 v{QW}, s7, v23
s_mov_b32 s{FLG}, 1
s_cmp_lt_u32 s{W}, 2
s_cbranch_scc1 L_nokv""")
a(f"""s_mov_b32 s{FLG}, 0
v_lshrrev_b32 v26, 3, v21
v_and_b32 v27, 7, v21
v_mul_u32_u24 v23, s{RBD}, v26
v_add_u32 v23, s{RBA}, v23
v_and_b32 v24, 1, v23
v_lshlrev_b32 v23, 10, v23
v_lshl_add_u32 v23, v24, 6, v23
v_lshl_add_u32 v23, v27, 7, v23
v_lshrrev_b32 v24, 1, v27
v_xor_b32 v24, v24, v22
v_lshl_add_u32 v23, v24, 4, v23
v_add_u32 v18, {XBL}, v23
v_xor_b32 v19, 64, v18
v_bfe_u32 v23, v0, 2, 2
v_lshl_add_u32 v23, v22, 3, v23
v_mul_u32_u24 v23, 40, v23
s_cmp_eq_u32 s6, 0
s_cselect_b64 vcc, -1, 0
v_cndmask_b32 v25, 4, v25, vcc
v_lshl_add_u32 v20, v25, 3, v23
s_lshr_b32 s66, s{QB}, 1
s_mul_i32 s66, s66, 10240
s_and_b32 s67, s{QB}, 1
v_lshrrev_b32 v24, 1, v22
v_and_b32 v25, 1, v22
s_cmp_ge_u32 s{HG}, 4
s_cbranch_scc1 L_kvV""")
def kvgemm(isK):
    a("s_waitcnt vmcnt(0)\ns_barrier")
    stamp('kvland')
    NB=5
    def rd(st):
        f=FR+8*(st%NB)
        if st==16: a("v_add_u32 v18, 0x10000, v18\nv_add_u32 v19, 0x10000, v19")
        a(f"""ds_read_b128 v[{f}:{f+3}], v{18+st%2} offset:{(8192*(st//2))&0xffff}
        ds_read_b64_tr_b16 v[{f+4}:{f+5}], v20 offset:{1280*st}
        ds_read_b64_tr_b16 v[{f+6}:{f+7}], v20 offset:{1280*st+160}""")
    for st in range(NB-1): rd(st)
    for st in range(20):
        if st+NB-1<20: rd(st+NB-1)
        f=FR+8*(st%NB); A,B=(f+4,f) if isK else (f,f+4)
        a(f"s_waitcnt lgkmcnt({3*min(NB-1,19-st)})\nv_mfma_f32_16x16x32_bf16 v[28:31], v[{A}:{A+3}], v[{B}:{B+3}], {'0' if st==0 else 'v[28:31]'}")
a(f"""v_lshlrev_b32 v27, 4, v27
v_lshl_add_u32 v23, v26, 11, v27
v_lshl_add_u32 v23, v24, 9, v23
v_lshl_add_u32 v23, v25, 3, v23
v_lshl_add_u32 v27, v26, 3, v27
v_cndmask_b32 v15, v27, v23, vcc
s_lshl_b32 s7, s67, 9
s_add_u32 s7, s7, 4096
s_lshl_b32 s67, s67, 10
s_cmp_eq_u32 s6, 0
s_cselect_b32 s67, s67, s7
s_cselect_b32 s64, -1, 0xffff
s_cselect_b32 s65, -1, 0
s_lshl_b32 s7, s{J}, 7
s_add_u32 s66, s66, s7
s_add_u32 s66, s66, s67""")
kvgemm(True)
a(f"""s_branch L_kvW
L_kvV:
s_cmp_eq_u32 s6, 0
s_cselect_b32 s7, 0x180, 64
s_cselect_b32 s64, -1, 0x000f000f
s_mov_b32 s65, s64
v_mul_u32_u24 v24, s7, v24
v_lshl_add_u32 v24, v21, 4, v24
v_lshl_add_u32 v15, v25, 3, v24
s_and_b32 s7, s{J}, 2
s_add_u32 s67, s67, s7
s_lshl_b32 s67, s67, 1
s_and_b32 s7, s{J}, 1
s_add_u32 s67, s67, s7
s_mul_i32 s67, s67, 640
s_lshl_b32 s7, s6, 8
s_add_u32 s66, s66, s7
s_add_u32 s66, s66, s67
s_add_u32 s66, s66, 5120""")
kvgemm(False)
a(f"""L_kvW:
global_load_dword v16, v17, s[{DBG}:{DBG+1}] sc1
s_nop 6
v_cvt_pk_bf16_f32 v28, v28, v29
v_cvt_pk_bf16_f32 v29, v30, v31
s_mov_b64 exec, s[64:65]
buffer_store_dwordx2 v[28:29], v15, {S(WS_)}, s66 offen sc1
s_mov_b64 exec, -1
s_branch L_kvE
L_nokv:""")
a("s_waitcnt vmcnt(0)\ns_barrier")
stamp('kvland')
a("L_kvE:")
stamp('kvpub')
def qmm(i,k,ct,qt):
    f=FR+40*(i%2)+20*k; d=ACC+8*ct+4*qt
    c='0' if (i==0 and k==0) else f"v[{d}:{d+3}]"
    return f"v_mfma_f32_16x16x32_bf16 v[{d}:{d+3}], v[{f+8+4*ct}:{f+11+4*ct}], v[{f+4*qt}:{f+4*qt+3}], {c}"
def qrx(i,k,qt):
    f=FR+40*(i%2)+20*k; return f"ds_read_b128 v[{f+4*qt}:{f+4*qt+3}], v{[XR,7][k]} offset:{((8192*i)&0xffff)+2048*qt}"
def qrw(i,k,ct,u):
    f=FR+40*(i%2)+20*k+8+4*ct+2*u; return f"ds_read_b64_tr_b16 v[{f}:{f+1}], v{WR+u} offset:{(i%5)*10240+5120*k+32*ct}"
def weave(R,M):
    n=max(len(M),1); k=0
    for j in range(n):
        t=(len(R)*(j+1))//n
        em(R[k:t]); k=t
        if M: a(M[j])
pm=pre_m(); fill=pm[:2]+[pm[2][:3]]+att_init()
quota=[round(len(fill)*(i+1)/9) for i in range(9)]; done=0
FORCE=int(XP.get('force',5))
for i in range(10):
    a("s_barrier")
    if i in (0,3,6,9): stamp(f'b{i}')
    if i==FORCE+1: a(f"v_mov_b32 v18, {NONL}\nds_read_b32 v16, v18")
    if i==FORCE+2: a(f"v_readfirstlane_b32 s{NON}, v16")
    R=[x for k in range(2) for x in [qrx(i,k,0),qrx(i,k,1)]+[qrw(i,k,ct,u) for ct in range(2) for u in range(2)]]
    M=[qmm(i-1,k,ct,qt) for k in range(2) for ct in range(2) for qt in range(2)] if i>0 else []
    weave(R,M)
    a(f"s_cmp_ge_u32 s{W}, 2\ns_cbranch_scc1 L_c{i}")
    weave([qrw(i,k,2,u) for k in range(2) for u in range(2)],[qmm(i-1,k,2,qt) for k in range(2) for qt in range(2)] if i>0 else [])
    a(f"L_c{i}:")
    if i==7: a(f"v_add_u32 v{XR}, 0x10000, v{XR}\nv_add_u32 v7, 0x10000, v7")
    if i<9: em(fill[done:quota[i]]); done=quota[i]
    if i<=FORCE:
        if i<FORCE: a(f"s_getreg_b32 s68, hwreg(HW_REG_IB_STS, 0, 4)\ns_or_b32 s68, s68, s{FLG}")
        else: a(f"s_cmp_lg_u32 s{FLG}, 0")
        a(f"s_cbranch_scc1 L_nf{i}\ns_call_b64 s[{RET}:{RET+1}], L_flag1\nL_nf{i}:")
    a("s_waitcnt lgkmcnt(0)")
def qst(ct):
    for qt in range(2):
        d=ACC+8*ct+4*qt
        a(f"""v_pk_mul_f32 v[{d}:{d+1}], v[{d}:{d+1}], s[6:7]
        v_pk_mul_f32 v[{d+2}:{d+3}], v[{d+2}:{d+3}], s[6:7]
        v_cvt_pk_bf16_f32 v{d}, v{d}, v{d+1}
        v_cvt_pk_bf16_f32 v{d+1}, v{d+2}, v{d+3}
        ds_write_b64 v{QW}, v[{d}:{d+1}] offset:{16*QP*qt+32*ct}""")
a(f"s_mov_b32 s6, {fh(CSCALE)}\ns_mov_b32 s7, {fh(CSCALE)}")
em([qmm(9,k,ct,qt) for ct in range(2) for k in range(2) for qt in range(2)])
a(f"s_cmp_ge_u32 s{W}, 2\ns_cbranch_scc1 L_c10")
em([qmm(9,k,2,qt) for k in range(2) for qt in range(2)])
a(f"L_c10:\nv_mov_b32 v{IDX}, 0xdddddddd")
qst(0); qst(1)
a("s_cbranch_scc1 L_c11")
qst(2)
a("L_c11:\ns_waitcnt lgkmcnt(0)")
stamp('f_qst')

a(f"""global_load_dwordx4 v[{TA}:{TA+3}], v{L16}, s[{TW_}:{TW_+1}]
global_load_dwordx4 v[{TA+4}:{TA+7}], v{L16}, s[{TW_}:{TW_+1}] offset:1024
global_load_dwordx4 v[{TA-4}:{TA-1}], v{L16}, s[{TW_}:{TW_+1}] offset:2048
s_setprio 3
s_barrier""")
stamp('att')
VRA=TA; FO=TA+1; L8=TA+2; PA=TA+3; FN=TA+4
def koff(g,t): return (g>>1)*10240+(2*(g&1)+t)*1024
def k4off(g): return (g>>1)*10240+4096
def voff(g,u): return (g>>1)*10240+5120+(4*(g&1)+u)*640
on=f"s_mov_b64 exec, s[{VM}:{VM+1}]"; off="s_mov_b64 exec, -1"
def M16(d,k,q,c): return f"v_mfma_f32_32x32x16_bf16 v[{d}:{d+15}], v[{k}:{k+3}], v[{Q16[q]}:{Q16[q]+3}], {c}"
def M4(d,k,q): return f"v_mfma_f32_32x32x4_2b_bf16 v[{d}:{d+31}], v[{k}:{k+1}], v[{Q4[q]}:{Q4[q]+1}], v[{d}:{d+31}]"
def SM(v,x,q): return f"v_smfmac_f32_32x32x32_bf16 v[{O[q]}:{O[q]+15}], v[{v}:{v+3}], v[{x}:{x+7}], v{IDX}"
CMr=[f"v[{c}:{c+15}]" for c in CM]
def qrd(q): return f"""ds_read_b64 v[{Q16[q]}:{Q16[q]+1}], v{QR} offset:{32*QP*q}
ds_read_b64 v[{Q16[q]+2}:{Q16[q]+3}], v{QR} offset:{32*QP*q+8}
ds_read_b64 v[{Q4[q]}:{Q4[q]+1}], v{QR+1} offset:{32*QP*q+32}"""
a(f"""{qrd(0)}
ds_read_b128 v[{KF}:{KF+3}], v{AK} offset:{koff(0,0)}
ds_read_b128 v[{KF+4}:{KF+7}], v{AK} offset:{koff(0,1)}
{qrd(1)}
ds_read_b128 v[{K4}:{K4+3}], v{AK} offset:{k4off(0)}
s_waitcnt lgkmcnt(5)
{M16(SS[0],KF,0,'0')}
s_waitcnt lgkmcnt(4)
{M16(SS[0]+16,KF+4,0,'0')}
s_waitcnt lgkmcnt(0)
{M16(SS[1],KF,1,'0')}
{M16(SS[1]+16,KF+4,1,'0')}
{on}""")
for u in range(4): a(f"ds_read_b128 v[{VF[0]+4*u}:{VF[0]+4*u+3}], v{AV} offset:{voff(0,u)}")
a(f"""{off}
s_mov_b32 s{IT}, 8
{M4(SS[0],K4,0)}
s_mov_b32 s{SLOW}, 0
s_nop 0
{M4(SS[1],K4,1)}
s_nop 15
s_nop 0""")
for q in range(2):
    X=SS[q]
    a(f"v_max3_f32 v{T}, v{X}, v{X+1}, v{X+2}\nv_max3_f32 v{T+1}, v{X+3}, v{X+4}, v{X+5}")
    for i in range(6,32,4):
        a(f"v_max3_f32 v{T}, v{T}, v{X+i}, v{X+i+1}")
        if i+2<32: a(f"v_max3_f32 v{T+1}, v{T+1}, v{X+i+2}, v{X+i+3}")
    a(f"""v_max_f32 v{T}, v{T}, v{T+1}
    v_mov_b32 v{T+1}, v{T}
    s_nop 1
    v_permlane32_swap_b32 v{T}, v{T+1}
    v_max_f32 v{T}, v{T}, v{T+1}
    v_sub_f32 v{CM[q]}, {fh(-OFFS)}, v{T}
    v_sub_f32 v{CM[q]+1}, {fh(-OFFS)}, v{T}""")
    for i in range(1,8): a(f"v_mov_b64 v[{CM[q]+2*i}:{CM[q]+2*i+1}], v[{CM[q]}:{CM[q]+1}]")
X=SS[0]
for i in range(16):
    a(f"v_pk_add_f32 v[{X+2*i}:{X+2*i+1}], v[{X+2*i}:{X+2*i+1}], v[{CM[0]}:{CM[0]+1}]")
    if i==1: a(M16(SS[1],KF,1,CMr[1]))
a(f"v_exp_f32 v{X}, v{X}\nv_exp_f32 v{X+1}, v{X+1}\ns_waitcnt lgkmcnt(0)")
stamp('g_0')
a(".p2align 3\nL_loop:")
pos=dict(smp=2,mB=5,s0=10,mC=13,s1=21,s2=26,mA=29)
order=sorted(pos,key=lambda k:pos[k])
body=[]
for u in range(8):
    g,q=u>>1,u&1
    X=SS[q]; Y=SS[q^1]; gn=(u+1)>>1
    m={}
    m['mA']=M16(X,KF,q,CMr[q]); m['mB']=M16(Y+16,KF+4,q^1,CMr[q^1]); m['mC']=M4(Y,K4+2*(gn&1),q^1)
    for i in range(3): m[f's{i}']=SM(VF[g%2]+4*i,X+8*i,q)
    m['smp']=SM(VF[((u-1)>>1)%2]+12,Y+24,q^1)
    aft={k:[] for k in pos}
    if q==0:
        if g==3: aft['smp'].append("s_barrier")
        aft['smp'].append(f"ds_read_b128 v[{KF}:{KF+3}], v{AK} offset:{koff(g+1,0)}")
        aft['mB'].append(f"ds_read_b128 v[{KF+4}:{KF+7}], v{AK} offset:{koff(g+1,1)}")
        if g&1: aft['mC'].append(f"ds_read_b128 v[{K4}:{K4+3}], v{AK} offset:{k4off(g+1)}")
        aft['s2'].append("s_waitcnt lgkmcnt(0)")
    else:
        b=VF[(g+1)%2]
        aft['s0']+=[on]+[f"ds_read_b128 v[{b+4*i}:{b+4*i+3}], v{AV} offset:{voff(g+1,i)}" for i in range(4)]+[off]
        aft['mA'].append("s_waitcnt lgkmcnt(0)")
        if g==3:
            aft['s1']+=[f"s_sub_u32 s{IT}, s{IT}, 1",f"v_add_u32 v{AK}, 20480, v{AK}",f"v_add_u32 v{AV}, 20480, v{AV}"]
            aft['s2']+=[f"s_cmp_lg_u32 s{IT}, 0"]
    ins={i:[] for i in range(33)}
    for k in order: ins[pos[k]]+=[m[k]]+aft[k]
    for i in range(32): body+=ins[i]+[f"v_exp_f32 v{X+i}, v{X+i}"]
em(body[3:]+body[:3])
a("s_cbranch_scc1 L_loop\nL_check:")
stamp('loopend')
dd=[230,236]
def nrm(q,lo,hi):
    for i in range(lo,hi): a(f"v_pk_mul_f32 v[{CM[q]+2*i}:{CM[q]+1+2*i}], v[{O[q]+2*i}:{O[q]+2*i+1}], v[{T+4*q}:{T+1+4*q}] op_sel_hi:[1,0]")
    for i in range(lo,hi): a(f"v_cvt_pk_bf16_f32 v{dd[q]+i}, v{CM[q]+2*i}, v{CM[q]+1+2*i}")
a(f"v_rcp_f32 v{T}, v{O[0]+12}\ns_waitcnt vmcnt(0)")
nrm(0,0,4)
a(f"buffer_store_dwordx4 v[{dd[0]}:{dd[0]+3}], v{L16}, {S(WS_)}, s{SA} offen sc1\nv_rcp_f32 v{T+4}, v{O[1]+12}")
stamp('e_s0')
nrm(0,4,6); nrm(1,4,6); nrm(1,0,4)
a(f"""buffer_store_dwordx4 v[{dd[1]}:{dd[1]+3}], v{L16}, {S(WS_)}, s{SC} offen sc1
v_permlane32_swap_b32 v{dd[0]+4}, v{dd[1]+4}
v_permlane32_swap_b32 v{dd[0]+5}, v{dd[1]+5}
buffer_store_dwordx2 v[{dd[0]+4}:{dd[0]+5}], v{L8}, {S(WS_)}, s{SB} offen sc1""")
chk=[]
for q in range(2):
    o=O[q]
    chk+=lines(f"""v_max3_f32 v{T+2+q}, |v{o}|, |v{o+1}|, |v{o+2}|
    v_max3_f32 v{T+2+q}, v{T+2+q}, |v{o+3}|, |v{o+4}|
    v_max3_f32 v{T+2+q}, v{T+2+q}, |v{o+5}|, |v{o+6}|
    v_max_f32 v{T+2+q}, v{T+2+q}, |v{o+7}|""")
prs=[O[q]+2*i for q in range(2) for i in range(6)]
chk.append(f"v_pk_add_f32 v[{T+4}:{T+5}], v[{prs[0]}:{prs[0]+1}], v[{prs[1]}:{prs[1]+1}]")
for r_ in prs[2:]: chk.append(f"v_pk_add_f32 v[{T+4}:{T+5}], v[{T+4}:{T+5}], v[{r_}:{r_+1}]")
chk+=lines(f"""v_cmp_gt_f32 vcc, {fh(2.0**110)}, v{O[0]+12}
v_add_f32 v{T+4}, v{T+4}, v{T+5}
v_min_f32 v{T+2}, v{T+2}, v{T+3}
s_mov_b64 s[68:69], vcc
v_cmp_gt_f32 vcc, {fh(2.0**110)}, v{O[1]+12}
v_cmp_gt_f32 s[66:67], s6, |v{T+4}|
v_cmp_lt_f32 s[6:7], s7, v{T+2}
s_and_b64 vcc, vcc, s[68:69]
s_and_b64 vcc, vcc, s[66:67]
s_and_b64 vcc, vcc, s[6:7]""")
TB=84; NF=136; XX=[4,148]; TRs=[20,52]; TIs=[36,68]
stamp('e_st')
a(f"v_add_u32 v3, {TL}, v{L16}")
for qd in [0,2,1,3,13,14]: a(f"ds_read_b128 v[{TB+4*qd}:{TB+4*qd+3}], v3 offset:{1024*qd}")
a(f"s_mov_b32 s6, 0x7f800000\ns_mov_b32 s7, {fh(2.0**-(OFFS+14))}")
stamp('e_rd')
em(chk)
stamp('e_chk')
a(f"""s_cmp_eq_u64 vcc, -1
s_waitcnt lgkmcnt(0)
s_cbranch_scc0 L_slow
L_store:""")
stamp('e_w')
a("s_barrier")
stamp('T-1')
def mm(d,A,B,c): return f"v_mfma_f32_32x32x16_bf16 v[{d}:{d+15}], v[{A}:{A+3}], v[{B}:{B+3}], {c}"
def vrd(r):
    return [f"ds_read_b64_tr_b16 v[{XX[r]+8*p+4*s+2*u}:{XX[r]+8*p+4*s+2*u+1}], v{VRA} offset:{VP*(2*r+p)+640*s+160*u}" for p in range(2) for s in range(2) for u in range(2)]
def sta(r):
    f=XX[r]; TR=TRs[r]; TI=TIs[r]; TRr=f"v[{TR}:{TR+15}]"; TIr=f"v[{TI}:{TI+15}]"
    return [mm(TR,f,TB,'0'),mm(TI,f,TB+8,'0'),mm(TR,f+4,TB+4,TRr),mm(TI,f+4,TB+12,TIr),mm(TR,f+8,NF,TRr),mm(TI,f+8,TB,TIr),mm(TR,f+12,NF+4,TRr),mm(TI,f+12,TB+4,TIr)]
WRr=TB+16; WI=TB+28; GG=TB+40; P=144
def pr(x): return f"v[{x}:{x+1}]"
def twid(r):
    f=XX[r]; TR=TRs[r]; TI=TIs[r]; o=[]
    for i in range(0,12,2):
        o+=lines(f"""v_pk_mul_f32 {pr(P)}, {pr(TI+i)}, {pr(WI+i)}
        v_pk_mul_f32 {pr(P+2)}, {pr(TR+i)}, {pr(WI+i)}
        v_pk_fma_f32 {pr(TR+i)}, {pr(TR+i)}, {pr(WRr+i)}, {pr(P)} neg_lo:[0,0,1] neg_hi:[0,0,1]
        v_pk_fma_f32 {pr(TI+i)}, {pr(TI+i)}, {pr(WRr+i)}, {pr(P+2)}
        v_cvt_pk_bf16_f32 v{f+4*(i//4)+(i%4)//2}, v{TR+i}, v{TR+i+1}
        v_cvt_pk_bf16_f32 v{f+4*(i//4)+2+(i%4)//2}, v{TI+i}, v{TI+i+1}""")
    return o
def stb(r):
    f=XX[r]; y=TRs[r]; return [mm(y,f,GG,'0'),mm(y,f+4,GG+4,f"v[{y}:{y+15}]"),mm(y,f+8,GG+8,f"v[{y}:{y+15}]")]
FF=XP.get('ff','nt'); HST='ast' not in XP
def fout(r):
    y=TRs[r]; d=TIs[r]
    return [f"v_cvt_pk_bf16_f32 v{d+i}, v{y+2*i}, v{y+2*i+1}" for i in range(8)]+[on,f"ds_write_b128 v{FO}, v[{d}:{d+3}] offset:{1280*r}",f"ds_write_b128 v{L8}, v[{d+4}:{d+7}] offset:{1280*r}",off]
def frd(r,d,ad): return [f"ds_read_b128 v[{d}:{d+3}], v{ad} offset:{1280*r}",f"ds_read_b128 v[{d+4}:{d+7}], v{ad} offset:{1280*r+1024}"]
def fsto(r,d):
    return [f"buffer_store_dwordx4 v[{d}:{d+3}], v{L16}, {S(OUT_)}, s{66+r} offen {FF}","s_mov_b64 exec, 0xffff",f"buffer_store_dwordx4 v[{d+4}:{d+7}], v{L16}, {S(OUT_)}, s{66+r} offen offset:1024 {FF}",off]
def rowsc(wr,ad): return lines(f"""s_lshl_b32 s66, s{wr}, 8
s_add_u32 s66, s66, s{T0}
s_mul_i32 s66, s66, 2560
s_add_u32 s67, s66, {128*2560}
v_bfe_u32 v{ad}, v0, 3, 2
v_xor_b32 v{ad}, v{ad}, v0
s_mul_i32 s7, s{wr}, 2560
s_add_u32 s7, s7, {FSG}
v_lshl_add_u32 v{ad}, v{ad}, 4, s7""")
flag3=["s_waitcnt vmcnt(0)","s_barrier","s_mov_b64 exec, 0xffff",
   f"buffer_load_dword v1, v{PA}, {S(WS_)}, s{SA} offen sc1","s_mov_b64 exec, 15",f"buffer_load_dword v1, v{PA}, {S(WS_)}, s{SB} offen sc1",off]
scal=lines(f"""s_lshl_b32 m0, s{W}, 10
s_mul_i32 s68, s{QB}, 81920
s_add_u32 s68, s68, {WS_O}
s_add_u32 s{XB_}, s{WS_}, s68
s_addc_u32 s{XB_+1}, s{WS_+1}, 0
s_mov_b32 s{XB_+2}, 81920
v_xor_b32 v{L8}, 16, v{FO}""")
OAa=TA-4; WXa=164; BA=[84+4*i for i in range(8)]; ACa=116
wxr=[f"ds_read_b128 v[{WXa+4*st}:{WXa+4*st+3}], v{OAa+3} offset:{1024*st}" for st in range(20)]
A0=sta(0); A1=sta(1); W0=twid(0); W1=twid(1); B0=stb(0); FP=int(XP.get('fp',10))
R1=vrd(1)+[f"ds_read_b128 v[{TB+4*qd}:{TB+4*qd+3}], v3 offset:{1024*qd}" for qd in range(4,13)]
em(vrd(0)); em(scal); a("s_waitcnt lgkmcnt(6)")
a(A0[0]); a(A0[1]); a("s_waitcnt lgkmcnt(0)")
def fp(j):
    if FP==j: em(flag3); stamp('T0')
for j in range(2,8):
    a(A0[j]); em(R1[:3]); R1=R1[3:]; fp(j)
a("s_waitcnt lgkmcnt(9)")
for j in range(3):
    a(A1[j]); em(wxr[2*j:2*j+2]); fp(8+j)
a("s_waitcnt lgkmcnt(6)")
for j in range(3,8):
    em(W0[:5]); W0=W0[5:]; a(A1[j]); em(wxr[2*j:2*j+2]); fp(8+j)
em(W0)
fp(16)
a("s_nop 1")
for j in range(3):
    a(B0[j]); em(W1[:6]); W1=W1[6:]
em(W1)
em(wxr[16:18]); B1=stb(1); f0=fout(0)
a(B1[0]); em(f0[:4]); a(B1[1]); em(f0[4:8]); a(B1[2]); em(f0[8:]); em(wxr[18:])
if not HST: em(rowsc(W,3)); em(frd(0,4,3))
else: a("s_nop 5")
em(fout(1))
if not HST:
    em(frd(1,12,3)); a("s_waitcnt lgkmcnt(4)"); em(fsto(0,4)); a("s_waitcnt lgkmcnt(0)"); em(fsto(1,12))
a("s_waitcnt lgkmcnt(0)")
late=[]
FSP=int(XP.get('fsp',99))
stamp('o_fft')
a("s_barrier")
stamp('T1')
oda=[f"buffer_load_dwordx4 v{L16}, {S(XB_)}, m0 offen sc1 lds","s_add_u32 m0, m0, 40960","s_nop 0",f"buffer_load_dwordx4 v{L16}, {S(XB_)}, m0 offen sc1 lds",f"s_sub_u32 m0, m0, {40960-4096}","s_nop 0"]
SYNC=eval(XP.get('sync','{0/1,1/2,2/4,4/6,6/8,8/10}').replace('/',':'))
AHEAD=int(XP.get('ahead',3))
def ard(st):
    b=BA[st%8]
    if st<16: return [f"ds_read_b128 v[{b}:{b+3}], v{OAa} offset:{2048*st}"]
    return [f"ds_read_b64 v[{b+2*u}:{b+2*u+1}], v{OAa+1} offset:{2048*(st-16)+1024*u}" for u in range(2)]
ar=0; am=0
def amm():
    global am
    b=BA[am%8]; n=sum(len(ard(x)) for x in range(am+1,ar))
    a(f"s_waitcnt lgkmcnt({n})\nv_mfma_f32_16x16x32_bf16 v[{ACa}:{ACa+3}], v[{WXa+4*am}:{WXa+4*am+3}], v[{b}:{b+3}], {'0' if am==0 else f'v[{ACa}:{ACa+3}]'}")
    am+=1
def awork(avail,k):
    global ar
    old=ar
    while ar<avail and ar-am<8 and sum(len(ard(x)) for x in range(am,ar+1))<=14: em(ard(ar)); ar+=1
    for _ in range(k):
        if am<old: amm()
issued=0; avail=0; vm=[]
def slot(k):
    global late
    if late:
        c=late[0]; late=late[1:]; em(c); vm.extend([None]*sum(x.startswith('buffer_') for x in c))
    else: awork(avail,k)
PRE=int(XP.get('pre',2))
for hc in sorted(SYNC):
    while issued<min(10,SYNC[hc]+AHEAD):
        if hc>0: slot(3)
        em(oda); vm.extend([issued]*2); issued+=1
    if hc==0:
        for _ in range(PRE): slot(0)
    elif issued==10:
        while late or am<avail-4: slot(2)
    last=max(i for i,x in enumerate(vm) if x==SYNC[hc]-1)
    a(f"s_waitcnt vmcnt({len(vm)-1-last})\ns_barrier")
    avail=2*SYNC[hc]
    stamp(f'o_b{hc}')
while am<20: awork(20,2)
stamp('gemm')
a(f"""s_nop 7
v_cvt_pk_bf16_f32 v{ACa}, v{ACa}, v{ACa+1}
v_cvt_pk_bf16_f32 v{ACa+1}, v{ACa+2}, v{ACa+3}
ds_write_b64 v{OAa+2}, v[{ACa}:{ACa+1}]
s_branch L_fin""")
a(f"""L_flag1:
s_mov_b32 s{CNT}, 0
L_non:
s_waitcnt vmcnt(0)
v_readfirstlane_b32 s{NON}, v16
s_add_u32 s{CNT}, s{CNT}, 1
s_cmp_gt_u32 s{CNT}, {SPIN}
s_cbranch_scc1 L_gotnon
s_cmp_lg_u32 s{NON}, 0
s_cbranch_scc1 L_gotnon
global_load_dword v16, v17, s[{DBG}:{DBG+1}] sc1
s_branch L_non
L_gotnon:
s_lshl_b32 s68, s{QB}, 3
s_add_u32 s68, s68, s{HG}
s_mul_i32 s68, s68, {FS//4}
s_add_u32 s68, s68, s{W}
s_lshl_b32 s68, s68, 2
s_add_u32 s68, s68, {WS_F1-8}
v_mov_b32 v18, {NONL}
s_mov_b64 exec, 1
buffer_store_dword v16, v17, {S(WS_)}, s68 offen sc1
ds_write_b32 v18, v16
s_mov_b64 exec, -1
s_mov_b32 s{FLG}, 1""")
stamp('f_flag')
a(f"s_setpc_b64 s[{RET}:{RET+1}]")

a("L_loader:")
ST=[dict(srd=36,v=5,G=16,GS=17,GL=18,L=19,LD=30,LS=31,LW=34),dict(srd=12,v=7,G=26,GS=27,GL=35,L=44,LD=64,LS=66,LW=67)]
for k,st in enumerate(ST):
    a(f"""s_lshl_b32 s47, s{W}, 1
    s_sub_u32 s47, s47, {8-k}
    s_mov_b32 s{st['srd']+3}, 0x20000
    s_cmp_ge_u32 s47, 5
    s_cbranch_scc1 L_sx{k}
    s_lshl_b32 s6, s47, 6
    v_add_u32 v21, s6, v0
    v_mul_u32_u24 v23, 0x667, v21
    v_lshrrev_b32 v23, 14, v23
    s_mov_b32 s{st['srd']+2}, 819200
    v_mul_u32_u24 v24, 10, v23
    s_mov_b32 s{st['GS']}, {64*1280}
    v_sub_u32 v24, v21, v24
    s_lshl_b32 s{st['L']}, s47, 10
    v_lshrrev_b32 v25, 3, v23
    s_add_u32 s{st['L']}, s{st['L']}, {RB}
    v_xor_b32 v26, v25, v23
    s_mov_b32 s{st['LD']}, 5120
    v_and_b32 v26, 1, v26
    s_mov_b32 s{st['LS']}, 10240
    v_lshl_add_u32 v25, v25, 1, v26
    s_mov_b32 s{st['LW']}, 51200
    v_bfe_u32 v26, v23, 1, 2
    s_mul_i32 s6, s{HG}, 160
    v_lshl_add_u32 v25, v25, 2, v26
    v_mul_u32_u24 v25, 0x500, v25
    v_lshl_add_u32 v24, v24, 4, s6
    v_add_u32 v{st['v']}, v24, v25
    v_add_u32 v{st['v']+1}, {32*1280}, v{st['v']}
    s_branch L_se{k}
    L_sx{k}:
    s_add_u32 s6, s47, s{J}
    s_and_b32 s6, s6, 3
    s_lshr_b32 s7, s{HG}, 2
    s_lshl_b32 s6, s6, s7
    s_lshl_b32 s{st['L']}, s6, 10
    s_add_u32 s{st['L']}, s{st['L']}, {XBL}
    s_lshl_b32 s{st['LD']}, s{RBD}, 10
    s_and_b32 s47, s6, 1
    s_lshl_b32 s47, s47, 6
    v_xor_b32 v21, s47, v3
    s_lshl_b32 s7, s7, 6
    v_xor_b32 v22, s7, v21
    s_lshl_b32 s7, s{QB}, 3
    s_add_u32 s6, s6, s7
    s_mul_i32 s7, s6, 10240
    v_add_u32 v{st['v']}, s7, v21
    s_add_u32 s6, s6, s{RBD}
    s_mul_i32 s7, s6, 10240
    v_add_u32 v{st['v']+1}, s7, v22
    s_mov_b32 s{st['srd']+2}, 2621440
    s_mov_b32 s{st['GS']}, 128
    s_mov_b32 s{st['LS']}, 8192
    s_mov_b32 s{st['LW']}, 0
    L_se{k}:
    s_lshl_b32 s6, s{R0}, 1
    s_mul_i32 s{st['G']}, s6, s{st['GS']}
    s_mul_i32 s{st['GL']}, s{st['GS']}, 10""")
a(f"""s_and_b32 s6, s{W}, 3
s_lshl_b32 s6, s6, 6
v_add_u32 v21, s6, v0
v_mul_u32_u24 v47, {FS}, v0
v_mul_u32_u24 v48, {FS}, v21""")
stamp('f_ka0')
a(f"""s_waitcnt lgkmcnt(0)
s_cmp_ge_u32 s{W}, 7
s_cselect_b32 s36, s48, s50
s_cselect_b32 s37, s49, s51
s_cmp_ge_u32 s{W}, 6
s_cselect_b32 s12, s48, s50
s_cselect_b32 s13, s49, s51""")
a(cpy)
a(f"""s_lshl_b32 s6, s2, 3
s_add_u32 s6, s6, s{W}
s_cmp_eq_u32 s6, 7
s_cbranch_scc0 L_nonon
s_or_b32 s68, s68, 1
v_mov_b32 v23, s68
s_mov_b64 exec, 1
global_store_dword v17, v23, s[{DBG}:{DBG+1}] sc1
s_mov_b64 exec, -1
L_nonon:""")
def issue(i):
    for st in ST:
        if i==5: a(f"s_sub_u32 s{st['L']}, s{st['L']}, s{st['LW']}")
        a(f"""s_mov_b32 m0, s{st['L']}
        s_add_u32 s{st['L']}, s{st['L']}, s{st['LS']}
        {dmab(st['v'],st['srd'],'s%d'%st['G'])}
        s_add_u32 m0, m0, s{st['LD']}
        s_add_u32 s6, s{st['G']}, s{st['GS']}
        {dmab(st['v']+1,st['srd'],'s%d'%st['G'])}
        s_cmp_eq_u32 s6, s{st['GL']}
        s_cselect_b32 s{st['G']}, 0, s6""")
KB=int(XP.get('kb',2))
for i in range(KB): issue(i)
stamp('f_kvi')
a("s_barrier")
for i in range(KB,3): issue(i)
POLLI=int(XP.get('polli',8))
fillL=pre_m()+[p1_scal()]
def lpolls():
    a(f"buffer_load_dwordx2 v[50:51], v47, {S(WS_)}, s68 offen sc1\nbuffer_load_dwordx2 v[52:53], v48, {S(WS_)}, s68 offen sc1")
for i in range(10):
    n=4*min(2,9-i)+(2 if i>POLLI else 0)
    a(f"s_waitcnt vmcnt({n})\ns_barrier")
    if i<7: issue(i+3)
    if i==7: a(f"v_mov_b32 v18, {NONL}\nds_read_b32 v16, v18\ns_mov_b32 s68, {WS_F1}")
    if i==POLLI: lpolls()
    if i==7: em(fillL[:5])
    if i==8: em(fillL[5:9])
fillL=fillL[9:]
a(f"""s_waitcnt lgkmcnt(0)
v_readfirstlane_b32 s{NON}, v16
s_mov_b32 s{CNT}, 0
s_and_b32 s6, s{W}, 3
s_lshl_b32 m0, s6, 10""")
if POLLI>9: lpolls()
a(f"""L_pk:
s_waitcnt vmcnt(0)
v_xor_b32 v50, s{NON}, v50
v_xor_b32 v51, s{NON}, v51
v_xor_b32 v52, s{NON}, v52
v_xor_b32 v53, s{NON}, v53
v_or3_b32 v50, v50, v51, v52
v_or_b32 v50, v50, v53
v_cmp_ne_u32 vcc, 0, v50
s_add_u32 s{CNT}, s{CNT}, 1
s_cmp_gt_u32 s{CNT}, {SPIN}
s_cbranch_scc1 L_pkok
s_cbranch_vccz L_pkok""")
lpolls()
a("s_branch L_pk\nL_pkok:")
dma=f"buffer_load_dwordx4 v{L16}, {S(WS_)}, m0 offen sc1 lds"
bump="s_add_u32 m0, m0, 8192"
stamp('f_qst')
for k in range(6): a(dma+"\ns_add_u32 m0, m0, 4096\ns_nop 0")
em(fillL)
stamp('f_flag')
a("s_waitcnt vmcnt(0)")
stamp('f_p1')

def th(q,r):
    base,o=[(TW_,4096),(TW_+2,12288),(RET,20480)][q//8]
    return f"global_load_dwordx4 v[{r}:{r+3}], v{L16}, s[{base}:{base+1}] offset:{1024*q-o}"
H0=24; FA=H0; PA2=H0+3; WOA=H0+4; UA=H0+9; UR=H0+14; WAD=H0+16
W3=4; VW=7; OA=8; SG=10; PA3=11; FNH=12; WXW=14
FT=92; P1A=124; PFR=128; PD=176; WA=92; WX=172
kd=[dma,"s_add_u32 m0, m0, 4096","s_nop 0"]
a("s_barrier")
stamp('att')
for k in range(5): a(th(9+k,H0+4*k))
em(kd*20)
a("s_waitcnt vmcnt(16)\ns_barrier")
a(f"""s_mov_b32 s68, m0
s_lshl_b32 m0, s{HA}, 10
s_nop 0
{dmab(FA,XA_,'s69')}
s_add_u32 m0, m0, 4096
s_cmp_ge_u32 s{HA}, 2
{dmab(FA+1,XA_,'s69')}
s_cbranch_scc1 L_f2
s_add_u32 m0, m0, 4096
s_nop 0
{dmab(FA+2,XA_,'s69')}
L_f2:
s_mov_b32 m0, s68""")
for k in range(9): a(th(k,FT+4*k))
em(kd*14)
a("s_waitcnt vmcnt(14)\ns_barrier")
if 'nopfwo' not in XP:
    a(f"""s_lshr_b32 s6, s2, 3
    s_lshl_b32 s6, s6, 2
    s_add_u32 s6, s6, s{HA}
    s_mul_i32 s6, s6, 6400
    v_lshlrev_b32 v1, 7, v0
    s_mov_b32 exec_hi, 0x3ffff
    buffer_load_dword v1, v1, {S(WO_)}, s6 offen
    s_mov_b32 exec_hi, -1""")
for s_ in range(4):
    for Tt in range(3):
        for u in range(2):
            f=PFR+12*s_+4*Tt+2*u
            a(f"ds_read_b64_tr_b16 v[{f}:{f+1}], v{P1A+(Tt==2)} offset:{(32*s_+u)*80+(32 if Tt==1 else 0)}")
a("s_waitcnt lgkmcnt(0)")
for s_ in range(4):
    if s_==int(XP.get('pb',3)): a("s_barrier")
    for nt in range(2):
        for Tt in range(3):
            d=PD+12*nt+4*Tt; f=PFR+12*s_+4*Tt
            a(f"v_mfma_f32_16x16x32_bf16 v[{d}:{d+3}], v[{f}:{f+3}], v[{FT+16*nt+4*s_}:{FT+16*nt+4*s_+3}], {'0' if s_==0 else f'v[{d}:{d+3}]'}")
a("s_nop 2")
for nt in range(2):
    for Tt in range(3):
        d=PD+12*nt+4*Tt
        a(f"v_cvt_pk_bf16_f32 v{d}, v{d}, v{d+1}\nv_cvt_pk_bf16_f32 v{d+1}, v{d+2}, v{d+3}")
        if Tt<2: a(f"ds_write_b64 v{P1A+2}, v[{d}:{d+1}] offset:{1280*nt+32*Tt}")
a("s_mov_b32 exec_hi, 0")
for nt in range(2): a(f"ds_write_b64 v{P1A+2}, v[{PD+12*nt+8}:{PD+12*nt+9}] offset:{1280*nt+64}")
a("s_mov_b32 exec_hi, -1")
for k in range(3): a(f"ds_read_b128 v[{PFR+4*k}:{PFR+4*k+3}], v{P1A+3} offset:{1024*k}")
a("s_waitcnt lgkmcnt(0)")
for k in range(3):
    if k==2: a("s_mov_b32 exec_hi, 0")
    a(f"buffer_store_dwordx4 v[{PFR+4*k}:{PFR+4*k+3}], v{L16}, {S(WS_)}, s{PB} offen offset:{1024*k} sc1")
a("s_mov_b32 exec_hi, -1")
stamp('g_p1')
for k in range(3): a(th(14+k,W3+4*k))
a(f"""s_mul_i32 s6, s2, {FS}
s_add_u32 s6, s6, {WS_F2}
v_mov_b32 v3, s{NON}
s_lshl_b32 m0, s{HA}, 10
s_mul_i32 s68, s{HG}, 160
s_waitcnt vmcnt(6)
s_barrier""")
for n in range(25):
    WN=int(XP.get('wn',13))
    if n==WN:
        stamp('g_wo')
        a(f"""s_cmp_eq_u32 s{W}, 7
        s_waitcnt vmcnt({WN})
        s_barrier
        s_cbranch_scc0 L_nofl2
        s_mov_b64 exec, 1
        buffer_store_dword v3, v{L16}, {S(WS_)}, s6 offen sc1
        s_mov_b64 exec, -1
        L_nofl2:""")
    a(dmab(WOA+n%5,WO_,'s68')); a("s_add_u32 m0, m0, 4096")
    a(f"s_add_u32 s68, s68, {128*1280}" if n%5==4 else "s_nop 0")
a(f"""s_add_u32 s66, s{TAB}, tab_hid-L_pc
s_addc_u32 s67, s{TAB+1}, 0
s_lshl_b32 s6, s{HA}, 10
v_add_u32 v1, s6, v{L16}
s_mov_b32 s68, {WS_F2}
s_waitcnt vmcnt(0)
s_barrier""")
for k in range(5):
    for u in range(2):
        a(f"ds_read_b64_tr_b16 v[{44+4*k+2*u}:{45+4*k+2*u}], v{WAD+u+(2 if k==4 else 0)} offset:{6400*(k%4)}")
for half in range(2):
    for H in range(16*half,16*half+16):
        for u in range(2): a(f"ds_read_b64_tr_b16 v[{WA+4*H+2*u}:{WA+4*H+2*u+1}], v{W3+(H&1)} offset:{6400*((H>>1)%8)+1280*u}")
        if H==2:
            a("s_waitcnt lgkmcnt(6)")
            for k in range(5): a(f"ds_write_b128 v{WXW+(k==4)}, v[{44+4*k}:{47+4*k}] offset:{1024*(k%4)}")
    for b in range(4*half,4*half+4):
        for u in range(2): a(f"ds_read_b64_tr_b16 v[{WA+128+4*b+2*u}:{WA+128+4*b+2*u+1}], v{W3+2} offset:{12800*(b%4)+6400*u}")
    if half==0:
        for i in range(3): a(f"v_add_u32 v{W3+i}, 51200, v{W3+i}")
def spin(tag,addr,soff):
    a(f"""s_mov_b32 s{CNT}, 0
    L_{tag}:
    s_waitcnt vmcnt(0)
    v_cmp_ne_u32 vcc, s{NON}, v3
    s_add_u32 s{CNT}, s{CNT}, 1
    s_cmp_gt_u32 s{CNT}, {SPIN}
    s_cbranch_scc1 L_{tag}ok
    s_cbranch_vccz L_{tag}ok
    buffer_load_dword v3, v{addr}, {S(WS_)}, {soff} offen sc1
    s_branch L_{tag}
    L_{tag}ok:""")
a(f"buffer_load_dword v3, v{PA2}, {S(WS_)}, s68 offen sc1")
spin('pu',PA2,'s68')
a(f"""s_lshl_b32 m0, s{HA}, 10
s_mul_i32 s68, s{UU}, 160
s_add_u32 s68, s68, {WS_U}
s_waitcnt lgkmcnt(0)""")
stamp('g_wr')
a("s_barrier")
for n in range(10):
    a(dmab(UA+n%5,WS_,'s68',0,'sc1')); a("s_add_u32 m0, m0, 4096")
    a(f"s_add_u32 s68, s68, {128*10240}" if n%5==4 else "s_nop 0")
a(f"s_add_u32 m0, m0, {TL-40960}\ns_nop 0")
for k in range(4):
    if k==3: a(f"s_cmp_eq_u32 s{HA}, 3\ns_cbranch_scc1 L_nt3")
    a("global_load_lds_dwordx4 v1, s[66:67]")
    if k<3: a("s_add_u32 m0, m0, 4096\ns_add_u32 s66, s66, 4096\ns_addc_u32 s67, s67, 0")
a("L_nt3:")
a(f"s_lshl_b32 s68, s{QB}, 10\ns_add_u32 s68, s68, {WS_F3}\ns_waitcnt vmcnt(0)")
stamp('g_u')
a("s_barrier")
Fh=44
def s1r(b): return [f"ds_read_b64_tr_b16 v[{Fh+4*i+2*u}:{Fh+4*i+2*u+1}], v{UR+(i==2)} offset:{5120*b+32*i+1280*u+(2480 if i>2 else 0)}" for i in range(5) for u in range(2)]
em(s1r(0))
for b in range(2):
    nx=s1r(1) if b==0 else []
    for i in range(5):
        a(f"s_waitcnt lgkmcnt({8 if b==0 else 13-2*i})\nv_mfma_f32_16x16x32_bf16 v[{Fh+20+4*i}:{Fh+23+4*i}], v[{Fh+4*i}:{Fh+4*i+3}], v[{MM}:{MM+3}], 0")
        em(nx[2*i:2*i+2])
    if b==1: a("s_nop 0")
    for i in range(5):
        d=Fh+20+4*i; e=Fh+40+2*(i%4)
        a(f"v_cvt_pk_bf16_f32 v{d}, v{d}, v{d+1}\nv_cvt_pk_bf16_f32 v{d+1}, v{d+2}, v{d+3}\nds_write_b64 v{VW}, v[{d}:{d+1}] offset:{160*b+32*i}")
a("s_waitcnt lgkmcnt(0)")
stamp('loopend')
a("s_barrier")
stamp('T-1')
em(rowsc(HA,4))
a(f"""s_setprio 2
v_mov_b32 v1, s{NON}
s_lshl_b32 s6, s{HG}, 7
s_add_u32 s6, s6, s68
s_cmp_eq_u32 s{W}, 4
s_barrier""")
stamp('T0')
a(f"""s_cbranch_scc0 L_pook
s_mov_b64 exec, 1
buffer_store_dword v1, v{L16}, {S(WS_)}, s6 offen sc1
s_mov_b64 exec, -1
{'s_waitcnt vmcnt(0)' if 'nopw' not in XP else ''}""")
a(f"buffer_load_dword v3, v{PA3}, {S(WS_)}, s68 offen sc1")
spin('po',PA3,'s68')
stamp('o_fft')
a("s_barrier")
stamp('T1')
if HST:
    em(frd(0,72,4)+frd(1,80,4)); a("s_waitcnt lgkmcnt(2)"); em(fsto(0,72)); a("s_waitcnt lgkmcnt(0)"); em(fsto(1,80))
NBH=int(XP.get('nbh',6)); AC=24
def rd(st):
    b=44+4*(st%(NBH+1))
    if st<32: return [f"ds_read_b128 v[{b}:{b+3}], v{OA} offset:{1024*st}"]
    return [f"ds_read_b64 v[{b+2*u}:{b+2*u+1}], v{OA+1} offset:{1024*(st-32)+512*u}" for u in range(2)]
KEEP=int(XP.get('keep',2))
nr=0; nm=0
def hm():
    global nm
    b=44+4*(nm%(NBH+1)); n=sum(len(rd(x)) for x in range(nm+1,nr))
    a(f"s_waitcnt lgkmcnt({n})\nv_mfma_f32_32x32x16_bf16 v[{AC}:{AC+15}], v[{WA+4*nm}:{WA+4*nm+3}], v[{b}:{b+3}], {'0' if nm==0 else f'v[{AC}:{AC+15}]'}")
    nm+=1
while nm<40:
    if nr<40 and nr%4==0 and nr//4 in SYNC:
        while nr-nm>KEEP: hm()
        a("s_barrier"); stamp(f'o_b{nr//4}')
        em(rd(nr)); nr+=1
    elif nr<40 and nr-nm<NBH:
        em(rd(nr)); nr+=1
        if nr-nm>=4 and nr<40 and not (nr%4==0 and nr//4 in SYNC) and nr-nm<NBH:
            hm(); em(rd(nr)); nr+=1
    else: hm()
stamp('gemm')
a(f"v_mov_b64 v[{FN}:{FN+1}], v[{FNH}:{FNH+1}]\ns_nop 10")
for j in range(4):
    d=AC+4*j
    a(f"v_cvt_pk_bf16_f32 v{d}, v{d}, v{d+1}\nv_cvt_pk_bf16_f32 v{d+1}, v{d+2}, v{d+3}\nds_write_b64 v{SG}, v[{d}:{d+1}] offset:{16*j}")
OF=XP.get('of','nt')
a(f"""L_fin:
s_mul_i32 s6, s{QB}, {64*2560}
s_mul_i32 s7, s{HG}, 160
s_add_u32 s6, s6, s7
s_add_u32 s6, s6, 1280
s_cmp_ge_u32 s{W}, 2
s_waitcnt lgkmcnt(0)
s_barrier
ds_read_b128 v[24:27], v{FN}
s_cbranch_scc1 L_one
ds_read_b128 v[28:31], v{FN+2}
s_waitcnt lgkmcnt(0)
buffer_store_dwordx4 v[28:31], v{FN+3}, {S(OUT_)}, s6 offen {OF}
L_one:
s_waitcnt lgkmcnt(0)
buffer_store_dwordx4 v[24:27], v{FN+1}, {S(OUT_)}, s6 offen {OF}""")
if STAMP:
    a("s_waitcnt vmcnt(0)"); stamp('end')
    a(f"""s_lshl_b32 s6, s2, 3
    s_add_u32 s6, s6, s{W}
    s_lshl_b32 s6, s6, 6
    s_add_u32 s6, s6, {WS_ST}
    v_mov_b32 v21, 0
    s_waitcnt lgkmcnt(0)""")
    for i in range(nstamp[0]): a(f"v_mov_b32 v22, s{STB+2*i}\nbuffer_store_dword v22, v21, {S(WS_)}, s6 offen offset:{4*i}")
a("L_end:\ns_endpgm")
X=SS[0]
a(f"""L_slow:
s_cmp_lg_u32 s{SLOW}, 0
s_cbranch_scc1 L_store
v_subrev_u32 v{AV}, 163840, v{AV}
s_mov_b32 s{IT}, 0
L_blk:
s_mov_b32 s{SLOW}, 1
v_mov_b32 v{T}, 0xff800000""")
zero(CM[0],16); zero(O[0],16)
a(f"""L_pass:
s_mov_b32 s{CNT}, 0
L_sl:
s_lshr_b32 s66, s{CNT}, 1
s_mul_i32 s66, s66, 10240
s_and_b32 s6, s{CNT}, 1
s_mul_i32 s7, s6, 2048
s_add_u32 s7, s7, s66
buffer_load_dwordx4 v[{KF}:{KF+3}], v{L16}, {S(WS_)}, s7 offen sc1
buffer_load_dwordx4 v[{KF+4}:{KF+7}], v{L16}, {S(WS_)}, s7 offen offset:1024 sc1
s_lshl_b32 s7, s6, 3
s_add_u32 s7, s7, s66
s_add_u32 s7, s7, 4096
buffer_load_dwordx2 v[{K4}:{K4+1}], v{L16}, {S(WS_)}, s7 offen sc1
s_mul_i32 s7, s6, 2560
s_add_u32 s7, s7, s66
s_add_u32 s7, s7, 5120
{on}""")
for u in range(4): a(f"buffer_load_dwordx4 v[{VF[0]+4*u}:{VF[0]+4*u+3}], v{AV}, {S(WS_)}, s7 offen offset:{640*u} sc1")
a(f"""{off}
s_waitcnt vmcnt(0)
{M16(X,KF,0,CMr[0])}
{M16(X+16,KF+4,0,CMr[0])}
s_nop 9
{M4(X,K4,0)}
s_nop 15
s_nop 3
s_cmp_eq_u32 s{SLOW}, 1
s_cbranch_scc0 L_p2""")
for i in range(0,32,2): a(f"v_max3_f32 v{T}, v{T}, v{X+i}, v{X+i+1}")
a("s_branch L_nx\nL_p2:")
for i in range(32): a(f"v_exp_f32 v{X+i}, v{X+i}")
a("s_nop 1")
for u in range(4): a(SM(VF[0]+4*u,X+8*u,0))
a(f"""L_nx:
s_add_u32 s{CNT}, s{CNT}, 1
s_cmp_lt_u32 s{CNT}, 32
s_cbranch_scc1 L_sl
s_cmp_eq_u32 s{SLOW}, 1
s_cbranch_scc0 L_swap
s_mov_b32 s{SLOW}, 2
v_mov_b32 v{T+1}, v{T}
s_nop 1
v_permlane32_swap_b32 v{T}, v{T+1}
v_max_f32 v{T}, v{T}, v{T+1}""")
for i in range(16): a(f"v_sub_f32 v{CM[0]+i}, 0, v{T}")
a("s_branch L_pass\nL_swap:\ns_nop 7")
for i in range(6): a(f"v_swap_b32 v{Q16[0]+i}, v{Q16[1]+i}")
for i in range(16): a(f"v_swap_b32 v{O[0]+i}, v{O[1]+i}")
a(f"""s_add_u32 s{IT}, s{IT}, 1
s_cmp_lt_u32 s{IT}, 2
s_cbranch_scc1 L_blk
s_branch L_check""")

hdr=open('concat_heads__spectral_fnet__grouped_kv_mqa__prompt.s.ref').read().split('; Override launch')[0]
s=hdr+"; @launch grid=(256,1,1) block=(512,1,1) lds=163840\n"
if STAMP: s+="; stamps: "+" ".join(stnames)+"\n"
s+='.amdgcn_target "amdgcn-amd-amdhsa--gfx950"\n.text\n'+khead(KN)+a.text()
s+=emit_table('tab_a',table_a())+emit_table('tab_h',table_h())+emit_table('tab_hid',table_hid())+'L_tabend:\n'
s+='.section .rodata,"a"\n'+kdesc(KN,256,102)
open(OUTF,'w').write(s)
print('wrote',OUTF,len(s),'stamps',nstamp[0],stnames)
```

```python
import sys, math, struct
import numpy as np
sys.path.insert(0,'gen')
from asmlib import *

STAMP = '--stamp' in sys.argv
XP = dict((a[4:].split(':')+[''])[:2] for a in sys.argv if a.startswith('--x='))
OUTF = [a for a in sys.argv[1:] if not a.startswith('--')]
OUTF = OUTF[0] if OUTF else 'concat_heads__spectral_fnet__grouped_kv_mqa__prompt.s'
KN='concat_heads__spectral_fnet__grouped_kv_mqa__prompt_kernel'

WS_KV = 0x000000
WS_F1 = 0x040000
WS_F2 = 0x050000
WS_F3 = 0x060000
WS_O  = 0x100000
WS_U  = 0x400000
WS_ST = 0x900000
WS_SZ = 0x1000000
CSCALE = (20**-0.5)*math.log2(math.e)
OFFS = 100.0
SPIN = 200000
def f2u(x): return struct.unpack('<I',struct.pack('<f',x))[0]
def fh(x): return hex(f2u(x))
def bf(x):
    u=np.asarray(x,np.float32).view(np.uint32)
    return ((u+0x7fff+((u>>16)&1))>>16).astype(np.uint32)
def pack(vals):
    b=bf(vals); return b[...,0::2]|(b[...,1::2]<<16)
def sig(n): return 16*((n>>2)&1)+4*(n>>3)+(n&3)
def table_hid():
    out=np.zeros((15,64,4),np.uint32)
    for l in range(64):
        n=l&31; h=l>>5; k1=sig(n)
        for s in range(2):
            d1=np.arange(8)+16*s+8*h
            out[s,l]=pack(np.cos(2*np.pi*d1*k1/32))
            out[2+s,l]=pack(-np.sin(2*np.pi*d1*k1/32))
            out[13+s,l]=out[2+s,l]^0x80008000
        for j in range(3):
            d2=8*j+4*h+np.arange(4); ok=(d2<20)
            out[4+j,l]=(np.cos(2*np.pi*d2*k1/640)*ok).astype(np.float32).view(np.uint32)
            out[7+j,l]=(-np.sin(2*np.pi*d2*k1/640)*ok).astype(np.float32).view(np.uint32)
            k2=n if n<20 else 0
            out[10+j,l]=pack(np.concatenate([np.cos(2*np.pi*d2*k2/20)*ok, np.sin(2*np.pi*d2*k2/20)*ok]))
    return out.reshape(-1)
XBL=25600; RB=107520; NONL=158720
UL=0; OL=0; STG=81920; FSG=81920; WXL=102400; TL=122880; VL=138240; VP=1288
FLF=0; FSF=10240; FS=32; QSL=RB; QP=168
def grp_rows(k0): return ((k0&~7)+((k0>>2)&1))
NQH=17; NQA=3
def fin(w,l):
    c0=64*w+l; c1=min(c0+512,639)
    return [STG+(c0+c0//10)*16, c0*16+(c0//10)*2400, STG+(c1+c1//10)*16, c1*16+(c1//10)*2400]
def table_h():
    t=np.zeros((4,NQH,64,4),np.uint32)
    for w in range(4):
        for l in range(64):
            n=l&15; g=l>>4; r=(l>>2)&3; c=l&3
            j=np.arange(8)
            for nt in range(2):
                kidx=32*w+16*nt+n; u=kidx>>1; q=kidx&1
                for s in range(4):
                    sh=32*s+8*g+2*(j&3)+(j>>2)
                    v=np.cos(np.pi*sh) if kidx==1 else (np.cos(2*np.pi*u*sh/128) if q==0 else -np.sin(2*np.pi*u*sh/128))
                    t[w,4*nt+s,l]=pack(v)
            rb=FLF+(8*g+2*r)*80; sb=FSF+2560*w
            t[w,8,l]=[rb+8*c, rb+64+8*(c&1), sb+80*n+8*g, sb+16*l]
            fa=[]; wo=[]; ua=[]
            for k in range(5):
                cell=64*(w+4*k)+l
                if k<3: cf=min(cell,639); fa.append((cf//5)*20480+(cf%5)*16)
                pos=cell//10; cc=cell%10
                wo.append(((pos&~7)|((pos>>1)&3)|((pos&1)<<2))*1280+cc*16); ua.append(pos*10240+cc*16)
            ur=UL+10240*w+(2*r+(g&1))*160+(g>>1)*80+8*c
            wad=[25600*w+r*320+128+8*c+160*(grp_rows(20*(g>>1)+4*(g&1)+8*uu) if kind==0 else grp_rows(20*(4*uu+g)+16)) for kind in range(2) for uu in range(2)]
            t[w,9:14,l]=np.array(fa+[FS*(64*w+l)]+wo+ua+[ur,ur+(2480 if c>=2 else 0)]+wad).reshape(5,4)
            h=l>>5; qh=w&1; ct=w>>1; cb=r*320+64*ct+32*(g&1)+8*c
            t[w,14,l]=[cb+160*grp_rows(4*h), cb+160*grp_rows(20+4*h), cb+160*grp_rows(20*h+16), VL+n*VP+320*w+8*g]
            t[w,15,l]=[OL+qh*40960+16*l, OL+qh*40960+32768+8*l, STG+(32*qh+(l&31))*176+64*ct+8*h, 128*(l&7)]
            t[w,16,l]=fin(w+4,l)[:2]+[WXL+4096*w+16*l, WXL+16384+1024*w+16*l]
    return t.reshape(-1)
def table_a():
    t=np.zeros((4,NQA,64,4),np.uint32)
    for w in range(4):
        for l in range(64):
            g=l>>4; r=(l>>2)&3; c=l&3; h=l>>5
            t[w,0,l]=[VL+4*w*VP+(8*h+r)*40+(32 if (g&1) else 8*c), FSG+2560*w+16*((4*min(l&31,19)+2*h)^(((l&31)>>1)&3)), 8*(l&31)+40960*h, (l&1)*40960+((l>>1)&7)*128]
            t[w,1,l]=fin(w,l)
            n=l&15
            t[w,2,l]=[OL+(w>>1)*40960+512*g+16*(16*(w&1)+n), OL+(w>>1)*40960+32768+256*g+8*(16*(w&1)+n), STG+(16*w+n)*176+8*g+128, WXL+16*l]
    return t.reshape(-1)
def emit_table(name, arr):
    s=f".p2align 8\n.type {name},@object\n{name}:\n"
    for i in range(0,len(arr),8):
        s+=".long "+",".join(hex(int(x)) for x in arr[i:i+8])+"\n"
    s+=f".size {name}, {4*len(arr)}\n"
    return s

W=3; QB=4; HG=5
XB_=8; TW_=12; KV_=16; WS_=20; XA_=24; WO_=28; OUT_=32
DBG=40; TAB=42; NON=44; R0=45; J=46; RBA=47; RBD=65
SA=49; SB=50; SC=51; SD=54; HA=55; IT=55; FLG=48; RET=52
PB=56; UU=57; QT=58; T0=59; MIR=60; SLOW=61; CNT=62
VM=64
STB=70
def S(r,n=4): return f"s[{r}:{r+n-1}]"
a=Asm()
nstamp=[0]; stnames=[]
def stamp(name):
    sel=XP.get('st','')
    front=['kvland','kvpub','b0','b3','b6','b9pre','b9']
    if sel!='tail' and name.startswith('o_'): return
    if sel!='loop' and name.startswith('g_'): return
    if sel!='epi' and name.startswith('e_'): return
    if sel!='front' and name.startswith('f_'): return
    if sel=='front' and name in ['loopend','T0','T1','gemm']: return
    if sel and sel!='front' and name in front: return
    if name in stnames:
        i=stnames.index(name); a(f"{'s_memtime' if 'cyc' in XP else 's_memrealtime'} s[{STB+2*i}:{STB+1+2*i}]"); return
    if STAMP:
        assert nstamp[0]<16
        a(f"{'s_memtime' if 'cyc' in XP else 's_memrealtime'} s[{STB+2*nstamp[0]}:{STB+1+2*nstamp[0]}]"); nstamp[0]+=1; stnames.append(name)
def zero(base,n):
    for i in range(n): a(f"v_mov_b32 v{base+i}, 0")
def dmab(v,srd,soff,off=0,fl=''):
    return f"buffer_load_dwordx4 v{v}, {S(srd)}, {soff} offen{' offset:%d'%off if off else ''} {fl} lds"
def mod5(d,s,t):
    a(f"s_mul_i32 s{t}, s{s}, 0x3334\ns_lshr_b32 s{t}, s{t}, 16\ns_mul_i32 s{t}, s{t}, 5\ns_sub_u32 s{d}, s{s}, s{t}")


L16=2
Q16=[4,10]; Q4=[8,14]; IDX=16; AK=3; AV=1
CM=[20,36]; O=[52,68]; SS=[84,116]; KF=148; K4=156; VF=[164,180]; QR=196; T=224
XR=8; WR=9; QW=13; FR=84; ACC=200; TA=248
MM=252
def lines(t): return [x.strip() for x in t.split("\n") if x.strip()]
def pre_m():
    o=[lines(f"""s_and_b32 s{UU}, s2, 7
    s_lshl_b32 s{UU}, s{UU}, 3
    s_bfe_u32 s6, s2, 0x30003
    s_add_u32 s{UU}, s{UU}, s6
    s_lshr_b32 s{QT}, s2, 6
    s_lshr_b32 s{MIR}, s{QT}, 1
    s_sub_u32 s6, 128, s{UU}"""),lines(f"""s_cmp_eq_u32 s{UU}, 0
    s_cselect_b32 s6, 64, s6
    s_cselect_b32 s66, 0, 512
    s_mul_i32 s7, s66, 3
    s_cmp_eq_u32 s{MIR}, 0
    s_cselect_b32 s{T0}, s{UU}, s6
    s_cselect_b32 s66, s7, s66"""),lines(f"""s_and_b32 s6, s{QT}, 1
    s_lshl_b32 s6, s6, 10
    s_add_u32 s{T0}, s{T0}, s6
    v_lshrrev_b32 v23, 5, v0
    v_cmp_eq_u32 vcc, s{MIR}, v23
    v_bfe_u32 v21, v0, 1, 3"""),lines(f"""v_lshl_add_u32 v21, v21, 7, s{T0}
    v_and_b32 v22, 1, v0
    v_lshlrev_b32 v22, 9, v22
    v_mad_u32_u24 v22, v23, s66, v22
    v_bfe_u32 v24, v0, 4, 1"""),lines(f"""v_mad_u32_u24 v22, v24, v21, v22
    v_cvt_f32_u32 v21, v21
    v_cvt_f32_u32 v22, v22
    v_mul_f32 v21, {fh(1/1024)}, v21
    v_mul_f32 v22, {fh(1/2048)}, v22
    s_cmp_eq_u32 s{UU}, 0
    s_cselect_b64 vcc, vcc, -1""")]
    for i in range(4):
        o.append(lines(f"""v_cos_f32 v25, v22
        v_add_f32 v22, v22, v21
        v_cos_f32 v26, v22
        v_add_f32 v22, v22, v21
        v_cvt_pk_bf16_f32 v24, v25, v26
        v_cndmask_b32 v{MM+i}, 0, v24, vcc"""))
    return o

def chunks(l,n): return [l[k:k+n] for k in range(0,len(l),n)]
def att_init():
    o=lines(f"""v_and_b32 v21, 27, v0
    v_cmp_eq_u32 vcc, 24, v21
    v_mov_b32 v21, 0x3f803f80
    s_mov_b32 s{VM}, 0xfffff
    s_mov_b32 s{VM+1}, 0xfffff
    v_cndmask_b32 v{VF[0]}, 0, v21, vcc
    v_cndmask_b32 v{VF[0]+1}, 0, v21, vcc""")
    o+=[f"v_mov_b64 v[{VF[0]+2*i}:{VF[0]+2*i+1}], v[{VF[0]}:{VF[0]+1}]" for i in range(1,16)]+[f"v_mov_b64 v[{O[0]+2*i}:{O[0]+2*i+1}], 0" for i in range(16)]
    o=chunks(o,6)
    o.append(lines(f"""s_mov_b32 s{OUT_+2}, 5242880
    s_mov_b32 s{OUT_+3}, 0x20000
    s_mul_i32 s66, s{W}, 40
    s_add_u32 s66, s66, {QSL}
    s_mul_i32 s67, s{W}, {NQA*1024}
    s_add_u32 s67, s67, tab_a-L_pc
    s_add_u32 s{TW_}, s{TAB}, s67
    s_addc_u32 s{TW_+1}, s{TAB+1}, 0"""))
    o.append(lines(f"""v_and_b32 v21, 31, v0
    v_cmp_gt_u32 vcc, 16, v21
    v_lshrrev_b32 v22, 5, v0
    v_mov_b32 v23, 0x180
    v_cndmask_b32 v23, 64, v23, vcc"""))
    o.append(lines(f"""v_mul_u32_u24 v23, v22, v23
    v_lshl_add_u32 v{AV}, v21, 4, v23
    v_mul_u32_u24 v21, {QP}, v21
    v_add_u32 v{QR+1}, s66, v21
    v_lshl_add_u32 v{QR}, v22, 4, v{QR+1}
    v_mov_b32 v{AK}, v{L16}"""))
    o.append(lines(f"""s_mul_i32 s{SA}, s{QB}, 81920
    s_add_u32 s{SA}, s{SA}, {WS_O}
    s_lshl_b32 s7, s{HG}, 2
    s_add_u32 s7, s7, s{W}
    s_lshl_b32 s{SB}, s7, 8
    s_lshl_b32 s7, s7, 10"""))
    o.append(lines(f"""s_add_u32 s{SB}, s{SB}, s{SA}
    s_add_u32 s{SA}, s{SA}, s7
    s_add_u32 s{SB}, s{SB}, 32768
    s_add_u32 s{SC}, s{SA}, 40960
    s_add_u32 s{SD}, s{SB}, 40960"""))
    return o
def p1_scal():
    return lines(f"""s_and_b32 s6, s2, 7
    s_lshl_b32 s6, s6, 1
    s_bfe_u32 s7, s2, 0x10003
    s_add_u32 s6, s6, s7
    s_lshr_b32 s7, s2, 4
    s_lshl_b32 s{PB}, s7, 4
    s_add_u32 s{PB}, s{PB}, s6
    s_mul_i32 s6, s6, 1280
    s_mul_i32 s7, s7, 80
    s_add_u32 s69, s6, s7
    s_and_b32 s{HA}, s{W}, 3
    s_lshl_b32 s{PB}, s{PB}, 2
    s_add_u32 s{PB}, s{PB}, s{HA}
    s_mul_i32 s{PB}, s{PB}, 2560
    s_add_u32 s{PB}, s{PB}, {WS_U}
    s_mov_b32 s{XA_+2}, 2621440
    s_mov_b32 s{XA_+3}, 0x20000
    s_mov_b32 s{WO_+2}, 819200
    s_mov_b32 s{WO_+3}, 0x20000
    s_mov_b32 s{OUT_+2}, 5242880
    s_mov_b32 s{OUT_+3}, 0x20000
    s_mul_i32 s6, s{HA}, {NQH*1024}
    s_add_u32 s6, s6, tab_h-L_pc+4096
    s_add_u32 s{TW_}, s{TAB}, s6
    s_addc_u32 s{TW_+1}, s{TAB+1}, 0
    s_add_u32 s{TW_+2}, s{TW_}, 8192
    s_addc_u32 s{TW_+3}, s{TW_+1}, 0
    s_add_u32 s{RET}, s{TW_}, 16384
    s_addc_u32 s{RET+1}, s{TW_+1}, 0""")
def em(l):
    for x in l:
        if isinstance(x,list): em(x)
        else: a(x)
def wrap(d,s,inc,lim):
    a(f"s_add_u32 s{d}, s{s}, {inc}\ns_sub_u32 s7, s{d}, {lim}\ns_min_u32 s{d}, s{d}, s7")

stamp('start')
a(f"""s_cmp_ge_u32 s2, 256
s_cbranch_scc1 L_end
s_load_dwordx8 s[48:55], s[0:1], 40
s_load_dwordx8 s[56:63], s[0:1], 72
s_load_dwordx2 s[24:25], s[0:1], 0
s_memrealtime s[68:69]
s_getpc_b64 s[{TAB}:{TAB+1}]
L_pc:
v_lshrrev_b32 v1, 6, v0
v_and_b32 v0, 63, v0
s_and_b32 s{QB}, s2, 7
v_readfirstlane_b32 s{W}, v1
s_lshl_b32 s{QB}, s{QB}, 2
v_lshlrev_b32 v{L16}, 4, v0
s_bfe_u32 s6, s2, 0x20003
v_lshrrev_b32 v21, 3, v0
s_add_u32 s{QB}, s{QB}, s6
v_lshrrev_b32 v23, 4, v0
s_lshr_b32 s{HG}, s2, 5
v_and_b32 v24, 7, v0
s_and_b32 s7, s2, 0xf8
s_add_u32 s7, s7, s{W}
s_lshl_b32 s7, s7, 7
v_mul_u32_u24 v22, ((L_tabend-L_pc-32768)/3)&0xffff80, v0
v_add_u32 v22, s7, v22
s_add_u32 s{R0}, s6, s{HG}
s_mov_b64 exec, {int(XP.get('pf',15))}
global_load_dword v255, v22, s[{TAB}:{TAB+1}]
s_mov_b64 exec, -1
v_xor_b32 v23, v23, v24
s_mul_i32 s7, s{R0}, 0x3334
v_mul_u32_u24 v21, 0x500, v21
s_lshr_b32 s7, s7, 16
v_lshl_add_u32 v3, v23, 4, v21
s_mul_i32 s7, s7, 5
v_mov_b32 v17, 0
s_sub_u32 s{R0}, s{R0}, s7
s_and_b32 s{J}, s{HG}, 3
s_lshl_b32 s7, s{J}, 1
s_cmp_lt_u32 s{HG}, 4
s_cselect_b32 s{RBA}, s{J}, s7
s_cselect_b32 s{RBD}, 4, 1
s_mov_b32 s{XB_+2}, 2621440
s_mov_b32 s{XB_+3}, 0x20000
s_mov_b32 s{WS_+2}, {WS_SZ}
s_mov_b32 s{WS_+3}, 0x20000
s_cmp_ge_u32 s{W}, 4
s_cbranch_scc1 L_loader
s_and_b32 s6, s{W}, 1
s_mul_i32 s6, s6, s{RBD}
s_add_u32 s6, s6, s{RBA}
s_and_b32 s7, s6, 1
s_lshl_b32 s7, s7, 6
v_xor_b32 v4, s7, v3
s_lshl_b32 s7, s{QB}, 3
s_add_u32 s7, s7, s6
s_mul_i32 s7, s7, 10240
v_add_u32 v4, s7, v4
s_lshr_b32 s36, s{W}, 1
s_lshl_b32 s35, s36, 3
s_add_u32 s35, s35, s6
s_lshl_b32 s35, s35, 10
s_add_u32 s35, s35, {XBL}
s_lshl_b32 s36, s36, 7
s_lshl_b32 s6, s{R0}, 8
s_add_u32 s36, s36, s6
s_lshl_b32 m0, s{W}, 10
s_mul_i32 s6, s{R0}, 5120
s_add_u32 s37, m0, s6
s_mov_b32 s{KV_+2}, 25600
s_mov_b32 s{KV_+3}, 0x20000
s_cmp_lt_u32 s{HG}, 4""")
stamp('f_ka0')
a(f"""s_waitcnt lgkmcnt(0)
s_cselect_b32 s{KV_}, s52, s54
s_cselect_b32 s{KV_+1}, s53, s55""")
for t in range(6):
    a(dmab(L16,KV_,'s37')); a("s_add_u32 m0, m0, 4096"); wrap(37,37,4096,25600)
    if t==0: a(f"s_mov_b32 s{XB_}, s48\ns_mov_b32 s{XB_+1}, s49")
a(f"""s_cmp_lg_u32 s{W}, 0
s_cbranch_scc1 L_nw0
{dmab(L16,KV_,'s37')}
L_nw0:
s_mov_b32 m0, s35
s_nop 0""")
for t in range(5):
    a(dmab(4,XB_,'s36'))
    if t<4: a("s_add_u32 m0, m0, 16384"); wrap(36,36,256,1280)
stamp('f_kvi')
cpy=f"""s_mov_b32 s{WO_}, s56
s_mov_b32 s{WO_+1}, s57
s_mov_b32 s{OUT_}, s58
s_mov_b32 s{OUT_+1}, s59
s_mov_b32 s{DBG}, s60
s_mov_b32 s{DBG+1}, s61
s_mov_b32 s{WS_}, s62
s_mov_b32 s{WS_+1}, s63"""
a(cpy)
a(f"""v_and_b32 v21, 15, v0
v_lshrrev_b32 v22, 4, v0
s_and_b32 s6, s{W}, 1
s_lshl_b32 s7, s6, 12
s_add_u32 s7, s7, {XBL}
v_lshrrev_b32 v24, 1, v21
v_xor_b32 v23, v22, v24
v_lshl_add_u32 v24, v21, 7, s7
v_lshl_add_u32 v{XR}, v23, 4, v24
v_xor_b32 v7, 64, v{XR}
s_lshr_b32 s66, s{W}, 1
s_mul_i32 s66, s66, 96
s_add_u32 s7, s66, {RB}
v_lshrrev_b32 v23, 2, v0
v_mul_u32_u24 v23, 320, v23
v_and_b32 v25, 3, v0
v_lshl_add_u32 v23, v25, 3, v23
v_and_b32 v24, 1, v22
v_mul_u32_u24 v24, 160, v24
v_add3_u32 v{WR}, v23, v24, s7
s_add_u32 s7, s7, 160
v_sub_u32 v23, v23, v24
v_add_u32 v{WR+1}, s7, v23
s_mul_i32 s7, s6, {32*QP}
s_add_u32 s7, s7, s66
s_add_u32 s7, s7, {QSL}
v_mul_u32_u24 v23, {QP}, v21
v_lshl_add_u32 v23, v22, 3, v23
v_add_u32 v{QW}, s7, v23
s_mov_b32 s{FLG}, 1
s_cmp_lt_u32 s{W}, 2
s_cbranch_scc1 L_nokv""")
a(f"""s_mov_b32 s{FLG}, 0
v_lshrrev_b32 v26, 3, v21
v_and_b32 v27, 7, v21
v_mul_u32_u24 v23, s{RBD}, v26
v_add_u32 v23, s{RBA}, v23
v_and_b32 v24, 1, v23
v_lshlrev_b32 v23, 10, v23
v_lshl_add_u32 v23, v24, 6, v23
v_lshl_add_u32 v23, v27, 7, v23
v_lshrrev_b32 v24, 1, v27
v_xor_b32 v24, v24, v22
v_lshl_add_u32 v23, v24, 4, v23
v_add_u32 v18, {XBL}, v23
v_xor_b32 v19, 64, v18
v_bfe_u32 v23, v0, 2, 2
v_lshl_add_u32 v23, v22, 3, v23
v_mul_u32_u24 v23, 40, v23
s_cmp_eq_u32 s6, 0
s_cselect_b64 vcc, -1, 0
v_cndmask_b32 v25, 4, v25, vcc
v_lshl_add_u32 v20, v25, 3, v23
s_lshr_b32 s66, s{QB}, 1
s_mul_i32 s66, s66, 10240
s_and_b32 s67, s{QB}, 1
v_lshrrev_b32 v24, 1, v22
v_and_b32 v25, 1, v22
s_cmp_ge_u32 s{HG}, 4
s_cbranch_scc1 L_kvV""")
def kvgemm(isK):
    a("s_waitcnt vmcnt(0)\ns_barrier")
    stamp('kvland')
    NB=5
    def rd(st):
        f=FR+8*(st%NB)
        if st==16: a("v_add_u32 v18, 0x10000, v18\nv_add_u32 v19, 0x10000, v19")
        a(f"""ds_read_b128 v[{f}:{f+3}], v{18+st%2} offset:{(8192*(st//2))&0xffff}
        ds_read_b64_tr_b16 v[{f+4}:{f+5}], v20 offset:{1280*st}
        ds_read_b64_tr_b16 v[{f+6}:{f+7}], v20 offset:{1280*st+160}""")
    for st in range(NB-1): rd(st)
    for st in range(20):
        if st+NB-1<20: rd(st+NB-1)
        f=FR+8*(st%NB); A,B=(f+4,f) if isK else (f,f+4)
        a(f"s_waitcnt lgkmcnt({3*min(NB-1,19-st)})\nv_mfma_f32_16x16x32_bf16 v[28:31], v[{A}:{A+3}], v[{B}:{B+3}], {'0' if st==0 else 'v[28:31]'}")
a(f"""v_lshlrev_b32 v27, 4, v27
v_lshl_add_u32 v23, v26, 11, v27
v_lshl_add_u32 v23, v24, 9, v23
v_lshl_add_u32 v23, v25, 3, v23
v_lshl_add_u32 v27, v26, 3, v27
v_cndmask_b32 v15, v27, v23, vcc
s_lshl_b32 s7, s67, 9
s_add_u32 s7, s7, 4096
s_lshl_b32 s67, s67, 10
s_cmp_eq_u32 s6, 0
s_cselect_b32 s67, s67, s7
s_cselect_b32 s64, -1, 0xffff
s_cselect_b32 s65, -1, 0
s_lshl_b32 s7, s{J}, 7
s_add_u32 s66, s66, s7
s_add_u32 s66, s66, s67""")
kvgemm(True)
a(f"""s_branch L_kvW
L_kvV:
s_cmp_eq_u32 s6, 0
s_cselect_b32 s7, 0x180, 64
s_cselect_b32 s64, -1, 0x000f000f
s_mov_b32 s65, s64
v_mul_u32_u24 v24, s7, v24
v_lshl_add_u32 v24, v21, 4, v24
v_lshl_add_u32 v15, v25, 3, v24
s_and_b32 s7, s{J}, 2
s_add_u32 s67, s67, s7
s_lshl_b32 s67, s67, 1
s_and_b32 s7, s{J}, 1
s_add_u32 s67, s67, s7
s_mul_i32 s67, s67, 640
s_lshl_b32 s7, s6, 8
s_add_u32 s66, s66, s7
s_add_u32 s66, s66, s67
s_add_u32 s66, s66, 5120""")
kvgemm(False)
a(f"""L_kvW:
global_load_dword v16, v17, s[{DBG}:{DBG+1}] sc1
s_nop 6
v_cvt_pk_bf16_f32 v28, v28, v29
v_cvt_pk_bf16_f32 v29, v30, v31
s_mov_b64 exec, s[64:65]
buffer_store_dwordx2 v[28:29], v15, {S(WS_)}, s66 offen sc1
s_mov_b64 exec, -1
s_branch L_kvE
L_nokv:""")
a("s_waitcnt vmcnt(0)\ns_barrier")
stamp('kvland')
a("L_kvE:")
stamp('kvpub')
def qmm(i,k,ct,qt):
    f=FR+40*(i%2)+20*k; d=ACC+8*ct+4*qt
    c='0' if (i==0 and k==0) else f"v[{d}:{d+3}]"
    return f"v_mfma_f32_16x16x32_bf16 v[{d}:{d+3}], v[{f+8+4*ct}:{f+11+4*ct}], v[{f+4*qt}:{f+4*qt+3}], {c}"
def qrx(i,k,qt):
    f=FR+40*(i%2)+20*k; return f"ds_read_b128 v[{f+4*qt}:{f+4*qt+3}], v{[XR,7][k]} offset:{((8192*i)&0xffff)+2048*qt}"
def qrw(i,k,ct,u):
    f=FR+40*(i%2)+20*k+8+4*ct+2*u; return f"ds_read_b64_tr_b16 v[{f}:{f+1}], v{WR+u} offset:{(i%5)*10240+5120*k+32*ct}"
def weave(R,M):
    n=max(len(M),1); k=0
    for j in range(n):
        t=(len(R)*(j+1))//n
        em(R[k:t]); k=t
        if M: a(M[j])
pm=pre_m(); fill=pm[:2]+[pm[2][:3]]+att_init()
quota=[round(len(fill)*(i+1)/9) for i in range(9)]; done=0
FORCE=int(XP.get('force',5))
for i in range(10):
    a("s_barrier")
    if i in (0,3,6,9): stamp(f'b{i}')
    if i==FORCE+1: a(f"v_mov_b32 v18, {NONL}\nds_read_b32 v16, v18")
    if i==FORCE+2: a(f"v_readfirstlane_b32 s{NON}, v16")
    R=[x for k in range(2) for x in [qrx(i,k,0),qrx(i,k,1)]+[qrw(i,k,ct,u) for ct in range(2) for u in range(2)]]
    M=[qmm(i-1,k,ct,qt) for k in range(2) for ct in range(2) for qt in range(2)] if i>0 else []
    weave(R,M)
    a(f"s_cmp_ge_u32 s{W}, 2\ns_cbranch_scc1 L_c{i}")
    weave([qrw(i,k,2,u) for k in range(2) for u in range(2)],[qmm(i-1,k,2,qt) for k in range(2) for qt in range(2)] if i>0 else [])
    a(f"L_c{i}:")
    if i==7: a(f"v_add_u32 v{XR}, 0x10000, v{XR}\nv_add_u32 v7, 0x10000, v7")
    if i<9: em(fill[done:quota[i]]); done=quota[i]
    if i<=FORCE:
        if i<FORCE: a(f"s_getreg_b32 s68, hwreg(HW_REG_IB_STS, 0, 4)\ns_or_b32 s68, s68, s{FLG}")
        else: a(f"s_cmp_lg_u32 s{FLG}, 0")
        a(f"s_cbranch_scc1 L_nf{i}\ns_call_b64 s[{RET}:{RET+1}], L_flag1\nL_nf{i}:")
    a("s_waitcnt lgkmcnt(0)")
def qst(ct):
    for qt in range(2):
        d=ACC+8*ct+4*qt
        a(f"""v_pk_mul_f32 v[{d}:{d+1}], v[{d}:{d+1}], s[6:7]
        v_pk_mul_f32 v[{d+2}:{d+3}], v[{d+2}:{d+3}], s[6:7]
        v_cvt_pk_bf16_f32 v{d}, v{d}, v{d+1}
        v_cvt_pk_bf16_f32 v{d+1}, v{d+2}, v{d+3}
        ds_write_b64 v{QW}, v[{d}:{d+1}] offset:{16*QP*qt+32*ct}""")
a(f"s_mov_b32 s6, {fh(CSCALE)}\ns_mov_b32 s7, {fh(CSCALE)}")
em([qmm(9,k,ct,qt) for ct in range(2) for k in range(2) for qt in range(2)])
a(f"s_cmp_ge_u32 s{W}, 2\ns_cbranch_scc1 L_c10")
em([qmm(9,k,2,qt) for k in range(2) for qt in range(2)])
a(f"L_c10:\nv_mov_b32 v{IDX}, 0xdddddddd")
qst(0); qst(1)
a("s_cbranch_scc1 L_c11")
qst(2)
a("L_c11:\ns_waitcnt lgkmcnt(0)")
stamp('f_qst')

a(f"""global_load_dwordx4 v[{TA}:{TA+3}], v{L16}, s[{TW_}:{TW_+1}]
global_load_dwordx4 v[{TA+4}:{TA+7}], v{L16}, s[{TW_}:{TW_+1}] offset:1024
global_load_dwordx4 v[{TA-4}:{TA-1}], v{L16}, s[{TW_}:{TW_+1}] offset:2048
s_setprio 3
s_barrier""")
stamp('att')
VRA=TA; FO=TA+1; L8=TA+2; PA=TA+3; FN=TA+4
def koff(g,t): return (g>>1)*10240+(2*(g&1)+t)*1024
def k4off(g): return (g>>1)*10240+4096
def voff(g,u): return (g>>1)*10240+5120+(4*(g&1)+u)*640
on=f"s_mov_b64 exec, s[{VM}:{VM+1}]"; off="s_mov_b64 exec, -1"
def M16(d,k,q,c): return f"v_mfma_f32_32x32x16_bf16 v[{d}:{d+15}], v[{k}:{k+3}], v[{Q16[q]}:{Q16[q]+3}], {c}"
def M4(d,k,q): return f"v_mfma_f32_32x32x4_2b_bf16 v[{d}:{d+31}], v[{k}:{k+1}], v[{Q4[q]}:{Q4[q]+1}], v[{d}:{d+31}]"
def SM(v,x,q): return f"v_smfmac_f32_32x32x32_bf16 v[{O[q]}:{O[q]+15}], v[{v}:{v+3}], v[{x}:{x+7}], v{IDX}"
CMr=[f"v[{c}:{c+15}]" for c in CM]
def qrd(q): return f"""ds_read_b64 v[{Q16[q]}:{Q16[q]+1}], v{QR} offset:{32*QP*q}
ds_read_b64 v[{Q16[q]+2}:{Q16[q]+3}], v{QR} offset:{32*QP*q+8}
ds_read_b64 v[{Q4[q]}:{Q4[q]+1}], v{QR+1} offset:{32*QP*q+32}"""
a(f"""{qrd(0)}
ds_read_b128 v[{KF}:{KF+3}], v{AK} offset:{koff(0,0)}
ds_read_b128 v[{KF+4}:{KF+7}], v{AK} offset:{koff(0,1)}
{qrd(1)}
ds_read_b128 v[{K4}:{K4+3}], v{AK} offset:{k4off(0)}
s_waitcnt lgkmcnt(5)
{M16(SS[0],KF,0,'0')}
s_waitcnt lgkmcnt(4)
{M16(SS[0]+16,KF+4,0,'0')}
s_waitcnt lgkmcnt(0)
{M16(SS[1],KF,1,'0')}
{M16(SS[1]+16,KF+4,1,'0')}
{on}""")
for u in range(4): a(f"ds_read_b128 v[{VF[0]+4*u}:{VF[0]+4*u+3}], v{AV} offset:{voff(0,u)}")
a(f"""{off}
s_mov_b32 s{IT}, 8
{M4(SS[0],K4,0)}
s_mov_b32 s{SLOW}, 0
s_nop 0
{M4(SS[1],K4,1)}
s_nop 15
s_nop 0""")
for q in range(2):
    X=SS[q]
    a(f"v_max3_f32 v{T}, v{X}, v{X+1}, v{X+2}\nv_max3_f32 v{T+1}, v{X+3}, v{X+4}, v{X+5}")
    for i in range(6,32,4):
        a(f"v_max3_f32 v{T}, v{T}, v{X+i}, v{X+i+1}")
        if i+2<32: a(f"v_max3_f32 v{T+1}, v{T+1}, v{X+i+2}, v{X+i+3}")
    a(f"""v_max_f32 v{T}, v{T}, v{T+1}
    v_mov_b32 v{T+1}, v{T}
    s_nop 1
    v_permlane32_swap_b32 v{T}, v{T+1}
    v_max_f32 v{T}, v{T}, v{T+1}
    v_sub_f32 v{CM[q]}, {fh(-OFFS)}, v{T}
    v_sub_f32 v{CM[q]+1}, {fh(-OFFS)}, v{T}""")
    for i in range(1,8): a(f"v_mov_b64 v[{CM[q]+2*i}:{CM[q]+2*i+1}], v[{CM[q]}:{CM[q]+1}]")
X=SS[0]
for i in range(16):
    a(f"v_pk_add_f32 v[{X+2*i}:{X+2*i+1}], v[{X+2*i}:{X+2*i+1}], v[{CM[0]}:{CM[0]+1}]")
    if i==1: a(M16(SS[1],KF,1,CMr[1]))
a(f"v_exp_f32 v{X}, v{X}\nv_exp_f32 v{X+1}, v{X+1}\ns_waitcnt lgkmcnt(0)")
stamp('g_0')
a(".p2align 3\nL_loop:")
pos=dict(smp=2,mB=5,s0=10,mC=13,s1=21,s2=26,mA=29)
order=sorted(pos,key=lambda k:pos[k])
body=[]
for u in range(8):
    g,q=u>>1,u&1
    X=SS[q]; Y=SS[q^1]; gn=(u+1)>>1
    m={}
    m['mA']=M16(X,KF,q,CMr[q]); m['mB']=M16(Y+16,KF+4,q^1,CMr[q^1]); m['mC']=M4(Y,K4+2*(gn&1),q^1)
    for i in range(3): m[f's{i}']=SM(VF[g%2]+4*i,X+8*i,q)
    m['smp']=SM(VF[((u-1)>>1)%2]+12,Y+24,q^1)
    aft={k:[] for k in pos}
    if q==0:
        if g==3: aft['smp'].append("s_barrier")
        aft['smp'].append(f"ds_read_b128 v[{KF}:{KF+3}], v{AK} offset:{koff(g+1,0)}")
        aft['mB'].append(f"ds_read_b128 v[{KF+4}:{KF+7}], v{AK} offset:{koff(g+1,1)}")
        if g&1: aft['mC'].append(f"ds_read_b128 v[{K4}:{K4+3}], v{AK} offset:{k4off(g+1)}")
        aft['s2'].append("s_waitcnt lgkmcnt(0)")
    else:
        b=VF[(g+1)%2]
        aft['s0']+=[on]+[f"ds_read_b128 v[{b+4*i}:{b+4*i+3}], v{AV} offset:{voff(g+1,i)}" for i in range(4)]+[off]
        aft['mA'].append("s_waitcnt lgkmcnt(0)")
        if g==3:
            aft['s1']+=[f"s_sub_u32 s{IT}, s{IT}, 1",f"v_add_u32 v{AK}, 20480, v{AK}",f"v_add_u32 v{AV}, 20480, v{AV}"]
            aft['s2']+=[f"s_cmp_lg_u32 s{IT}, 0"]
    ins={i:[] for i in range(33)}
    for k in order: ins[pos[k]]+=[m[k]]+aft[k]
    for i in range(32): body+=ins[i]+[f"v_exp_f32 v{X+i}, v{X+i}"]
em(body[3:]+body[:3])
a("s_cbranch_scc1 L_loop\nL_check:")
stamp('loopend')
dd=[230,236]
def nrm(q,lo,hi):
    for i in range(lo,hi): a(f"v_pk_mul_f32 v[{CM[q]+2*i}:{CM[q]+1+2*i}], v[{O[q]+2*i}:{O[q]+2*i+1}], v[{T+4*q}:{T+1+4*q}] op_sel_hi:[1,0]")
    for i in range(lo,hi): a(f"v_cvt_pk_bf16_f32 v{dd[q]+i}, v{CM[q]+2*i}, v{CM[q]+1+2*i}")
a(f"v_rcp_f32 v{T}, v{O[0]+12}\ns_waitcnt vmcnt(0)")
nrm(0,0,4)
a(f"buffer_store_dwordx4 v[{dd[0]}:{dd[0]+3}], v{L16}, {S(WS_)}, s{SA} offen sc1\nv_rcp_f32 v{T+4}, v{O[1]+12}")
stamp('e_s0')
nrm(0,4,6); nrm(1,4,6); nrm(1,0,4)
a(f"""buffer_store_dwordx4 v[{dd[1]}:{dd[1]+3}], v{L16}, {S(WS_)}, s{SC} offen sc1
v_permlane32_swap_b32 v{dd[0]+4}, v{dd[1]+4}
v_permlane32_swap_b32 v{dd[0]+5}, v{dd[1]+5}
buffer_store_dwordx2 v[{dd[0]+4}:{dd[0]+5}], v{L8}, {S(WS_)}, s{SB} offen sc1""")
chk=[]
for q in range(2):
    o=O[q]
    chk+=lines(f"""v_max3_f32 v{T+2+q}, |v{o}|, |v{o+1}|, |v{o+2}|
    v_max3_f32 v{T+2+q}, v{T+2+q}, |v{o+3}|, |v{o+4}|
    v_max3_f32 v{T+2+q}, v{T+2+q}, |v{o+5}|, |v{o+6}|
    v_max_f32 v{T+2+q}, v{T+2+q}, |v{o+7}|""")
prs=[O[q]+2*i for q in range(2) for i in range(6)]
chk.append(f"v_pk_add_f32 v[{T+4}:{T+5}], v[{prs[0]}:{prs[0]+1}], v[{prs[1]}:{prs[1]+1}]")
for r_ in prs[2:]: chk.append(f"v_pk_add_f32 v[{T+4}:{T+5}], v[{T+4}:{T+5}], v[{r_}:{r_+1}]")
chk+=lines(f"""v_cmp_gt_f32 vcc, {fh(2.0**110)}, v{O[0]+12}
v_add_f32 v{T+4}, v{T+4}, v{T+5}
v_min_f32 v{T+2}, v{T+2}, v{T+3}
s_mov_b64 s[68:69], vcc
v_cmp_gt_f32 vcc, {fh(2.0**110)}, v{O[1]+12}
v_cmp_gt_f32 s[66:67], s6, |v{T+4}|
v_cmp_lt_f32 s[6:7], s7, v{T+2}
s_and_b64 vcc, vcc, s[68:69]
s_and_b64 vcc, vcc, s[66:67]
s_and_b64 vcc, vcc, s[6:7]""")
TB=84; NF=136; XX=[4,148]; TRs=[20,52]; TIs=[36,68]
stamp('e_st')
a(f"v_add_u32 v3, {TL}, v{L16}")
for qd in [0,2,1,3,13,14]: a(f"ds_read_b128 v[{TB+4*qd}:{TB+4*qd+3}], v3 offset:{1024*qd}")
a(f"s_mov_b32 s6, 0x7f800000\ns_mov_b32 s7, {fh(2.0**-(OFFS+14))}")
stamp('e_rd')
em(chk)
stamp('e_chk')
a(f"""s_cmp_eq_u64 vcc, -1
s_waitcnt lgkmcnt(0)
s_cbranch_scc0 L_slow
L_store:""")
stamp('e_w')
a("s_barrier")
stamp('T-1')
def mm(d,A,B,c): return f"v_mfma_f32_32x32x16_bf16 v[{d}:{d+15}], v[{A}:{A+3}], v[{B}:{B+3}], {c}"
def vrd(r):
    return [f"ds_read_b64_tr_b16 v[{XX[r]+8*p+4*s+2*u}:{XX[r]+8*p+4*s+2*u+1}], v{VRA} offset:{VP*(2*r+p)+640*s+160*u}" for p in range(2) for s in range(2) for u in range(2)]
def sta(r):
    f=XX[r]; TR=TRs[r]; TI=TIs[r]; TRr=f"v[{TR}:{TR+15}]"; TIr=f"v[{TI}:{TI+15}]"
    return [mm(TR,f,TB,'0'),mm(TI,f,TB+8,'0'),mm(TR,f+4,TB+4,TRr),mm(TI,f+4,TB+12,TIr),mm(TR,f+8,NF,TRr),mm(TI,f+8,TB,TIr),mm(TR,f+12,NF+4,TRr),mm(TI,f+12,TB+4,TIr)]
WRr=TB+16; WI=TB+28; GG=TB+40; P=144
def pr(x): return f"v[{x}:{x+1}]"
def twid(r):
    f=XX[r]; TR=TRs[r]; TI=TIs[r]; o=[]
    for i in range(0,12,2):
        o+=lines(f"""v_pk_mul_f32 {pr(P)}, {pr(TI+i)}, {pr(WI+i)}
        v_pk_mul_f32 {pr(P+2)}, {pr(TR+i)}, {pr(WI+i)}
        v_pk_fma_f32 {pr(TR+i)}, {pr(TR+i)}, {pr(WRr+i)}, {pr(P)} neg_lo:[0,0,1] neg_hi:[0,0,1]
        v_pk_fma_f32 {pr(TI+i)}, {pr(TI+i)}, {pr(WRr+i)}, {pr(P+2)}
        v_cvt_pk_bf16_f32 v{f+4*(i//4)+(i%4)//2}, v{TR+i}, v{TR+i+1}
        v_cvt_pk_bf16_f32 v{f+4*(i//4)+2+(i%4)//2}, v{TI+i}, v{TI+i+1}""")
    return o
def stb(r):
    f=XX[r]; y=TRs[r]; return [mm(y,f,GG,'0'),mm(y,f+4,GG+4,f"v[{y}:{y+15}]"),mm(y,f+8,GG+8,f"v[{y}:{y+15}]")]
FF=XP.get('ff','sc1'); HST='ast' not in XP and 'al' not in XP; AL='al' in XP; HSP=int(XP.get('hsp',-1))
def fout(r):
    y=TRs[r]; d=TIs[r]
    return [f"v_cvt_pk_bf16_f32 v{d+i}, v{y+2*i}, v{y+2*i+1}" for i in range(8)]+[on,f"ds_write_b128 v{FO}, v[{d}:{d+3}] offset:{1280*r}",f"ds_write_b128 v{L8}, v[{d+4}:{d+7}] offset:{1280*r}",off]
def frd(r,d,ad): return [f"ds_read_b128 v[{d}:{d+3}], v{ad} offset:{1280*r}",f"ds_read_b128 v[{d+4}:{d+7}], v{ad} offset:{1280*r+1024}"]
def fsto(r,d):
    return [f"buffer_store_dwordx4 v[{d}:{d+3}], v{L16}, {S(OUT_)}, s{66+r} offen {FF}","s_mov_b64 exec, 0xffff",f"buffer_store_dwordx4 v[{d+4}:{d+7}], v{L16}, {S(OUT_)}, s{66+r} offen offset:1024 {FF}",off]
def rowsc(wr,ad): return lines(f"""s_lshl_b32 s66, s{wr}, 8
s_add_u32 s66, s66, s{T0}
s_mul_i32 s66, s66, 2560
s_add_u32 s67, s66, {128*2560}
v_bfe_u32 v{ad}, v0, 3, 2
v_xor_b32 v{ad}, v{ad}, v0
s_mul_i32 s7, s{wr}, 2560
s_add_u32 s7, s7, {FSG}
v_lshl_add_u32 v{ad}, v{ad}, 4, s7""")
flag3=["s_waitcnt vmcnt(0)","s_barrier","s_mov_b64 exec, 0xffff",
   f"buffer_load_dword v1, v{PA}, {S(WS_)}, s{SA} offen sc1","s_mov_b64 exec, 15",f"buffer_load_dword v1, v{PA}, {S(WS_)}, s{SB} offen sc1",off]
scal=lines(f"""s_lshl_b32 m0, s{W}, 10
s_mul_i32 s68, s{QB}, 81920
s_add_u32 s68, s68, {WS_O}
s_add_u32 s{XB_}, s{WS_}, s68
s_addc_u32 s{XB_+1}, s{WS_+1}, 0
s_mov_b32 s{XB_+2}, 81920
v_xor_b32 v{L8}, 16, v{FO}""")
OAa=TA-4; WXa=164; BA=[84+4*i for i in range(8)]; ACa=116
wxr=[f"ds_read_b128 v[{WXa+4*st}:{WXa+4*st+3}], v{OAa+3} offset:{1024*st}" for st in range(20)]
A0=sta(0); A1=sta(1); W0=twid(0); W1=twid(1); B0=stb(0); FP=int(XP.get('fp',10))
R1=vrd(1)+[f"ds_read_b128 v[{TB+4*qd}:{TB+4*qd+3}], v3 offset:{1024*qd}" for qd in range(4,13)]
em(vrd(0)); em(scal); a("s_waitcnt lgkmcnt(6)")
a(A0[0]); a(A0[1]); a("s_waitcnt lgkmcnt(0)")
def fp(j):
    if FP==j: em(flag3); stamp('T0')
for j in range(2,8):
    a(A0[j]); em(R1[:3]); R1=R1[3:]; fp(j)
a("s_waitcnt lgkmcnt(9)")
for j in range(3):
    a(A1[j]); em(wxr[2*j:2*j+2]); fp(8+j)
a("s_waitcnt lgkmcnt(6)")
for j in range(3,8):
    em(W0[:5]); W0=W0[5:]; a(A1[j]); em(wxr[2*j:2*j+2]); fp(8+j)
em(W0)
fp(16)
a("s_nop 1")
for j in range(3):
    a(B0[j]); em(W1[:6]); W1=W1[6:]
em(W1)
em(wxr[16:18]); B1=stb(1); f0=fout(0)
a(B1[0]); em(f0[:4]); a(B1[1]); em(f0[4:8]); a(B1[2]); em(f0[8:]); em(wxr[18:])
if not HST: em(rowsc(W,3)); em(frd(0,4,3))
else: a("s_nop 5")
em(fout(1))
if AL: em(frd(1,12,3))
elif not HST:
    em(frd(1,12,3)); a("s_waitcnt lgkmcnt(4)"); em(fsto(0,4)); a("s_waitcnt lgkmcnt(0)"); em(fsto(1,12))
a("s_waitcnt lgkmcnt(0)")
late=[]
FSP=int(XP.get('fsp',99))
stamp('o_fft')
a("s_barrier")
stamp('T1')
oda=[f"buffer_load_dwordx4 v{L16}, {S(XB_)}, m0 offen sc1 lds","s_add_u32 m0, m0, 40960","s_nop 0",f"buffer_load_dwordx4 v{L16}, {S(XB_)}, m0 offen sc1 lds",f"s_sub_u32 m0, m0, {40960-4096}","s_nop 0"]
SYNC=eval(XP.get('sync','{0/1,1/2,2/4,4/6,6/8,8/10}').replace('/',':'))
AHEAD=int(XP.get('ahead',3))
def ard(st):
    b=BA[st%8]
    if st<16: return [f"ds_read_b128 v[{b}:{b+3}], v{OAa} offset:{2048*st}"]
    return [f"ds_read_b64 v[{b+2*u}:{b+2*u+1}], v{OAa+1} offset:{2048*(st-16)+1024*u}" for u in range(2)]
ar=0; am=0
def amm():
    global am
    b=BA[am%8]; n=sum(len(ard(x)) for x in range(am+1,ar))
    a(f"s_waitcnt lgkmcnt({n})\nv_mfma_f32_16x16x32_bf16 v[{ACa}:{ACa+3}], v[{WXa+4*am}:{WXa+4*am+3}], v[{b}:{b+3}], {'0' if am==0 else f'v[{ACa}:{ACa+3}]'}")
    am+=1
def awork(avail,k):
    global ar
    old=ar
    while ar<avail and ar-am<8 and sum(len(ard(x)) for x in range(am,ar+1))<=14: em(ard(ar)); ar+=1
    for _ in range(k):
        if am<old: amm()
issued=0; avail=0; vm=[]
def slot(k):
    global late
    if late:
        c=late[0]; late=late[1:]; em(c); vm.extend([None]*sum(x.startswith('buffer_') for x in c))
    else: awork(avail,k)
PRE=int(XP.get('pre',2))
for hc in sorted(SYNC):
    while issued<min(10,SYNC[hc]+AHEAD):
        if hc>0: slot(3)
        em(oda); vm.extend([issued]*2); issued+=1
        if AL and issued==int(XP['al'] or 10): em(fsto(0,4)+fsto(1,12)); vm.extend([None]*4)
    if hc==0:
        for _ in range(PRE): slot(0)
    elif issued==10:
        while late or am<avail-4: slot(2)
    last=max(i for i,x in enumerate(vm) if x==SYNC[hc]-1)
    a(f"s_waitcnt vmcnt({len(vm)-1-last})\ns_barrier")
    avail=2*SYNC[hc]
    stamp(f'o_b{hc}')
while am<20: awork(20,2)
stamp('gemm')
a(f"""s_nop 7
v_cvt_pk_bf16_f32 v{ACa}, v{ACa}, v{ACa+1}
v_cvt_pk_bf16_f32 v{ACa+1}, v{ACa+2}, v{ACa+3}
ds_write_b64 v{OAa+2}, v[{ACa}:{ACa+1}]
s_branch L_fin""")
a(f"""L_flag1:
s_mov_b32 s{CNT}, 0
L_non:
s_waitcnt vmcnt(0)
v_readfirstlane_b32 s{NON}, v16
s_add_u32 s{CNT}, s{CNT}, 1
s_cmp_gt_u32 s{CNT}, {SPIN}
s_cbranch_scc1 L_gotnon
s_cmp_lg_u32 s{NON}, 0
s_cbranch_scc1 L_gotnon
global_load_dword v16, v17, s[{DBG}:{DBG+1}] sc1
s_branch L_non
L_gotnon:
s_lshl_b32 s68, s{QB}, 3
s_add_u32 s68, s68, s{HG}
s_mul_i32 s68, s68, {FS//4}
s_add_u32 s68, s68, s{W}
s_lshl_b32 s68, s68, 2
s_add_u32 s68, s68, {WS_F1-8}
v_mov_b32 v18, {NONL}
s_mov_b64 exec, 1
buffer_store_dword v16, v17, {S(WS_)}, s68 offen sc1
ds_write_b32 v18, v16
s_mov_b64 exec, -1
s_mov_b32 s{FLG}, 1""")
stamp('f_flag')
a(f"s_setpc_b64 s[{RET}:{RET+1}]")

a("L_loader:")
ST=[dict(srd=36,v=5,G=16,GS=17,GL=18,L=19,LD=30,LS=31,LW=34),dict(srd=12,v=7,G=26,GS=27,GL=35,L=44,LD=64,LS=66,LW=67)]
for k,st in enumerate(ST):
    a(f"""s_lshl_b32 s47, s{W}, 1
    s_sub_u32 s47, s47, {8-k}
    s_mov_b32 s{st['srd']+3}, 0x20000
    s_cmp_ge_u32 s47, 5
    s_cbranch_scc1 L_sx{k}
    s_lshl_b32 s6, s47, 6
    v_add_u32 v21, s6, v0
    v_mul_u32_u24 v23, 0x667, v21
    v_lshrrev_b32 v23, 14, v23
    s_mov_b32 s{st['srd']+2}, 819200
    v_mul_u32_u24 v24, 10, v23
    s_mov_b32 s{st['GS']}, {64*1280}
    v_sub_u32 v24, v21, v24
    s_lshl_b32 s{st['L']}, s47, 10
    v_lshrrev_b32 v25, 3, v23
    s_add_u32 s{st['L']}, s{st['L']}, {RB}
    v_xor_b32 v26, v25, v23
    s_mov_b32 s{st['LD']}, 5120
    v_and_b32 v26, 1, v26
    s_mov_b32 s{st['LS']}, 10240
    v_lshl_add_u32 v25, v25, 1, v26
    s_mov_b32 s{st['LW']}, 51200
    v_bfe_u32 v26, v23, 1, 2
    s_mul_i32 s6, s{HG}, 160
    v_lshl_add_u32 v25, v25, 2, v26
    v_mul_u32_u24 v25, 0x500, v25
    v_lshl_add_u32 v24, v24, 4, s6
    v_add_u32 v{st['v']}, v24, v25
    v_add_u32 v{st['v']+1}, {32*1280}, v{st['v']}
    s_branch L_se{k}
    L_sx{k}:
    s_add_u32 s6, s47, s{J}
    s_and_b32 s6, s6, 3
    s_lshr_b32 s7, s{HG}, 2
    s_lshl_b32 s6, s6, s7
    s_lshl_b32 s{st['L']}, s6, 10
    s_add_u32 s{st['L']}, s{st['L']}, {XBL}
    s_lshl_b32 s{st['LD']}, s{RBD}, 10
    s_and_b32 s47, s6, 1
    s_lshl_b32 s47, s47, 6
    v_xor_b32 v21, s47, v3
    s_lshl_b32 s7, s7, 6
    v_xor_b32 v22, s7, v21
    s_lshl_b32 s7, s{QB}, 3
    s_add_u32 s6, s6, s7
    s_mul_i32 s7, s6, 10240
    v_add_u32 v{st['v']}, s7, v21
    s_add_u32 s6, s6, s{RBD}
    s_mul_i32 s7, s6, 10240
    v_add_u32 v{st['v']+1}, s7, v22
    s_mov_b32 s{st['srd']+2}, 2621440
    s_mov_b32 s{st['GS']}, 128
    s_mov_b32 s{st['LS']}, 8192
    s_mov_b32 s{st['LW']}, 0
    L_se{k}:
    s_lshl_b32 s6, s{R0}, 1
    s_mul_i32 s{st['G']}, s6, s{st['GS']}
    s_mul_i32 s{st['GL']}, s{st['GS']}, 10""")
a(f"""s_and_b32 s6, s{W}, 3
s_lshl_b32 s6, s6, 6
v_add_u32 v21, s6, v0
v_mul_u32_u24 v47, {FS}, v0
v_mul_u32_u24 v48, {FS}, v21""")
stamp('f_ka0')
a(f"""s_waitcnt lgkmcnt(0)
s_cmp_ge_u32 s{W}, 7
s_cselect_b32 s36, s48, s50
s_cselect_b32 s37, s49, s51
s_cmp_ge_u32 s{W}, 6
s_cselect_b32 s12, s48, s50
s_cselect_b32 s13, s49, s51""")
a(cpy)
a(f"""s_lshl_b32 s6, s2, 3
s_add_u32 s6, s6, s{W}
s_cmp_eq_u32 s6, 7
s_cbranch_scc0 L_nonon
s_or_b32 s68, s68, 1
v_mov_b32 v23, s68
s_mov_b64 exec, 1
global_store_dword v17, v23, s[{DBG}:{DBG+1}] sc1
s_mov_b64 exec, -1
L_nonon:""")
def issue(i):
    for st in ST:
        if i==5: a(f"s_sub_u32 s{st['L']}, s{st['L']}, s{st['LW']}")
        a(f"""s_mov_b32 m0, s{st['L']}
        s_add_u32 s{st['L']}, s{st['L']}, s{st['LS']}
        {dmab(st['v'],st['srd'],'s%d'%st['G'])}
        s_add_u32 m0, m0, s{st['LD']}
        s_add_u32 s6, s{st['G']}, s{st['GS']}
        {dmab(st['v']+1,st['srd'],'s%d'%st['G'])}
        s_cmp_eq_u32 s6, s{st['GL']}
        s_cselect_b32 s{st['G']}, 0, s6""")
KB=int(XP.get('kb',2))
for i in range(KB): issue(i)
stamp('f_kvi')
a("s_barrier")
for i in range(KB,3): issue(i)
POLLI=int(XP.get('polli',8))
fillL=pre_m()+[p1_scal()]
def lpolls():
    a(f"buffer_load_dwordx2 v[50:51], v47, {S(WS_)}, s68 offen sc1\nbuffer_load_dwordx2 v[52:53], v48, {S(WS_)}, s68 offen sc1")
for i in range(10):
    n=4*min(2,9-i)+(2 if i>POLLI else 0)
    a(f"s_waitcnt vmcnt({n})\ns_barrier")
    if i<7: issue(i+3)
    if i==7: a(f"v_mov_b32 v18, {NONL}\nds_read_b32 v16, v18\ns_mov_b32 s68, {WS_F1}")
    if i==POLLI: lpolls()
    if i==7: em(fillL[:5])
    if i==8: em(fillL[5:9])
fillL=fillL[9:]
a(f"""s_waitcnt lgkmcnt(0)
v_readfirstlane_b32 s{NON}, v16
s_mov_b32 s{CNT}, 0
s_and_b32 s6, s{W}, 3
s_lshl_b32 m0, s6, 10""")
if POLLI>9: lpolls()
a(f"""L_pk:
s_waitcnt vmcnt(0)
v_xor_b32 v50, s{NON}, v50
v_xor_b32 v51, s{NON}, v51
v_xor_b32 v52, s{NON}, v52
v_xor_b32 v53, s{NON}, v53
v_or3_b32 v50, v50, v51, v52
v_or_b32 v50, v50, v53
v_cmp_ne_u32 vcc, 0, v50
s_add_u32 s{CNT}, s{CNT}, 1
s_cmp_gt_u32 s{CNT}, {SPIN}
s_cbranch_scc1 L_pkok
s_cbranch_vccz L_pkok""")
lpolls()
a("s_branch L_pk\nL_pkok:")
dma=f"buffer_load_dwordx4 v{L16}, {S(WS_)}, m0 offen sc1 lds"
bump="s_add_u32 m0, m0, 8192"
stamp('f_qst')
for k in range(6): a(dma+"\ns_add_u32 m0, m0, 4096\ns_nop 0")
em(fillL)
stamp('f_flag')
a("s_waitcnt vmcnt(0)")
stamp('f_p1')

def th(q,r):
    base,o=[(TW_,4096),(TW_+2,12288),(RET,20480)][q//8]
    return f"global_load_dwordx4 v[{r}:{r+3}], v{L16}, s[{base}:{base+1}] offset:{1024*q-o}"
H0=24; FA=H0; PA2=H0+3; WOA=H0+4; UA=H0+9; UR=H0+14; WAD=H0+16
W3=4; VW=7; OA=8; SG=10; PA3=11; FNH=12; WXW=14
FT=92; P1A=124; PFR=128; PD=176; WA=92; WX=172
kd=[dma,"s_add_u32 m0, m0, 4096","s_nop 0"]
a("s_barrier")
stamp('att')
for k in range(5): a(th(9+k,H0+4*k))
em(kd*20)
a("s_waitcnt vmcnt(16)\ns_barrier")
a(f"""s_mov_b32 s68, m0
s_lshl_b32 m0, s{HA}, 10
s_nop 0
{dmab(FA,XA_,'s69')}
s_add_u32 m0, m0, 4096
s_cmp_ge_u32 s{HA}, 2
{dmab(FA+1,XA_,'s69')}
s_cbranch_scc1 L_f2
s_add_u32 m0, m0, 4096
s_nop 0
{dmab(FA+2,XA_,'s69')}
L_f2:
s_mov_b32 m0, s68""")
for k in range(9): a(th(k,FT+4*k))
em(kd*14)
a("s_waitcnt vmcnt(14)\ns_barrier")
if 'nopfwo' not in XP:
    a(f"""s_lshr_b32 s6, s2, 3
    s_lshl_b32 s6, s6, 2
    s_add_u32 s6, s6, s{HA}
    s_mul_i32 s6, s6, 6400
    v_lshlrev_b32 v1, 7, v0
    s_mov_b32 exec_hi, 0x3ffff
    buffer_load_dword v1, v1, {S(WO_)}, s6 offen
    s_mov_b32 exec_hi, -1""")
for s_ in range(4):
    for Tt in range(3):
        for u in range(2):
            f=PFR+12*s_+4*Tt+2*u
            a(f"ds_read_b64_tr_b16 v[{f}:{f+1}], v{P1A+(Tt==2)} offset:{(32*s_+u)*80+(32 if Tt==1 else 0)}")
a("s_waitcnt lgkmcnt(0)")
for s_ in range(4):
    if s_==int(XP.get('pb',3)): a("s_barrier")
    for nt in range(2):
        for Tt in range(3):
            d=PD+12*nt+4*Tt; f=PFR+12*s_+4*Tt
            a(f"v_mfma_f32_16x16x32_bf16 v[{d}:{d+3}], v[{f}:{f+3}], v[{FT+16*nt+4*s_}:{FT+16*nt+4*s_+3}], {'0' if s_==0 else f'v[{d}:{d+3}]'}")
a("s_nop 2")
for nt in range(2):
    for Tt in range(3):
        d=PD+12*nt+4*Tt
        a(f"v_cvt_pk_bf16_f32 v{d}, v{d}, v{d+1}\nv_cvt_pk_bf16_f32 v{d+1}, v{d+2}, v{d+3}")
        if Tt<2: a(f"ds_write_b64 v{P1A+2}, v[{d}:{d+1}] offset:{1280*nt+32*Tt}")
a("s_mov_b32 exec_hi, 0")
for nt in range(2): a(f"ds_write_b64 v{P1A+2}, v[{PD+12*nt+8}:{PD+12*nt+9}] offset:{1280*nt+64}")
a("s_mov_b32 exec_hi, -1")
for k in range(3): a(f"ds_read_b128 v[{PFR+4*k}:{PFR+4*k+3}], v{P1A+3} offset:{1024*k}")
a("s_waitcnt lgkmcnt(0)")
for k in range(3):
    if k==2: a("s_mov_b32 exec_hi, 0")
    a(f"buffer_store_dwordx4 v[{PFR+4*k}:{PFR+4*k+3}], v{L16}, {S(WS_)}, s{PB} offen offset:{1024*k} sc1")
a("s_mov_b32 exec_hi, -1")
stamp('g_p1')
for k in range(3): a(th(14+k,W3+4*k))
a(f"""s_mul_i32 s6, s2, {FS}
s_add_u32 s6, s6, {WS_F2}
v_mov_b32 v3, s{NON}
s_lshl_b32 m0, s{HA}, 10
s_mul_i32 s68, s{HG}, 160
s_waitcnt vmcnt(6)
s_barrier""")
for n in range(25):
    WN=int(XP.get('wn',13))
    if n==WN:
        stamp('g_wo')
        a(f"""s_cmp_eq_u32 s{W}, 7
        s_waitcnt vmcnt({WN})
        s_barrier
        s_cbranch_scc0 L_nofl2
        s_mov_b64 exec, 1
        buffer_store_dword v3, v{L16}, {S(WS_)}, s6 offen sc1
        s_mov_b64 exec, -1
        L_nofl2:""")
    a(dmab(WOA+n%5,WO_,'s68')); a("s_add_u32 m0, m0, 4096")
    a(f"s_add_u32 s68, s68, {128*1280}" if n%5==4 else "s_nop 0")
a(f"""s_add_u32 s66, s{TAB}, tab_hid-L_pc
s_addc_u32 s67, s{TAB+1}, 0
s_lshl_b32 s6, s{HA}, 10
v_add_u32 v1, s6, v{L16}
s_mov_b32 s68, {WS_F2}
s_waitcnt vmcnt(0)
s_barrier""")
for k in range(5):
    for u in range(2):
        a(f"ds_read_b64_tr_b16 v[{44+4*k+2*u}:{45+4*k+2*u}], v{WAD+u+(2 if k==4 else 0)} offset:{6400*(k%4)}")
for half in range(2):
    for H in range(16*half,16*half+16):
        for u in range(2): a(f"ds_read_b64_tr_b16 v[{WA+4*H+2*u}:{WA+4*H+2*u+1}], v{W3+(H&1)} offset:{6400*((H>>1)%8)+1280*u}")
        if H==2:
            a("s_waitcnt lgkmcnt(6)")
            for k in range(5): a(f"ds_write_b128 v{WXW+(k==4)}, v[{44+4*k}:{47+4*k}] offset:{1024*(k%4)}")
    for b in range(4*half,4*half+4):
        for u in range(2): a(f"ds_read_b64_tr_b16 v[{WA+128+4*b+2*u}:{WA+128+4*b+2*u+1}], v{W3+2} offset:{12800*(b%4)+6400*u}")
    if half==0:
        for i in range(3): a(f"v_add_u32 v{W3+i}, 51200, v{W3+i}")
def spin(tag,addr,soff):
    a(f"""s_mov_b32 s{CNT}, 0
    L_{tag}:
    s_waitcnt vmcnt(0)
    v_cmp_ne_u32 vcc, s{NON}, v3
    s_add_u32 s{CNT}, s{CNT}, 1
    s_cmp_gt_u32 s{CNT}, {SPIN}
    s_cbranch_scc1 L_{tag}ok
    s_cbranch_vccz L_{tag}ok
    buffer_load_dword v3, v{addr}, {S(WS_)}, {soff} offen sc1
    s_branch L_{tag}
    L_{tag}ok:""")
a(f"buffer_load_dword v3, v{PA2}, {S(WS_)}, s68 offen sc1")
spin('pu',PA2,'s68')
a(f"""s_lshl_b32 m0, s{HA}, 10
s_mul_i32 s68, s{UU}, 160
s_add_u32 s68, s68, {WS_U}
s_waitcnt lgkmcnt(0)""")
stamp('g_wr')
a("s_barrier")
for n in range(10):
    a(dmab(UA+n%5,WS_,'s68',0,'sc1')); a("s_add_u32 m0, m0, 4096")
    a(f"s_add_u32 s68, s68, {128*10240}" if n%5==4 else "s_nop 0")
a(f"s_add_u32 m0, m0, {TL-40960}\ns_nop 0")
for k in range(4):
    if k==3: a(f"s_cmp_eq_u32 s{HA}, 3\ns_cbranch_scc1 L_nt3")
    a("global_load_lds_dwordx4 v1, s[66:67]")
    if k<3: a("s_add_u32 m0, m0, 4096\ns_add_u32 s66, s66, 4096\ns_addc_u32 s67, s67, 0")
a("L_nt3:")
a(f"s_lshl_b32 s68, s{QB}, 10\ns_add_u32 s68, s68, {WS_F3}\ns_waitcnt vmcnt(0)")
stamp('g_u')
a("s_barrier")
Fh=44
def s1r(b): return [f"ds_read_b64_tr_b16 v[{Fh+4*i+2*u}:{Fh+4*i+2*u+1}], v{UR+(i==2)} offset:{5120*b+32*i+1280*u+(2480 if i>2 else 0)}" for i in range(5) for u in range(2)]
em(s1r(0))
for b in range(2):
    nx=s1r(1) if b==0 else []
    for i in range(5):
        a(f"s_waitcnt lgkmcnt({8 if b==0 else 13-2*i})\nv_mfma_f32_16x16x32_bf16 v[{Fh+20+4*i}:{Fh+23+4*i}], v[{Fh+4*i}:{Fh+4*i+3}], v[{MM}:{MM+3}], 0")
        em(nx[2*i:2*i+2])
    if b==1: a("s_nop 0")
    for i in range(5):
        d=Fh+20+4*i; e=Fh+40+2*(i%4)
        a(f"v_cvt_pk_bf16_f32 v{d}, v{d}, v{d+1}\nv_cvt_pk_bf16_f32 v{d+1}, v{d+2}, v{d+3}\nds_write_b64 v{VW}, v[{d}:{d+1}] offset:{160*b+32*i}")
a("s_waitcnt lgkmcnt(0)")
stamp('loopend')
a("s_barrier")
stamp('T-1')
em(rowsc(HA,4))
a(f"""s_setprio 2
v_mov_b32 v1, s{NON}
s_lshl_b32 s6, s{HG}, 7
s_add_u32 s6, s6, s68
s_cmp_eq_u32 s{W}, 4
s_barrier""")
stamp('T0')
a(f"""s_cbranch_scc0 L_pook
s_mov_b64 exec, 1
buffer_store_dword v1, v{L16}, {S(WS_)}, s6 offen sc1
s_mov_b64 exec, -1
{'s_waitcnt vmcnt(0)' if 'nopw' not in XP else ''}""")
a(f"buffer_load_dword v3, v{PA3}, {S(WS_)}, s68 offen sc1")
spin('po',PA3,'s68')
stamp('o_fft')
a("s_barrier")
stamp('T1')
if HST:
    em(frd(0,72,4)+frd(1,80,4))
    if HSP<0: a("s_waitcnt lgkmcnt(2)"); em(fsto(0,72)); a("s_waitcnt lgkmcnt(0)"); em(fsto(1,80))
NBH=int(XP.get('nbh',6)); AC=24
def rd(st):
    b=44+4*(st%(NBH+1))
    if st<32: return [f"ds_read_b128 v[{b}:{b+3}], v{OA} offset:{1024*st}"]
    return [f"ds_read_b64 v[{b+2*u}:{b+2*u+1}], v{OA+1} offset:{1024*(st-32)+512*u}" for u in range(2)]
KEEP=int(XP.get('keep',2))
nr=0; nm=0
def hm():
    global nm
    b=44+4*(nm%(NBH+1)); n=sum(len(rd(x)) for x in range(nm+1,nr))
    a(f"s_waitcnt lgkmcnt({n})\nv_mfma_f32_32x32x16_bf16 v[{AC}:{AC+15}], v[{WA+4*nm}:{WA+4*nm+3}], v[{b}:{b+3}], {'0' if nm==0 else f'v[{AC}:{AC+15}]'}")
    if HST and HSP>=0:
        pcs=[fsto(0,72)[:1],fsto(0,72)[1:],fsto(1,80)[:1],fsto(1,80)[1:]]
        if nm>=HSP and (nm-HSP)%2==0 and (nm-HSP)//2<4: em(pcs[(nm-HSP)//2])
    nm+=1
while nm<40:
    if nr<40 and nr%4==0 and nr//4 in SYNC:
        while nr-nm>KEEP: hm()
        a("s_barrier"); stamp(f'o_b{nr//4}')
        em(rd(nr)); nr+=1
    elif nr<40 and nr-nm<NBH:
        em(rd(nr)); nr+=1
        if nr-nm>=4 and nr<40 and not (nr%4==0 and nr//4 in SYNC) and nr-nm<NBH:
            hm(); em(rd(nr)); nr+=1
    else: hm()
stamp('gemm')
a(f"v_mov_b64 v[{FN}:{FN+1}], v[{FNH}:{FNH+1}]\ns_nop 10")
for j in range(4):
    d=AC+4*j
    a(f"v_cvt_pk_bf16_f32 v{d}, v{d}, v{d+1}\nv_cvt_pk_bf16_f32 v{d+1}, v{d+2}, v{d+3}\nds_write_b64 v{SG}, v[{d}:{d+1}] offset:{16*j}")
OF=XP.get('of','nt')
a(f"""L_fin:
s_mul_i32 s6, s{QB}, {64*2560}
s_mul_i32 s7, s{HG}, 160
s_add_u32 s6, s6, s7
s_add_u32 s6, s6, 1280
s_cmp_ge_u32 s{W}, 2
s_waitcnt lgkmcnt(0)
s_barrier
ds_read_b128 v[24:27], v{FN}
s_cbranch_scc1 L_one
ds_read_b128 v[28:31], v{FN+2}
s_waitcnt lgkmcnt(0)
buffer_store_dwordx4 v[28:31], v{FN+3}, {S(OUT_)}, s6 offen {OF}
L_one:
s_waitcnt lgkmcnt(0)
buffer_store_dwordx4 v[24:27], v{FN+1}, {S(OUT_)}, s6 offen {OF}""")
if STAMP:
    a("s_waitcnt vmcnt(0)"); stamp('end')
    a(f"""s_lshl_b32 s6, s2, 3
    s_add_u32 s6, s6, s{W}
    s_lshl_b32 s6, s6, 6
    s_add_u32 s6, s6, {WS_ST}
    v_mov_b32 v21, 0
    s_waitcnt lgkmcnt(0)""")
    for i in range(nstamp[0]): a(f"v_mov_b32 v22, s{STB+2*i}\nbuffer_store_dword v22, v21, {S(WS_)}, s6 offen offset:{4*i}")
a("L_end:\ns_endpgm")
X=SS[0]
a(f"""L_slow:
s_cmp_lg_u32 s{SLOW}, 0
s_cbranch_scc1 L_store
v_subrev_u32 v{AV}, 163840, v{AV}
s_mov_b32 s{IT}, 0
L_blk:
s_mov_b32 s{SLOW}, 1
v_mov_b32 v{T}, 0xff800000""")
zero(CM[0],16); zero(O[0],16)
a(f"""L_pass:
s_mov_b32 s{CNT}, 0
L_sl:
s_lshr_b32 s66, s{CNT}, 1
s_mul_i32 s66, s66, 10240
s_and_b32 s6, s{CNT}, 1
s_mul_i32 s7, s6, 2048
s_add_u32 s7, s7, s66
buffer_load_dwordx4 v[{KF}:{KF+3}], v{L16}, {S(WS_)}, s7 offen sc1
buffer_load_dwordx4 v[{KF+4}:{KF+7}], v{L16}, {S(WS_)}, s7 offen offset:1024 sc1
s_lshl_b32 s7, s6, 3
s_add_u32 s7, s7, s66
s_add_u32 s7, s7, 4096
buffer_load_dwordx2 v[{K4}:{K4+1}], v{L16}, {S(WS_)}, s7 offen sc1
s_mul_i32 s7, s6, 2560
s_add_u32 s7, s7, s66
s_add_u32 s7, s7, 5120
{on}""")
for u in range(4): a(f"buffer_load_dwordx4 v[{VF[0]+4*u}:{VF[0]+4*u+3}], v{AV}, {S(WS_)}, s7 offen offset:{640*u} sc1")
a(f"""{off}
s_waitcnt vmcnt(0)
{M16(X,KF,0,CMr[0])}
{M16(X+16,KF+4,0,CMr[0])}
s_nop 9
{M4(X,K4,0)}
s_nop 15
s_nop 3
s_cmp_eq_u32 s{SLOW}, 1
s_cbranch_scc0 L_p2""")
for i in range(0,32,2): a(f"v_max3_f32 v{T}, v{T}, v{X+i}, v{X+i+1}")
a("s_branch L_nx\nL_p2:")
for i in range(32): a(f"v_exp_f32 v{X+i}, v{X+i}")
a("s_nop 1")
for u in range(4): a(SM(VF[0]+4*u,X+8*u,0))
a(f"""L_nx:
s_add_u32 s{CNT}, s{CNT}, 1
s_cmp_lt_u32 s{CNT}, 32
s_cbranch_scc1 L_sl
s_cmp_eq_u32 s{SLOW}, 1
s_cbranch_scc0 L_swap
s_mov_b32 s{SLOW}, 2
v_mov_b32 v{T+1}, v{T}
s_nop 1
v_permlane32_swap_b32 v{T}, v{T+1}
v_max_f32 v{T}, v{T}, v{T+1}""")
for i in range(16): a(f"v_sub_f32 v{CM[0]+i}, 0, v{T}")
a("s_branch L_pass\nL_swap:\ns_nop 7")
for i in range(6): a(f"v_swap_b32 v{Q16[0]+i}, v{Q16[1]+i}")
for i in range(16): a(f"v_swap_b32 v{O[0]+i}, v{O[1]+i}")
a(f"""s_add_u32 s{IT}, s{IT}, 1
s_cmp_lt_u32 s{IT}, 2
s_cbranch_scc1 L_blk
s_branch L_check""")

hdr=open('concat_heads__spectral_fnet__grouped_kv_mqa__prompt.s.ref').read().split('; Override launch')[0]
s=hdr+"; @launch grid=(256,1,1) block=(512,1,1) lds=163840\n"
if STAMP: s+="; stamps: "+" ".join(stnames)+"\n"
s+='.amdgcn_target "amdgcn-amd-amdhsa--gfx950"\n.text\n'+khead(KN)+a.text()
s+=emit_table('tab_a',table_a())+emit_table('tab_h',table_h())+emit_table('tab_hid',table_hid())+'L_tabend:\n'
s+='.section .rodata,"a"\n'+kdesc(KN,256,102)
open(OUTF,'w').write(s)
print('wrote',OUTF,len(s),'stamps',nstamp[0],stnames)
```

```python
import sys, math, struct
import numpy as np
sys.path.insert(0,'gen')
from asmlib import *

STAMP = '--stamp' in sys.argv
XP = dict((a[4:].split(':')+[''])[:2] for a in sys.argv if a.startswith('--x='))
OUTF = [a for a in sys.argv[1:] if not a.startswith('--')]
OUTF = OUTF[0] if OUTF else 'concat_heads__spectral_fnet__grouped_kv_mqa__prompt.s'
KN='concat_heads__spectral_fnet__grouped_kv_mqa__prompt_kernel'

WS_KV = 0x000000
WS_F1 = 0x040000
WS_F2 = 0x050000
WS_F3 = 0x060000
WS_O  = 0x100000
WS_U  = 0x400000
WS_ST = 0x900000
WS_SZ = 0x1000000
CSCALE = (20**-0.5)*math.log2(math.e)
OFFS = float(XP.get('offs',102))
SPIN = 200000
def f2u(x): return struct.unpack('<I',struct.pack('<f',x))[0]
def fh(x): return hex(f2u(x))
def bf(x):
    u=np.asarray(x,np.float32).view(np.uint32)
    return ((u+0x7fff+((u>>16)&1))>>16).astype(np.uint32)
def pack(vals):
    b=bf(vals); return b[...,0::2]|(b[...,1::2]<<16)
def sig(n): return 16*((n>>2)&1)+4*(n>>3)+(n&3)
def table_hid():
    out=np.zeros((15,64,4),np.uint32)
    for l in range(64):
        n=l&31; h=l>>5; k1=sig(n)
        for s in range(2):
            d1=np.arange(8)+16*s+8*h
            out[s,l]=pack(np.cos(2*np.pi*d1*k1/32))
            out[2+s,l]=pack(-np.sin(2*np.pi*d1*k1/32))
            out[13+s,l]=out[2+s,l]^0x80008000
        for j in range(3):
            d2=8*j+4*h+np.arange(4); ok=(d2<20)
            out[4+j,l]=(np.cos(2*np.pi*d2*k1/640)*ok).astype(np.float32).view(np.uint32)
            out[7+j,l]=(-np.sin(2*np.pi*d2*k1/640)*ok).astype(np.float32).view(np.uint32)
            k2=n if n<20 else 0
            out[10+j,l]=pack(np.concatenate([np.cos(2*np.pi*d2*k2/20)*ok, np.sin(2*np.pi*d2*k2/20)*ok]))
    return out.reshape(-1)
XBL=25600; RB=107520; NONL=158720
UL=0; OL=0; STG=81920; FSG=81920; WXL=102400; TL=122880; VL=138240; VP=1288
FLF=0; FSF=10240; FS=32; QSL=RB; QP=168
def grp_rows(k0): return ((k0&~7)+((k0>>2)&1))
NQH=17; NQA=3
def fin(w,l):
    c0=64*w+l; c1=min(c0+512,639)
    return [STG+(c0+c0//10)*16, c0*16+(c0//10)*2400, STG+(c1+c1//10)*16, c1*16+(c1//10)*2400]
def table_h():
    t=np.zeros((4,NQH,64,4),np.uint32)
    for w in range(4):
        for l in range(64):
            n=l&15; g=l>>4; r=(l>>2)&3; c=l&3
            j=np.arange(8)
            for nt in range(2):
                kidx=32*w+16*nt+n; u=kidx>>1; q=kidx&1
                for s in range(4):
                    sh=32*s+8*g+2*(j&3)+(j>>2)
                    v=np.cos(np.pi*sh) if kidx==1 else (np.cos(2*np.pi*u*sh/128) if q==0 else -np.sin(2*np.pi*u*sh/128))
                    t[w,4*nt+s,l]=pack(v)
            rb=FLF+(8*g+2*r)*80; sb=FSF+2560*w
            t[w,8,l]=[rb+8*c, rb+64+8*(c&1), sb+80*n+8*g, sb+16*l]
            fa=[]; wo=[]; ua=[]
            for k in range(5):
                cell=64*(w+4*k)+l
                if k<3: cf=min(cell,639); fa.append((cf//5)*20480+(cf%5)*16)
                pos=cell//10; cc=cell%10
                wo.append(((pos&~7)|((pos>>1)&3)|((pos&1)<<2))*1280+cc*16); ua.append(pos*10240+cc*16)
            ur=UL+10240*w+(2*r+(g&1))*160+(g>>1)*80+8*c
            wad=[25600*w+r*320+128+8*c+160*(grp_rows(20*(g>>1)+4*(g&1)+8*uu) if kind==0 else grp_rows(20*(4*uu+g)+16)) for kind in range(2) for uu in range(2)]
            t[w,9:14,l]=np.array(fa+[FS*(64*w+l)]+wo+ua+[ur,ur+(2480 if c>=2 else 0)]+wad).reshape(5,4)
            h=l>>5; qh=w&1; ct=w>>1; cb=r*320+64*ct+32*(g&1)+8*c
            t[w,14,l]=[cb+160*grp_rows(4*h), cb+160*grp_rows(20+4*h), cb+160*grp_rows(20*h+16), VL+n*VP+320*w+8*g]
            t[w,15,l]=[OL+qh*40960+16*l, OL+qh*40960+32768+8*l, STG+(32*qh+(l&31))*176+64*ct+8*h, 128*(l&7)]
            t[w,16,l]=fin(w+4,l)[:2]+[WXL+4096*w+16*l, WXL+16384+1024*w+16*l]
    return t.reshape(-1)
def table_a():
    t=np.zeros((4,NQA,64,4),np.uint32)
    for w in range(4):
        for l in range(64):
            g=l>>4; r=(l>>2)&3; c=l&3; h=l>>5
            t[w,0,l]=[VL+4*w*VP+(8*h+r)*40+(32 if (g&1) else 8*c), FSG+2560*w+16*((4*min(l&31,19)+2*h)^(((l&31)>>1)&3)), 8*(l&31)+40960*h, (l&1)*40960+((l>>1)&7)*128]
            t[w,1,l]=fin(w,l)
            n=l&15
            t[w,2,l]=[OL+(w>>1)*40960+512*g+16*(16*(w&1)+n), OL+(w>>1)*40960+32768+256*g+8*(16*(w&1)+n), STG+(16*w+n)*176+8*g+128, WXL+16*l]
    return t.reshape(-1)
def emit_table(name, arr):
    s=f".p2align 8\n.type {name},@object\n{name}:\n"
    for i in range(0,len(arr),8):
        s+=".long "+",".join(hex(int(x)) for x in arr[i:i+8])+"\n"
    s+=f".size {name}, {4*len(arr)}\n"
    return s

W=3; QB=4; HG=5
XB_=8; TW_=12; KV_=16; WS_=20; XA_=24; WO_=28; OUT_=32
DBG=40; TAB=42; NON=44; R0=45; J=46; RBA=47; RBD=65
SA=49; SB=50; SC=51; SD=54; HA=55; IT=55; KS=38; KM=36; FLG=48; RET=52
PB=56; UU=57; QT=58; T0=59; MIR=60; SLOW=61; CNT=62
VM=64
STB=70
def S(r,n=4): return f"s[{r}:{r+n-1}]"
a=Asm()
nstamp=[0]; stnames=[]
def stamp(name):
    sel=XP.get('st','')
    front=['kvland','kvpub','b0','b3','b6','b9pre','b9']
    if sel!='tail' and name.startswith('o_'): return
    if sel!='loop' and name.startswith('g_'): return
    if sel!='epi' and name.startswith('e_'): return
    if sel!='front' and name.startswith('f_'): return
    if sel=='front' and name in ['loopend','T0','T1','gemm']: return
    if sel and sel!='front' and name in front: return
    if name in stnames:
        i=stnames.index(name); a(f"{'s_memtime' if 'cyc' in XP else 's_memrealtime'} s[{STB+2*i}:{STB+1+2*i}]"); return
    if STAMP:
        assert nstamp[0]<16
        a(f"{'s_memtime' if 'cyc' in XP else 's_memrealtime'} s[{STB+2*nstamp[0]}:{STB+1+2*nstamp[0]}]"); nstamp[0]+=1; stnames.append(name)
def zero(base,n):
    for i in range(n): a(f"v_mov_b32 v{base+i}, 0")
def dmab(v,srd,soff,off=0,fl=''):
    return f"buffer_load_dwordx4 v{v}, {S(srd)}, {soff} offen{' offset:%d'%off if off else ''} {fl} lds"
def mod5(d,s,t):
    a(f"s_mul_i32 s{t}, s{s}, 0x3334\ns_lshr_b32 s{t}, s{t}, 16\ns_mul_i32 s{t}, s{t}, 5\ns_sub_u32 s{d}, s{s}, s{t}")


L16=2
Q16=[4,10]; Q4=[8,14]; IDX=16; AK=3; AV=1
CM=[20,36]; O=[52,68]; SS=[84,116]; KF=148; K4=156; VF=[164,180]; QR=196; T=224
XR=8; WR=9; QW=13; FR=84; ACC=200; TA=248
MM=252
def lines(t): return [x.strip() for x in t.split("\n") if x.strip()]
def pre_m():
    o=[lines(f"""s_and_b32 s{UU}, s2, 7
    s_lshl_b32 s{UU}, s{UU}, 3
    s_bfe_u32 s6, s2, 0x30003
    s_add_u32 s{UU}, s{UU}, s6
    s_lshr_b32 s{QT}, s2, 6
    s_lshr_b32 s{MIR}, s{QT}, 1
    s_sub_u32 s6, 128, s{UU}"""),lines(f"""s_cmp_eq_u32 s{UU}, 0
    s_cselect_b32 s6, 64, s6
    s_cselect_b32 s66, 0, 512
    s_mul_i32 s7, s66, 3
    s_cmp_eq_u32 s{MIR}, 0
    s_cselect_b32 s{T0}, s{UU}, s6
    s_cselect_b32 s66, s7, s66"""),lines(f"""s_and_b32 s6, s{QT}, 1
    s_lshl_b32 s6, s6, 10
    s_add_u32 s{T0}, s{T0}, s6
    v_lshrrev_b32 v23, 5, v0
    v_cmp_eq_u32 vcc, s{MIR}, v23
    v_bfe_u32 v21, v0, 1, 3"""),lines(f"""v_lshl_add_u32 v21, v21, 7, s{T0}
    v_and_b32 v22, 1, v0
    v_lshlrev_b32 v22, 9, v22
    v_mad_u32_u24 v22, v23, s66, v22
    v_bfe_u32 v24, v0, 4, 1"""),lines(f"""v_mad_u32_u24 v22, v24, v21, v22
    v_cvt_f32_u32 v21, v21
    v_cvt_f32_u32 v22, v22
    v_mul_f32 v21, {fh(1/1024)}, v21
    v_mul_f32 v22, {fh(1/2048)}, v22
    s_cmp_eq_u32 s{UU}, 0
    s_cselect_b64 vcc, vcc, -1""")]
    for i in range(4):
        o.append(lines(f"""v_cos_f32 v25, v22
        v_add_f32 v22, v22, v21
        v_cos_f32 v26, v22
        v_add_f32 v22, v22, v21
        v_cvt_pk_bf16_f32 v24, v25, v26
        v_cndmask_b32 v{MM+i}, 0, v24, vcc"""))
    return o

def chunks(l,n): return [l[k:k+n] for k in range(0,len(l),n)]
def att_init():
    o=lines(f"""v_and_b32 v21, 27, v0
    v_cmp_eq_u32 vcc, 24, v21
    v_mov_b32 v21, 0x3f803f80
    s_mov_b32 s{VM}, 0xfffff
    s_mov_b32 s{VM+1}, 0xfffff
    v_cndmask_b32 v{VF[0]}, 0, v21, vcc
    v_cndmask_b32 v{VF[0]+1}, 0, v21, vcc""")
    o+=[f"v_mov_b64 v[{VF[0]+2*i}:{VF[0]+2*i+1}], v[{VF[0]}:{VF[0]+1}]" for i in range(1,16)]+[f"v_mov_b64 v[{O[0]+2*i}:{O[0]+2*i+1}], 0" for i in range(16)]
    o=chunks(o,6)
    o.append(lines(f"""s_mov_b32 s{OUT_+2}, 5242880
    s_mov_b32 s{OUT_+3}, 0x20000
    s_mul_i32 s66, s{W}, 40
    s_add_u32 s66, s66, {QSL}
    s_mul_i32 s67, s{W}, {NQA*1024}
    s_add_u32 s67, s67, tab_a-L_pc
    s_add_u32 s{TW_}, s{TAB}, s67
    s_addc_u32 s{TW_+1}, s{TAB+1}, 0"""))
    o.append(lines(f"""v_and_b32 v21, 31, v0
    v_cmp_gt_u32 vcc, 16, v21
    v_lshrrev_b32 v22, 5, v0
    v_mov_b32 v23, 0x180
    v_cndmask_b32 v23, 64, v23, vcc"""))
    o.append(lines(f"""v_mul_u32_u24 v23, v22, v23
    v_lshl_add_u32 v{AV}, v21, 4, v23
    v_mul_u32_u24 v21, {QP}, v21
    v_add_u32 v{QR+1}, s66, v21
    v_lshl_add_u32 v{QR}, v22, 4, v{QR+1}
    v_mov_b32 v{AK}, v{L16}"""))
    o.append(lines(f"""s_mul_i32 s{SA}, s{QB}, 81920
    s_add_u32 s{SA}, s{SA}, {WS_O}
    s_lshl_b32 s7, s{HG}, 2
    s_add_u32 s7, s7, s{W}
    s_lshl_b32 s{SB}, s7, 8
    s_lshl_b32 s7, s7, 10"""))
    o.append(lines(f"""s_add_u32 s{SB}, s{SB}, s{SA}
    s_add_u32 s{SA}, s{SA}, s7
    s_add_u32 s{SB}, s{SB}, 32768
    s_add_u32 s{SC}, s{SA}, 40960
    s_add_u32 s{SD}, s{SB}, 40960"""))
    return o
def p1_scal():
    return lines(f"""s_and_b32 s6, s2, 7
    s_lshl_b32 s6, s6, 1
    s_bfe_u32 s7, s2, 0x10003
    s_add_u32 s6, s6, s7
    s_lshr_b32 s7, s2, 4
    s_lshl_b32 s{PB}, s7, 4
    s_add_u32 s{PB}, s{PB}, s6
    s_mul_i32 s6, s6, 1280
    s_mul_i32 s7, s7, 80
    s_add_u32 s69, s6, s7
    s_and_b32 s{HA}, s{W}, 3
    s_lshl_b32 s{PB}, s{PB}, 2
    s_add_u32 s{PB}, s{PB}, s{HA}
    s_mul_i32 s{PB}, s{PB}, 2560
    s_add_u32 s{PB}, s{PB}, {WS_U}
    s_mov_b32 s{XA_+2}, 2621440
    s_mov_b32 s{XA_+3}, 0x20000
    s_mov_b32 s{WO_+2}, 819200
    s_mov_b32 s{WO_+3}, 0x20000
    s_mov_b32 s{OUT_+2}, 5242880
    s_mov_b32 s{OUT_+3}, 0x20000
    s_mul_i32 s6, s{HA}, {NQH*1024}
    s_add_u32 s6, s6, tab_h-L_pc+4096
    s_add_u32 s{TW_}, s{TAB}, s6
    s_addc_u32 s{TW_+1}, s{TAB+1}, 0
    s_add_u32 s{TW_+2}, s{TW_}, 8192
    s_addc_u32 s{TW_+3}, s{TW_+1}, 0
    s_add_u32 s{RET}, s{TW_}, 16384
    s_addc_u32 s{RET+1}, s{TW_+1}, 0""")
def em(l):
    for x in l:
        if isinstance(x,list): em(x)
        else: a(x)
def wrap(d,s,inc,lim):
    a(f"s_add_u32 s{d}, s{s}, {inc}\ns_sub_u32 s7, s{d}, {lim}\ns_min_u32 s{d}, s{d}, s7")

stamp('start')
a(f"""s_cmp_ge_u32 s2, 256
s_cbranch_scc1 L_end
s_load_dwordx8 s[48:55], s[0:1], 40
s_load_dwordx8 s[56:63], s[0:1], 72
s_load_dwordx2 s[24:25], s[0:1], 0
s_memrealtime s[68:69]
s_getpc_b64 s[{TAB}:{TAB+1}]
L_pc:
v_lshrrev_b32 v1, 6, v0
v_and_b32 v0, 63, v0
s_and_b32 s{QB}, s2, 7
v_readfirstlane_b32 s{W}, v1
s_lshl_b32 s{QB}, s{QB}, 2
v_lshlrev_b32 v{L16}, 4, v0
s_bfe_u32 s6, s2, 0x20003
v_lshrrev_b32 v21, 3, v0
s_add_u32 s{QB}, s{QB}, s6
v_lshrrev_b32 v23, 4, v0
s_lshr_b32 s{HG}, s2, 5
v_and_b32 v24, 7, v0
s_and_b32 s7, s2, 0xf8
s_add_u32 s7, s7, s{W}
s_lshl_b32 s7, s7, 7
v_mul_u32_u24 v22, ((L_tabend-L_pc-32768)/3)&0xffff80, v0
v_add_u32 v22, s7, v22
s_add_u32 s{R0}, s6, s{HG}
s_mov_b64 exec, {int(XP.get('pf',15))}
global_load_dword v255, v22, s[{TAB}:{TAB+1}]
s_mov_b64 exec, -1
v_xor_b32 v23, v23, v24
s_mul_i32 s7, s{R0}, 0x3334
v_mul_u32_u24 v21, 0x500, v21
s_lshr_b32 s7, s7, 16
v_lshl_add_u32 v3, v23, 4, v21
s_mul_i32 s7, s7, 5
v_mov_b32 v17, 0
v_mov_b32 v19, 0
v_mov_b32 v15, 0
s_sub_u32 s{R0}, s{R0}, s7
s_and_b32 s{J}, s{HG}, 3
s_lshl_b32 s7, s{J}, 1
s_cmp_lt_u32 s{HG}, 4
s_cselect_b32 s{RBA}, s{J}, s7
s_cselect_b32 s{RBD}, 4, 1
s_mov_b32 s{XB_+2}, 2621440
s_mov_b32 s{XB_+3}, 0x20000
s_mov_b32 s{WS_+2}, {WS_SZ}
s_mov_b32 s{WS_+3}, 0x20000
s_cmp_ge_u32 s{W}, 4
s_cbranch_scc1 L_loader
s_and_b32 s6, s{W}, 1
s_mul_i32 s6, s6, s{RBD}
s_add_u32 s6, s6, s{RBA}
s_and_b32 s7, s6, 1
s_lshl_b32 s7, s7, 6
v_xor_b32 v4, s7, v3
s_lshl_b32 s7, s{QB}, 3
s_add_u32 s7, s7, s6
s_mul_i32 s7, s7, 10240
v_add_u32 v4, s7, v4
s_lshr_b32 s36, s{W}, 1
s_lshl_b32 s35, s36, 3
s_add_u32 s35, s35, s6
s_lshl_b32 s35, s35, 10
s_add_u32 s35, s35, {XBL}
s_lshl_b32 s36, s36, 7
s_lshl_b32 s6, s{R0}, 8
s_add_u32 s36, s36, s6
s_lshl_b32 m0, s{W}, 10
s_mul_i32 s6, s{R0}, 5120
s_add_u32 s37, m0, s6
s_mov_b32 s{KV_+2}, 25600
s_mov_b32 s{KV_+3}, 0x20000
s_cmp_lt_u32 s{HG}, 4""")
stamp('f_ka0')
a(f"""s_waitcnt lgkmcnt(0)
s_cselect_b32 s{KV_}, s52, s54
s_cselect_b32 s{KV_+1}, s53, s55
s_lshr_b32 s6, s2, 3
s_xor_b32 s7, s{W}, 1
s_or_b32 s6, s6, s7
s_cbranch_scc1 L_nonon
s_or_b32 s68, s68, 1
v_mov_b32 v16, s68
s_mov_b64 exec, 1
global_atomic_cmpswap v17, v[16:17], s[60:61] sc1
s_mov_b64 exec, -1
L_nonon:""")
for t in range(6):
    a(dmab(L16,KV_,'s37')); a("s_add_u32 m0, m0, 4096"); wrap(37,37,4096,25600)
    if t==0: a(f"s_mov_b32 s{XB_}, s48\ns_mov_b32 s{XB_+1}, s49")
a(f"""s_cmp_lg_u32 s{W}, 0
s_cbranch_scc1 L_nw0
{dmab(L16,KV_,'s37')}
L_nw0:
s_mov_b32 m0, s35
s_nop 0""")
for t in range(5):
    a(dmab(4,XB_,'s36'))
    if t<4: a("s_add_u32 m0, m0, 16384"); wrap(36,36,256,1280)
stamp('f_kvi')
cpy=f"""s_mov_b32 s{WO_}, s56
s_mov_b32 s{WO_+1}, s57
s_mov_b32 s{OUT_}, s58
s_mov_b32 s{OUT_+1}, s59
s_mov_b32 s{DBG}, s60
s_mov_b32 s{DBG+1}, s61
s_mov_b32 s{WS_}, s62
s_mov_b32 s{WS_+1}, s63"""
a(cpy)
a(f"""v_and_b32 v21, 15, v0
v_lshrrev_b32 v22, 4, v0
s_and_b32 s6, s{W}, 1
s_lshl_b32 s7, s6, 12
s_add_u32 s7, s7, {XBL}
v_lshrrev_b32 v24, 1, v21
v_xor_b32 v23, v22, v24
v_lshl_add_u32 v24, v21, 7, s7
v_lshl_add_u32 v{XR}, v23, 4, v24
v_xor_b32 v7, 64, v{XR}
s_lshr_b32 s66, s{W}, 1
s_mul_i32 s66, s66, 96
s_add_u32 s7, s66, {RB}
v_lshrrev_b32 v23, 2, v0
v_mul_u32_u24 v23, 320, v23
v_and_b32 v25, 3, v0
v_lshl_add_u32 v23, v25, 3, v23
v_and_b32 v24, 1, v22
v_mul_u32_u24 v24, 160, v24
v_add3_u32 v{WR}, v23, v24, s7
s_add_u32 s7, s7, 160
v_sub_u32 v23, v23, v24
v_add_u32 v{WR+1}, s7, v23
s_mul_i32 s7, s6, {32*QP}
s_add_u32 s7, s7, s66
s_add_u32 s7, s7, {QSL}
v_mul_u32_u24 v23, {QP}, v21
v_lshl_add_u32 v23, v22, 3, v23
v_add_u32 v{QW}, s7, v23
s_mov_b32 s{FLG}, 8
s_cmp_lt_u32 s{W}, 2
s_cbranch_scc1 L_nokv""")
a(f"""s_mov_b32 s{FLG}, 0
v_lshrrev_b32 v26, 3, v21
v_and_b32 v27, 7, v21
v_mul_u32_u24 v23, s{RBD}, v26
v_add_u32 v23, s{RBA}, v23
v_and_b32 v24, 1, v23
v_lshlrev_b32 v23, 10, v23
v_lshl_add_u32 v23, v24, 6, v23
v_lshl_add_u32 v23, v27, 7, v23
v_lshrrev_b32 v24, 1, v27
v_xor_b32 v24, v24, v22
v_lshl_add_u32 v23, v24, 4, v23
v_add_u32 v18, {XBL}, v23
v_xor_b32 v19, 64, v18
v_bfe_u32 v23, v0, 2, 2
v_lshl_add_u32 v23, v22, 3, v23
v_mul_u32_u24 v23, 40, v23
s_cmp_eq_u32 s6, 0
s_cselect_b64 vcc, -1, 0
v_cndmask_b32 v25, 4, v25, vcc
v_lshl_add_u32 v20, v25, 3, v23
s_lshr_b32 s66, s{QB}, 1
s_mul_i32 s66, s66, 10240
s_and_b32 s67, s{QB}, 1
v_lshrrev_b32 v24, 1, v22
v_and_b32 v25, 1, v22
s_cmp_ge_u32 s{HG}, 4
s_cbranch_scc1 L_kvV""")
def kvgemm(isK):
    a("s_waitcnt vmcnt(0)\ns_barrier")
    stamp('kvland')
    a(f"global_load_dword v16, v17, s[{DBG}:{DBG+1}] sc1")
    NB=5
    def rd(st):
        f=FR+8*(st%NB)
        if st==16: a("v_add_u32 v18, 0x10000, v18\nv_add_u32 v19, 0x10000, v19")
        a(f"""ds_read_b128 v[{f}:{f+3}], v{18+st%2} offset:{(8192*(st//2))&0xffff}
        ds_read_b64_tr_b16 v[{f+4}:{f+5}], v20 offset:{1280*st}
        ds_read_b64_tr_b16 v[{f+6}:{f+7}], v20 offset:{1280*st+160}""")
    for st in range(NB-1): rd(st)
    for st in range(20):
        if st+NB-1<20: rd(st+NB-1)
        f=FR+8*(st%NB); A,B=(f+4,f) if isK else (f,f+4)
        a(f"s_waitcnt lgkmcnt({3*min(NB-1,19-st)})\nv_mfma_f32_16x16x32_bf16 v[28:31], v[{A}:{A+3}], v[{B}:{B+3}], {'0' if st==0 else 'v[28:31]'}")
a(f"""v_lshlrev_b32 v27, 4, v27
v_lshl_add_u32 v23, v26, 11, v27
v_lshl_add_u32 v23, v24, 9, v23
v_lshl_add_u32 v23, v25, 3, v23
v_lshl_add_u32 v27, v26, 3, v27
v_cndmask_b32 v15, v27, v23, vcc
s_lshl_b32 s7, s67, 9
s_add_u32 s7, s7, 4096
s_lshl_b32 s67, s67, 10
s_cmp_eq_u32 s6, 0
s_cselect_b32 s67, s67, s7
s_cselect_b32 s64, -1, 0xffff
s_cselect_b32 s65, -1, 0
s_lshl_b32 s7, s{J}, 7
s_add_u32 s66, s66, s7
s_add_u32 s66, s66, s67""")
kvgemm(True)
a(f"""s_branch L_kvW
L_kvV:
s_cmp_eq_u32 s6, 0
s_cselect_b32 s7, 0x180, 64
s_cselect_b32 s64, -1, 0x000f000f
s_mov_b32 s65, s64
v_mul_u32_u24 v24, s7, v24
v_lshl_add_u32 v24, v21, 4, v24
v_lshl_add_u32 v15, v25, 3, v24
s_and_b32 s7, s{J}, 2
s_add_u32 s67, s67, s7
s_lshl_b32 s67, s67, 1
s_and_b32 s7, s{J}, 1
s_add_u32 s67, s67, s7
s_mul_i32 s67, s67, 640
s_lshl_b32 s7, s6, 8
s_add_u32 s66, s66, s7
s_add_u32 s66, s66, s67
s_add_u32 s66, s66, 5120""")
kvgemm(False)
a(f"""L_kvW:
s_mov_b32 s{KS}, s66
s_mov_b64 s[{KM}:{KM+1}], s[64:65]
s_cmp_lt_u32 s{HG}, 4
s_cselect_b32 s6, {fh(CSCALE)}, 1.0
s_mov_b32 s7, s6
s_nop 2
v_pk_mul_f32 v[28:29], v[28:29], s[6:7]
v_pk_mul_f32 v[30:31], v[30:31], s[6:7]
v_cvt_pk_bf16_f32 v28, v28, v29
v_cvt_pk_bf16_f32 v29, v30, v31
s_mov_b64 exec, s[64:65]
buffer_store_dwordx2 v[28:29], v15, {S(WS_)}, s66 offen sc1
s_mov_b64 exec, -1
s_branch L_kvE
L_nokv:""")
a("s_waitcnt vmcnt(0)\ns_barrier")
stamp('kvland')
a("L_kvE:")
stamp('kvpub')
def qmm(i,k,ct,qt):
    f=FR+40*(i%2)+20*k; d=ACC+8*ct+4*qt
    c='0' if (i==0 and k==0) else f"v[{d}:{d+3}]"
    return f"v_mfma_f32_16x16x32_bf16 v[{d}:{d+3}], v[{f+8+4*ct}:{f+11+4*ct}], v[{f+4*qt}:{f+4*qt+3}], {c}"
def qrx(i,k,qt):
    f=FR+40*(i%2)+20*k; return f"ds_read_b128 v[{f+4*qt}:{f+4*qt+3}], v{[XR,7][k]} offset:{((8192*i)&0xffff)+2048*qt}"
def qrw(i,k,ct,u):
    f=FR+40*(i%2)+20*k+8+4*ct+2*u; return f"ds_read_b64_tr_b16 v[{f}:{f+1}], v{WR+u} offset:{(i%5)*10240+5120*k+32*ct}"
def weave(R,M):
    n=max(len(M),1); k=0
    for j in range(n):
        t=(len(R)*(j+1))//n
        em(R[k:t]); k=t
        if M: a(M[j])
pm=pre_m(); fill=pm[:2]+[pm[2][:3]]+att_init()
quota=[round(len(fill)*(i+1)/9) for i in range(9)]; done=0
FORCE=int(XP.get('force',5))
for i in range(10):
    a("s_barrier")
    if i in (0,3,6,9): stamp(f'b{i}')
    if i==FORCE+1: a(f"v_mov_b32 v18, {NONL}\nds_read_b32 v16, v18")
    if i==FORCE+2: a(f"v_readfirstlane_b32 s{NON}, v16")
    R=[x for k in range(2) for x in [qrx(i,k,0),qrx(i,k,1)]+[qrw(i,k,ct,u) for ct in range(2) for u in range(2)]]
    M=[qmm(i-1,k,ct,qt) for k in range(2) for ct in range(2) for qt in range(2)] if i>0 else []
    if i<9: weave(R,M)
    a(f"s_cmp_ge_u32 s{W}, 2\ns_cbranch_scc1 L_c{i}")
    weave([qrw(i,k,2,u) for k in range(2) for u in range(2)],[qmm(i-1,k,2,qt) for k in range(2) for qt in range(2)] if i>0 else [])
    a(f"L_c{i}:")
    if i==9: weave(R,M); break
    if i==7: a(f"v_add_u32 v{XR}, 0x10000, v{XR}\nv_add_u32 v7, 0x10000, v7")
    if i<9: em(fill[done:quota[i]]); done=quota[i]
    a(f"s_getreg_b32 s68, hwreg(HW_REG_IB_STS, 0, 4)")
    if i==FORCE: a(f"s_min_u32 s68, s68, s{FLG}")
    a(f"s_and_b32 s69, s{FLG}, 8\ns_or_b32 s68, s68, s69\ns_cbranch_scc1 L_nf{i}\ns_call_b64 s[{RET}:{RET+1}], L_sm\nL_nf{i}:")
    a("s_waitcnt lgkmcnt(0)")
def qst(ct):
    o=[]
    for qt in range(2):
        d=ACC+8*ct+4*qt
        o+=[f"v_cvt_pk_bf16_f32 v{d}, v{d}, v{d+1}",f"v_cvt_pk_bf16_f32 v{d+1}, v{d+2}, v{d+3}",f"ds_write_b64 v{QW}, v[{d}:{d+1}] offset:{16*QP*qt+32*ct}"]
    return o
a("s_waitcnt lgkmcnt(6)")
em([qmm(9,0,ct,qt) for ct in range(2) for qt in range(2)])
a("s_waitcnt lgkmcnt(0)")
em([qmm(9,1,ct,qt) for ct in range(2) for qt in range(2)])
a("s_cbranch_scc1 L_c10")
em([qmm(9,k,2,qt) for k in range(2) for qt in range(2)])
a(f"L_c10:\nv_mov_b32 v{IDX}, 0xdddddddd\ns_nop 2")
em(qst(0)+qst(1))
a("s_cbranch_scc1 L_c11")
em(qst(2))
a("L_c11:")
stamp('f_qst')

a(f"""global_load_dwordx4 v[{TA}:{TA+3}], v{L16}, s[{TW_}:{TW_+1}]
global_load_dwordx4 v[{TA+4}:{TA+7}], v{L16}, s[{TW_}:{TW_+1}] offset:1024
global_load_dwordx4 v[{TA-4}:{TA-1}], v{L16}, s[{TW_}:{TW_+1}] offset:2048
s_setprio 2
s_waitcnt lgkmcnt(0)
s_barrier""")
stamp('att')
VRA=TA; FO=TA+1; L8=TA+2; PA=TA+3; FN=TA+4
def koff(g,t): return (g>>1)*10240+(2*(g&1)+t)*1024
def k4off(g): return (g>>1)*10240+4096
def voff(g,u): return (g>>1)*10240+5120+(4*(g&1)+u)*640
on=f"s_mov_b64 exec, s[{VM}:{VM+1}]"; off="s_mov_b64 exec, -1"
def M16(d,k,q,c): return f"v_mfma_f32_32x32x16_bf16 v[{d}:{d+15}], v[{k}:{k+3}], v[{Q16[q]}:{Q16[q]+3}], {c}"
def M4(d,k,q): return f"v_mfma_f32_32x32x4_2b_bf16 v[{d}:{d+31}], v[{k}:{k+1}], v[{Q4[q]}:{Q4[q]+1}], v[{d}:{d+31}]"
def SM(v,x,q): return f"v_smfmac_f32_32x32x32_bf16 v[{O[q]}:{O[q]+15}], v[{v}:{v+3}], v[{x}:{x+7}], v{IDX}"
CMr=[f"v[{c}:{c+15}]" for c in CM]
def qrd(q): return f"""ds_read_b64 v[{Q16[q]}:{Q16[q]+1}], v{QR} offset:{32*QP*q}
ds_read_b64 v[{Q16[q]+2}:{Q16[q]+3}], v{QR} offset:{32*QP*q+8}
ds_read_b64 v[{Q4[q]}:{Q4[q]+1}], v{QR+1} offset:{32*QP*q+32}"""
a(f"""{qrd(0)}
ds_read_b128 v[{KF}:{KF+3}], v{AK} offset:{koff(0,0)}
ds_read_b128 v[{KF+4}:{KF+7}], v{AK} offset:{koff(0,1)}
{qrd(1)}
ds_read_b128 v[{K4}:{K4+3}], v{AK} offset:{k4off(0)}
s_waitcnt lgkmcnt(5)
{M16(SS[0],KF,0,'0')}
s_waitcnt lgkmcnt(4)
{M16(SS[0]+16,KF+4,0,'0')}
s_waitcnt lgkmcnt(0)
{M16(SS[1],KF,1,'0')}
{M16(SS[1]+16,KF+4,1,'0')}
{on}""")
for u in range(4): a(f"ds_read_b128 v[{VF[0]+4*u}:{VF[0]+4*u+3}], v{AV} offset:{voff(0,u)}")
a(f"""{off}
s_mov_b32 s{IT}, 8
{M4(SS[0],K4,0)}
s_mov_b32 s{SLOW}, 0
s_nop 0
{M4(SS[1],K4,1)}
s_nop 15
s_nop 0""")
for q in range(2):
    X=SS[q]
    a(f"v_max3_f32 v{T}, v{X}, v{X+1}, v{X+2}\nv_max3_f32 v{T+1}, v{X+3}, v{X+4}, v{X+5}")
    for i in range(6,32,4):
        a(f"v_max3_f32 v{T}, v{T}, v{X+i}, v{X+i+1}")
        if i+2<32: a(f"v_max3_f32 v{T+1}, v{T+1}, v{X+i+2}, v{X+i+3}")
    a(f"""v_max_f32 v{T}, v{T}, v{T+1}
    v_mov_b32 v{T+1}, v{T}
    s_nop 1
    v_permlane32_swap_b32 v{T}, v{T+1}
    v_max_f32 v{T}, v{T}, v{T+1}
    v_sub_f32 v{CM[q]}, {fh(-OFFS)}, v{T}
    v_sub_f32 v{CM[q]+1}, {fh(-OFFS)}, v{T}""")
    for i in range(1,8): a(f"v_mov_b64 v[{CM[q]+2*i}:{CM[q]+2*i+1}], v[{CM[q]}:{CM[q]+1}]")
X=SS[0]
for i in range(16):
    a(f"v_pk_add_f32 v[{X+2*i}:{X+2*i+1}], v[{X+2*i}:{X+2*i+1}], v[{CM[0]}:{CM[0]+1}]")
    if i==1: a(M16(SS[1],KF,1,CMr[1]))
a(f"v_exp_f32 v{X}, v{X}\nv_exp_f32 v{X+1}, v{X+1}\ns_waitcnt lgkmcnt(0)")
stamp('g_0')
a(".p2align 3\nL_loop:")
pos=dict(smp=2,mB=5,s0=10,mC=13,s1=21,s2=26,mA=29)
order=sorted(pos,key=lambda k:pos[k])
body=[]
for u in range(8):
    g,q=u>>1,u&1
    X=SS[q]; Y=SS[q^1]; gn=(u+1)>>1
    m={}
    m['mA']=M16(X,KF,q,CMr[q]); m['mB']=M16(Y+16,KF+4,q^1,CMr[q^1]); m['mC']=M4(Y,K4+2*(gn&1),q^1)
    for i in range(3): m[f's{i}']=SM(VF[g%2]+4*i,X+8*i,q)
    m['smp']=SM(VF[((u-1)>>1)%2]+12,Y+24,q^1)
    aft={k:[] for k in pos}
    if q==0:
        if g==3: aft['smp'].append("s_barrier")
        aft['smp'].append(f"ds_read_b128 v[{KF}:{KF+3}], v{AK} offset:{koff(g+1,0)}")
        aft['mB'].append(f"ds_read_b128 v[{KF+4}:{KF+7}], v{AK} offset:{koff(g+1,1)}")
        if g&1: aft['mC'].append(f"ds_read_b128 v[{K4}:{K4+3}], v{AK} offset:{k4off(g+1)}")
        aft['s2'].append("s_waitcnt lgkmcnt(0)")
    else:
        b=VF[(g+1)%2]
        aft['s0']+=[on]+[f"ds_read_b128 v[{b+4*i}:{b+4*i+3}], v{AV} offset:{voff(g+1,i)}" for i in range(4)]+[off]
        aft['mA'].append("s_waitcnt lgkmcnt(0)")
        if g==3:
            aft['s1']+=[f"s_sub_u32 s{IT}, s{IT}, 1",f"v_add_u32 v{AK}, 20480, v{AK}",f"v_add_u32 v{AV}, 20480, v{AV}"]
            aft['s2']+=[f"s_cmp_lg_u32 s{IT}, 0"]
    ins={i:[] for i in range(33)}
    for k in order: ins[pos[k]]+=[m[k]]+aft[k]
    for i in range(32): body+=ins[i]+[f"v_exp_f32 v{X+i}, v{X+i}"]
em(body[3:]+body[:3])
a("s_cbranch_scc1 L_loop\nL_check:")
stamp('loopend')
dd=[230,236]
def nrm(q,lo,hi):
    for i in range(lo,hi): a(f"v_pk_mul_f32 v[{CM[q]+2*i}:{CM[q]+1+2*i}], v[{O[q]+2*i}:{O[q]+2*i+1}], v[{T+4*q}:{T+1+4*q}] op_sel_hi:[1,0]")
    for i in range(lo,hi): a(f"v_cvt_pk_bf16_f32 v{dd[q]+i}, v{CM[q]+2*i}, v{CM[q]+1+2*i}")
a(f"v_rcp_f32 v{T}, v{O[0]+12}\ns_waitcnt vmcnt(0)")
nrm(0,0,4)
a(f"buffer_store_dwordx4 v[{dd[0]}:{dd[0]+3}], v{L16}, {S(WS_)}, s{SA} offen sc1\nv_rcp_f32 v{T+4}, v{O[1]+12}")
stamp('e_s0')
nrm(0,4,6); nrm(1,4,6); nrm(1,0,4)
a(f"""buffer_store_dwordx4 v[{dd[1]}:{dd[1]+3}], v{L16}, {S(WS_)}, s{SC} offen sc1
v_permlane32_swap_b32 v{dd[0]+4}, v{dd[1]+4}
v_permlane32_swap_b32 v{dd[0]+5}, v{dd[1]+5}
buffer_store_dwordx2 v[{dd[0]+4}:{dd[0]+5}], v{L8}, {S(WS_)}, s{SB} offen sc1""")
chk=[]
for q in range(2):
    o=O[q]
    chk+=lines(f"""v_max3_f32 v{T+2+q}, |v{o}|, |v{o+1}|, |v{o+2}|
    v_max3_f32 v{T+2+q}, v{T+2+q}, |v{o+3}|, |v{o+4}|
    v_max3_f32 v{T+2+q}, v{T+2+q}, |v{o+5}|, |v{o+6}|
    v_max_f32 v{T+2+q}, v{T+2+q}, |v{o+7}|""")
prs=[O[q]+2*i for q in range(2) for i in range(6)]
chk.append(f"v_pk_add_f32 v[{T+4}:{T+5}], v[{prs[0]}:{prs[0]+1}], v[{prs[1]}:{prs[1]+1}]")
for r_ in prs[2:]: chk.append(f"v_pk_add_f32 v[{T+4}:{T+5}], v[{T+4}:{T+5}], v[{r_}:{r_+1}]")
chk+=lines(f"""v_cmp_gt_f32 vcc, {fh(2.0**110)}, v{O[0]+12}
v_add_f32 v{T+4}, v{T+4}, v{T+5}
v_min_f32 v{T+2}, v{T+2}, v{T+3}
s_mov_b64 s[68:69], vcc
v_cmp_gt_f32 vcc, {fh(2.0**110)}, v{O[1]+12}
v_cmp_gt_f32 s[66:67], s6, |v{T+4}|
v_cmp_lt_f32 s[6:7], s7, v{T+2}
s_and_b64 vcc, vcc, s[68:69]
s_and_b64 vcc, vcc, s[66:67]
s_and_b64 vcc, vcc, s[6:7]""")
TB=84; NF=136; XX=[4,148]; TRs=[20,52]; TIs=[36,68]
stamp('e_st')
a(f"v_add_u32 v3, {TL}, v{L16}")
for qd in [0,2,1,3,13,14]: a(f"ds_read_b128 v[{TB+4*qd}:{TB+4*qd+3}], v3 offset:{1024*qd}")
a(f"s_mov_b32 s6, 0x7f800000\ns_mov_b32 s7, {fh(2.0**-(OFFS+12))}")
stamp('e_rd')
em(chk)
stamp('e_chk')
a(f"""s_cmp_eq_u64 vcc, -1
s_waitcnt lgkmcnt(0)
s_cbranch_scc0 L_slow
L_store:""")
stamp('e_w')
a("s_barrier")
stamp('T-1')
def mm(d,A,B,c): return f"v_mfma_f32_32x32x16_bf16 v[{d}:{d+15}], v[{A}:{A+3}], v[{B}:{B+3}], {c}"
def vrd(r):
    return [f"ds_read_b64_tr_b16 v[{XX[r]+8*p+4*s+2*u}:{XX[r]+8*p+4*s+2*u+1}], v{VRA} offset:{VP*(2*r+p)+640*s+160*u}" for p in range(2) for s in range(2) for u in range(2)]
def sta(r):
    f=XX[r]; TR=TRs[r]; TI=TIs[r]; TRr=f"v[{TR}:{TR+15}]"; TIr=f"v[{TI}:{TI+15}]"
    return [mm(TR,f,TB,'0'),mm(TI,f,TB+8,'0'),mm(TR,f+4,TB+4,TRr),mm(TI,f+4,TB+12,TIr),mm(TR,f+8,NF,TRr),mm(TI,f+8,TB,TIr),mm(TR,f+12,NF+4,TRr),mm(TI,f+12,TB+4,TIr)]
WRr=TB+16; WI=TB+28; GG=TB+40; P=144
def pr(x): return f"v[{x}:{x+1}]"
def twid(r):
    f=XX[r]; TR=TRs[r]; TI=TIs[r]; o=[]
    for i in range(0,12,2):
        o+=lines(f"""v_pk_mul_f32 {pr(P)}, {pr(TI+i)}, {pr(WI+i)}
        v_pk_mul_f32 {pr(P+2)}, {pr(TR+i)}, {pr(WI+i)}
        v_pk_fma_f32 {pr(TR+i)}, {pr(TR+i)}, {pr(WRr+i)}, {pr(P)} neg_lo:[0,0,1] neg_hi:[0,0,1]
        v_pk_fma_f32 {pr(TI+i)}, {pr(TI+i)}, {pr(WRr+i)}, {pr(P+2)}
        v_cvt_pk_bf16_f32 v{f+4*(i//4)+(i%4)//2}, v{TR+i}, v{TR+i+1}
        v_cvt_pk_bf16_f32 v{f+4*(i//4)+2+(i%4)//2}, v{TI+i}, v{TI+i+1}""")
    return o
def stb(r):
    f=XX[r]; y=TRs[r]; return [mm(y,f,GG,'0'),mm(y,f+4,GG+4,f"v[{y}:{y+15}]"),mm(y,f+8,GG+8,f"v[{y}:{y+15}]")]
FF=XP.get('ff','sc1'); HST='ast' not in XP and 'al' not in XP; AL='al' in XP; HSP=int(XP.get('hsp',20))
def fout(r):
    y=TRs[r]; d=TIs[r]
    return [f"v_cvt_pk_bf16_f32 v{d+i}, v{y+2*i}, v{y+2*i+1}" for i in range(8)]+[on,f"ds_write_b128 v{FO}, v[{d}:{d+3}] offset:{1280*r}",f"ds_write_b128 v{L8}, v[{d+4}:{d+7}] offset:{1280*r}",off]
def frd(r,d,ad): return [f"ds_read_b128 v[{d}:{d+3}], v{ad} offset:{1280*r}",f"ds_read_b128 v[{d+4}:{d+7}], v{ad} offset:{1280*r+1024}"]
def fsto(r,d):
    return [f"buffer_store_dwordx4 v[{d}:{d+3}], v{L16}, {S(OUT_)}, s{66+r} offen {FF}","s_mov_b64 exec, 0xffff",f"buffer_store_dwordx4 v[{d+4}:{d+7}], v{L16}, {S(OUT_)}, s{66+r} offen offset:1024 {FF}",off]
def rowsc(wr,ad): return lines(f"""s_lshl_b32 s66, s{wr}, 8
s_add_u32 s66, s66, s{T0}
s_mul_i32 s66, s66, 2560
s_add_u32 s67, s66, {128*2560}
v_bfe_u32 v{ad}, v0, 3, 2
v_xor_b32 v{ad}, v{ad}, v0
s_mul_i32 s7, s{wr}, 2560
s_add_u32 s7, s7, {FSG}
v_lshl_add_u32 v{ad}, v{ad}, 4, s7""")
flag3=["s_waitcnt vmcnt(0)","s_barrier","s_mov_b64 exec, 0xffff",
   f"buffer_load_dword v1, v{PA}, {S(WS_)}, s{SA} offen sc1","s_mov_b64 exec, 15",f"buffer_load_dword v1, v{PA}, {S(WS_)}, s{SB} offen sc1",off]
scal=lines(f"""s_lshl_b32 m0, s{W}, 10
s_mul_i32 s68, s{QB}, 81920
s_add_u32 s68, s68, {WS_O}
s_add_u32 s{XB_}, s{WS_}, s68
s_addc_u32 s{XB_+1}, s{WS_+1}, 0
s_mov_b32 s{XB_+2}, 81920
v_xor_b32 v{L8}, 16, v{FO}""")
OAa=TA-4; WXa=164; BA=[84+4*i for i in range(8)]; ACa=116
wxr=[f"ds_read_b128 v[{WXa+4*st}:{WXa+4*st+3}], v{OAa+3} offset:{1024*st}" for st in range(20)]
A0=sta(0); A1=sta(1); W0=twid(0); W1=twid(1); B0=stb(0); FP=int(XP.get('fp',10))
R1=vrd(1)+[f"ds_read_b128 v[{TB+4*qd}:{TB+4*qd+3}], v3 offset:{1024*qd}" for qd in range(4,13)]
em(vrd(0)); em(scal); a("s_waitcnt lgkmcnt(6)")
a(A0[0]); a(A0[1]); a("s_waitcnt lgkmcnt(0)")
def fp(j):
    if FP==j: em(flag3); stamp('T0')
for j in range(2,8):
    a(A0[j]); em(R1[:3]); R1=R1[3:]; fp(j)
a("s_waitcnt lgkmcnt(9)")
for j in range(3):
    a(A1[j]); em(wxr[2*j:2*j+2]); fp(8+j)
a("s_waitcnt lgkmcnt(6)")
for j in range(3,8):
    em(W0[:5]); W0=W0[5:]; a(A1[j]); em(wxr[2*j:2*j+2]); fp(8+j)
em(W0)
fp(16)
a("s_nop 1")
for j in range(3):
    a(B0[j]); em(W1[:6]); W1=W1[6:]
em(W1)
em(wxr[16:18]); B1=stb(1); f0=fout(0)
a(B1[0]); em(f0[:4]); a(B1[1]); em(f0[4:8]); a(B1[2]); em(f0[8:]); em(wxr[18:])
if not HST: em(rowsc(W,3)); em(frd(0,4,3))
else: a("s_nop 5")
em(fout(1))
if AL: em(frd(1,12,3))
elif not HST:
    em(frd(1,12,3)); a("s_waitcnt lgkmcnt(4)"); em(fsto(0,4)); a("s_waitcnt lgkmcnt(0)"); em(fsto(1,12))
a("s_waitcnt lgkmcnt(0)")
late=[]
FSP=int(XP.get('fsp',99))
stamp('o_fft')
a("s_barrier")
stamp('T1')
oda=[f"buffer_load_dwordx4 v{L16}, {S(XB_)}, m0 offen sc1 lds","s_add_u32 m0, m0, 40960","s_nop 0",f"buffer_load_dwordx4 v{L16}, {S(XB_)}, m0 offen sc1 lds",f"s_sub_u32 m0, m0, {40960-4096}","s_nop 0"]
SYNC=eval(XP.get('sync','{0/1,1/2,2/4,4/6,6/8,8/10}').replace('/',':'))
AHEAD=int(XP.get('ahead',3))
def ard(st):
    b=BA[st%8]
    if st<16: return [f"ds_read_b128 v[{b}:{b+3}], v{OAa} offset:{2048*st}"]
    return [f"ds_read_b64 v[{b+2*u}:{b+2*u+1}], v{OAa+1} offset:{2048*(st-16)+1024*u}" for u in range(2)]
ar=0; am=0
def amm():
    global am
    b=BA[am%8]; n=sum(len(ard(x)) for x in range(am+1,ar))
    a(f"s_waitcnt lgkmcnt({n})\nv_mfma_f32_16x16x32_bf16 v[{ACa}:{ACa+3}], v[{WXa+4*am}:{WXa+4*am+3}], v[{b}:{b+3}], {'0' if am==0 else f'v[{ACa}:{ACa+3}]'}")
    am+=1
def awork(avail,k):
    global ar
    old=ar
    while ar<avail and ar-am<8 and sum(len(ard(x)) for x in range(am,ar+1))<=14: em(ard(ar)); ar+=1
    for _ in range(k):
        if am<old: amm()
issued=0; avail=0; vm=[]
def slot(k):
    global late
    if late:
        c=late[0]; late=late[1:]; em(c); vm.extend([None]*sum(x.startswith('buffer_') for x in c))
    else: awork(avail,k)
PRE=int(XP.get('pre',2))
for hc in sorted(SYNC):
    while issued<min(10,SYNC[hc]+AHEAD):
        if hc>0: slot(3)
        em(oda); vm.extend([issued]*2); issued+=1
        if AL and issued==int(XP['al'] or 10): em(fsto(0,4)+fsto(1,12)); vm.extend([None]*4)
    if hc==0:
        for _ in range(PRE): slot(0)
    elif issued==10:
        while late or am<avail-4: slot(2)
    last=max(i for i,x in enumerate(vm) if x==SYNC[hc]-1)
    a(f"s_waitcnt vmcnt({len(vm)-1-last})\ns_barrier")
    avail=2*SYNC[hc]
    stamp(f'o_b{hc}')
while am<20: awork(20,2)
stamp('gemm')
a(f"""s_nop 7
v_cvt_pk_bf16_f32 v{ACa}, v{ACa}, v{ACa+1}
v_cvt_pk_bf16_f32 v{ACa+1}, v{ACa+2}, v{ACa+3}
ds_write_b64 v{OAa+2}, v[{ACa}:{ACa+1}]
s_branch L_fin""")
a(f"""L_sm:
s_cmp_eq_u32 s{FLG}, 0
s_cbranch_scc1 L_flag1
s_cmp_eq_u32 s{FLG}, 1
s_cbranch_scc1 L_smp
s_waitcnt vmcnt(0)
v_cmp_ne_u64 s[68:69], s[{NON}:{NON+1}], v[198:199]
s_cmp_lg_u64 s[68:69], 0
s_cbranch_scc1 L_smp
ds_write_b32 v18, v18 offset:4
s_mov_b32 s{FLG}, 8""")
stamp('f_p1')
a(f"""s_setpc_b64 s[{RET}:{RET+1}]
L_smp:
buffer_load_dwordx2 v[198:199], v19, {S(WS_)}, s{KS} offen sc1
s_mov_b32 s{FLG}, 2
s_setpc_b64 s[{RET}:{RET+1}]
L_flag1:
s_mov_b32 s{CNT}, 0
L_non:
s_waitcnt vmcnt(0)
v_readfirstlane_b32 s{NON}, v16
s_add_u32 s{CNT}, s{CNT}, 1
s_cmp_gt_u32 s{CNT}, {SPIN}
s_cbranch_scc1 L_gotnon
s_cmp_lg_u32 s{NON}, 0
s_cbranch_scc1 L_gotnon
global_load_dword v16, v17, s[{DBG}:{DBG+1}] sc1
s_branch L_non
L_gotnon:
s_lshl_b32 s68, s{QB}, 3
s_add_u32 s68, s68, s{HG}
s_mul_i32 s68, s68, {FS//4}
s_add_u32 s68, s68, s{W}
s_lshl_b32 s68, s68, 2
s_add_u32 s68, s68, {WS_F1-8}
v_mov_b32 v18, {NONL}
s_mov_b64 exec, 1
buffer_store_dword v16, v17, {S(WS_)}, s68 offen sc1
{'' if 'nokp' in XP else f's_mov_b64 exec, s[{KM}:{KM+1}]'}
{'' if 'nokp' in XP else f'buffer_load_dword v198, v15, {S(WS_)}, s{KS} offen sc1'}
s_mov_b64 exec, -1
s_mov_b32 s{NON+1}, s{NON}
v_and_b32 v19, 31, v0
v_mul_u32_u24 v19, {FS}, v19
s_and_b32 s68, s2, 7
s_mul_i32 s68, s68, {32*FS}
s_add_u32 s{KS}, s68, {WS_F1}
s_cmp_eq_u32 s{W}, 3
s_cselect_b32 s{FLG}, 1, 8
s_cbranch_scc0 L_nw3
ds_write_b64 v18, v[16:17]
L_nw3:""")
stamp('f_flag')
a(f"s_setpc_b64 s[{RET}:{RET+1}]")

a("L_loader:")
ST=[dict(srd=36,v=5,G=16,GS=17,GL=18,L=19,LD=30,LS=31,LW=34),dict(srd=12,v=7,G=26,GS=27,GL=35,L=44,LD=64,LS=66,LW=67)]
for k,st in enumerate(ST):
    a(f"""s_lshl_b32 s47, s{W}, 1
    s_sub_u32 s47, s47, {8-k}
    s_mov_b32 s{st['srd']+3}, 0x20000
    s_cmp_ge_u32 s47, 5
    s_cbranch_scc1 L_sx{k}
    s_lshl_b32 s6, s47, 6
    v_add_u32 v21, s6, v0
    v_mul_u32_u24 v23, 0x667, v21
    v_lshrrev_b32 v23, 14, v23
    s_mov_b32 s{st['srd']+2}, 819200
    v_mul_u32_u24 v24, 10, v23
    s_mov_b32 s{st['GS']}, {64*1280}
    v_sub_u32 v24, v21, v24
    s_lshl_b32 s{st['L']}, s47, 10
    v_lshrrev_b32 v25, 3, v23
    s_add_u32 s{st['L']}, s{st['L']}, {RB}
    v_xor_b32 v26, v25, v23
    s_mov_b32 s{st['LD']}, 5120
    v_and_b32 v26, 1, v26
    s_mov_b32 s{st['LS']}, 10240
    v_lshl_add_u32 v25, v25, 1, v26
    s_mov_b32 s{st['LW']}, 51200
    v_bfe_u32 v26, v23, 1, 2
    s_mul_i32 s6, s{HG}, 160
    v_lshl_add_u32 v25, v25, 2, v26
    v_mul_u32_u24 v25, 0x500, v25
    v_lshl_add_u32 v24, v24, 4, s6
    v_add_u32 v{st['v']}, v24, v25
    v_add_u32 v{st['v']+1}, {32*1280}, v{st['v']}
    s_branch L_se{k}
    L_sx{k}:
    s_add_u32 s6, s47, s{J}
    s_and_b32 s6, s6, 3
    s_lshr_b32 s7, s{HG}, 2
    s_lshl_b32 s6, s6, s7
    s_lshl_b32 s{st['L']}, s6, 10
    s_add_u32 s{st['L']}, s{st['L']}, {XBL}
    s_lshl_b32 s{st['LD']}, s{RBD}, 10
    s_and_b32 s47, s6, 1
    s_lshl_b32 s47, s47, 6
    v_xor_b32 v21, s47, v3
    s_lshl_b32 s7, s7, 6
    v_xor_b32 v22, s7, v21
    s_lshl_b32 s7, s{QB}, 3
    s_add_u32 s6, s6, s7
    s_mul_i32 s7, s6, 10240
    v_add_u32 v{st['v']}, s7, v21
    s_add_u32 s6, s6, s{RBD}
    s_mul_i32 s7, s6, 10240
    v_add_u32 v{st['v']+1}, s7, v22
    s_mov_b32 s{st['srd']+2}, 2621440
    s_mov_b32 s{st['GS']}, 128
    s_mov_b32 s{st['LS']}, 8192
    s_mov_b32 s{st['LW']}, 0
    L_se{k}:
    s_lshl_b32 s6, s{R0}, 1
    s_mul_i32 s{st['G']}, s6, s{st['GS']}
    s_mul_i32 s{st['GL']}, s{st['GS']}, 10""")
a(f"""s_and_b32 s6, s{W}, 3
s_lshl_b32 s6, s6, 6
v_add_u32 v21, s6, v0
v_mul_u32_u24 v48, {FS}, v0
s_and_b32 s6, s2, 7
s_mul_i32 s6, s6, {32*FS}
v_and_b32 v47, {32*FS-1}, v48
v_add_u32 v47, s6, v47
s_add_u32 s6, s6, {32*FS}
v_add_u32 v48, s6, v48
v_and_b32 v48, {256*FS-1}, v48
v_mul_u32_u24 v49, {FS}, v21""")
stamp('f_ka0')
a(f"""s_waitcnt lgkmcnt(0)
s_cmp_ge_u32 s{W}, 7
s_cselect_b32 s36, s48, s50
s_cselect_b32 s37, s49, s51
s_cmp_ge_u32 s{W}, 6
s_cselect_b32 s12, s48, s50
s_cselect_b32 s13, s49, s51""")
a(cpy)
def issue(i):
    for st in ST:
        if i==5: a(f"s_sub_u32 s{st['L']}, s{st['L']}, s{st['LW']}")
        a(f"""s_mov_b32 m0, s{st['L']}
        s_add_u32 s{st['L']}, s{st['L']}, s{st['LS']}
        {dmab(st['v'],st['srd'],'s%d'%st['G'])}
        s_add_u32 m0, m0, s{st['LD']}
        s_add_u32 s6, s{st['G']}, s{st['GS']}
        {dmab(st['v']+1,st['srd'],'s%d'%st['G'])}
        s_cmp_eq_u32 s6, s{st['GL']}
        s_cselect_b32 s{st['G']}, 0, s6""")
KB=int(XP.get('kb',2))
for i in range(KB): issue(i)
stamp('f_kvi')
a("s_barrier")
for i in range(KB,3): issue(i)
POLLI=int(XP.get('polli',6)); KG=47; OKF=46
fillL=pre_m()+[p1_scal()]
lpoll=f"buffer_load_dwordx2 v[50:51], v47, {S(WS_)}, s68 offen sc1"
kd=[f"buffer_load_dwordx4 v{L16}, {S(WS_)}, s{KG} offen sc1 lds","s_add_u32 m0, m0, 4096",f"s_add_u32 s{KG}, s{KG}, 4096",f"s_sub_u32 s7, s{KG}, 163840",f"s_min_u32 s{KG}, s{KG}, s7"]
def apoll(k): return f"buffer_load_dwordx2 v[50:51], v{48+k}, {S(WS_)}, s68 offen sc1"
def aspin(tag,k,n):
    a(f"""s_mov_b32 s{CNT}, 0
    s_waitcnt vmcnt({n})
    L_{tag}:
    v_cmp_ne_u64 s[6:7], s[{NON}:{NON+1}], v[50:51]
    s_add_u32 s{CNT}, s{CNT}, 1
    s_cmp_gt_u32 s{CNT}, {SPIN}
    s_cbranch_scc1 L_{tag}ok
    s_cmp_eq_u64 s[6:7], 0
    s_cbranch_scc1 L_{tag}ok
    {apoll(k)}
    s_waitcnt vmcnt(0)
    s_branch L_{tag}
    L_{tag}ok:""")
a(f"""s_mov_b32 s68, {WS_F1}
v_mov_b32 v18, {NONL}
s_and_b32 s6, s{W}, 3
s_lshl_b32 s63, s6, 10
s_and_b32 s6, s2, 7
s_mul_i32 s6, s6, 20480
s_add_u32 s{KG}, s6, s63
s_mov_b32 s{OKF}, 0""")
for i in range(10):
    n=4*min(2,9-i)
    if i>=8: a(f"s_cmp_eq_u32 s{OKF}, 0\ns_cbranch_scc0 L_w{i}\ns_waitcnt vmcnt({n})\nL_w{i}:\ns_waitcnt vmcnt({n+5})\ns_barrier")
    else: a(f"s_waitcnt vmcnt({n})\ns_barrier")
    if i<7: issue(i+3)
    if i>=7:
        if i>7: a(f"s_cbranch_scc0 L_go{i}")
        a(f"ds_read_b64 v[16:17], v18\ns_mov_b32 m0, s63\ns_waitcnt lgkmcnt(0)\nv_readfirstlane_b32 s{OKF}, v17")
        if i==7: a(f"v_readfirstlane_b32 s{NON}, v16\nv_readfirstlane_b32 s{NON+1}, v16")
        if i<9: a(f"s_cmp_eq_u32 s{OKF}, 0\ns_cbranch_scc1 L_go{i}")
        else:
            a(f"s_cmp_lg_u32 s{OKF}, 0\ns_cbranch_scc1 L_pkok"); a(apoll(-1)); aspin('pk',-1,0)
        stamp('f_qst')
        em(kd*5)
        a(f"L_go{i}:")
        em({7:fillL[:5],8:fillL[5:9],9:fillL[9:]}[i])
stamp('f_flag')
a("s_waitcnt vmcnt(0)")
stamp('f_p1')

def th(q,r):
    base,o=[(TW_,4096),(TW_+2,12288),(RET,20480)][q//8]
    return f"global_load_dwordx4 v[{r}:{r+3}], v{L16}, s[{base}:{base+1}] offset:{1024*q-o}"
H0=24; FA=H0; PA2=H0+3; WOA=H0+4; UA=H0+9; UR=H0+14; WAD=H0+16
W3=4; VW=7; OA=8; SG=10; PA3=11; FNH=12; WXW=14
FT=92; P1A=124; PFR=128; PD=176; WA=92; WX=172
a("s_barrier")
stamp('att')
a(apoll(0))
a("s_setprio 3")
aspin('pa',0,0)
stamp('g_pa')
NI0=10
em(kd*5); a(apoll(1))
for k in range(5): a(th(9+k,H0+4*k))
em(kd*5)
aspin('pb',1,5)
a("s_setprio 0")
stamp('g_i0')
a("s_barrier")
a(f"""s_mov_b32 s68, m0
s_lshl_b32 m0, s{HA}, 10
s_nop 0
{dmab(FA,XA_,'s69')}
s_add_u32 m0, m0, 4096
s_cmp_ge_u32 s{HA}, 2
{dmab(FA+1,XA_,'s69')}
s_cbranch_scc1 L_f2
s_add_u32 m0, m0, 4096
s_nop 0
{dmab(FA+2,XA_,'s69')}
L_f2:
s_mov_b32 m0, s68""")
for k in range(9): a(th(k,FT+4*k))
em(kd*12)
a(f"s_waitcnt vmcnt(7)\ns_barrier")
em(kd*13)
if 'nopfwo' not in XP:
    a(f"""s_lshr_b32 s6, s2, 3
    s_lshl_b32 s6, s6, 2
    s_add_u32 s6, s6, s{HA}
    s_mul_i32 s6, s6, 6400
    v_lshlrev_b32 v1, 7, v0
    s_mov_b32 exec_hi, 0x3ffff
    buffer_load_dword v1, v1, {S(WO_)}, s6 offen
    s_mov_b32 exec_hi, -1""")
for s_ in range(4):
    for Tt in range(3):
        for u in range(2):
            f=PFR+12*s_+4*Tt+2*u
            a(f"ds_read_b64_tr_b16 v[{f}:{f+1}], v{P1A+(Tt==2)} offset:{(32*s_+u)*80+(32 if Tt==1 else 0)}")
a("s_waitcnt lgkmcnt(0)")
for s_ in range(4):
    if s_==int(XP.get('pb',3)): a("s_barrier")
    for nt in range(2):
        for Tt in range(3):
            d=PD+12*nt+4*Tt; f=PFR+12*s_+4*Tt
            a(f"v_mfma_f32_16x16x32_bf16 v[{d}:{d+3}], v[{f}:{f+3}], v[{FT+16*nt+4*s_}:{FT+16*nt+4*s_+3}], {'0' if s_==0 else f'v[{d}:{d+3}]'}")
a("s_nop 2")
for nt in range(2):
    for Tt in range(3):
        d=PD+12*nt+4*Tt
        a(f"v_cvt_pk_bf16_f32 v{d}, v{d}, v{d+1}\nv_cvt_pk_bf16_f32 v{d+1}, v{d+2}, v{d+3}")
        if Tt<2: a(f"ds_write_b64 v{P1A+2}, v[{d}:{d+1}] offset:{1280*nt+32*Tt}")
a("s_mov_b32 exec_hi, 0")
for nt in range(2): a(f"ds_write_b64 v{P1A+2}, v[{PD+12*nt+8}:{PD+12*nt+9}] offset:{1280*nt+64}")
a("s_mov_b32 exec_hi, -1")
for k in range(3): a(f"ds_read_b128 v[{PFR+4*k}:{PFR+4*k+3}], v{P1A+3} offset:{1024*k}")
a("s_waitcnt lgkmcnt(0)")
for k in range(3):
    if k==2: a("s_mov_b32 exec_hi, 0")
    a(f"buffer_store_dwordx4 v[{PFR+4*k}:{PFR+4*k+3}], v{L16}, {S(WS_)}, s{PB} offen offset:{1024*k} sc1")
a("s_mov_b32 exec_hi, -1")
stamp('g_p1')
for k in range(3): a(th(14+k,W3+4*k))
a(f"""s_mul_i32 s6, s2, {FS}
s_add_u32 s6, s6, {WS_F2}
v_mov_b32 v3, s{NON}
s_lshl_b32 m0, s{HA}, 10
s_mul_i32 s68, s{HG}, 160
s_waitcnt vmcnt(6)
s_barrier""")
for n in range(25):
    WN=int(XP.get('wn',13))
    if n==WN:
        stamp('g_wo')
        a(f"""s_cmp_eq_u32 s{W}, 7
        s_waitcnt vmcnt({WN})
        s_barrier
        s_cbranch_scc0 L_nofl2
        s_mov_b64 exec, 1
        buffer_store_dword v3, v{L16}, {S(WS_)}, s6 offen sc1
        s_mov_b64 exec, -1
        L_nofl2:""")
    a(dmab(WOA+n%5,WO_,'s68')); a("s_add_u32 m0, m0, 4096")
    a(f"s_add_u32 s68, s68, {128*1280}" if n%5==4 else "s_nop 0")
a(f"""s_add_u32 s66, s{TAB}, tab_hid-L_pc
s_addc_u32 s67, s{TAB+1}, 0
s_lshl_b32 s6, s{HA}, 10
v_add_u32 v1, s6, v{L16}
s_mov_b32 s68, {WS_F2}
s_waitcnt vmcnt(0)
s_barrier""")
for k in range(5):
    for u in range(2):
        a(f"ds_read_b64_tr_b16 v[{44+4*k+2*u}:{45+4*k+2*u}], v{WAD+u+(2 if k==4 else 0)} offset:{6400*(k%4)}")
for half in range(2):
    for H in range(16*half,16*half+16):
        for u in range(2): a(f"ds_read_b64_tr_b16 v[{WA+4*H+2*u}:{WA+4*H+2*u+1}], v{W3+(H&1)} offset:{6400*((H>>1)%8)+1280*u}")
        if H==2:
            a("s_waitcnt lgkmcnt(6)")
            for k in range(5): a(f"ds_write_b128 v{WXW+(k==4)}, v[{44+4*k}:{47+4*k}] offset:{1024*(k%4)}")
    for b in range(4*half,4*half+4):
        for u in range(2): a(f"ds_read_b64_tr_b16 v[{WA+128+4*b+2*u}:{WA+128+4*b+2*u+1}], v{W3+2} offset:{12800*(b%4)+6400*u}")
    if half==0:
        for i in range(3): a(f"v_add_u32 v{W3+i}, 51200, v{W3+i}")
def spin(tag,addr,soff):
    a(f"""s_mov_b32 s{CNT}, 0
    L_{tag}:
    s_waitcnt vmcnt(0)
    v_cmp_ne_u32 vcc, s{NON}, v3
    s_add_u32 s{CNT}, s{CNT}, 1
    s_cmp_gt_u32 s{CNT}, {SPIN}
    s_cbranch_scc1 L_{tag}ok
    s_cbranch_vccz L_{tag}ok
    buffer_load_dword v3, v{addr}, {S(WS_)}, {soff} offen sc1
    s_branch L_{tag}
    L_{tag}ok:""")
a(f"buffer_load_dword v3, v{PA2}, {S(WS_)}, s68 offen sc1")
spin('pu',PA2,'s68')
a(f"""s_lshl_b32 m0, s{HA}, 10
s_mul_i32 s68, s{UU}, 160
s_add_u32 s68, s68, {WS_U}
s_waitcnt lgkmcnt(0)""")
stamp('g_wr')
a("s_barrier")
for n in range(10):
    a(dmab(UA+n%5,WS_,'s68',0,'sc1')); a("s_add_u32 m0, m0, 4096")
    a(f"s_add_u32 s68, s68, {128*10240}" if n%5==4 else "s_nop 0")
a(f"s_add_u32 m0, m0, {TL-40960}\ns_nop 0")
for k in range(4):
    if k==3: a(f"s_cmp_eq_u32 s{HA}, 3\ns_cbranch_scc1 L_nt3")
    a("global_load_lds_dwordx4 v1, s[66:67]")
    if k<3: a("s_add_u32 m0, m0, 4096\ns_add_u32 s66, s66, 4096\ns_addc_u32 s67, s67, 0")
a("L_nt3:")
a(f"s_lshl_b32 s68, s{QB}, 10\ns_add_u32 s68, s68, {WS_F3}\ns_waitcnt vmcnt(0)")
stamp('g_u')
a("s_barrier")
Fh=44
def s1r(b): return [f"ds_read_b64_tr_b16 v[{Fh+4*i+2*u}:{Fh+4*i+2*u+1}], v{UR+(i==2)} offset:{5120*b+32*i+1280*u+(2480 if i>2 else 0)}" for i in range(5) for u in range(2)]
em(s1r(0))
for b in range(2):
    nx=s1r(1) if b==0 else []
    for i in range(5):
        a(f"s_waitcnt lgkmcnt({8 if b==0 else 13-2*i})\nv_mfma_f32_16x16x32_bf16 v[{Fh+20+4*i}:{Fh+23+4*i}], v[{Fh+4*i}:{Fh+4*i+3}], v[{MM}:{MM+3}], 0")
        em(nx[2*i:2*i+2])
    if b==1: a("s_nop 0")
    for i in range(5):
        d=Fh+20+4*i; e=Fh+40+2*(i%4)
        a(f"v_cvt_pk_bf16_f32 v{d}, v{d}, v{d+1}\nv_cvt_pk_bf16_f32 v{d+1}, v{d+2}, v{d+3}\nds_write_b64 v{VW}, v[{d}:{d+1}] offset:{160*b+32*i}")
a("s_waitcnt lgkmcnt(0)")
stamp('loopend')
a("s_barrier")
stamp('T-1')
em(rowsc(HA,4))
a(f"""s_setprio 1
v_mov_b32 v1, s{NON}
s_lshl_b32 s6, s{HG}, 7
s_add_u32 s6, s6, s68
s_cmp_eq_u32 s{W}, 4
s_barrier""")
stamp('T0')
a(f"""s_cbranch_scc0 L_pook
s_mov_b64 exec, 1
buffer_store_dword v1, v{L16}, {S(WS_)}, s6 offen sc1
s_mov_b64 exec, -1
{'s_waitcnt vmcnt(0)' if 'nopw' not in XP else ''}""")
a(f"buffer_load_dword v3, v{PA3}, {S(WS_)}, s68 offen sc1")
spin('po',PA3,'s68')
stamp('o_fft')
a("s_barrier")
stamp('T1')
if HST:
    em(frd(0,72,4)+frd(1,80,4))
    if HSP<0: a("s_waitcnt lgkmcnt(2)"); em(fsto(0,72)); a("s_waitcnt lgkmcnt(0)"); em(fsto(1,80))
NBH=int(XP.get('nbh',6)); AC=24
def rd(st):
    b=44+4*(st%(NBH+1))
    if st<32: return [f"ds_read_b128 v[{b}:{b+3}], v{OA} offset:{1024*st}"]
    return [f"ds_read_b64 v[{b+2*u}:{b+2*u+1}], v{OA+1} offset:{1024*(st-32)+512*u}" for u in range(2)]
KEEP=int(XP.get('keep',2))
nr=0; nm=0
def hm():
    global nm
    b=44+4*(nm%(NBH+1)); n=sum(len(rd(x)) for x in range(nm+1,nr))
    a(f"s_waitcnt lgkmcnt({n})\nv_mfma_f32_32x32x16_bf16 v[{AC}:{AC+15}], v[{WA+4*nm}:{WA+4*nm+3}], v[{b}:{b+3}], {'0' if nm==0 else f'v[{AC}:{AC+15}]'}")
    if HST and HSP>=0:
        pcs=[fsto(0,72)[:1],fsto(0,72)[1:],fsto(1,80)[:1],fsto(1,80)[1:]]
        if nm>=HSP and (nm-HSP)%2==0 and (nm-HSP)//2<4: em(pcs[(nm-HSP)//2])
    nm+=1
while nm<40:
    if nr<40 and nr%4==0 and nr//4 in SYNC:
        while nr-nm>KEEP: hm()
        a("s_barrier"); stamp(f'o_b{nr//4}')
        em(rd(nr)); nr+=1
    elif nr<40 and nr-nm<NBH:
        em(rd(nr)); nr+=1
        if nr-nm>=4 and nr<40 and not (nr%4==0 and nr//4 in SYNC) and nr-nm<NBH:
            hm(); em(rd(nr)); nr+=1
    else: hm()
stamp('gemm')
a(f"v_mov_b64 v[{FN}:{FN+1}], v[{FNH}:{FNH+1}]\ns_nop 10")
for j in range(4):
    d=AC+4*j
    a(f"v_cvt_pk_bf16_f32 v{d}, v{d}, v{d+1}\nv_cvt_pk_bf16_f32 v{d+1}, v{d+2}, v{d+3}\nds_write_b64 v{SG}, v[{d}:{d+1}] offset:{16*j}")
OF=XP.get('of','nt')
a(f"""L_fin:
s_mul_i32 s6, s{QB}, {64*2560}
s_mul_i32 s7, s{HG}, 160
s_add_u32 s6, s6, s7
s_add_u32 s6, s6, 1280
s_cmp_ge_u32 s{W}, 2
s_waitcnt lgkmcnt(0)
s_barrier
ds_read_b128 v[24:27], v{FN}
s_cbranch_scc1 L_one
ds_read_b128 v[28:31], v{FN+2}
s_waitcnt lgkmcnt(0)
buffer_store_dwordx4 v[28:31], v{FN+3}, {S(OUT_)}, s6 offen {OF}
L_one:
s_waitcnt lgkmcnt(0)
buffer_store_dwordx4 v[24:27], v{FN+1}, {S(OUT_)}, s6 offen {OF}""")
if STAMP:
    a("s_waitcnt vmcnt(0)"); stamp('end')
    a(f"""s_lshl_b32 s6, s2, 3
    s_add_u32 s6, s6, s{W}
    s_lshl_b32 s6, s6, 6
    s_add_u32 s6, s6, {WS_ST}
    v_mov_b32 v21, 0
    s_waitcnt lgkmcnt(0)""")
    for i in range(nstamp[0]): a(f"v_mov_b32 v22, s{STB+2*i}\nbuffer_store_dword v22, v21, {S(WS_)}, s6 offen offset:{4*i}")
a("L_end:\ns_endpgm")
X=SS[0]
a(f"""L_slow:
s_cmp_lg_u32 s{SLOW}, 0
s_cbranch_scc1 L_store
v_subrev_u32 v{AV}, 163840, v{AV}
s_mov_b32 s{IT}, 0
L_blk:
s_mov_b32 s{SLOW}, 1
v_mov_b32 v{T}, 0xff800000""")
zero(CM[0],16); zero(O[0],16)
a(f"""L_pass:
s_mov_b32 s{CNT}, 0
L_sl:
s_lshr_b32 s66, s{CNT}, 1
s_mul_i32 s66, s66, 10240
s_and_b32 s6, s{CNT}, 1
s_mul_i32 s7, s6, 2048
s_add_u32 s7, s7, s66
buffer_load_dwordx4 v[{KF}:{KF+3}], v{L16}, {S(WS_)}, s7 offen sc1
buffer_load_dwordx4 v[{KF+4}:{KF+7}], v{L16}, {S(WS_)}, s7 offen offset:1024 sc1
s_lshl_b32 s7, s6, 3
s_add_u32 s7, s7, s66
s_add_u32 s7, s7, 4096
buffer_load_dwordx2 v[{K4}:{K4+1}], v{L16}, {S(WS_)}, s7 offen sc1
s_mul_i32 s7, s6, 2560
s_add_u32 s7, s7, s66
s_add_u32 s7, s7, 5120
{on}""")
for u in range(4): a(f"buffer_load_dwordx4 v[{VF[0]+4*u}:{VF[0]+4*u+3}], v{AV}, {S(WS_)}, s7 offen offset:{640*u} sc1")
a(f"""{off}
s_waitcnt vmcnt(0)
{M16(X,KF,0,CMr[0])}
{M16(X+16,KF+4,0,CMr[0])}
s_nop 9
{M4(X,K4,0)}
s_nop 15
s_nop 3
s_cmp_eq_u32 s{SLOW}, 1
s_cbranch_scc0 L_p2""")
for i in range(0,32,2): a(f"v_max3_f32 v{T}, v{T}, v{X+i}, v{X+i+1}")
a("s_branch L_nx\nL_p2:")
for i in range(32): a(f"v_exp_f32 v{X+i}, v{X+i}")
a("s_nop 1")
for u in range(4): a(SM(VF[0]+4*u,X+8*u,0))
a(f"""L_nx:
s_add_u32 s{CNT}, s{CNT}, 1
s_cmp_lt_u32 s{CNT}, 32
s_cbranch_scc1 L_sl
s_cmp_eq_u32 s{SLOW}, 1
s_cbranch_scc0 L_swap
s_mov_b32 s{SLOW}, 2
v_mov_b32 v{T+1}, v{T}
s_nop 1
v_permlane32_swap_b32 v{T}, v{T+1}
v_max_f32 v{T}, v{T}, v{T+1}""")
for i in range(16): a(f"v_sub_f32 v{CM[0]+i}, 0, v{T}")
a("s_branch L_pass\nL_swap:\ns_nop 7")
for i in range(6): a(f"v_swap_b32 v{Q16[0]+i}, v{Q16[1]+i}")
for i in range(16): a(f"v_swap_b32 v{O[0]+i}, v{O[1]+i}")
a(f"""s_add_u32 s{IT}, s{IT}, 1
s_cmp_lt_u32 s{IT}, 2
s_cbranch_scc1 L_blk
s_branch L_check""")

hdr=open('concat_heads__spectral_fnet__grouped_kv_mqa__prompt.s.ref').read().split('; Override launch')[0]
s=hdr+"; @launch grid=(256,1,1) block=(512,1,1) lds=163840\n"
if STAMP: s+="; stamps: "+" ".join(stnames)+"\n"
s+='.amdgcn_target "amdgcn-amd-amdhsa--gfx950"\n.text\n'+khead(KN)+a.text()
s+=emit_table('tab_a',table_a())+emit_table('tab_h',table_h())+emit_table('tab_hid',table_hid())+'L_tabend:\n'
s+='.section .rodata,"a"\n'+kdesc(KN,256,102)
open(OUTF,'w').write(s)
print('wrote',OUTF,len(s),'stamps',nstamp[0],stnames)
```

```python
import sys, math, struct
import numpy as np, re
sys.path.insert(0,'gen')
from asmlib import *

STAMP = '--stamp' in sys.argv
XP = dict((a[4:].split(':')+[''])[:2] for a in sys.argv if a.startswith('--x='))
OUTF = [a for a in sys.argv[1:] if not a.startswith('--')]
OUTF = OUTF[0] if OUTF else 'concat_heads__spectral_fnet__grouped_kv_mqa__prompt.s'
KN='concat_heads__spectral_fnet__grouped_kv_mqa__prompt_kernel'

WS_KV = 0x000000
WS_F1 = 0x040000
WS_F2 = 0x050000
WS_F3 = 0x060000
WS_O  = 0x100000
WS_U  = 0x400000
WS_ST = 0x900000
WS_SZ = 0x1000000
CSCALE = (20**-0.5)*math.log2(math.e)
OFFS = float(XP.get('offs',102))
SPIN = 200000
def f2u(x): return struct.unpack('<I',struct.pack('<f',x))[0]
def fh(x): return hex(f2u(x))
def bf(x):
    u=np.asarray(x,np.float32).view(np.uint32)
    return ((u+0x7fff+((u>>16)&1))>>16).astype(np.uint32)
def pack(vals):
    b=bf(vals); return b[...,0::2]|(b[...,1::2]<<16)
def sig(n): return 16*((n>>2)&1)+4*(n>>3)+(n&3)
def table_hid():
    out=np.zeros((15,64,4),np.uint32)
    for l in range(64):
        n=l&31; h=l>>5; k1=sig(n)
        for s in range(2):
            d1=np.arange(8)+16*s+8*h
            out[s,l]=pack(np.cos(2*np.pi*d1*k1/32))
            out[2+s,l]=pack(-np.sin(2*np.pi*d1*k1/32))
            out[13+s,l]=out[2+s,l]^0x80008000
        for j in range(3):
            d2=8*j+4*h+np.arange(4); ok=(d2<20)
            out[4+j,l]=(np.cos(2*np.pi*d2*k1/640)*ok).astype(np.float32).view(np.uint32)
            out[7+j,l]=(-np.sin(2*np.pi*d2*k1/640)*ok).astype(np.float32).view(np.uint32)
            k2=n if n<20 else 0
            out[10+j,l]=pack(np.concatenate([np.cos(2*np.pi*d2*k2/20)*ok, np.sin(2*np.pi*d2*k2/20)*ok]))
    return out.reshape(-1)
XBL=25600; RB=107520; NONL=158720
UL=0; OL=0; STG=81920; FSG=81920; WXL=102400; TL=122880; VL=138240; VP=1288
FLF=0; FSF=10240; FS=32; QSL=RB; QP=168
def grp_rows(k0): return ((k0&~7)+((k0>>2)&1))
NQH=17; NQA=3
def fin(w,l):
    c0=64*w+l; c1=min(c0+512,639)
    return [STG+(c0+c0//10)*16, c0*16+(c0//10)*2400, STG+(c1+c1//10)*16, c1*16+(c1//10)*2400]
def table_h():
    t=np.zeros((4,NQH,64,4),np.uint32)
    for w in range(4):
        for l in range(64):
            n=l&15; g=l>>4; r=(l>>2)&3; c=l&3
            j=np.arange(8)
            for nt in range(2):
                kidx=32*w+16*nt+n; u=kidx>>1; q=kidx&1
                for s in range(4):
                    sh=32*s+8*g+2*(j&3)+(j>>2)
                    v=np.cos(np.pi*sh) if kidx==1 else (np.cos(2*np.pi*u*sh/128) if q==0 else -np.sin(2*np.pi*u*sh/128))
                    t[w,4*nt+s,l]=pack(v)
            rb=FLF+(8*g+2*r)*80; sb=FSF+2560*w
            t[w,8,l]=[rb+8*c, rb+64+8*(c&1), sb+80*n+8*g, sb+16*l]
            fa=[]; wo=[]; ua=[]
            for k in range(5):
                cell=64*(w+4*k)+l
                if k<3: cf=min(cell,639); fa.append((cf//5)*20480+(cf%5)*16)
                pos=cell//10; cc=cell%10
                wo.append(((pos&~7)|((pos>>1)&3)|((pos&1)<<2))*1280+cc*16); ua.append(pos*10240+cc*16)
            ur=UL+10240*w+(2*r+(g&1))*160+(g>>1)*80+8*c
            wad=[25600*w+r*320+128+8*c+160*(grp_rows(20*(g>>1)+4*(g&1)+8*uu) if kind==0 else grp_rows(20*(4*uu+g)+16)) for kind in range(2) for uu in range(2)]
            t[w,9:14,l]=np.array(fa+[FS*(64*w+l)]+wo+ua+[ur,ur+(2480 if c>=2 else 0)]+wad).reshape(5,4)
            h=l>>5; qh=w&1; ct=w>>1; cb=r*320+64*ct+32*(g&1)+8*c
            t[w,14,l]=[cb+160*grp_rows(4*h), cb+160*grp_rows(20+4*h), cb+160*grp_rows(20*h+16), VL+n*VP+320*w+8*g]
            t[w,15,l]=[OL+qh*40960+16*l, OL+qh*40960+32768+8*l, STG+(32*qh+(l&31))*176+64*ct+8*h, 128*(l&7)]
            t[w,16,l]=fin(w+4,l)[:2]+[WXL+4096*w+16*l, WXL+16384+1024*w+16*l]
    return t.reshape(-1)
def table_a():
    t=np.zeros((4,NQA,64,4),np.uint32)
    for w in range(4):
        for l in range(64):
            g=l>>4; r=(l>>2)&3; c=l&3; h=l>>5
            t[w,0,l]=[VL+4*w*VP+(8*h+r)*40+(32 if (g&1) else 8*c), FSG+2560*w+16*((4*min(l&31,19)+2*h)^(((l&31)>>1)&3)), 8*(l&31)+40960*h, (l&1)*40960+((l>>1)&7)*128]
            t[w,1,l]=fin(w,l)
            n=l&15
            t[w,2,l]=[OL+(w>>1)*40960+512*g+16*(16*(w&1)+n), OL+(w>>1)*40960+32768+256*g+8*(16*(w&1)+n), STG+(16*w+n)*176+8*g+128, WXL+16*l]
    return t.reshape(-1)
def emit_table(name, arr):
    s=f".p2align 8\n.type {name},@object\n{name}:\n"
    for i in range(0,len(arr),8):
        s+=".long "+",".join(hex(int(x)) for x in arr[i:i+8])+"\n"
    s+=f".size {name}, {4*len(arr)}\n"
    return s

W=3; QB=4; HG=5
XB_=8; TW_=12; KV_=16; WS_=20; XA_=24; WO_=28; OUT_=32
DBG=40; TAB=42; NON=44; R0=45; J=46; RBA=47; RBD=65
SA=49; SB=50; SC=51; SD=54; HA=55; IT=55; KS=38; KM=36; FLG=48; RET=52
PB=56; UU=57; QT=58; T0=59; MIR=60; SLOW=61; CNT=62
VM=64
STB=70
def S(r,n=4): return f"s[{r}:{r+n-1}]"
a=Asm()
nstamp=[0]; stnames=[]
def stamp(name):
    sel=XP.get('st','')
    front=['kvland','kvpub','b0','b3','b6','b9pre','b9']
    if sel!='tail' and name.startswith('o_'): return
    if sel!='loop' and name.startswith('g_'): return
    if sel!='epi' and name.startswith('e_'): return
    if sel!='bars' and name.startswith('h_'): return
    if sel!='front' and name.startswith('f_'): return
    if sel=='front' and name in ['loopend','T0','T1','gemm']: return
    if sel and sel!='front' and name in front: return
    if name in stnames:
        i=stnames.index(name); a(f"{'s_memtime' if 'cyc' in XP else 's_memrealtime'} s[{STB+2*i}:{STB+1+2*i}]"); return
    if STAMP:
        assert nstamp[0]<16
        a(f"{'s_memtime' if 'cyc' in XP else 's_memrealtime'} s[{STB+2*nstamp[0]}:{STB+1+2*nstamp[0]}]"); nstamp[0]+=1; stnames.append(name)
def zero(base,n):
    for i in range(n): a(f"v_mov_b32 v{base+i}, 0")
def dmab(v,srd,soff,off=0,fl=''):
    return f"buffer_load_dwordx4 v{v}, {S(srd)}, {soff} offen{' offset:%d'%off if off else ''} {fl} lds"
def mod5(d,s,t):
    a(f"s_mul_i32 s{t}, s{s}, 0x3334\ns_lshr_b32 s{t}, s{t}, 16\ns_mul_i32 s{t}, s{t}, 5\ns_sub_u32 s{d}, s{s}, s{t}")


L16=2
Q16=[4,10]; Q4=[8,14]; IDX=16; AK=3; AV=1
CM=[20,36]; O=[52,68]; SS=[84,116]; KF=148; K4=156; VF=[164,180]; QR=196; T=224
XR=8; WR=9; QW=13; FR=84; ACC=200; TA=248
MM=252
def lines(t): return [x.strip() for x in t.split("\n") if x.strip()]
def pre_m():
    o=[lines(f"""s_and_b32 s{UU}, s2, 7
    s_lshl_b32 s{UU}, s{UU}, 3
    s_bfe_u32 s6, s2, 0x30003
    s_add_u32 s{UU}, s{UU}, s6
    s_lshr_b32 s{QT}, s2, 6
    s_lshr_b32 s{MIR}, s{QT}, 1
    s_sub_u32 s6, 128, s{UU}"""),lines(f"""s_cmp_eq_u32 s{UU}, 0
    s_cselect_b32 s6, 64, s6
    s_cselect_b32 s66, 0, 512
    s_mul_i32 s7, s66, 3
    s_cmp_eq_u32 s{MIR}, 0
    s_cselect_b32 s{T0}, s{UU}, s6
    s_cselect_b32 s66, s7, s66"""),lines(f"""s_and_b32 s6, s{QT}, 1
    s_lshl_b32 s6, s6, 10
    s_add_u32 s{T0}, s{T0}, s6
    v_lshrrev_b32 v23, 5, v0
    v_cmp_eq_u32 vcc, s{MIR}, v23
    v_bfe_u32 v21, v0, 1, 3"""),lines(f"""v_lshl_add_u32 v21, v21, 7, s{T0}
    v_and_b32 v22, 1, v0
    v_lshlrev_b32 v22, 9, v22
    v_mad_u32_u24 v22, v23, s66, v22
    v_bfe_u32 v24, v0, 4, 1"""),lines(f"""v_mad_u32_u24 v22, v24, v21, v22
    v_cvt_f32_u32 v21, v21
    v_cvt_f32_u32 v22, v22
    v_mul_f32 v21, {fh(1/1024)}, v21
    v_mul_f32 v22, {fh(1/2048)}, v22
    s_cmp_eq_u32 s{UU}, 0
    s_cselect_b64 vcc, vcc, -1""")]
    for i in range(4):
        o.append(lines(f"""v_cos_f32 v25, v22
        v_add_f32 v22, v22, v21
        v_cos_f32 v26, v22
        v_add_f32 v22, v22, v21
        v_cvt_pk_bf16_f32 v24, v25, v26
        v_cndmask_b32 v{MM+i}, 0, v24, vcc"""))
    return o

def chunks(l,n): return [l[k:k+n] for k in range(0,len(l),n)]
def att_init():
    o=lines(f"""v_and_b32 v21, 27, v0
    v_cmp_eq_u32 vcc, 24, v21
    v_mov_b32 v21, 0x3f803f80
    s_mov_b32 s{VM}, 0xfffff
    s_mov_b32 s{VM+1}, 0xfffff
    v_cndmask_b32 v{VF[0]}, 0, v21, vcc
    v_cndmask_b32 v{VF[0]+1}, 0, v21, vcc""")
    o+=[f"v_mov_b64 v[{VF[0]+2*i}:{VF[0]+2*i+1}], v[{VF[0]}:{VF[0]+1}]" for i in range(1,16)]+[f"v_mov_b64 v[{O[0]+2*i}:{O[0]+2*i+1}], 0" for i in range(16)]
    o=chunks(o,6)
    o.append(lines(f"""s_mov_b32 s{OUT_+2}, 5242880
    s_mov_b32 s{OUT_+3}, 0x20000
    s_mul_i32 s66, s{W}, 40
    s_add_u32 s66, s66, {QSL}
    s_mul_i32 s67, s{W}, {NQA*1024}
    s_add_u32 s67, s67, tab_a-L_pc
    s_add_u32 s{TW_}, s{TAB}, s67
    s_addc_u32 s{TW_+1}, s{TAB+1}, 0"""))
    o.append(lines(f"""v_and_b32 v21, 31, v0
    v_cmp_gt_u32 vcc, 16, v21
    v_lshrrev_b32 v22, 5, v0
    v_mov_b32 v23, 0x180
    v_cndmask_b32 v23, 64, v23, vcc"""))
    o.append(lines(f"""v_mul_u32_u24 v23, v22, v23
    v_lshl_add_u32 v{AV}, v21, 4, v23
    v_mul_u32_u24 v21, {QP}, v21
    v_add_u32 v{QR+1}, s66, v21
    v_lshl_add_u32 v{QR}, v22, 4, v{QR+1}
    v_mov_b32 v{AK}, v{L16}"""))
    o.append(lines(f"""s_mul_i32 s{SA}, s{QB}, 81920
    s_add_u32 s{SA}, s{SA}, {WS_O}
    s_lshl_b32 s7, s{HG}, 2
    s_add_u32 s7, s7, s{W}
    s_lshl_b32 s{SB}, s7, 8
    s_lshl_b32 s7, s7, 10"""))
    o.append(lines(f"""s_add_u32 s{SB}, s{SB}, s{SA}
    s_add_u32 s{SA}, s{SA}, s7
    s_add_u32 s{SB}, s{SB}, 32768
    s_add_u32 s{SC}, s{SA}, 40960
    s_add_u32 s{SD}, s{SB}, 40960"""))
    return o
def p1_scal():
    return lines(f"""s_and_b32 s6, s2, 7
    s_lshl_b32 s6, s6, 1
    s_bfe_u32 s7, s2, 0x10003
    s_add_u32 s6, s6, s7
    s_lshr_b32 s7, s2, 4
    s_lshl_b32 s{PB}, s7, 4
    s_add_u32 s{PB}, s{PB}, s6
    s_mul_i32 s6, s6, 1280
    s_mul_i32 s7, s7, 80
    s_add_u32 s69, s6, s7
    s_and_b32 s{HA}, s{W}, 3
    s_lshl_b32 s{PB}, s{PB}, 2
    s_add_u32 s{PB}, s{PB}, s{HA}
    s_mul_i32 s{PB}, s{PB}, 2560
    s_add_u32 s{PB}, s{PB}, {WS_U}
    s_mov_b32 s{XA_+2}, 2621440
    s_mov_b32 s{XA_+3}, 0x20000
    s_mov_b32 s{WO_+2}, 819200
    s_mov_b32 s{WO_+3}, 0x20000
    s_mov_b32 s{OUT_+2}, 5242880
    s_mov_b32 s{OUT_+3}, 0x20000
    s_mul_i32 s6, s{HA}, {NQH*1024}
    s_add_u32 s6, s6, tab_h-L_pc+4096
    s_add_u32 s{TW_}, s{TAB}, s6
    s_addc_u32 s{TW_+1}, s{TAB+1}, 0
    s_add_u32 s{TW_+2}, s{TW_}, 8192
    s_addc_u32 s{TW_+3}, s{TW_+1}, 0
    s_add_u32 s{RET}, s{TW_}, 16384
    s_addc_u32 s{RET+1}, s{TW_+1}, 0""")
def em(l):
    for x in l:
        if isinstance(x,list): em(x)
        else: a(x)
def wrap(d,s,inc,lim):
    a(f"s_add_u32 s{d}, s{s}, {inc}\ns_sub_u32 s7, s{d}, {lim}\ns_min_u32 s{d}, s{d}, s7")

stamp('start')
a(f"""s_cmp_ge_u32 s2, 256
s_cbranch_scc1 L_end
s_load_dwordx8 s[48:55], s[0:1], 40
s_load_dwordx8 s[56:63], s[0:1], 72
s_load_dwordx2 s[24:25], s[0:1], 0
s_memrealtime s[68:69]
s_getpc_b64 s[{TAB}:{TAB+1}]
L_pc:
v_lshrrev_b32 v1, 6, v0
v_and_b32 v0, 63, v0
s_and_b32 s{QB}, s2, 7
v_readfirstlane_b32 s{W}, v1
s_lshl_b32 s{QB}, s{QB}, 2
v_lshlrev_b32 v{L16}, 4, v0
s_bfe_u32 s6, s2, 0x20003
v_lshrrev_b32 v21, 3, v0
s_add_u32 s{QB}, s{QB}, s6
v_lshrrev_b32 v23, 4, v0
s_lshr_b32 s{HG}, s2, 5
v_and_b32 v24, 7, v0
s_and_b32 s7, s2, 0xf8
s_add_u32 s7, s7, s{W}
s_lshl_b32 s7, s7, 7
v_mul_u32_u24 v22, ((L_tabend-L_pc-32768)/3)&0xffff80, v0
v_add_u32 v22, s7, v22
s_add_u32 s{R0}, s6, s{HG}
s_mov_b64 exec, {int(XP.get('pf',15))}
global_load_dword v255, v22, s[{TAB}:{TAB+1}]
s_mov_b64 exec, -1
v_xor_b32 v23, v23, v24
s_mul_i32 s7, s{R0}, 0x3334
v_mul_u32_u24 v21, 0x500, v21
s_lshr_b32 s7, s7, 16
v_lshl_add_u32 v3, v23, 4, v21
s_mul_i32 s7, s7, 5
v_mov_b32 v17, 0
v_mov_b32 v15, 0
s_sub_u32 s{R0}, s{R0}, s7
s_and_b32 s{J}, s{HG}, 3
s_lshl_b32 s7, s{J}, 1
s_cmp_lt_u32 s{HG}, 4
s_cselect_b32 s{RBA}, s{J}, s7
s_cselect_b32 s{RBD}, 4, 1
s_mov_b32 s{XB_+2}, 2621440
s_mov_b32 s{XB_+3}, 0x20000
s_mov_b32 s{WS_+2}, {WS_SZ}
s_mov_b32 s{WS_+3}, 0x20000
s_cmp_ge_u32 s{W}, 4
s_cbranch_scc1 L_loader
s_and_b32 s6, s{W}, 1
s_mul_i32 s6, s6, s{RBD}
s_add_u32 s6, s6, s{RBA}
s_and_b32 s7, s6, 1
s_lshl_b32 s7, s7, 6
v_xor_b32 v4, s7, v3
s_lshl_b32 s7, s{QB}, 3
s_add_u32 s7, s7, s6
s_mul_i32 s7, s7, 10240
v_add_u32 v4, s7, v4
s_lshr_b32 s36, s{W}, 1
s_lshl_b32 s35, s36, 3
s_add_u32 s35, s35, s6
s_lshl_b32 s35, s35, 10
s_add_u32 s35, s35, {XBL}
s_lshl_b32 s36, s36, 7
s_lshl_b32 s6, s{R0}, 8
s_add_u32 s36, s36, s6
s_lshl_b32 m0, s{W}, 10
s_mul_i32 s6, s{R0}, 5120
s_add_u32 s37, m0, s6
s_mov_b32 s{KV_+2}, 25600
s_mov_b32 s{KV_+3}, 0x20000
s_cmp_lt_u32 s{HG}, 4""")
stamp('f_ka0')
a(f"""s_waitcnt lgkmcnt(0)
s_cselect_b32 s{KV_}, s52, s54
s_cselect_b32 s{KV_+1}, s53, s55
s_lshr_b32 s6, s2, 3
s_xor_b32 s7, s{W}, 1
s_or_b32 s6, s6, s7
s_cbranch_scc1 L_nonon
s_or_b32 s68, s68, 1
v_mov_b32 v16, s68
s_mov_b64 exec, 1
global_atomic_cmpswap v17, v[16:17], s[60:61] sc1
s_mov_b64 exec, -1
L_nonon:""")
for t in range(6):
    a(dmab(L16,KV_,'s37')); a("s_add_u32 m0, m0, 4096"); wrap(37,37,4096,25600)
    if t==0: a(f"s_mov_b32 s{XB_}, s48\ns_mov_b32 s{XB_+1}, s49")
a(f"""s_cmp_lg_u32 s{W}, 0
s_cbranch_scc1 L_nw0
{dmab(L16,KV_,'s37')}
L_nw0:
s_mov_b32 m0, s35
s_nop 0""")
for t in range(5):
    a(dmab(4,XB_,'s36'))
    if t<4: a("s_add_u32 m0, m0, 16384"); wrap(36,36,256,1280)
stamp('f_kvi')
cpy=f"""s_mov_b32 s{WO_}, s56
s_mov_b32 s{WO_+1}, s57
s_mov_b32 s{OUT_}, s58
s_mov_b32 s{OUT_+1}, s59
s_mov_b32 s{DBG}, s60
s_mov_b32 s{DBG+1}, s61
s_mov_b32 s{WS_}, s62
s_mov_b32 s{WS_+1}, s63"""
a(cpy)
a(f"""v_and_b32 v21, 15, v0
v_lshrrev_b32 v22, 4, v0
s_and_b32 s6, s{W}, 1
s_lshl_b32 s7, s6, 12
s_add_u32 s7, s7, {XBL}
v_lshrrev_b32 v24, 1, v21
v_xor_b32 v23, v22, v24
v_lshl_add_u32 v24, v21, 7, s7
v_lshl_add_u32 v{XR}, v23, 4, v24
v_xor_b32 v7, 64, v{XR}
s_lshr_b32 s66, s{W}, 1
s_mul_i32 s66, s66, 96
s_add_u32 s7, s66, {RB}
v_lshrrev_b32 v23, 2, v0
v_mul_u32_u24 v23, 320, v23
v_and_b32 v25, 3, v0
v_lshl_add_u32 v23, v25, 3, v23
v_and_b32 v24, 1, v22
v_mul_u32_u24 v24, 160, v24
v_add3_u32 v{WR}, v23, v24, s7
s_add_u32 s7, s7, 160
v_sub_u32 v23, v23, v24
v_add_u32 v{WR+1}, s7, v23
s_mul_i32 s7, s6, {32*QP}
s_add_u32 s7, s7, s66
s_add_u32 s7, s7, {QSL}
v_mul_u32_u24 v23, {QP}, v21
v_lshl_add_u32 v23, v22, 3, v23
v_add_u32 v{QW}, s7, v23
s_lshr_b32 s67, s{W}, 1
s_lshl_b32 s7, s67, 11
v_add_u32 v{XR}, s7, v{XR}
v_add_u32 v7, s7, v7
s_mul_i32 s7, s67, {(-4096)&0xffffffff}
s_add_u32 s7, s7, 2048
v_add_u32 v32, s7, v{XR}
v_add_u32 v33, s7, v7
s_sub_u32 s7, 64, s66
v_add_u32 v11, s7, v{WR}
v_add_u32 v12, s7, v{WR+1}
s_mul_i32 s66, s67, {16*QP}
v_add_u32 v34, s66, v{QW}
v_add_u32 v35, s7, v34
s_sub_u32 s66, {16*QP}, s66
v_add_u32 v{QW}, s66, v{QW}
s_mov_b32 s{FLG}, 8
s_cmp_lt_u32 s{W}, 2
s_cbranch_scc1 L_nokv""")
a(f"""s_mov_b32 s{FLG}, 0
v_lshrrev_b32 v26, 3, v21
v_and_b32 v27, 7, v21
v_mul_u32_u24 v23, s{RBD}, v26
v_add_u32 v23, s{RBA}, v23
v_and_b32 v24, 1, v23
v_lshlrev_b32 v23, 10, v23
v_lshl_add_u32 v23, v24, 6, v23
v_lshl_add_u32 v23, v27, 7, v23
v_lshrrev_b32 v24, 1, v27
v_xor_b32 v24, v24, v22
v_lshl_add_u32 v23, v24, 4, v23
v_add_u32 v18, {XBL}, v23
v_xor_b32 v19, 64, v18
v_bfe_u32 v23, v0, 2, 2
v_lshl_add_u32 v23, v22, 3, v23
v_mul_u32_u24 v23, 40, v23
s_cmp_eq_u32 s6, 0
s_cselect_b64 vcc, -1, 0
v_cndmask_b32 v25, 4, v25, vcc
v_lshl_add_u32 v20, v25, 3, v23
s_lshr_b32 s66, s{QB}, 1
s_mul_i32 s66, s66, 10240
s_and_b32 s67, s{QB}, 1
v_lshrrev_b32 v24, 1, v22
v_and_b32 v25, 1, v22
s_cmp_ge_u32 s{HG}, 4
s_cbranch_scc1 L_kvV""")
def kvgemm(isK):
    if 'ptk' in XP:
        a(f"""s_mov_b64 exec, s[64:65]
        buffer_load_dword v198, v15, {S(WS_)}, s66 offen sc1
        s_lshl_b32 s7, s{QB}, 3
        s_add_u32 s7, s7, s{HG}
        s_mul_i32 s7, s7, {FS}
        s_add_u32 s7, s7, {WS_F1}
        s_mov_b64 exec, 1
        buffer_load_dword v198, v17, {S(WS_)}, s7 offen sc1
        s_mov_b64 exec, -1
        s_waitcnt vmcnt(2)
        s_barrier""")
    else: a("s_waitcnt vmcnt(0)\ns_barrier")
    stamp('kvland')
    a(f"global_load_dword v16, v17, s[{DBG}:{DBG+1}] sc1")
    NB=5
    def rd(st):
        f=FR+8*(st%NB)
        if st==16: a("v_add_u32 v18, 0x10000, v18\nv_add_u32 v19, 0x10000, v19")
        a(f"""ds_read_b128 v[{f}:{f+3}], v{18+st%2} offset:{(8192*(st//2))&0xffff}
        ds_read_b64_tr_b16 v[{f+4}:{f+5}], v20 offset:{1280*st}
        ds_read_b64_tr_b16 v[{f+6}:{f+7}], v20 offset:{1280*st+160}""")
    for st in range(NB-1): rd(st)
    for st in range(20):
        if st+NB-1<20: rd(st+NB-1)
        f=FR+8*(st%NB); A,B=(f+4,f) if isK else (f,f+4)
        a(f"s_waitcnt lgkmcnt({3*min(NB-1,19-st)})\nv_mfma_f32_16x16x32_bf16 v[28:31], v[{A}:{A+3}], v[{B}:{B+3}], {'0' if st==0 else 'v[28:31]'}")
a(f"""v_lshlrev_b32 v27, 4, v27
v_lshl_add_u32 v23, v26, 11, v27
v_lshl_add_u32 v23, v24, 9, v23
v_lshl_add_u32 v23, v25, 3, v23
v_lshl_add_u32 v27, v26, 3, v27
v_cndmask_b32 v15, v27, v23, vcc
s_lshl_b32 s7, s67, 9
s_add_u32 s7, s7, 4096
s_lshl_b32 s67, s67, 10
s_cmp_eq_u32 s6, 0
s_cselect_b32 s67, s67, s7
s_cselect_b32 s64, -1, 0xffff
s_cselect_b32 s65, -1, 0
s_lshl_b32 s7, s{J}, 7
s_add_u32 s66, s66, s7
s_add_u32 s66, s66, s67""")
kvgemm(True)
a(f"""s_branch L_kvW
L_kvV:
s_cmp_eq_u32 s6, 0
s_cselect_b32 s7, 0x180, 64
s_cselect_b32 s64, -1, 0x000f000f
s_mov_b32 s65, s64
v_mul_u32_u24 v24, s7, v24
v_lshl_add_u32 v24, v21, 4, v24
v_lshl_add_u32 v15, v25, 3, v24
s_and_b32 s7, s{J}, 2
s_add_u32 s67, s67, s7
s_lshl_b32 s67, s67, 1
s_and_b32 s7, s{J}, 1
s_add_u32 s67, s67, s7
s_mul_i32 s67, s67, 640
s_lshl_b32 s7, s6, 8
s_add_u32 s66, s66, s7
s_add_u32 s66, s66, s67
s_add_u32 s66, s66, 5120""")
kvgemm(False)
a(f"""L_kvW:
s_mov_b32 s{KS}, s66
s_mov_b64 s[{KM}:{KM+1}], s[64:65]
s_cmp_lt_u32 s{HG}, 4
s_cselect_b32 s6, {fh(CSCALE)}, 1.0
s_mov_b32 s7, s6
s_nop 2
v_pk_mul_f32 v[28:29], v[28:29], s[6:7]
v_pk_mul_f32 v[30:31], v[30:31], s[6:7]
v_cvt_pk_bf16_f32 v28, v28, v29
v_cvt_pk_bf16_f32 v29, v30, v31
s_mov_b64 exec, s[64:65]
buffer_store_dwordx2 v[28:29], v15, {S(WS_)}, s66 offen sc1
s_mov_b64 exec, -1
s_branch L_kvE
L_nokv:""")
a("s_waitcnt vmcnt(0)\ns_barrier")
stamp('kvland')
a("L_kvE:")
stamp('kvpub')
def qmm(i,k,ct,qt):
    f=FR+40*(i%2)+20*k; d=ACC+8*ct+4*qt
    c='0' if (i==0 and k==0) else f"v[{d}:{d+3}]"
    return f"v_mfma_f32_16x16x32_bf16 v[{d}:{d+3}], v[{f+8+4*ct}:{f+11+4*ct}], v[{f+4*qt}:{f+4*qt+3}], {c}"
def qrx(i,k,qt):
    f=FR+40*(i%2)+20*k; return f"ds_read_b128 v[{f+4*qt}:{f+4*qt+3}], v{[[XR,32],[7,33]][k][qt]} offset:{(8192*i)&0xffff}"
def qrw(i,k,ct,u):
    f=FR+40*(i%2)+20*k+8+4*ct+2*u; return f"ds_read_b64_tr_b16 v[{f}:{f+1}], v{(WR if ct<2 else 11)+u} offset:{(i%5)*10240+5120*k+32*(ct%2)}"
TL5=[(0,0),(0,1),(1,0),(1,1),(2,0)]
def weave(R,M):
    n=max(len(M),1); k=0
    for j in range(n):
        t=(len(R)*(j+1))//n
        em(R[k:t]); k=t
        if M: a(M[j])
pm=pre_m(); fill=pm[:2]+[pm[2][:3]]+att_init()
NQ=int(XP.get('nq',6)); LAG=int(XP.get('lag',9))
quota=[max(2,min(len(fill),round(len(fill)*(i+1)/NQ))) for i in range(9)]; done=0
FORCE=int(XP.get('force',5))
for i in range(10):
    a("s_barrier")
    if i in (0,3,6,9): stamp(f'b{i}')
    if i==FORCE+1: a(f"v_mov_b32 v18, {NONL}\nds_read_b32 v16, v18")
    if i==FORCE+2: a(f"v_readfirstlane_b32 s{NON}, v16")
    R=[x for k in range(2) for x in [qrx(i,k,0),qrx(i,k,1)]+[qrw(i,k,ct,u) for ct in range(3) for u in range(2)]]
    M=[qmm(i-1,k,ct,qt) for k in range(2) for ct,qt in TL5] if 0<i<LAG else []
    if i==9: break
    if 0<i<FORCE and 'nomid' not in XP:
        a(f"s_getreg_b32 s68, hwreg(HW_REG_IB_STS, 0, 4)\ns_or_b32 s68, s68, s{FLG}\ns_cbranch_scc1 L_mf{i}\ns_call_b64 s[{RET}:{RET+1}], L_flag1\nL_mf{i}:")
    weave(R,M)
    if i==7: a("".join(f"v_add_u32 v{r_}, 0x10000, v{r_}\n" for r_ in (XR,7,32,33)))
    if i<9: em(fill[done:quota[i]]); done=quota[i]
    if i<=FORCE:
        if i<FORCE: a(f"s_getreg_b32 s68, hwreg(HW_REG_IB_STS, 0, 4)\ns_or_b32 s68, s68, s{FLG}")
        else: a(f"s_cmp_lg_u32 s{FLG}, 0")
        a(f"s_cbranch_scc1 L_nf{i}\ns_call_b64 s[{RET}:{RET+1}], L_flag1\nL_nf{i}:")
    if i>=LAG:
        a("s_waitcnt lgkmcnt(8)"); em([qmm(i,0,ct,qt) for ct,qt in TL5])
        a("s_waitcnt lgkmcnt(0)"); em([qmm(i,1,ct,qt) for ct,qt in TL5])
    else:
        a("s_waitcnt lgkmcnt(0)")
        if i==LAG-1: em([qmm(i,k,ct,qt) for k in range(2) for ct,qt in TL5])
def qst(ct,qt):
    d=ACC+8*ct+4*qt
    return [f"v_cvt_pk_bf16_f32 v{d}, v{d}, v{d+1}",f"v_cvt_pk_bf16_f32 v{d+1}, v{d+2}, v{d+3}",f"ds_write_b64 v{35 if ct==2 else [34,QW][qt]}, v[{d}:{d+1}] offset:{32*(ct%2)}"]
em(R[:12])
for k in range(2):
    for j,(ct,qt) in enumerate(TL5):
        if qt==0:
            issued=12+(2*min(ct,2) if k==0 else 4)
            a(f"s_waitcnt lgkmcnt({issued-(8*k+4+2*ct)})")
        a(qmm(9,k,ct,qt))
        if k==0 and j<4: a(R[12+j])
a(f"v_mov_b32 v{IDX}, 0xdddddddd\ns_nop 2")
for ct,qt in TL5: em(qst(ct,qt))
stamp('f_qst')

a(f"""s_setprio 2
s_waitcnt lgkmcnt(0)
s_barrier""")
stamp('att')
VRA=TA; FO=TA+1; L8=TA+2; PA=TA+3; FN=TA+4
def koff(g,t): return (g>>1)*10240+(2*(g&1)+t)*1024
def k4off(g): return (g>>1)*10240+4096
def voff(g,u): return (g>>1)*10240+5120+(4*(g&1)+u)*640
on=f"s_mov_b64 exec, s[{VM}:{VM+1}]"; off="s_mov_b64 exec, -1"
def M16(d,k,q,c): return f"v_mfma_f32_32x32x16_bf16 v[{d}:{d+15}], v[{k}:{k+3}], v[{Q16[q]}:{Q16[q]+3}], {c}"
def M4(d,k,q): return f"v_mfma_f32_32x32x4_2b_bf16 v[{d}:{d+31}], v[{k}:{k+1}], v[{Q4[q]}:{Q4[q]+1}], v[{d}:{d+31}]"
def SM(v,x,q): return f"v_smfmac_f32_32x32x32_bf16 v[{O[q]}:{O[q]+15}], v[{v}:{v+3}], v[{x}:{x+7}], v{IDX}"
CMr=[f"v[{c}:{c+15}]" for c in CM]
def qrd(q): return f"""ds_read_b64 v[{Q16[q]}:{Q16[q]+1}], v{QR} offset:{32*QP*q}
ds_read_b64 v[{Q16[q]+2}:{Q16[q]+3}], v{QR} offset:{32*QP*q+8}
ds_read_b64 v[{Q4[q]}:{Q4[q]+1}], v{QR+1} offset:{32*QP*q+32}"""
a(f"""{qrd(0)}
ds_read_b128 v[{KF}:{KF+3}], v{AK} offset:{koff(0,0)}
ds_read_b128 v[{KF+4}:{KF+7}], v{AK} offset:{koff(0,1)}
ds_read_b128 v[{K4}:{K4+3}], v{AK} offset:{k4off(0)}
s_waitcnt lgkmcnt(2)
{M16(SS[0],KF,0,'0')}
s_waitcnt lgkmcnt(1)
{M16(SS[0]+16,KF+4,0,'0')}
{qrd(1)}
{on}""")
for u in range(4): a(f"ds_read_b128 v[{VF[0]+4*u}:{VF[0]+4*u+3}], v{AV} offset:{voff(0,u)}")
a(f"""{off}
s_waitcnt lgkmcnt(4)
{M4(SS[0],K4,0)}
s_mov_b32 s{IT}, 8
s_mov_b32 s{SLOW}, 0
global_load_dwordx4 v[{TA}:{TA+3}], v{L16}, s[{TW_}:{TW_+1}]
global_load_dwordx4 v[{TA+4}:{TA+7}], v{L16}, s[{TW_}:{TW_+1}] offset:1024
global_load_dwordx4 v[{TA-4}:{TA-1}], v{L16}, s[{TW_}:{TW_+1}] offset:2048
s_nop 10
{M16(SS[1],KF,1,'0')}
s_nop 2""")
def rowmax(q,hooks):
    X=SS[q]; o=[f"v_max3_f32 v{T}, v{X}, v{X+1}, v{X+2}",f"v_max3_f32 v{T+1}, v{X+3}, v{X+4}, v{X+5}"]
    for i in range(6,32,4):
        o.append(f"v_max3_f32 v{T}, v{T}, v{X+i}, v{X+i+1}")
        if i+2<32: o.append(f"v_max3_f32 v{T+1}, v{T+1}, v{X+i+2}, v{X+i+3}")
    o+=lines(f"""v_max_f32 v{T}, v{T}, v{T+1}
    v_mov_b32 v{T+1}, v{T}
    s_nop 1
    v_permlane32_swap_b32 v{T}, v{T+1}
    v_max_f32 v{T}, v{T}, v{T+1}
    v_sub_f32 v{CM[q]}, {fh(-OFFS)}, v{T}
    v_sub_f32 v{CM[q]+1}, {fh(-OFFS)}, v{T}""")
    o+=[f"v_mov_b64 v[{CM[q]+2*i}:{CM[q]+2*i+1}], v[{CM[q]}:{CM[q]+1}]" for i in range(1,8)]
    for k,x in enumerate(o):
        if k in hooks: a(hooks[k])
        a(x)
X=SS[0]
pka=[f"v_pk_add_f32 v[{X+2*i}:{X+2*i+1}], v[{X+2*i}:{X+2*i+1}], v[{CM[0]}:{CM[0]+1}]" for i in range(16)]
rowmax(0,{3:M16(SS[1]+16,KF+4,1,'0'),13:M4(SS[1],K4,1)})
em(pka[:14])
rowmax(1,{})
em(pka[14:]); a(M16(SS[1],KF,1,CMr[1]))
ALT='alt' in XP
pos=dict(smp=2,mB=5,s0=10,mC=13,s1=21,s2=26,mA=29) if not ALT else dict(s2=0,smp=3,mB=6,mC=14,s0=22,s1=25,mA=28)
if 'pos' in XP: pos=dict(zip(['smp','mB','s0','mC','s1','s2','mA'],eval(XP['pos'])))
for i in range(pos['smp']): a(f"v_exp_f32 v{X+i}, v{X+i}")
a("s_waitcnt lgkmcnt(0)")
stamp('g_0')
a(f".p2align {XP.get('al2',3)}\nL_loop:")
order=sorted(pos,key=lambda k:pos[k])
body=[]
for u in range(8):
    g,q=u>>1,u&1
    X=SS[q]; Y=SS[q^1]; gn=(u+1)>>1
    m={}
    m['mA']=M16(X,KF,q,CMr[q]); m['mB']=M16(Y+16,KF+4,q^1,CMr[q^1]); m['mC']=M4(Y,K4+2*(gn&1),q^1)
    for i in range(3): m[f's{i}']=SM(VF[g%2]+4*i,X+8*i,q)
    m['smp']=SM(VF[((u-1)>>1)%2]+12,Y+24,q^1)
    if ALT: m['s2']=SM(VF[((u-1)>>1)%2]+8,Y+16,q^1)
    aft={k:[] for k in pos}
    kw,kv,k1,k2=('s2','s0','s1','s2') if not ALT else ('s1','mB','s0','s1')
    if q==0:
        if g==3: aft['smp'].append("s_barrier")
        aft['smp'].append(f"ds_read_b128 v[{KF}:{KF+3}], v{AK} offset:{koff(g+1,0)}")
        if ALT: aft['mB'].append("s_nop 0")
        aft['mB'].append(f"ds_read_b128 v[{KF+4}:{KF+7}], v{AK} offset:{koff(g+1,1)}")
        if g&1: aft['mC'].append(f"ds_read_b128 v[{K4}:{K4+3}], v{AK} offset:{k4off(g+1)}")
        aft[kw].append("s_waitcnt lgkmcnt(0)")
    else:
        b=VF[(g+1)%2]
        aft[kv]+=[on]+[f"ds_read_b128 v[{b+4*i}:{b+4*i+3}], v{AV} offset:{voff(g+1,i)}" for i in range(4)]+[off]
        aft['mA'].append("s_waitcnt lgkmcnt(0)")
        if g==3:
            aft[k1]+=[f"s_sub_u32 s{IT}, s{IT}, 1",f"v_add_u32 v{AK}, 20480, v{AK}",f"v_add_u32 v{AV}, 20480, v{AV}"]
            aft[k2]+=[f"s_cmp_lg_u32 s{IT}, 0"]
    ins={i:[] for i in range(33)}
    for k in order: ins[pos[k]]+=[m[k]]+aft[k]
    for i in range(32): body+=ins[i]+[f"v_exp_f32 v{X+i}, v{X+i}"]
rot=pos['smp']+1+ALT
em(body[rot:]+body[:rot])
a("s_cbranch_scc1 L_loop\nL_check:")
stamp('loopend')
dd=[230,236]
def nrm(q,lo,hi):
    for i in range(lo,hi): a(f"v_pk_mul_f32 v[{CM[q]+2*i}:{CM[q]+1+2*i}], v[{O[q]+2*i}:{O[q]+2*i+1}], v[{T+4*q}:{T+1+4*q}] op_sel_hi:[1,0]")
    for i in range(lo,hi): a(f"v_cvt_pk_bf16_f32 v{dd[q]+i}, v{CM[q]+2*i}, v{CM[q]+1+2*i}")
a(f"v_rcp_f32 v{T}, v{O[0]+12}\ns_waitcnt vmcnt(0)")
nrm(0,0,4)
a(f"buffer_store_dwordx4 v[{dd[0]}:{dd[0]+3}], v{L16}, {S(WS_)}, s{SA} offen sc1\nv_rcp_f32 v{T+4}, v{O[1]+12}")
stamp('e_s0')
nrm(0,4,6); nrm(1,4,6); nrm(1,0,4)
a(f"""buffer_store_dwordx4 v[{dd[1]}:{dd[1]+3}], v{L16}, {S(WS_)}, s{SC} offen sc1
v_permlane32_swap_b32 v{dd[0]+4}, v{dd[1]+4}
v_permlane32_swap_b32 v{dd[0]+5}, v{dd[1]+5}
buffer_store_dwordx2 v[{dd[0]+4}:{dd[0]+5}], v{L8}, {S(WS_)}, s{SB} offen sc1""")
chk=[]
for q in range(2):
    o=O[q]
    chk+=lines(f"""v_max3_f32 v{T+2+q}, |v{o}|, |v{o+1}|, |v{o+2}|
    v_max3_f32 v{T+2+q}, v{T+2+q}, |v{o+3}|, |v{o+4}|
    v_max3_f32 v{T+2+q}, v{T+2+q}, |v{o+5}|, |v{o+6}|
    v_max_f32 v{T+2+q}, v{T+2+q}, |v{o+7}|""")
prs=[O[q]+2*i for q in range(2) for i in range(6)]
chk.append(f"v_pk_add_f32 v[{T+4}:{T+5}], v[{prs[0]}:{prs[0]+1}], v[{prs[1]}:{prs[1]+1}]")
for r_ in prs[2:]: chk.append(f"v_pk_add_f32 v[{T+4}:{T+5}], v[{T+4}:{T+5}], v[{r_}:{r_+1}]")
chk+=lines(f"""v_cmp_gt_f32 vcc, {fh(2.0**110)}, v{O[0]+12}
v_add_f32 v{T+4}, v{T+4}, v{T+5}
v_min_f32 v{T+2}, v{T+2}, v{T+3}
s_mov_b64 s[68:69], vcc
v_cmp_gt_f32 vcc, {fh(2.0**110)}, v{O[1]+12}
v_cmp_gt_f32 s[66:67], s6, |v{T+4}|
v_cmp_lt_f32 s[6:7], s7, v{T+2}
s_and_b64 vcc, vcc, s[68:69]
s_and_b64 vcc, vcc, s[66:67]
s_and_b64 vcc, vcc, s[6:7]""")
TB=84; NF=136; XX=[4,148]; TRs=[20,52]; TIs=[36,68]
stamp('e_st')
a(f"v_add_u32 v3, {TL}, v{L16}")
for qd in [0,2,1,3,13,14]: a(f"ds_read_b128 v[{TB+4*qd}:{TB+4*qd+3}], v3 offset:{1024*qd}")
a(f"s_mov_b32 s6, 0x7f800000\ns_mov_b32 s7, {fh(2.0**-min(OFFS+12,125))}")
stamp('e_rd')
em(chk)
stamp('e_chk')
a(f"""s_cmp_eq_u64 vcc, -1
s_waitcnt lgkmcnt(0)
s_cbranch_scc0 L_slow
L_store:""")
stamp('e_w')
a("s_barrier")
stamp('T-1')
def mm(d,A,B,c): return f"v_mfma_f32_32x32x16_bf16 v[{d}:{d+15}], v[{A}:{A+3}], v[{B}:{B+3}], {c}"
def vrd(r):
    return [f"ds_read_b64_tr_b16 v[{XX[r]+8*p+4*s+2*u}:{XX[r]+8*p+4*s+2*u+1}], v{VRA} offset:{VP*(2*r+p)+640*s+160*u}" for p in range(2) for s in range(2) for u in range(2)]
def sta(r):
    f=XX[r]; TR=TRs[r]; TI=TIs[r]; TRr=f"v[{TR}:{TR+15}]"; TIr=f"v[{TI}:{TI+15}]"
    return [mm(TR,f,TB,'0'),mm(TI,f,TB+8,'0'),mm(TR,f+4,TB+4,TRr),mm(TI,f+4,TB+12,TIr),mm(TR,f+8,NF,TRr),mm(TI,f+8,TB,TIr),mm(TR,f+12,NF+4,TRr),mm(TI,f+12,TB+4,TIr)]
WRr=TB+16; WI=TB+28; GG=TB+40; P=144
def pr(x): return f"v[{x}:{x+1}]"
def twid(r):
    f=XX[r]; TR=TRs[r]; TI=TIs[r]; o=[]
    for i in range(0,12,2):
        if 'pkt' not in XP:
            o+=lines(f"""v_mul_f32 v{P}, v{TI+i}, v{WI+i}
            v_mul_f32 v{P+1}, v{TR+i}, v{WI+i}
            v_mul_f32 v{P+2}, v{TI+i+1}, v{WI+i+1}
            v_mul_f32 v{P+3}, v{TR+i+1}, v{WI+i+1}
            v_fma_f32 v{TR+i}, v{TR+i}, v{WRr+i}, -v{P}
            v_fma_f32 v{TI+i}, v{TI+i}, v{WRr+i}, v{P+1}
            v_fma_f32 v{TR+i+1}, v{TR+i+1}, v{WRr+i+1}, -v{P+2}
            v_fma_f32 v{TI+i+1}, v{TI+i+1}, v{WRr+i+1}, v{P+3}
            v_cvt_pk_bf16_f32 v{f+4*(i//4)+(i%4)//2}, v{TR+i}, v{TR+i+1}
            v_cvt_pk_bf16_f32 v{f+4*(i//4)+2+(i%4)//2}, v{TI+i}, v{TI+i+1}"""); continue
        o+=lines(f"""v_pk_mul_f32 {pr(P)}, {pr(TI+i)}, {pr(WI+i)}
        v_pk_mul_f32 {pr(P+2)}, {pr(TR+i)}, {pr(WI+i)}
        v_pk_fma_f32 {pr(TR+i)}, {pr(TR+i)}, {pr(WRr+i)}, {pr(P)} neg_lo:[0,0,1] neg_hi:[0,0,1]
        v_pk_fma_f32 {pr(TI+i)}, {pr(TI+i)}, {pr(WRr+i)}, {pr(P+2)}
        v_cvt_pk_bf16_f32 v{f+4*(i//4)+(i%4)//2}, v{TR+i}, v{TR+i+1}
        v_cvt_pk_bf16_f32 v{f+4*(i//4)+2+(i%4)//2}, v{TI+i}, v{TI+i+1}""")
    return o
def stb(r):
    f=XX[r]; y=TRs[r]; return [mm(y,f,GG,'0'),mm(y,f+4,GG+4,f"v[{y}:{y+15}]"),mm(y,f+8,GG+8,f"v[{y}:{y+15}]")]
FF=XP.get('ff','sc1'); HST='ast' not in XP and 'al' not in XP; AL='al' in XP; HSP=int(XP.get('hsp',20))
def fout(r):
    y=TRs[r]; d=TIs[r]
    return [f"v_cvt_pk_bf16_f32 v{d+i}, v{y+2*i}, v{y+2*i+1}" for i in range(8)]+[on,f"ds_write_b128 v{FO}, v[{d}:{d+3}] offset:{1280*r}",f"ds_write_b128 v{L8}, v[{d+4}:{d+7}] offset:{1280*r}",off]
def frd(r,d,ad): return [f"ds_read_b128 v[{d}:{d+3}], v{ad} offset:{1280*r}",f"ds_read_b128 v[{d+4}:{d+7}], v{ad} offset:{1280*r+1024}"]
def fsto(r,d):
    return [f"buffer_store_dwordx4 v[{d}:{d+3}], v{L16}, {S(OUT_)}, s{66+r} offen {FF}","s_mov_b64 exec, 0xffff",f"buffer_store_dwordx4 v[{d+4}:{d+7}], v{L16}, {S(OUT_)}, s{66+r} offen offset:1024 {FF}",off]
def rowsc(wr,ad): return lines(f"""s_lshl_b32 s66, s{wr}, 8
s_add_u32 s66, s66, s{T0}
s_mul_i32 s66, s66, 2560
s_add_u32 s67, s66, {128*2560}
v_bfe_u32 v{ad}, v0, 3, 2
v_xor_b32 v{ad}, v{ad}, v0
s_mul_i32 s7, s{wr}, 2560
s_add_u32 s7, s7, {FSG}
v_lshl_add_u32 v{ad}, v{ad}, 4, s7""")
flag3=["s_waitcnt vmcnt(0)","s_barrier","s_mov_b64 exec, 0xffff",
   f"buffer_load_dword v1, v{PA}, {S(WS_)}, s{SA} offen sc1","s_mov_b64 exec, 15",f"buffer_load_dword v1, v{PA}, {S(WS_)}, s{SB} offen sc1",off]
scal=lines(f"""s_lshl_b32 m0, s{W}, 10
s_mul_i32 s68, s{QB}, 81920
s_add_u32 s68, s68, {WS_O}
s_add_u32 s{XB_}, s{WS_}, s68
s_addc_u32 s{XB_+1}, s{WS_+1}, 0
s_mov_b32 s{XB_+2}, 81920
v_xor_b32 v{L8}, 16, v{FO}""")
OAa=TA-4; WXa=164; BA=[84+4*i for i in range(8)]; ACa=116
wxr=[f"ds_read_b128 v[{WXa+4*st}:{WXa+4*st+3}], v{OAa+3} offset:{1024*st}" for st in range(20)]
A0=sta(0); A1=sta(1); W0=twid(0); W1=twid(1); B0=stb(0); FP=int(XP.get('fp',10))
R1=vrd(1)+[f"ds_read_b128 v[{TB+4*qd}:{TB+4*qd+3}], v3 offset:{1024*qd}" for qd in range(4,13)]
em(vrd(0)); em(scal); a("s_waitcnt lgkmcnt(6)")
a(A0[0]); a(A0[1]); a("s_waitcnt lgkmcnt(0)")
def fp(j):
    if FP==j: em(flag3); stamp('T0')
for j in range(2,8):
    a(A0[j]); em(R1[:3]); R1=R1[3:]; fp(j)
a("s_waitcnt lgkmcnt(9)")
for j in range(3):
    a(A1[j]); em(wxr[2*j:2*j+2]); fp(8+j)
a("s_waitcnt lgkmcnt(6)")
for j in range(3,8):
    em(W0[:5]); W0=W0[5:]; a(A1[j]); em(wxr[2*j:2*j+2]); fp(8+j)
em(W0)
fp(16)
a("s_nop 1")
for j in range(3):
    a(B0[j]); em(W1[:6]); W1=W1[6:]
em(W1)
em(wxr[16:18]); B1=stb(1); f0=fout(0)
a(B1[0]); em(f0[:4]); a(B1[1]); em(f0[4:8]); a(B1[2]); em(f0[8:]); em(wxr[18:])
if not HST: em(rowsc(W,3)); em(frd(0,4,3))
else: a("s_nop 5")
em(fout(1))
if AL: em(frd(1,12,3))
elif not HST:
    em(frd(1,12,3)); a("s_waitcnt lgkmcnt(4)"); em(fsto(0,4)); a("s_waitcnt lgkmcnt(0)"); em(fsto(1,12))
a("s_waitcnt lgkmcnt(0)")
late=[]
FSP=int(XP.get('fsp',99))
stamp('o_fft')
a("s_barrier")
stamp('T1')
oda=[f"buffer_load_dwordx4 v{L16}, {S(XB_)}, m0 offen sc1 lds","s_add_u32 m0, m0, 40960","s_nop 0",f"buffer_load_dwordx4 v{L16}, {S(XB_)}, m0 offen sc1 lds",f"s_sub_u32 m0, m0, {40960-4096}","s_nop 0"]
SYNC=eval(XP.get('sync','{0/1,1/2,2/4,4/6,6/8,8/10}').replace('/',':'))
AHEAD=int(XP.get('ahead',3))
def ard(st):
    b=BA[st%8]
    if st<16: return [f"ds_read_b128 v[{b}:{b+3}], v{OAa} offset:{2048*st}"]
    return [f"ds_read_b64 v[{b+2*u}:{b+2*u+1}], v{OAa+1} offset:{2048*(st-16)+1024*u}" for u in range(2)]
ar=0; am=0
def amm():
    global am
    b=BA[am%8]; n=sum(len(ard(x)) for x in range(am+1,ar))
    a(f"s_waitcnt lgkmcnt({n})\nv_mfma_f32_16x16x32_bf16 v[{ACa}:{ACa+3}], v[{WXa+4*am}:{WXa+4*am+3}], v[{b}:{b+3}], {'0' if am==0 else f'v[{ACa}:{ACa+3}]'}")
    am+=1
def awork(avail,k):
    global ar
    old=ar
    while ar<avail and ar-am<8 and sum(len(ard(x)) for x in range(am,ar+1))<=14: em(ard(ar)); ar+=1
    for _ in range(k):
        if am<old: amm()
issued=0; avail=0; vm=[]
def slot(k):
    global late
    if late:
        c=late[0]; late=late[1:]; em(c); vm.extend([None]*sum(x.startswith('buffer_') for x in c))
    else: awork(avail,k)
PRE=int(XP.get('pre',2))
for hc in sorted(SYNC):
    while issued<min(10,SYNC[hc]+AHEAD):
        if hc>0: slot(3)
        em(oda); vm.extend([issued]*2); issued+=1
        if AL and issued==int(XP['al'] or 10): em(fsto(0,4)+fsto(1,12)); vm.extend([None]*4)
    if hc==0:
        for _ in range(PRE): slot(0)
    elif issued==10:
        while late or am<avail-4: slot(2)
    last=max(i for i,x in enumerate(vm) if x==SYNC[hc]-1)
    a(f"s_waitcnt vmcnt({len(vm)-1-last})\ns_barrier")
    avail=2*SYNC[hc]
    stamp(f'o_b{hc}')
while am<20: awork(20,2)
stamp('gemm')
a(f"""s_nop 7
v_cvt_pk_bf16_f32 v{ACa}, v{ACa}, v{ACa+1}
v_cvt_pk_bf16_f32 v{ACa+1}, v{ACa+2}, v{ACa+3}
ds_write_b64 v{OAa+2}, v[{ACa}:{ACa+1}]
s_branch L_fin""")
a(f"""L_flag1:
s_mov_b32 s{CNT}, 0
L_non:
s_waitcnt vmcnt(0)
v_readfirstlane_b32 s{NON}, v16
s_add_u32 s{CNT}, s{CNT}, 1
s_cmp_gt_u32 s{CNT}, {SPIN}
s_cbranch_scc1 L_gotnon
s_cmp_lg_u32 s{NON}, 0
s_cbranch_scc1 L_gotnon
global_load_dword v16, v17, s[{DBG}:{DBG+1}] sc1
s_branch L_non
L_gotnon:
s_lshl_b32 s68, s{QB}, 3
s_add_u32 s68, s68, s{HG}
s_mul_i32 s68, s68, {FS//4}
s_add_u32 s68, s68, s{W}
s_lshl_b32 s68, s68, 2
s_add_u32 s68, s68, {WS_F1-8}
v_mov_b32 v18, {NONL}
s_mov_b64 exec, 1
buffer_store_dword v16, v17, {S(WS_)}, s68 offen sc1
{'' if 'nokp' in XP else f's_mov_b64 exec, s[{KM}:{KM+1}]'}
{'' if 'nokp' in XP else f'buffer_load_dword v198, v15, {S(WS_)}, s{KS} offen sc1'}
s_mov_b64 exec, -1
ds_write_b32 v18, v16
s_mov_b32 s{FLG}, 8""")
stamp('f_flag')
a(f"s_setpc_b64 s[{RET}:{RET+1}]")

a("L_loader:")
ST=[dict(srd=36,v=5,G=16,GS=17,GL=18,L=19,LD=30,LS=31,LW=34),dict(srd=12,v=7,G=26,GS=27,GL=35,L=44,LD=64,LS=66,LW=67)]
for k,st in enumerate(ST):
    a(f"""s_lshl_b32 s47, s{W}, 1
    s_sub_u32 s47, s47, {8-k}
    s_mov_b32 s{st['srd']+3}, 0x20000
    s_cmp_ge_u32 s47, 5
    s_cbranch_scc1 L_sx{k}
    s_lshl_b32 s6, s47, 6
    v_add_u32 v21, s6, v0
    v_mul_u32_u24 v23, 0x667, v21
    v_lshrrev_b32 v23, 14, v23
    s_mov_b32 s{st['srd']+2}, 819200
    v_mul_u32_u24 v24, 10, v23
    s_mov_b32 s{st['GS']}, {64*1280}
    v_sub_u32 v24, v21, v24
    s_lshl_b32 s{st['L']}, s47, 10
    v_lshrrev_b32 v25, 3, v23
    s_add_u32 s{st['L']}, s{st['L']}, {RB}
    v_xor_b32 v26, v25, v23
    s_mov_b32 s{st['LD']}, 5120
    v_and_b32 v26, 1, v26
    s_mov_b32 s{st['LS']}, 10240
    v_lshl_add_u32 v25, v25, 1, v26
    s_mov_b32 s{st['LW']}, 51200
    v_bfe_u32 v26, v23, 1, 2
    s_mul_i32 s6, s{HG}, 160
    v_lshl_add_u32 v25, v25, 2, v26
    v_mul_u32_u24 v25, 0x500, v25
    v_lshl_add_u32 v24, v24, 4, s6
    v_add_u32 v{st['v']}, v24, v25
    v_add_u32 v{st['v']+1}, {32*1280}, v{st['v']}
    s_branch L_se{k}
    L_sx{k}:
    s_add_u32 s6, s47, s{J}
    s_and_b32 s6, s6, 3
    s_lshr_b32 s7, s{HG}, 2
    s_lshl_b32 s6, s6, s7
    s_lshl_b32 s{st['L']}, s6, 10
    s_add_u32 s{st['L']}, s{st['L']}, {XBL}
    s_lshl_b32 s{st['LD']}, s{RBD}, 10
    s_and_b32 s47, s6, 1
    s_lshl_b32 s47, s47, 6
    v_xor_b32 v21, s47, v3
    s_lshl_b32 s7, s7, 6
    v_xor_b32 v22, s7, v21
    s_lshl_b32 s7, s{QB}, 3
    s_add_u32 s6, s6, s7
    s_mul_i32 s7, s6, 10240
    v_add_u32 v{st['v']}, s7, v21
    s_add_u32 s6, s6, s{RBD}
    s_mul_i32 s7, s6, 10240
    v_add_u32 v{st['v']+1}, s7, v22
    s_mov_b32 s{st['srd']+2}, 2621440
    s_mov_b32 s{st['GS']}, 128
    s_mov_b32 s{st['LS']}, 8192
    s_mov_b32 s{st['LW']}, 0
    L_se{k}:
    s_lshl_b32 s6, s{R0}, 1
    s_mul_i32 s{st['G']}, s6, s{st['GS']}
    s_mul_i32 s{st['GL']}, s{st['GS']}, 10""")
a(f"""s_and_b32 s6, s{W}, 3
s_lshl_b32 s6, s6, 6
v_add_u32 v21, s6, v0
v_mul_u32_u24 v48, {FS}, v0
s_and_b32 s6, s2, 7
s_mul_i32 s6, s6, {32*FS}
v_and_b32 v47, {32*FS-1}, v48
v_add_u32 v47, s6, v47
s_add_u32 s6, s6, {32*FS}
v_add_u32 v48, s6, v48
v_and_b32 v48, {256*FS-1}, v48
v_mul_u32_u24 v49, {FS}, v21
v_and_b32 v20, 1, v0
v_mul_u32_u24 v20, {40960-64}, v20
v_lshl_add_u32 v20, v0, 6, v20""")
stamp('f_ka0')
a(f"""s_waitcnt lgkmcnt(0)
s_cmp_ge_u32 s{W}, 7
s_cselect_b32 s36, s48, s50
s_cselect_b32 s37, s49, s51
s_cmp_ge_u32 s{W}, 6
s_cselect_b32 s12, s48, s50
s_cselect_b32 s13, s49, s51""")
a(cpy)
def issue(i):
    for st in ST:
        if i==5: a(f"s_sub_u32 s{st['L']}, s{st['L']}, s{st['LW']}")
        a(f"""s_mov_b32 m0, s{st['L']}
        s_add_u32 s{st['L']}, s{st['L']}, s{st['LS']}
        {dmab(st['v'],st['srd'],'s%d'%st['G'])}
        s_add_u32 m0, m0, s{st['LD']}
        s_add_u32 s6, s{st['G']}, s{st['GS']}
        {dmab(st['v']+1,st['srd'],'s%d'%st['G'])}
        s_cmp_eq_u32 s6, s{st['GL']}
        s_cselect_b32 s{st['G']}, 0, s6""")
KB=int(XP.get('kb',2))
for i in range(KB): issue(i)
stamp('f_kvi')
a("s_barrier")
DD=int(XP.get('dd',3))
for i in range(KB,DD): issue(i)
POLLI=int(XP.get('polli',6)); KG=47; OKF=46
fillL=pre_m()+[p1_scal()]
lpoll=f"buffer_load_dwordx2 v[50:51], v47, {S(WS_)}, s68 offen sc1"
kd=[f"buffer_load_dwordx4 v{L16}, {S(WS_)}, s{KG} offen sc1 lds","s_add_u32 m0, m0, 4096",f"s_add_u32 s{KG}, s{KG}, 4096",f"s_sub_u32 s7, s{KG}, 163840",f"s_min_u32 s{KG}, s{KG}, s7"]
def apoll(k): return f"buffer_load_dwordx2 v[50:51], v{48+k}, {S(WS_)}, s68 offen sc1"
def aspin(tag,k,n):
    a(f"""s_mov_b32 s{CNT}, 0
    s_waitcnt vmcnt({n})
    L_{tag}:
    v_cmp_ne_u64 s[6:7], s[{NON}:{NON+1}], v[50:51]
    s_add_u32 s{CNT}, s{CNT}, 1
    s_cmp_gt_u32 s{CNT}, {SPIN}
    s_cbranch_scc1 L_{tag}ok
    s_cmp_eq_u64 s[6:7], 0
    s_cbranch_scc1 L_{tag}ok
    {apoll(k)}
    s_waitcnt vmcnt(0)
    s_branch L_{tag}
    L_{tag}ok:""")
a(f"""s_mov_b32 s68, {WS_F1}
v_mov_b32 v18, {NONL}
s_and_b32 s6, s{W}, 3
s_lshl_b32 s63, s6, 10
s_and_b32 s6, s2, 7
s_mul_i32 s6, s6, 20480
s_add_u32 s{KG}, s6, s63
s_mov_b32 s{OKF}, 0""")
pmH=pre_m(); MF=int(XP.get('mf',5))
PI=int(XP.get('pi',7)); PRE9='post9' not in XP
for i in range(10):
    n=4*min(DD-1,9-i)+(1 if i>PI else 0)
    if i==9 and PRE9:
        a(f"""s_waitcnt vmcnt(0)
        v_cmp_ne_u64 s[6:7], s[{NON}:{NON+1}], v[50:51]
        s_cmp_eq_u64 s[6:7], 0
        s_cbranch_scc0 L_late""")
        stamp('f_qst'); K9=int(XP.get('k9',2)); em(kd*K9); a("s_barrier"); em(kd*(5-K9))
        a("s_branch L_kvgo\nL_late:"); a(apoll(-1)); a("s_barrier")
    else: a(f"s_waitcnt vmcnt({n})\ns_barrier")
    if i==6: a("ds_read_b32 v16, v18")
    if i+DD<10: issue(i+DD)
    if i==PI: a(apoll(-1))
    if i==7:
        a(f"s_mov_b32 m0, s63\ns_waitcnt lgkmcnt(0)\nv_readfirstlane_b32 s{NON}, v16\nv_readfirstlane_b32 s{NON+1}, v16")
        em(pmH[:MF])
    if i==8: em(p1_scal())
aspin('pk',-1,0)
stamp('f_qst')
em(kd*5)
a("L_kvgo:")
em(pmH[MF:])
stamp('f_flag')
a("s_waitcnt vmcnt(0)")
stamp('f_p1')

def th(q,r):
    base,o=[(TW_,4096),(TW_+2,12288),(RET,20480)][q//8]
    return f"global_load_dwordx4 v[{r}:{r+3}], v{L16}, s[{base}:{base+1}] offset:{1024*q-o}"
H0=24; FA=H0; PA2=H0+3; WOA=H0+4; UA=H0+9; UR=H0+14; WAD=H0+16
W3=4; VW=7; OA=8; SG=10; PA3=11; FNH=12; WXW=14
FT=92; P1A=124; PFR=128; PD=176; WA=92; WX=172
a("s_barrier")
stamp('att')
a(apoll(0))
a("s_setprio 3")
aspin('pa',0,0)
stamp('g_pa')
NI0=10
em(kd*5); a(apoll(1))
for k in range(5): a(th(9+k,H0+4*k))
em(kd*5)
aspin('pb',1,5)
a("s_setprio 0")
stamp('g_i0')
a("s_barrier"); stamp('h_0')
em(kd*5)
a(f"""s_mov_b32 s68, m0
s_lshl_b32 m0, s{HA}, 10
s_nop 0
{dmab(FA,XA_,'s69')}
s_add_u32 m0, m0, 4096
s_cmp_ge_u32 s{HA}, 2
{dmab(FA+1,XA_,'s69')}
s_cbranch_scc1 L_f2
s_add_u32 m0, m0, 4096
s_nop 0
{dmab(FA+2,XA_,'s69')}
L_f2:
s_mov_b32 m0, s68""")
for k in range(9): a(th(k,FT+4*k))
a(f"s_waitcnt vmcnt(0)\ns_barrier")
stamp('h_1')
em(kd*20)
if 'nopfwo' not in XP:
    a(f"""s_lshr_b32 s6, s2, 3
    s_lshl_b32 s6, s6, 2
    s_add_u32 s6, s6, s{HA}
    s_mul_i32 s6, s6, 6400
    v_lshlrev_b32 v1, 7, v0
    s_mov_b32 exec_hi, 0x3ffff
    buffer_load_dword v1, v1, {S(WO_)}, s6 offen
    s_mov_b32 exec_hi, -1""")
for s_ in range(4):
    for Tt in range(3):
        for u in range(2):
            f=PFR+12*s_+4*Tt+2*u
            a(f"ds_read_b64_tr_b16 v[{f}:{f+1}], v{P1A+(Tt==2)} offset:{(32*s_+u)*80+(32 if Tt==1 else 0)}")
a("s_waitcnt lgkmcnt(0)")
for s_ in range(4):
    if s_==int(XP.get('pb',2)): a("s_barrier"); stamp('h_2')
    for nt in range(2):
        for Tt in range(3):
            d=PD+12*nt+4*Tt; f=PFR+12*s_+4*Tt
            a(f"v_mfma_f32_16x16x32_bf16 v[{d}:{d+3}], v[{f}:{f+3}], v[{FT+16*nt+4*s_}:{FT+16*nt+4*s_+3}], {'0' if s_==0 else f'v[{d}:{d+3}]'}")
a("s_nop 2")
for nt in range(2):
    for Tt in range(3):
        d=PD+12*nt+4*Tt
        a(f"v_cvt_pk_bf16_f32 v{d}, v{d}, v{d+1}\nv_cvt_pk_bf16_f32 v{d+1}, v{d+2}, v{d+3}")
        if Tt<2: a(f"ds_write_b64 v{P1A+2}, v[{d}:{d+1}] offset:{1280*nt+32*Tt}")
a("s_mov_b32 exec_hi, 0")
for nt in range(2): a(f"ds_write_b64 v{P1A+2}, v[{PD+12*nt+8}:{PD+12*nt+9}] offset:{1280*nt+64}")
a("s_mov_b32 exec_hi, -1")
for k in range(3): a(f"ds_read_b128 v[{PFR+4*k}:{PFR+4*k+3}], v{P1A+3} offset:{1024*k}")
a("s_waitcnt lgkmcnt(0)")
for k in range(3):
    if k==2: a("s_mov_b32 exec_hi, 0")
    a(f"buffer_store_dwordx4 v[{PFR+4*k}:{PFR+4*k+3}], v{L16}, {S(WS_)}, s{PB} offen offset:{1024*k} sc1")
a("s_mov_b32 exec_hi, -1")
stamp('g_p1')
for k in range(3): a(th(14+k,W3+4*k))
a(f"""s_mul_i32 s6, s2, {FS}
s_add_u32 s6, s6, {WS_F2}
v_mov_b32 v3, s{NON}
s_lshl_b32 m0, s{HA}, 10
s_mul_i32 s68, s{HG}, 160
s_waitcnt vmcnt(6)
s_barrier""")
stamp('h_3')
for n in range(25):
    WN=int(XP.get('wn',13))
    if n==WN:
        stamp('g_wo')
        a(f"""s_cmp_eq_u32 s{W}, 7
        s_waitcnt vmcnt({WN})
        s_barrier
        s_cbranch_scc0 L_nofl2
        s_mov_b64 exec, 1
        buffer_store_dword v3, v{L16}, {S(WS_)}, s6 offen sc1
        s_mov_b64 exec, -1
        L_nofl2:""")
        stamp('h_4')
    a(dmab(WOA+n%5,WO_,'s68')); a("s_add_u32 m0, m0, 4096")
    a(f"s_add_u32 s68, s68, {128*1280}" if n%5==4 else "s_nop 0")
a(f"""s_add_u32 s66, s{TAB}, tab_hid-L_pc
s_addc_u32 s67, s{TAB+1}, 0
s_lshl_b32 s6, s{HA}, 10
v_add_u32 v1, s6, v{L16}
s_mov_b32 s68, {WS_F2}
s_waitcnt vmcnt(0)
s_barrier""")
stamp('h_5')
if 'pto' in XP:
    a(f"""s_lshl_b32 s6, s{HG}, 2
    s_add_u32 s6, s6, s{HA}
    s_mul_i32 s63, s{QB}, 81920
    s_add_u32 s63, s63, {WS_O}
    s_lshl_b32 s7, s6, 8
    s_add_u32 s7, s7, s63
    s_add_u32 s7, s7, 32768
    s_lshl_b32 s6, s6, 10
    s_add_u32 s6, s6, s63
    s_mov_b64 exec, 0xffff
    buffer_load_dword v18, v20, {S(WS_)}, s6 offen sc1
    s_mov_b64 exec, 15
    buffer_load_dword v18, v20, {S(WS_)}, s7 offen sc1
    s_mov_b64 exec, -1""")
if 'nopt' not in XP:
    a(f"""s_lshl_b32 s6, s{HG}, 7
    s_lshl_b32 s7, s{QB}, 10
    s_add_u32 s6, s6, s7
    s_add_u32 s6, s6, {WS_F3}
    s_mov_b64 exec, 1
    buffer_load_dword v18, v{L16}, {S(WS_)}, s6 offen sc1
    s_mov_b64 exec, -1""")

for k in range(5):
    for u in range(2):
        a(f"ds_read_b64_tr_b16 v[{44+4*k+2*u}:{45+4*k+2*u}], v{WAD+u+(2 if k==4 else 0)} offset:{6400*(k%4)}")
for half in range(2):
    for H in range(16*half,16*half+16):
        for u in range(2): a(f"ds_read_b64_tr_b16 v[{WA+4*H+2*u}:{WA+4*H+2*u+1}], v{W3+(H&1)} offset:{6400*((H>>1)%8)+1280*u}")
        if H==2:
            a("s_waitcnt lgkmcnt(6)")
            for k in range(5): a(f"ds_write_b128 v{WXW+(k==4)}, v[{44+4*k}:{47+4*k}] offset:{1024*(k%4)}")
    for b in range(4*half,4*half+4):
        for u in range(2): a(f"ds_read_b64_tr_b16 v[{WA+128+4*b+2*u}:{WA+128+4*b+2*u+1}], v{W3+2} offset:{12800*(b%4)+6400*u}")
    if half==0:
        for i in range(3): a(f"v_add_u32 v{W3+i}, 51200, v{W3+i}")
def spin(tag,addr,soff):
    a(f"""s_mov_b32 s{CNT}, 0
    L_{tag}:
    s_waitcnt vmcnt(0)
    v_cmp_ne_u32 vcc, s{NON}, v3
    s_add_u32 s{CNT}, s{CNT}, 1
    s_cmp_gt_u32 s{CNT}, {SPIN}
    s_cbranch_scc1 L_{tag}ok
    s_cbranch_vccz L_{tag}ok
    buffer_load_dword v3, v{addr}, {S(WS_)}, {soff} offen sc1
    s_branch L_{tag}
    L_{tag}ok:""")
a(f"buffer_load_dword v3, v{PA2}, {S(WS_)}, s68 offen sc1")
spin('pu',PA2,'s68')
a(f"""s_lshl_b32 m0, s{HA}, 10
s_mul_i32 s68, s{UU}, 160
s_add_u32 s68, s68, {WS_U}
s_waitcnt lgkmcnt(0)""")
stamp('g_wr')
a("s_barrier"); stamp('h_6')
for n in range(10):
    a(dmab(UA+n%5,WS_,'s68',0,'sc1')); a("s_add_u32 m0, m0, 4096")
    a(f"s_add_u32 s68, s68, {128*10240}" if n%5==4 else "s_nop 0")
a(f"s_add_u32 m0, m0, {TL-40960}\ns_nop 0")
for k in range(4):
    if k==3: a(f"s_cmp_eq_u32 s{HA}, 3\ns_cbranch_scc1 L_nt3")
    a("global_load_lds_dwordx4 v1, s[66:67]")
    if k<3: a("s_add_u32 m0, m0, 4096\ns_add_u32 s66, s66, 4096\ns_addc_u32 s67, s67, 0")
a("L_nt3:")
a(f"s_lshl_b32 s68, s{QB}, 10\ns_add_u32 s68, s68, {WS_F3}")
a("s_waitcnt vmcnt(0)")
stamp('g_u')
a("s_barrier"); stamp('h_7')
Fh=44
def s1r(b): return [f"ds_read_b64_tr_b16 v[{Fh+4*i+2*u}:{Fh+4*i+2*u+1}], v{UR+(i==2)} offset:{5120*b+32*i+1280*u+(2480 if i>2 else 0)}" for i in range(5) for u in range(2)]
em(s1r(0))
for b in range(2):
    nx=s1r(1) if b==0 else []
    for i in range(5):
        a(f"s_waitcnt lgkmcnt({8 if b==0 else 13-2*i})\nv_mfma_f32_16x16x32_bf16 v[{Fh+20+4*i}:{Fh+23+4*i}], v[{Fh+4*i}:{Fh+4*i+3}], v[{MM}:{MM+3}], 0")
        em(nx[2*i:2*i+2])
    if b==1: a("s_nop 0")
    for i in range(5):
        d=Fh+20+4*i; e=Fh+40+2*(i%4)
        a(f"v_cvt_pk_bf16_f32 v{d}, v{d}, v{d+1}\nv_cvt_pk_bf16_f32 v{d+1}, v{d+2}, v{d+3}\nds_write_b64 v{VW}, v[{d}:{d+1}] offset:{160*b+32*i}")
a("s_waitcnt lgkmcnt(0)")
stamp('loopend')
a("s_barrier")
stamp('T-1')
em(rowsc(HA,4))
a(f"""s_setprio 1
v_mov_b32 v16, s{NON}
v_mov_b32 v1, s{NON}
s_lshl_b32 s6, s{HG}, 7
s_add_u32 s6, s6, s68
s_cmp_eq_u32 s{W}, 4
s_barrier""")
stamp('T0')
a(f"""s_cbranch_scc0 L_pook
{'s_mov_b64 exec, 0xff' if 'nofl' not in XP else 's_mov_b64 exec, 1'}
{f'buffer_store_dwordx4 v[16:19], v{L16}, {S(WS_)}, s6 offen sc1' if 'nofl' not in XP else f'buffer_store_dword v1, v{L16}, {S(WS_)}, s6 offen sc1'}
s_mov_b64 exec, -1
{'s_waitcnt vmcnt(0)' if 'nopw' not in XP else ''}""")
a(f"buffer_load_dword v3, v{PA3}, {S(WS_)}, s68 offen sc1")
spin('po',PA3,'s68')
stamp('o_fft')
a("s_barrier")
stamp('T1')
if HST:
    em(frd(0,72,4)+frd(1,80,4))
    if HSP<0: a("s_waitcnt lgkmcnt(2)"); em(fsto(0,72)); a("s_waitcnt lgkmcnt(0)"); em(fsto(1,80))
NBH=int(XP.get('nbh',6)); AC=24
def rd(st):
    b=44+4*(st%(NBH+1))
    if st<32: return [f"ds_read_b128 v[{b}:{b+3}], v{OA} offset:{1024*st}"]
    return [f"ds_read_b64 v[{b+2*u}:{b+2*u+1}], v{OA+1} offset:{1024*(st-32)+512*u}" for u in range(2)]
KEEP=int(XP.get('keep',2))
nr=0; nm=0
def hm():
    global nm
    b=44+4*(nm%(NBH+1)); n=sum(len(rd(x)) for x in range(nm+1,nr))
    a(f"s_waitcnt lgkmcnt({n})\nv_mfma_f32_32x32x16_bf16 v[{AC}:{AC+15}], v[{WA+4*nm}:{WA+4*nm+3}], v[{b}:{b+3}], {'0' if nm==0 else f'v[{AC}:{AC+15}]'}")
    if HST and HSP>=0:
        pcs=[fsto(0,72)[:1],fsto(0,72)[1:],fsto(1,80)[:1],fsto(1,80)[1:]]
        if nm>=HSP and (nm-HSP)%2==0 and (nm-HSP)//2<4: em(pcs[(nm-HSP)//2])
    nm+=1
while nm<40:
    if nr<40 and nr%4==0 and nr//4 in SYNC:
        while nr-nm>KEEP: hm()
        a("s_barrier"); stamp(f'o_b{nr//4}')
        em(rd(nr)); nr+=1
    elif nr<40 and nr-nm<NBH:
        em(rd(nr)); nr+=1
        if nr-nm>=4 and nr<40 and not (nr%4==0 and nr//4 in SYNC) and nr-nm<NBH:
            hm(); em(rd(nr)); nr+=1
    else: hm()
stamp('gemm')
a(f"v_mov_b64 v[{FN}:{FN+1}], v[{FNH}:{FNH+1}]\ns_nop 10")
for j in range(4):
    d=AC+4*j
    a(f"v_cvt_pk_bf16_f32 v{d}, v{d}, v{d+1}\nv_cvt_pk_bf16_f32 v{d+1}, v{d+2}, v{d+3}\nds_write_b64 v{SG}, v[{d}:{d+1}] offset:{16*j}")
OF=XP.get('of','nt')
a(f"""L_fin:
s_mul_i32 s6, s{QB}, {64*2560}
s_mul_i32 s7, s{HG}, 160
s_add_u32 s6, s6, s7
s_add_u32 s6, s6, 1280
s_cmp_ge_u32 s{W}, 2
s_waitcnt lgkmcnt(0)
s_barrier
ds_read_b128 v[24:27], v{FN}
s_cbranch_scc1 L_one
ds_read_b128 v[28:31], v{FN+2}
s_waitcnt lgkmcnt(0)
buffer_store_dwordx4 v[28:31], v{FN+3}, {S(OUT_)}, s6 offen {OF}
L_one:
s_waitcnt lgkmcnt(0)
buffer_store_dwordx4 v[24:27], v{FN+1}, {S(OUT_)}, s6 offen {OF}""")
if STAMP:
    a("s_waitcnt vmcnt(0)"); stamp('end')
    a(f"""s_lshl_b32 s6, s2, 3
    s_add_u32 s6, s6, s{W}
    s_lshl_b32 s6, s6, 6
    s_add_u32 s6, s6, {WS_ST}
    v_mov_b32 v21, 0
    s_waitcnt lgkmcnt(0)""")
    for i in range(nstamp[0]): a(f"v_mov_b32 v22, s{STB+2*i}\nbuffer_store_dword v22, v21, {S(WS_)}, s6 offen offset:{4*i}")
a("L_end:\ns_endpgm")
X=SS[0]
a(f"""L_slow:
s_cmp_lg_u32 s{SLOW}, 0
s_cbranch_scc1 L_store
v_subrev_u32 v{AV}, 163840, v{AV}
s_mov_b32 s{IT}, 0
L_blk:
s_mov_b32 s{SLOW}, 1
v_mov_b32 v{T}, 0xff800000""")
zero(CM[0],16); zero(O[0],16)
a(f"""L_pass:
s_mov_b32 s{CNT}, 0
L_sl:
s_lshr_b32 s66, s{CNT}, 1
s_mul_i32 s66, s66, 10240
s_and_b32 s6, s{CNT}, 1
s_mul_i32 s7, s6, 2048
s_add_u32 s7, s7, s66
buffer_load_dwordx4 v[{KF}:{KF+3}], v{L16}, {S(WS_)}, s7 offen sc1
buffer_load_dwordx4 v[{KF+4}:{KF+7}], v{L16}, {S(WS_)}, s7 offen offset:1024 sc1
s_lshl_b32 s7, s6, 3
s_add_u32 s7, s7, s66
s_add_u32 s7, s7, 4096
buffer_load_dwordx2 v[{K4}:{K4+1}], v{L16}, {S(WS_)}, s7 offen sc1
s_mul_i32 s7, s6, 2560
s_add_u32 s7, s7, s66
s_add_u32 s7, s7, 5120
{on}""")
for u in range(4): a(f"buffer_load_dwordx4 v[{VF[0]+4*u}:{VF[0]+4*u+3}], v{AV}, {S(WS_)}, s7 offen offset:{640*u} sc1")
a(f"""{off}
s_waitcnt vmcnt(0)
{M16(X,KF,0,CMr[0])}
{M16(X+16,KF+4,0,CMr[0])}
s_nop 9
{M4(X,K4,0)}
s_nop 15
s_nop 3
s_cmp_eq_u32 s{SLOW}, 1
s_cbranch_scc0 L_p2""")
for i in range(0,32,2): a(f"v_max3_f32 v{T}, v{T}, v{X+i}, v{X+i+1}")
a("s_branch L_nx\nL_p2:")
for i in range(32): a(f"v_exp_f32 v{X+i}, v{X+i}")
a("s_nop 1")
for u in range(4): a(SM(VF[0]+4*u,X+8*u,0))
a(f"""L_nx:
s_add_u32 s{CNT}, s{CNT}, 1
s_cmp_lt_u32 s{CNT}, 32
s_cbranch_scc1 L_sl
s_cmp_eq_u32 s{SLOW}, 1
s_cbranch_scc0 L_swap
s_mov_b32 s{SLOW}, 2
v_mov_b32 v{T+1}, v{T}
s_nop 1
v_permlane32_swap_b32 v{T}, v{T+1}
v_max_f32 v{T}, v{T}, v{T+1}""")
for i in range(16): a(f"v_sub_f32 v{CM[0]+i}, 0, v{T}")
a("s_branch L_pass\nL_swap:\ns_nop 7")
for i in range(6): a(f"v_swap_b32 v{Q16[0]+i}, v{Q16[1]+i}")
for i in range(16): a(f"v_swap_b32 v{O[0]+i}, v{O[1]+i}")
a(f"""s_add_u32 s{IT}, s{IT}, 1
s_cmp_lt_u32 s{IT}, 2
s_cbranch_scc1 L_blk
s_branch L_check""")

hdr=open('concat_heads__spectral_fnet__grouped_kv_mqa__prompt.s.ref').read().split('; Override launch')[0]
s=hdr+"; @launch grid=(256,1,1) block=(512,1,1) lds=163840\n"
if STAMP: s+="; stamps: "+" ".join(stnames)+"\n"
s+='.amdgcn_target "amdgcn-amd-amdhsa--gfx950"\n.text\n'+khead(KN)+a.text()
s+=emit_table('tab_a',table_a())+emit_table('tab_h',table_h())+emit_table('tab_hid',table_hid())+'L_tabend:\n'
s+='.section .rodata,"a"\n'+kdesc(KN,256,102)
open(OUTF,'w').write(s)
print('wrote',OUTF,len(s),'stamps',nstamp[0],stnames)
```

```python
import sys, math, struct
import numpy as np, re
sys.path.insert(0,'gen')
from asmlib import *

STAMP = '--stamp' in sys.argv
XP = dict((a[4:].split(':')+[''])[:2] for a in sys.argv if a.startswith('--x='))
OUTF = [a for a in sys.argv[1:] if not a.startswith('--')]
OUTF = OUTF[0] if OUTF else 'concat_heads__spectral_fnet__grouped_kv_mqa__prompt.s'
KN='concat_heads__spectral_fnet__grouped_kv_mqa__prompt_kernel'

WS_KV = 0x000000
WS_F1 = 0x040000
WS_F2 = 0x050000
WS_F3 = 0x060000
WS_O  = 0x100000
WS_U  = 0x400000
WS_ST = 0x900000
WS_SZ = 0x1000000
CSCALE = (20**-0.5)*math.log2(math.e)
OFFS = float(XP.get('offs',102))
SPIN = 200000
def f2u(x): return struct.unpack('<I',struct.pack('<f',x))[0]
def fh(x): return hex(f2u(x))
def bf(x):
    u=np.asarray(x,np.float32).view(np.uint32)
    return ((u+0x7fff+((u>>16)&1))>>16).astype(np.uint32)
def pack(vals):
    b=bf(vals); return b[...,0::2]|(b[...,1::2]<<16)
def sig(n): return 16*((n>>2)&1)+4*(n>>3)+(n&3)
def table_hid():
    out=np.zeros((15,64,4),np.uint32)
    for l in range(64):
        n=l&31; h=l>>5; k1=sig(n)
        for s in range(2):
            d1=np.arange(8)+16*s+8*h
            out[s,l]=pack(np.cos(2*np.pi*d1*k1/32))
            out[2+s,l]=pack(-np.sin(2*np.pi*d1*k1/32))
            out[13+s,l]=out[2+s,l]^0x80008000
        for j in range(3):
            d2=8*j+4*h+np.arange(4); ok=(d2<20)
            out[4+j,l]=(np.cos(2*np.pi*d2*k1/640)*ok).astype(np.float32).view(np.uint32)
            out[7+j,l]=(-np.sin(2*np.pi*d2*k1/640)*ok).astype(np.float32).view(np.uint32)
            k2=n if n<20 else 0
            out[10+j,l]=pack(np.concatenate([np.cos(2*np.pi*d2*k2/20)*ok, np.sin(2*np.pi*d2*k2/20)*ok]))
    return out.reshape(-1)
XBL=25600; RB=107520; NONL=158720
UL=0; OL=0; STG=81920; FSG=81920; WXL=102400; TL=122880; VL=138240; VP=1288
FLF=0; FSF=10240; FS=32; QSL=RB; QP=168
def grp_rows(k0): return ((k0&~7)+((k0>>2)&1))
NQH=17; NQA=3
PRIV='priv' in XP
def fin(w,l):
    if PRIV:
        if w<4: r=16*w+((l&31)>>1); c=128+16*(l&1)
        else: r=32*(w&1)+(l>>2); c=64*((w>>1)&1)+16*(l&3)
        return [STG+r*176+c, r*2560+c, 0, 0]
    c0=64*w+l; c1=min(c0+512,639)
    return [STG+(c0+c0//10)*16, c0*16+(c0//10)*2400, STG+(c1+c1//10)*16, c1*16+(c1//10)*2400]
def table_h():
    t=np.zeros((4,NQH,64,4),np.uint32)
    for w in range(4):
        for l in range(64):
            n=l&15; g=l>>4; r=(l>>2)&3; c=l&3
            j=np.arange(8)
            for nt in range(2):
                kidx=32*w+16*nt+n; u=kidx>>1; q=kidx&1
                for s in range(4):
                    sh=32*s+8*g+2*(j&3)+(j>>2)
                    v=np.cos(np.pi*sh) if kidx==1 else (np.cos(2*np.pi*u*sh/128) if q==0 else -np.sin(2*np.pi*u*sh/128))
                    t[w,4*nt+s,l]=pack(v)
            rb=FLF+(8*g+2*r)*80; sb=FSF+2560*w
            t[w,8,l]=[rb+8*c, rb+64+8*(c&1), sb+80*n+8*g, sb+16*l]
            fa=[]; wo=[]; ua=[]
            for k in range(5):
                cell=64*(w+4*k)+l
                if k<3: cf=min(cell,639); fa.append((cf//5)*20480+(cf%5)*16)
                pos=cell//10; cc=cell%10
                wo.append(((pos&~7)|((pos>>1)&3)|((pos&1)<<2))*1280+cc*16); ua.append(pos*10240+cc*16)
            ur=UL+10240*w+(2*r+(g&1))*160+(g>>1)*80+8*c
            wad=[25600*w+r*320+128+8*c+160*(grp_rows(20*(g>>1)+4*(g&1)+8*uu) if kind==0 else grp_rows(20*(4*uu+g)+16)) for kind in range(2) for uu in range(2)]
            t[w,9:14,l]=np.array(fa+[FS*(64*w+l)]+wo+ua+[ur,ur+(2480 if c>=2 else 0)]+wad).reshape(5,4)
            h=l>>5; qh=w&1; ct=w>>1; cb=r*320+64*ct+32*(g&1)+8*c
            t[w,14,l]=[cb+160*grp_rows(4*h), cb+160*grp_rows(20+4*h), cb+160*grp_rows(20*h+16), VL+n*VP+320*w+8*g]
            t[w,15,l]=[OL+qh*40960+16*l, OL+qh*40960+32768+8*l, STG+(32*qh+(l&31))*176+64*ct+8*h, 128*(l&7)]
            t[w,16,l]=fin(w+4,l)[:2]+[WXL+4096*w+16*l, WXL+16384+1024*w+16*l]
    return t.reshape(-1)
def table_a():
    t=np.zeros((4,NQA,64,4),np.uint32)
    for w in range(4):
        for l in range(64):
            g=l>>4; r=(l>>2)&3; c=l&3; h=l>>5
            t[w,0,l]=[VL+4*w*VP+(8*h+r)*40+(32 if (g&1) else 8*c), FSG+2560*w+16*((4*min(l&31,19)+2*h)^(((l&31)>>1)&3)), 8*(l&31)+40960*h, (l&1)*40960+((l>>1)&7)*128]
            t[w,1,l]=fin(w,l)
            n=l&15
            t[w,2,l]=[OL+(w>>1)*40960+512*g+16*(16*(w&1)+n), OL+(w>>1)*40960+32768+256*g+8*(16*(w&1)+n), STG+(16*w+n)*176+8*g+128, WXL+16*l]
    return t.reshape(-1)
def emit_table(name, arr):
    s=f".p2align 8\n.type {name},@object\n{name}:\n"
    for i in range(0,len(arr),8):
        s+=".long "+",".join(hex(int(x)) for x in arr[i:i+8])+"\n"
    s+=f".size {name}, {4*len(arr)}\n"
    return s

W=3; QB=4; HG=5
XB_=8; TW_=12; KV_=16; WS_=20; XA_=24; WO_=28; OUT_=32
DBG=40; TAB=42; NON=44; R0=45; J=46; RBA=47; RBD=65
SA=49; SB=50; SC=51; SD=54; HA=55; IT=55; KS=38; KM=36; FLG=48; RET=52
PB=56; UU=57; QT=58; T0=59; MIR=60; SLOW=61; CNT=62
VM=64
STB=70
def S(r,n=4): return f"s[{r}:{r+n-1}]"
a=Asm()
nstamp=[0]; stnames=[]
def stamp(name):
    sel=XP.get('st','')
    front=['kvland','kvpub','b0','b3','b6','b9pre','b9']
    if sel!='tail' and name.startswith('o_'): return
    if sel!='loop' and name.startswith('g_'): return
    if sel!='epi' and name.startswith('e_'): return
    if sel!='bars' and name.startswith('h_'): return
    if sel!='front' and name.startswith('f_'): return
    if sel=='front' and name in ['loopend','T0','T1','gemm']: return
    if sel and sel!='front' and name in front: return
    if name.startswith('o_b') and name not in ('o_b0','o_b2','o_b4','o_b6','o_b8'): return
    if name in stnames:
        i=stnames.index(name); a(f"{'s_memtime' if 'cyc' in XP else 's_memrealtime'} s[{STB+2*i}:{STB+1+2*i}]"); return
    if STAMP:
        assert nstamp[0]<16
        a(f"{'s_memtime' if 'cyc' in XP else 's_memrealtime'} s[{STB+2*nstamp[0]}:{STB+1+2*nstamp[0]}]"); nstamp[0]+=1; stnames.append(name)
def zero(base,n):
    for i in range(n): a(f"v_mov_b32 v{base+i}, 0")
def dmab(v,srd,soff,off=0,fl=''):
    return f"buffer_load_dwordx4 v{v}, {S(srd)}, {soff} offen{' offset:%d'%off if off else ''} {fl} lds"
def mod5(d,s,t):
    a(f"s_mul_i32 s{t}, s{s}, 0x3334\ns_lshr_b32 s{t}, s{t}, 16\ns_mul_i32 s{t}, s{t}, 5\ns_sub_u32 s{d}, s{s}, s{t}")


L16=2
Q16=[4,10]; Q4=[8,14]; IDX=16; AK=3; AV=1
CM=[20,36]; O=[52,68]; SS=[84,116]; KF=148; K4=156; VF=[164,180]; QR=196; T=224
XR=8; WR=9; QW=13; FR=84; ACC=200; TA=248
MM=252
def lines(t): return [x.strip() for x in t.split("\n") if x.strip()]
def pre_m():
    o=[lines(f"""s_and_b32 s{UU}, s2, 7
    s_lshl_b32 s{UU}, s{UU}, 3
    s_bfe_u32 s6, s2, 0x30003
    s_add_u32 s{UU}, s{UU}, s6
    s_lshr_b32 s{QT}, s2, 6
    s_lshr_b32 s{MIR}, s{QT}, 1
    s_sub_u32 s6, 128, s{UU}"""),lines(f"""s_cmp_eq_u32 s{UU}, 0
    s_cselect_b32 s6, 64, s6
    s_cselect_b32 s66, 0, 512
    s_mul_i32 s7, s66, 3
    s_cmp_eq_u32 s{MIR}, 0
    s_cselect_b32 s{T0}, s{UU}, s6
    s_cselect_b32 s66, s7, s66"""),lines(f"""s_and_b32 s6, s{QT}, 1
    s_lshl_b32 s6, s6, 10
    s_add_u32 s{T0}, s{T0}, s6
    v_lshrrev_b32 v23, 5, v0
    v_cmp_eq_u32 vcc, s{MIR}, v23
    v_bfe_u32 v21, v0, 1, 3"""),lines(f"""v_lshl_add_u32 v21, v21, 7, s{T0}
    v_and_b32 v22, 1, v0
    v_lshlrev_b32 v22, 9, v22
    v_mad_u32_u24 v22, v23, s66, v22
    v_bfe_u32 v24, v0, 4, 1"""),lines(f"""v_mad_u32_u24 v22, v24, v21, v22
    v_cvt_f32_u32 v21, v21
    v_cvt_f32_u32 v22, v22
    v_mul_f32 v21, {fh(1/1024)}, v21
    v_mul_f32 v22, {fh(1/2048)}, v22
    s_cmp_eq_u32 s{UU}, 0
    s_cselect_b64 vcc, vcc, -1""")]
    for i in range(4):
        o.append(lines(f"""v_cos_f32 v25, v22
        v_add_f32 v22, v22, v21
        v_cos_f32 v26, v22
        v_add_f32 v22, v22, v21
        v_cvt_pk_bf16_f32 v24, v25, v26
        v_cndmask_b32 v{MM+i}, 0, v24, vcc"""))
    return o

def chunks(l,n): return [l[k:k+n] for k in range(0,len(l),n)]
def att_init():
    o=lines(f"""v_and_b32 v21, 27, v0
    v_cmp_eq_u32 vcc, 24, v21
    v_mov_b32 v21, 0x3f803f80
    s_mov_b32 s{VM}, 0xfffff
    s_mov_b32 s{VM+1}, 0xfffff
    v_cndmask_b32 v{VF[0]}, 0, v21, vcc
    v_cndmask_b32 v{VF[0]+1}, 0, v21, vcc""")
    o+=[f"v_mov_b64 v[{VF[0]+2*i}:{VF[0]+2*i+1}], v[{VF[0]}:{VF[0]+1}]" for i in range(1,16)]+[f"v_mov_b64 v[{O[0]+2*i}:{O[0]+2*i+1}], 0" for i in range(16)]
    o=chunks(o,6)
    o.append(lines(f"""s_mov_b32 s{OUT_+2}, 5242880
    s_mov_b32 s{OUT_+3}, 0x20000
    s_mul_i32 s66, s{W}, 40
    s_add_u32 s66, s66, {QSL}
    s_mul_i32 s67, s{W}, {NQA*1024}
    s_add_u32 s67, s67, tab_a-L_pc
    s_add_u32 s{TW_}, s{TAB}, s67
    s_addc_u32 s{TW_+1}, s{TAB+1}, 0"""))
    o.append(lines(f"""v_and_b32 v21, 31, v0
    v_cmp_gt_u32 vcc, 16, v21
    v_lshrrev_b32 v22, 5, v0
    v_mov_b32 v23, 0x180
    v_cndmask_b32 v23, 64, v23, vcc"""))
    o.append(lines(f"""v_mul_u32_u24 v23, v22, v23
    v_lshl_add_u32 v{AV}, v21, 4, v23
    v_mul_u32_u24 v21, {QP}, v21
    v_add_u32 v{QR+1}, s66, v21
    v_lshl_add_u32 v{QR}, v22, 4, v{QR+1}
    v_mov_b32 v{AK}, v{L16}"""))
    o.append(lines(f"""s_mul_i32 s{SA}, s{QB}, 81920
    s_add_u32 s{SA}, s{SA}, {WS_O}
    s_lshl_b32 s7, s{HG}, 2
    s_add_u32 s7, s7, s{W}
    s_lshl_b32 s{SB}, s7, 8
    s_lshl_b32 s7, s7, 10"""))
    o.append(lines(f"""s_add_u32 s{SB}, s{SB}, s{SA}
    s_add_u32 s{SA}, s{SA}, s7
    s_add_u32 s{SB}, s{SB}, 32768
    s_add_u32 s{SC}, s{SA}, 40960
    s_add_u32 s{SD}, s{SB}, 40960"""))
    return o
def p1_scal():
    return lines(f"""s_and_b32 s6, s2, 7
    s_lshl_b32 s6, s6, 1
    s_bfe_u32 s7, s2, 0x10003
    s_add_u32 s6, s6, s7
    s_lshr_b32 s7, s2, 4
    s_lshl_b32 s{PB}, s7, 4
    s_add_u32 s{PB}, s{PB}, s6
    s_mul_i32 s6, s6, 1280
    s_mul_i32 s7, s7, 80
    s_add_u32 s69, s6, s7
    s_and_b32 s{HA}, s{W}, 3
    s_lshl_b32 s{PB}, s{PB}, 2
    s_add_u32 s{PB}, s{PB}, s{HA}
    s_mul_i32 s{PB}, s{PB}, 2560
    s_add_u32 s{PB}, s{PB}, {WS_U}
    s_mov_b32 s{XA_+2}, 2621440
    s_mov_b32 s{XA_+3}, 0x20000
    s_mov_b32 s{WO_+2}, 819200
    s_mov_b32 s{WO_+3}, 0x20000
    s_mov_b32 s{OUT_+2}, 5242880
    s_mov_b32 s{OUT_+3}, 0x20000
    s_mul_i32 s6, s{HA}, {NQH*1024}
    s_add_u32 s6, s6, tab_h-L_pc+4096
    s_add_u32 s{TW_}, s{TAB}, s6
    s_addc_u32 s{TW_+1}, s{TAB+1}, 0
    s_add_u32 s{TW_+2}, s{TW_}, 8192
    s_addc_u32 s{TW_+3}, s{TW_+1}, 0
    s_add_u32 s{RET}, s{TW_}, 16384
    s_addc_u32 s{RET+1}, s{TW_+1}, 0""")
def em(l):
    for x in l:
        if x is None: continue
        if isinstance(x,list): em(x)
        else: a(x)
def wrap(d,s,inc,lim):
    a(f"s_add_u32 s{d}, s{s}, {inc}\ns_sub_u32 s7, s{d}, {lim}\ns_min_u32 s{d}, s{d}, s7")

stamp('start')
a(f"""s_cmp_ge_u32 s2, 256
s_cbranch_scc1 L_end
s_load_dwordx8 s[48:55], s[0:1], 40
s_load_dwordx8 s[56:63], s[0:1], 72
s_load_dwordx2 s[24:25], s[0:1], 0
s_memrealtime s[68:69]
s_getpc_b64 s[{TAB}:{TAB+1}]
L_pc:
v_lshrrev_b32 v1, 6, v0
v_and_b32 v0, 63, v0
s_and_b32 s{QB}, s2, 7
v_readfirstlane_b32 s{W}, v1
s_lshl_b32 s{QB}, s{QB}, 2
v_lshlrev_b32 v{L16}, 4, v0
s_bfe_u32 s6, s2, 0x20003
v_lshrrev_b32 v21, 3, v0
s_add_u32 s{QB}, s{QB}, s6
v_lshrrev_b32 v23, 4, v0
s_lshr_b32 s{HG}, s2, 5
v_and_b32 v24, 7, v0
s_and_b32 s7, s2, 0xf8
s_add_u32 s7, s7, s{W}
s_lshl_b32 s7, s7, 7
v_mul_u32_u24 v22, ((L_tabend-L_pc-32768)/3)&0xffff80, v0
v_add_u32 v22, s7, v22
s_add_u32 s{R0}, s6, s{HG}
s_mov_b64 exec, {int(XP.get('pf',15))}
global_load_dword v255, v22, s[{TAB}:{TAB+1}]
s_mov_b64 exec, -1
v_xor_b32 v23, v23, v24
s_mul_i32 s7, s{R0}, 0x3334
v_mul_u32_u24 v21, 0x500, v21
s_lshr_b32 s7, s7, 16
v_lshl_add_u32 v3, v23, 4, v21
s_mul_i32 s7, s7, 5
v_mov_b32 v17, 0
v_mov_b32 v15, 0
s_sub_u32 s{R0}, s{R0}, s7
s_and_b32 s{J}, s{HG}, 3
s_lshl_b32 s7, s{J}, 1
s_cmp_lt_u32 s{HG}, 4
s_cselect_b32 s{RBA}, s{J}, s7
s_cselect_b32 s{RBD}, 4, 1
s_mov_b32 s{XB_+2}, 2621440
s_mov_b32 s{XB_+3}, 0x20000
s_mov_b32 s{WS_+2}, {WS_SZ}
s_mov_b32 s{WS_+3}, 0x20000
s_cmp_ge_u32 s{W}, 4
s_cbranch_scc1 L_loader
s_and_b32 s6, s{W}, 1
s_mul_i32 s6, s6, s{RBD}
s_add_u32 s6, s6, s{RBA}
s_and_b32 s7, s6, 1
s_lshl_b32 s7, s7, 6
v_xor_b32 v4, s7, v3
s_lshl_b32 s7, s{QB}, 3
s_add_u32 s7, s7, s6
s_mul_i32 s7, s7, 10240
v_add_u32 v4, s7, v4
s_lshr_b32 s36, s{W}, 1
s_lshl_b32 s35, s36, 3
s_add_u32 s35, s35, s6
s_lshl_b32 s35, s35, 10
s_add_u32 s35, s35, {XBL}
s_lshl_b32 s36, s36, 7
s_lshl_b32 s6, s{R0}, 8
s_add_u32 s36, s36, s6
s_lshl_b32 m0, s{W}, 10
s_mul_i32 s6, s{R0}, 5120
s_add_u32 s37, m0, s6
s_mov_b32 s{KV_+2}, 25600
s_mov_b32 s{KV_+3}, 0x20000
s_cmp_lt_u32 s{HG}, 4""")
stamp('f_ka0')
a(f"""s_waitcnt lgkmcnt(0)
s_cselect_b32 s{KV_}, s52, s54
s_cselect_b32 s{KV_+1}, s53, s55
s_lshr_b32 s6, s2, 3
s_xor_b32 s7, s{W}, 1
s_or_b32 s6, s6, s7
s_cbranch_scc1 L_nonon
s_or_b32 s68, s68, 1
v_mov_b32 v16, s68
s_mov_b64 exec, 1
global_atomic_cmpswap v17, v[16:17], s[60:61] sc1
s_mov_b64 exec, -1
L_nonon:""")
for t in range(6):
    a(dmab(L16,KV_,'s37')); a("s_add_u32 m0, m0, 4096"); wrap(37,37,4096,25600)
    if t==0: a(f"s_mov_b32 s{XB_}, s48\ns_mov_b32 s{XB_+1}, s49")
a(f"""s_cmp_lg_u32 s{W}, 0
s_cbranch_scc1 L_nw0
{dmab(L16,KV_,'s37')}
L_nw0:
s_mov_b32 m0, s35
s_nop 0""")
for t in range(5):
    a(dmab(4,XB_,'s36'))
    if t<4: a("s_add_u32 m0, m0, 16384"); wrap(36,36,256,1280)
stamp('f_kvi')
cpy=f"""s_mov_b32 s{WO_}, s56
s_mov_b32 s{WO_+1}, s57
s_mov_b32 s{OUT_}, s58
s_mov_b32 s{OUT_+1}, s59
s_mov_b32 s{DBG}, s60
s_mov_b32 s{DBG+1}, s61
s_mov_b32 s{WS_}, s62
s_mov_b32 s{WS_+1}, s63"""
a(cpy)
a(f"""v_and_b32 v21, 15, v0
v_lshrrev_b32 v22, 4, v0
s_and_b32 s6, s{W}, 1
s_lshl_b32 s7, s6, 12
s_add_u32 s7, s7, {XBL}
v_lshrrev_b32 v24, 1, v21
v_xor_b32 v23, v22, v24
v_lshl_add_u32 v24, v21, 7, s7
v_lshl_add_u32 v{XR}, v23, 4, v24
v_xor_b32 v7, 64, v{XR}
s_lshr_b32 s66, s{W}, 1
s_mul_i32 s66, s66, 96
s_add_u32 s7, s66, {RB}
v_lshrrev_b32 v23, 2, v0
v_mul_u32_u24 v23, 320, v23
v_and_b32 v25, 3, v0
v_lshl_add_u32 v23, v25, 3, v23
v_and_b32 v24, 1, v22
v_mul_u32_u24 v24, 160, v24
v_add3_u32 v{WR}, v23, v24, s7
s_add_u32 s7, s7, 160
v_sub_u32 v23, v23, v24
v_add_u32 v{WR+1}, s7, v23
s_mul_i32 s7, s6, {32*QP}
s_add_u32 s7, s7, s66
s_add_u32 s7, s7, {QSL}
v_mul_u32_u24 v23, {QP}, v21
v_lshl_add_u32 v23, v22, 3, v23
v_add_u32 v{QW}, s7, v23
s_lshr_b32 s67, s{W}, 1
s_lshl_b32 s7, s67, 11
v_add_u32 v{XR}, s7, v{XR}
v_add_u32 v7, s7, v7
s_mul_i32 s7, s67, {(-4096)&0xffffffff}
s_add_u32 s7, s7, 2048
v_add_u32 v32, s7, v{XR}
v_add_u32 v33, s7, v7
s_sub_u32 s7, 64, s66
v_add_u32 v11, s7, v{WR}
v_add_u32 v12, s7, v{WR+1}
s_mul_i32 s66, s67, {16*QP}
v_add_u32 v34, s66, v{QW}
v_add_u32 v35, s7, v34
s_sub_u32 s66, {16*QP}, s66
v_add_u32 v{QW}, s66, v{QW}
s_mov_b32 s{FLG}, 8
s_cmp_lt_u32 s{W}, 2
s_cbranch_scc1 L_nokv""")
a(f"""s_mov_b32 s{FLG}, 0
v_lshrrev_b32 v26, 3, v21
v_and_b32 v27, 7, v21
v_mul_u32_u24 v23, s{RBD}, v26
v_add_u32 v23, s{RBA}, v23
v_and_b32 v24, 1, v23
v_lshlrev_b32 v23, 10, v23
v_lshl_add_u32 v23, v24, 6, v23
v_lshl_add_u32 v23, v27, 7, v23
v_lshrrev_b32 v24, 1, v27
v_xor_b32 v24, v24, v22
v_lshl_add_u32 v23, v24, 4, v23
v_add_u32 v18, {XBL}, v23
v_xor_b32 v19, 64, v18
v_bfe_u32 v23, v0, 2, 2
v_lshl_add_u32 v23, v22, 3, v23
v_mul_u32_u24 v23, 40, v23
s_cmp_eq_u32 s6, 0
s_cselect_b64 vcc, -1, 0
v_cndmask_b32 v25, 4, v25, vcc
v_lshl_add_u32 v20, v25, 3, v23
s_lshr_b32 s66, s{QB}, 1
s_mul_i32 s66, s66, 10240
s_and_b32 s67, s{QB}, 1
v_lshrrev_b32 v24, 1, v22
v_and_b32 v25, 1, v22
s_cmp_ge_u32 s{HG}, 4
s_cbranch_scc1 L_kvV""")
def kvgemm(isK):
    if 'ptk' in XP:
        a(f"""s_mov_b64 exec, s[64:65]
        buffer_load_dword v198, v15, {S(WS_)}, s66 offen sc1
        s_lshl_b32 s7, s{QB}, 3
        s_add_u32 s7, s7, s{HG}
        s_mul_i32 s7, s7, {FS}
        s_add_u32 s7, s7, {WS_F1}
        s_mov_b64 exec, 1
        buffer_load_dword v198, v17, {S(WS_)}, s7 offen sc1
        s_mov_b64 exec, -1
        s_waitcnt vmcnt(2)
        s_barrier""")
    else: a("s_waitcnt vmcnt(0)\ns_barrier")
    stamp('kvland')
    a(f"global_load_dword v16, v17, s[{DBG}:{DBG+1}] sc1")
    NB=5
    def rd(st):
        f=FR+8*(st%NB)
        if st==16: a("v_add_u32 v18, 0x10000, v18\nv_add_u32 v19, 0x10000, v19")
        a(f"""ds_read_b128 v[{f}:{f+3}], v{18+st%2} offset:{(8192*(st//2))&0xffff}
        ds_read_b64_tr_b16 v[{f+4}:{f+5}], v20 offset:{1280*st}
        ds_read_b64_tr_b16 v[{f+6}:{f+7}], v20 offset:{1280*st+160}""")
    for st in range(NB-1): rd(st)
    for st in range(20):
        if st+NB-1<20: rd(st+NB-1)
        f=FR+8*(st%NB); A,B=(f+4,f) if isK else (f,f+4)
        a(f"s_waitcnt lgkmcnt({3*min(NB-1,19-st)})\nv_mfma_f32_16x16x32_bf16 v[28:31], v[{A}:{A+3}], v[{B}:{B+3}], {'0' if st==0 else 'v[28:31]'}")
a(f"""v_lshlrev_b32 v27, 4, v27
v_lshl_add_u32 v23, v26, 11, v27
v_lshl_add_u32 v23, v24, 9, v23
v_lshl_add_u32 v23, v25, 3, v23
v_lshl_add_u32 v27, v26, 3, v27
v_cndmask_b32 v15, v27, v23, vcc
s_lshl_b32 s7, s67, 9
s_add_u32 s7, s7, 4096
s_lshl_b32 s67, s67, 10
s_cmp_eq_u32 s6, 0
s_cselect_b32 s67, s67, s7
s_cselect_b32 s64, -1, 0xffff
s_cselect_b32 s65, -1, 0
s_lshl_b32 s7, s{J}, 7
s_add_u32 s66, s66, s7
s_add_u32 s66, s66, s67""")
kvgemm(True)
a(f"""s_branch L_kvW
L_kvV:
s_cmp_eq_u32 s6, 0
s_cselect_b32 s7, 0x180, 64
s_cselect_b32 s64, -1, 0x000f000f
s_mov_b32 s65, s64
v_mul_u32_u24 v24, s7, v24
v_lshl_add_u32 v24, v21, 4, v24
v_lshl_add_u32 v15, v25, 3, v24
s_and_b32 s7, s{J}, 2
s_add_u32 s67, s67, s7
s_lshl_b32 s67, s67, 1
s_and_b32 s7, s{J}, 1
s_add_u32 s67, s67, s7
s_mul_i32 s67, s67, 640
s_lshl_b32 s7, s6, 8
s_add_u32 s66, s66, s7
s_add_u32 s66, s66, s67
s_add_u32 s66, s66, 5120""")
kvgemm(False)
a(f"""L_kvW:
s_mov_b32 s{KS}, s66
s_mov_b64 s[{KM}:{KM+1}], s[64:65]
s_cmp_lt_u32 s{HG}, 4
s_cselect_b32 s6, {fh(CSCALE)}, 1.0
s_mov_b32 s7, s6
s_nop 2
v_pk_mul_f32 v[28:29], v[28:29], s[6:7]
v_pk_mul_f32 v[30:31], v[30:31], s[6:7]
v_cvt_pk_bf16_f32 v28, v28, v29
v_cvt_pk_bf16_f32 v29, v30, v31
s_mov_b64 exec, s[64:65]
buffer_store_dwordx2 v[28:29], v15, {S(WS_)}, s66 offen sc1
s_mov_b64 exec, -1
s_branch L_kvE
L_nokv:""")
a("s_waitcnt vmcnt(0)\ns_barrier")
stamp('kvland')
a("L_kvE:")
stamp('kvpub')
def qmm(i,k,ct,qt):
    f=FR+40*(i%2)+20*k; d=ACC+8*ct+4*qt
    c='0' if (i==0 and k==0) else f"v[{d}:{d+3}]"
    return f"v_mfma_f32_16x16x32_bf16 v[{d}:{d+3}], v[{f+8+4*ct}:{f+11+4*ct}], v[{f+4*qt}:{f+4*qt+3}], {c}"
def qrx(i,k,qt):
    f=FR+40*(i%2)+20*k; return f"ds_read_b128 v[{f+4*qt}:{f+4*qt+3}], v{[[XR,32],[7,33]][k][qt]} offset:{(8192*i)&0xffff}"
def qrw(i,k,ct,u):
    f=FR+40*(i%2)+20*k+8+4*ct+2*u; return f"ds_read_b64_tr_b16 v[{f}:{f+1}], v{(WR if ct<2 else 11)+u} offset:{(i%5)*10240+5120*k+32*(ct%2)}"
TL5=[(0,0),(0,1),(1,0),(1,1),(2,0)]
def weave(R,M):
    n=max(len(M),1); k=0
    for j in range(n):
        t=(len(R)*(j+1))//n
        em(R[k:t]); k=t
        if M: a(M[j])
pm=pre_m(); fill=pm[:2]+[pm[2][:3]]+att_init()
NQ=int(XP.get('nq',6)); LAG=int(XP.get('lag',9))
quota=[max(2,min(len(fill),round(len(fill)*(i+1)/NQ))) for i in range(9)]; done=0
FORCE=int(XP.get('force',5))
for i in range(10):
    a("s_barrier")
    if i in (0,3,6,9): stamp(f'b{i}')
    if i==FORCE+1: a(f"v_mov_b32 v18, {NONL}\nds_read_b32 v16, v18")
    if i==FORCE+2: a(f"v_readfirstlane_b32 s{NON}, v16")
    R=[x for k in range(2) for x in [qrx(i,k,0),qrx(i,k,1)]+[qrw(i,k,ct,u) for ct in range(3) for u in range(2)]]
    M=[qmm(i-1,k,ct,qt) for k in range(2) for ct,qt in TL5] if 0<i<LAG else []
    if i==9: break
    if 0<i<FORCE and 'nomid' not in XP:
        a(f"s_getreg_b32 s68, hwreg(HW_REG_IB_STS, 0, 4)\ns_or_b32 s68, s68, s{FLG}\ns_cbranch_scc1 L_mf{i}\ns_call_b64 s[{RET}:{RET+1}], L_flag1\nL_mf{i}:")
    weave(R,M)
    if i==7: a("".join(f"v_add_u32 v{r_}, 0x10000, v{r_}\n" for r_ in (XR,7,32,33)))
    if i<9: em(fill[done:quota[i]]); done=quota[i]
    if i<=FORCE:
        if i<FORCE: a(f"s_getreg_b32 s68, hwreg(HW_REG_IB_STS, 0, 4)\ns_or_b32 s68, s68, s{FLG}")
        else: a(f"s_cmp_lg_u32 s{FLG}, 0")
        a(f"s_cbranch_scc1 L_nf{i}\ns_call_b64 s[{RET}:{RET+1}], L_flag1\nL_nf{i}:")
    if i>=LAG:
        a("s_waitcnt lgkmcnt(8)"); em([qmm(i,0,ct,qt) for ct,qt in TL5])
        a("s_waitcnt lgkmcnt(0)"); em([qmm(i,1,ct,qt) for ct,qt in TL5])
    else:
        a("s_waitcnt lgkmcnt(0)")
        if i==LAG-1: em([qmm(i,k,ct,qt) for k in range(2) for ct,qt in TL5])
def qst(ct,qt):
    d=ACC+8*ct+4*qt
    return [f"v_cvt_pk_bf16_f32 v{d}, v{d}, v{d+1}",f"v_cvt_pk_bf16_f32 v{d+1}, v{d+2}, v{d+3}",f"ds_write_b64 v{35 if ct==2 else [34,QW][qt]}, v[{d}:{d+1}] offset:{32*(ct%2)}"]
em(R[:12])
for k in range(2):
    for j,(ct,qt) in enumerate(TL5):
        if qt==0:
            issued=12+(2*min(ct,2) if k==0 else 4)
            a(f"s_waitcnt lgkmcnt({issued-(8*k+4+2*ct)})")
        a(qmm(9,k,ct,qt))
        if k==0 and j<4: a(R[12+j])
a(f"v_mov_b32 v{IDX}, 0xdddddddd\ns_nop 2")
for ct,qt in TL5: em(qst(ct,qt))
stamp('f_qst')

a(f"""s_setprio 2
s_waitcnt lgkmcnt(0)
s_barrier""")
stamp('att')
VRA=TA; FO=TA+1; L8=TA+2; PA=TA+3; FN=TA+4
def koff(g,t): return (g>>1)*10240+(2*(g&1)+t)*1024
def k4off(g): return (g>>1)*10240+4096
def voff(g,u): return (g>>1)*10240+5120+(4*(g&1)+u)*640
on=f"s_mov_b64 exec, s[{VM}:{VM+1}]"; off="s_mov_b64 exec, -1"
def M16(d,k,q,c): return f"v_mfma_f32_32x32x16_bf16 v[{d}:{d+15}], v[{k}:{k+3}], v[{Q16[q]}:{Q16[q]+3}], {c}"
def M4(d,k,q): return f"v_mfma_f32_32x32x4_2b_bf16 v[{d}:{d+31}], v[{k}:{k+1}], v[{Q4[q]}:{Q4[q]+1}], v[{d}:{d+31}]"
def SM(v,x,q): return f"v_smfmac_f32_32x32x32_bf16 v[{O[q]}:{O[q]+15}], v[{v}:{v+3}], v[{x}:{x+7}], v{IDX}"
CMr=[f"v[{c}:{c+15}]" for c in CM]
def qrd(q): return f"""ds_read_b64 v[{Q16[q]}:{Q16[q]+1}], v{QR} offset:{32*QP*q}
ds_read_b64 v[{Q16[q]+2}:{Q16[q]+3}], v{QR} offset:{32*QP*q+8}
ds_read_b64 v[{Q4[q]}:{Q4[q]+1}], v{QR+1} offset:{32*QP*q+32}"""
a(f"""{qrd(0)}
ds_read_b128 v[{KF}:{KF+3}], v{AK} offset:{koff(0,0)}
ds_read_b128 v[{KF+4}:{KF+7}], v{AK} offset:{koff(0,1)}
ds_read_b128 v[{K4}:{K4+3}], v{AK} offset:{k4off(0)}
s_waitcnt lgkmcnt(2)
{M16(SS[0],KF,0,'0')}
s_waitcnt lgkmcnt(1)
{M16(SS[0]+16,KF+4,0,'0')}
{qrd(1)}
{on}""")
for u in range(4): a(f"ds_read_b128 v[{VF[0]+4*u}:{VF[0]+4*u+3}], v{AV} offset:{voff(0,u)}")
a(f"""{off}
s_waitcnt lgkmcnt(4)
{M4(SS[0],K4,0)}
s_mov_b32 s{IT}, 8
s_mov_b32 s{SLOW}, 0
global_load_dwordx4 v[{TA}:{TA+3}], v{L16}, s[{TW_}:{TW_+1}]
global_load_dwordx4 v[{TA+4}:{TA+7}], v{L16}, s[{TW_}:{TW_+1}] offset:1024
global_load_dwordx4 v[{TA-4}:{TA-1}], v{L16}, s[{TW_}:{TW_+1}] offset:2048
s_nop 10
{M16(SS[1],KF,1,'0')}
s_nop 2""")
def rowmax(q,hooks):
    X=SS[q]; o=[f"v_max3_f32 v{T}, v{X}, v{X+1}, v{X+2}",f"v_max3_f32 v{T+1}, v{X+3}, v{X+4}, v{X+5}"]
    for i in range(6,32,4):
        o.append(f"v_max3_f32 v{T}, v{T}, v{X+i}, v{X+i+1}")
        if i+2<32: o.append(f"v_max3_f32 v{T+1}, v{T+1}, v{X+i+2}, v{X+i+3}")
    o+=lines(f"""v_max_f32 v{T}, v{T}, v{T+1}
    v_mov_b32 v{T+1}, v{T}
    s_nop 1
    v_permlane32_swap_b32 v{T}, v{T+1}
    v_max_f32 v{T}, v{T}, v{T+1}
    v_sub_f32 v{CM[q]}, {fh(-OFFS)}, v{T}
    v_sub_f32 v{CM[q]+1}, {fh(-OFFS)}, v{T}""")
    o+=[f"v_mov_b64 v[{CM[q]+2*i}:{CM[q]+2*i+1}], v[{CM[q]}:{CM[q]+1}]" for i in range(1,8)]
    for k,x in enumerate(o):
        if k in hooks: a(hooks[k])
        a(x)
X=SS[0]
pka=[f"v_pk_add_f32 v[{X+2*i}:{X+2*i+1}], v[{X+2*i}:{X+2*i+1}], v[{CM[0]}:{CM[0]+1}]" for i in range(16)]
rowmax(0,{3:M16(SS[1]+16,KF+4,1,'0'),13:M4(SS[1],K4,1)})
em(pka[:14])
rowmax(1,{})
em(pka[14:]); a(M16(SS[1],KF,1,CMr[1]))
ALT='alt' in XP
pos=dict(smp=2,mB=5,s0=10,mC=13,s1=21,s2=26,mA=29) if not ALT else dict(s2=0,smp=3,mB=6,mC=14,s0=22,s1=25,mA=28)
if 'pos' in XP: pos=dict(zip(['smp','mB','s0','mC','s1','s2','mA'],eval(XP['pos'])))
for i in range(pos['smp']): a(f"v_exp_f32 v{X+i}, v{X+i}")
a("s_waitcnt lgkmcnt(0)")
stamp('g_0')
a(f".p2align {XP.get('al2',3)}\nL_loop:")
order=sorted(pos,key=lambda k:pos[k])
body=[]
for u in range(8):
    g,q=u>>1,u&1
    X=SS[q]; Y=SS[q^1]; gn=(u+1)>>1
    m={}
    m['mA']=M16(X,KF,q,CMr[q]); m['mB']=M16(Y+16,KF+4,q^1,CMr[q^1]); m['mC']=M4(Y,K4+2*(gn&1),q^1)
    for i in range(3): m[f's{i}']=SM(VF[g%2]+4*i,X+8*i,q)
    m['smp']=SM(VF[((u-1)>>1)%2]+12,Y+24,q^1)
    if ALT: m['s2']=SM(VF[((u-1)>>1)%2]+8,Y+16,q^1)
    aft={k:[] for k in pos}
    kw,kv,k1,k2=('s2','s0','s1','s2') if not ALT else ('s1','mB','s0','s1')
    if q==0:
        if g==3: aft['smp'].append("s_barrier")
        aft['smp'].append(f"ds_read_b128 v[{KF}:{KF+3}], v{AK} offset:{koff(g+1,0)}")
        if ALT: aft['mB'].append("s_nop 0")
        aft['mB'].append(f"ds_read_b128 v[{KF+4}:{KF+7}], v{AK} offset:{koff(g+1,1)}")
        if g&1: aft['mC'].append(f"ds_read_b128 v[{K4}:{K4+3}], v{AK} offset:{k4off(g+1)}")
        aft[kw].append("s_waitcnt lgkmcnt(0)")
    else:
        b=VF[(g+1)%2]
        aft[kv]+=[on]+[f"ds_read_b128 v[{b+4*i}:{b+4*i+3}], v{AV} offset:{voff(g+1,i)}" for i in range(4)]+[off]
        aft['mA'].append("s_waitcnt lgkmcnt(0)")
        if g==3:
            aft[k1]+=[f"s_sub_u32 s{IT}, s{IT}, 1",f"v_add_u32 v{AK}, 20480, v{AK}",f"v_add_u32 v{AV}, 20480, v{AV}"]
            aft[k2]+=[f"s_cmp_lg_u32 s{IT}, 0"]
    ins={i:[] for i in range(33)}
    for k in order: ins[pos[k]]+=[m[k]]+aft[k]
    for i in range(32): body+=ins[i]+[f"v_exp_f32 v{X+i}, v{X+i}"]
rot=pos['smp']+1+ALT
em(body[rot:]+body[:rot])
a("s_cbranch_scc1 L_loop\nL_check:")
stamp('loopend')
dd=[230,236]
def nrm(q,lo,hi):
    for i in range(lo,hi): a(f"v_pk_mul_f32 v[{CM[q]+2*i}:{CM[q]+1+2*i}], v[{O[q]+2*i}:{O[q]+2*i+1}], v[{T+4*q}:{T+1+4*q}] op_sel_hi:[1,0]")
    for i in range(lo,hi): a(f"v_cvt_pk_bf16_f32 v{dd[q]+i}, v{CM[q]+2*i}, v{CM[q]+1+2*i}")
a(f"v_rcp_f32 v{T}, v{O[0]+12}\ns_waitcnt vmcnt(0)")
nrm(0,0,4)
a(f"buffer_store_dwordx4 v[{dd[0]}:{dd[0]+3}], v{L16}, {S(WS_)}, s{SA} offen sc1\nv_rcp_f32 v{T+4}, v{O[1]+12}")
stamp('e_s0')
nrm(0,4,6); nrm(1,4,6); nrm(1,0,4)
a(f"""buffer_store_dwordx4 v[{dd[1]}:{dd[1]+3}], v{L16}, {S(WS_)}, s{SC} offen sc1
v_permlane32_swap_b32 v{dd[0]+4}, v{dd[1]+4}
v_permlane32_swap_b32 v{dd[0]+5}, v{dd[1]+5}
buffer_store_dwordx2 v[{dd[0]+4}:{dd[0]+5}], v{L8}, {S(WS_)}, s{SB} offen sc1""")
chk=[]
for q in range(2):
    o=O[q]
    chk+=lines(f"""v_max3_f32 v{T+2+q}, |v{o}|, |v{o+1}|, |v{o+2}|
    v_max3_f32 v{T+2+q}, v{T+2+q}, |v{o+3}|, |v{o+4}|
    v_max3_f32 v{T+2+q}, v{T+2+q}, |v{o+5}|, |v{o+6}|
    v_max_f32 v{T+2+q}, v{T+2+q}, |v{o+7}|""")
prs=[O[q]+2*i for q in range(2) for i in range(6)]
chk.append(f"v_pk_add_f32 v[{T+4}:{T+5}], v[{prs[0]}:{prs[0]+1}], v[{prs[1]}:{prs[1]+1}]")
for r_ in prs[2:]: chk.append(f"v_pk_add_f32 v[{T+4}:{T+5}], v[{T+4}:{T+5}], v[{r_}:{r_+1}]")
chk+=lines(f"""v_cmp_gt_f32 vcc, {fh(2.0**110)}, v{O[0]+12}
v_add_f32 v{T+4}, v{T+4}, v{T+5}
v_min_f32 v{T+2}, v{T+2}, v{T+3}
s_mov_b64 s[68:69], vcc
v_cmp_gt_f32 vcc, {fh(2.0**110)}, v{O[1]+12}
v_cmp_gt_f32 s[66:67], s6, |v{T+4}|
v_cmp_lt_f32 s[6:7], s7, v{T+2}
s_and_b64 vcc, vcc, s[68:69]
s_and_b64 vcc, vcc, s[66:67]
s_and_b64 vcc, vcc, s[6:7]""")
TB=84; NF=136; XX=[4,148]; TRs=[20,52]; TIs=[36,68]
stamp('e_st')
a(f"v_add_u32 v3, {TL}, v{L16}")
for qd in [0,2,1,3,13,14]: a(f"ds_read_b128 v[{TB+4*qd}:{TB+4*qd+3}], v3 offset:{1024*qd}")
a(f"s_mov_b32 s6, 0x7f800000\ns_mov_b32 s7, {fh(2.0**-min(OFFS+12,125))}")
stamp('e_rd')
em(chk)
stamp('e_chk')
a(f"""s_cmp_eq_u64 vcc, -1
s_waitcnt lgkmcnt(0)
s_cbranch_scc0 L_slow
L_store:""")
stamp('e_w')
a("s_barrier")
stamp('T-1')
def mm(d,A,B,c): return f"v_mfma_f32_32x32x16_bf16 v[{d}:{d+15}], v[{A}:{A+3}], v[{B}:{B+3}], {c}"
def vrd(r):
    return [f"ds_read_b64_tr_b16 v[{XX[r]+8*p+4*s+2*u}:{XX[r]+8*p+4*s+2*u+1}], v{VRA} offset:{VP*(2*r+p)+640*s+160*u}" for p in range(2) for s in range(2) for u in range(2)]
def sta(r):
    f=XX[r]; TR=TRs[r]; TI=TIs[r]; TRr=f"v[{TR}:{TR+15}]"; TIr=f"v[{TI}:{TI+15}]"
    return [mm(TR,f,TB,'0'),mm(TI,f,TB+8,'0'),mm(TR,f+4,TB+4,TRr),mm(TI,f+4,TB+12,TIr),mm(TR,f+8,NF,TRr),mm(TI,f+8,TB,TIr),mm(TR,f+12,NF+4,TRr),mm(TI,f+12,TB+4,TIr)]
WRr=TB+16; WI=TB+28; GG=TB+40; P=144
def pr(x): return f"v[{x}:{x+1}]"
def twid(r):
    f=XX[r]; TR=TRs[r]; TI=TIs[r]; o=[]
    for i in range(0,12,2):
        if 'pkt' not in XP:
            o+=lines(f"""v_mul_f32 v{P}, v{TI+i}, v{WI+i}
            v_mul_f32 v{P+1}, v{TR+i}, v{WI+i}
            v_mul_f32 v{P+2}, v{TI+i+1}, v{WI+i+1}
            v_mul_f32 v{P+3}, v{TR+i+1}, v{WI+i+1}
            v_fma_f32 v{TR+i}, v{TR+i}, v{WRr+i}, -v{P}
            v_fma_f32 v{TI+i}, v{TI+i}, v{WRr+i}, v{P+1}
            v_fma_f32 v{TR+i+1}, v{TR+i+1}, v{WRr+i+1}, -v{P+2}
            v_fma_f32 v{TI+i+1}, v{TI+i+1}, v{WRr+i+1}, v{P+3}
            v_cvt_pk_bf16_f32 v{f+4*(i//4)+(i%4)//2}, v{TR+i}, v{TR+i+1}
            v_cvt_pk_bf16_f32 v{f+4*(i//4)+2+(i%4)//2}, v{TI+i}, v{TI+i+1}"""); continue
        o+=lines(f"""v_pk_mul_f32 {pr(P)}, {pr(TI+i)}, {pr(WI+i)}
        v_pk_mul_f32 {pr(P+2)}, {pr(TR+i)}, {pr(WI+i)}
        v_pk_fma_f32 {pr(TR+i)}, {pr(TR+i)}, {pr(WRr+i)}, {pr(P)} neg_lo:[0,0,1] neg_hi:[0,0,1]
        v_pk_fma_f32 {pr(TI+i)}, {pr(TI+i)}, {pr(WRr+i)}, {pr(P+2)}
        v_cvt_pk_bf16_f32 v{f+4*(i//4)+(i%4)//2}, v{TR+i}, v{TR+i+1}
        v_cvt_pk_bf16_f32 v{f+4*(i//4)+2+(i%4)//2}, v{TI+i}, v{TI+i+1}""")
    return o
def stb(r):
    f=XX[r]; y=TRs[r]; return [mm(y,f,GG,'0'),mm(y,f+4,GG+4,f"v[{y}:{y+15}]"),mm(y,f+8,GG+8,f"v[{y}:{y+15}]")]
FF=XP.get('ff','sc1'); HST='ast' not in XP and 'al' not in XP; AL='al' in XP; HSP=int(XP.get('hsp',27))
def fout(r):
    y=TRs[r]; d=TIs[r]
    return [f"v_cvt_pk_bf16_f32 v{d+i}, v{y+2*i}, v{y+2*i+1}" for i in range(8)]+[on,f"ds_write_b128 v{FO}, v[{d}:{d+3}] offset:{1280*r}",f"ds_write_b128 v{L8}, v[{d+4}:{d+7}] offset:{1280*r}",off]
def frd(r,d,ad): return [f"ds_read_b128 v[{d}:{d+3}], v{ad} offset:{1280*r}",f"ds_read_b128 v[{d+4}:{d+7}], v{ad} offset:{1280*r+1024}"]
def fsto(r,d):
    return [f"buffer_store_dwordx4 v[{d}:{d+3}], v{L16}, {S(OUT_)}, s{66+r} offen {FF}","s_mov_b64 exec, 0xffff",f"buffer_store_dwordx4 v[{d+4}:{d+7}], v{L16}, {S(OUT_)}, s{66+r} offen offset:1024 {FF}",off]
def frd3(d,ad): return [f"ds_read_b128 v[{d}:{d+3}], v{ad}",f"ds_read_b128 v[{d+4}:{d+7}], v{ad} offset:1280",f"ds_read_b128 v[{d+8}:{d+11}], v{ad+1} offset:1024"]
def fsto3(d,ad): return [[f"buffer_store_dwordx4 v[{d}:{d+3}], v{L16}, {S(OUT_)}, s66 offen {FF}"],[f"buffer_store_dwordx4 v[{d+4}:{d+7}], v{L16}, {S(OUT_)}, s67 offen {FF}"],
    ["s_mov_b32 exec_hi, 0",f"buffer_store_dwordx4 v[{d+8}:{d+11}], v{ad+2}, {S(OUT_)}, s66 offen offset:1024 {FF}","s_mov_b32 exec_hi, -1"]]
def rowsc3(wr,ad): return rowsc(wr,ad)+lines(f"""v_bfe_u32 v{ad+2}, v0, 4, 1
v_bfe_u32 v{ad+1}, v0, 3, 1
v_xor_b32 v{ad+1}, v{ad+1}, v0
v_and_b32 v{ad+1}, 15, v{ad+1}
v_lshl_add_u32 v{ad+1}, v{ad+1}, 4, s7
s_movk_i32 s7, 1280
v_mad_u32_u24 v{ad+1}, v{ad+2}, s7, v{ad+1}
v_mul_u32_u24 v{ad+2}, {128*2560-256}, v{ad+2}
v_add_u32 v{ad+2}, v{ad+2}, v{L16}""")
def rowsc(wr,ad): return lines(f"""s_lshl_b32 s66, s{wr}, 8
s_add_u32 s66, s66, s{T0}
s_mul_i32 s66, s66, 2560
s_add_u32 s67, s66, {128*2560}
v_bfe_u32 v{ad}, v0, 3, 2
v_xor_b32 v{ad}, v{ad}, v0
s_mul_i32 s7, s{wr}, 2560
s_add_u32 s7, s7, {FSG}
v_lshl_add_u32 v{ad}, v{ad}, 4, s7""")
flag3=["s_waitcnt vmcnt(0)","s_barrier","s_mov_b64 exec, 0xffff",
   f"buffer_load_dword v1, v{PA}, {S(WS_)}, s{SA} offen sc1","s_mov_b64 exec, 15",f"buffer_load_dword v1, v{PA}, {S(WS_)}, s{SB} offen sc1",off]
scal=lines(f"""s_lshl_b32 m0, s{W}, 10
s_mul_i32 s68, s{QB}, 81920
s_add_u32 s68, s68, {WS_O}
s_add_u32 s{XB_}, s{WS_}, s68
s_addc_u32 s{XB_+1}, s{WS_+1}, 0
s_mov_b32 s{XB_+2}, 81920
v_xor_b32 v{L8}, 16, v{FO}""")
OAa=TA-4; WXa=164; BA=[84+4*i for i in range(8)]; ACa=116
wxr=[f"ds_read_b128 v[{WXa+4*st}:{WXa+4*st+3}], v{OAa+3} offset:{1024*st}" for st in range(20)]
TF='tf' in XP; WE=int(XP.get('we',6)) if TF else 20
wxl=wxr[WE:]; wxr=[x if k<WE else None for k,x in enumerate(wxr)]
A0=sta(0); A1=sta(1); W0=twid(0); W1=twid(1); B0=stb(0); FP=int(XP.get('fp',10))
R1=vrd(1)+[f"ds_read_b128 v[{TB+4*qd}:{TB+4*qd+3}], v3 offset:{1024*qd}" for qd in range(4,13)]
em(vrd(0)); em(scal); a("s_waitcnt lgkmcnt(6)")
a(A0[0]); a(A0[1]); a("s_waitcnt lgkmcnt(0)")
def fp(j):
    if FP==j: em(flag3); stamp('T0')
for j in range(2,8):
    a(A0[j]); em(R1[:3]); R1=R1[3:]; fp(j)
a("s_waitcnt lgkmcnt(9)")
for j in range(3):
    a(A1[j]); em(wxr[2*j:2*j+2]); fp(8+j)
a("s_waitcnt lgkmcnt(6)")
for j in range(3,8):
    NW0=6 if TF else 5
    em(W0[:NW0]); W0=W0[NW0:]; a(A1[j]); em(wxr[2*j:2*j+2]); fp(8+j)
em(W0)
fp(16)
a("s_nop 1")
for j in range(3):
    a(B0[j]); em(W1[:6]); W1=W1[6:]
em(W1)
em(wxr[16:18]); B1=stb(1); f0=fout(0)
if TF: a("s_nop 1")
a(B1[0]); em(f0[:4]); a(B1[1]); em(f0[4:8]); a(B1[2]); em(f0[8:]); em(wxr[18:])
if not HST: em(rowsc(W,3)); em(frd(0,4,3))
else: a("s_nop 7" if TF else "s_nop 5")
em(fout(1))
if AL: em(frd(1,12,3))
elif not HST:
    em(frd(1,12,3)); a("s_waitcnt lgkmcnt(4)"); em(fsto(0,4)); a("s_waitcnt lgkmcnt(0)"); em(fsto(1,12))
a("s_waitcnt lgkmcnt(0)")
if TF: a("s_barrier"); stamp('o_tf'); em(wxl)
late=[]
FSP=int(XP.get('fsp',99))
stamp('o_fft')
a("s_barrier")
stamp('T1')
oda=[f"buffer_load_dwordx4 v{L16}, {S(XB_)}, m0 offen sc1 lds","s_add_u32 m0, m0, 40960","s_nop 0",f"buffer_load_dwordx4 v{L16}, {S(XB_)}, m0 offen sc1 lds",f"s_sub_u32 m0, m0, {40960-4096}","s_nop 0"]
SYNC=eval(XP.get('sync','{0/1,1/2,2/3,3/4,4/5,5/6,6/7,7/8,8/10}').replace('/',':'))
AHEAD=int(XP.get('ahead',3))
def ard(st):
    b=BA[st%8]
    if st<16: return [f"ds_read_b128 v[{b}:{b+3}], v{OAa} offset:{2048*st}"]
    return [f"ds_read_b64 v[{b+2*u}:{b+2*u+1}], v{OAa+1} offset:{2048*(st-16)+1024*u}" for u in range(2)]
ar=0; am=0
def amm():
    global am
    b=BA[am%8]; n=sum(len(ard(x)) for x in range(am+1,ar))
    a(f"s_waitcnt lgkmcnt({n})\nv_mfma_f32_16x16x32_bf16 v[{ACa}:{ACa+3}], v[{WXa+4*am}:{WXa+4*am+3}], v[{b}:{b+3}], {'0' if am==0 else f'v[{ACa}:{ACa+3}]'}")
    am+=1
def awork(avail,k):
    global ar
    old=ar
    while ar<avail and ar-am<8 and sum(len(ard(x)) for x in range(am,ar+1))<=14: em(ard(ar)); ar+=1
    for _ in range(k):
        if am<old: amm()
issued=0; avail=0; vm=[]
def slot(k):
    global late
    if late:
        c=late[0]; late=late[1:]; em(c); vm.extend([None]*sum(x.startswith('buffer_') for x in c))
    else: awork(avail,k)
PRE=int(XP.get('pre',2))
for hc in sorted(SYNC):
    while issued<min(10,SYNC[hc]+AHEAD):
        if hc>0: slot(3)
        em(oda); vm.extend([issued]*2); issued+=1
        if AL and issued==int(XP['al'] or 10): em(fsto(0,4)+fsto(1,12)); vm.extend([None]*4)
    if hc==0:
        for _ in range(PRE): slot(0)
    elif issued==10:
        while late or am<avail-4: slot(2)
    last=max(i for i,x in enumerate(vm) if x==SYNC[hc]-1)
    a(f"s_waitcnt vmcnt({len(vm)-1-last})\ns_barrier")
    avail=2*SYNC[hc]
    stamp(f'o_b{hc}')
while am<20: awork(20,2)
stamp('gemm')
a(f"""s_nop 7
v_cvt_pk_bf16_f32 v{ACa}, v{ACa}, v{ACa+1}
v_cvt_pk_bf16_f32 v{ACa+1}, v{ACa+2}, v{ACa+3}
ds_write_b64 v{OAa+2}, v[{ACa}:{ACa+1}]""")
OF=XP.get('of','nt')
osc=f"""s_mul_i32 s6, s{QB}, {64*2560}
s_mul_i32 s7, s{HG}, 160
s_add_u32 s6, s6, s7
s_add_u32 s6, s6, 1280"""
if PRIV:
    a(f"""ds_read_b128 v[24:27], v{FN}
    {osc}
    s_mov_b32 exec_hi, 0
    s_waitcnt lgkmcnt(0)
    buffer_store_dwordx4 v[24:27], v{FN+1}, {S(OUT_)}, s6 offen {OF}
    s_mov_b32 exec_hi, -1""")
a("s_branch L_fin")
a(f"""L_flag1:
s_mov_b32 s{CNT}, 0
L_non:
s_waitcnt vmcnt(0)
v_readfirstlane_b32 s{NON}, v16
s_add_u32 s{CNT}, s{CNT}, 1
s_cmp_gt_u32 s{CNT}, {SPIN}
s_cbranch_scc1 L_gotnon
s_cmp_lg_u32 s{NON}, 0
s_cbranch_scc1 L_gotnon
global_load_dword v16, v17, s[{DBG}:{DBG+1}] sc1
s_branch L_non
L_gotnon:
s_lshl_b32 s68, s{QB}, 3
s_add_u32 s68, s68, s{HG}
s_mul_i32 s68, s68, {FS//4}
s_add_u32 s68, s68, s{W}
s_lshl_b32 s68, s68, 2
s_add_u32 s68, s68, {WS_F1-8}
v_mov_b32 v18, {NONL}
s_mov_b64 exec, 1
buffer_store_dword v16, v17, {S(WS_)}, s68 offen sc1
{'' if 'nokp' in XP else f's_mov_b64 exec, s[{KM}:{KM+1}]'}
{'' if 'nokp' in XP else f'buffer_load_dword v198, v15, {S(WS_)}, s{KS} offen sc1'}
s_mov_b64 exec, -1
ds_write_b32 v18, v16
s_mov_b32 s{FLG}, 8""")
stamp('f_flag')
a(f"s_setpc_b64 s[{RET}:{RET+1}]")

a("L_loader:")
ST=[dict(srd=36,v=5,G=16,GS=17,GL=18,L=19,LD=30,LS=31,LW=34),dict(srd=12,v=7,G=26,GS=27,GL=35,L=44,LD=64,LS=66,LW=67)]
for k,st in enumerate(ST):
    a(f"""s_lshl_b32 s47, s{W}, 1
    s_sub_u32 s47, s47, {8-k}
    s_mov_b32 s{st['srd']+3}, 0x20000
    s_cmp_ge_u32 s47, 5
    s_cbranch_scc1 L_sx{k}
    s_lshl_b32 s6, s47, 6
    v_add_u32 v21, s6, v0
    v_mul_u32_u24 v23, 0x667, v21
    v_lshrrev_b32 v23, 14, v23
    s_mov_b32 s{st['srd']+2}, 819200
    v_mul_u32_u24 v24, 10, v23
    s_mov_b32 s{st['GS']}, {64*1280}
    v_sub_u32 v24, v21, v24
    s_lshl_b32 s{st['L']}, s47, 10
    v_lshrrev_b32 v25, 3, v23
    s_add_u32 s{st['L']}, s{st['L']}, {RB}
    v_xor_b32 v26, v25, v23
    s_mov_b32 s{st['LD']}, 5120
    v_and_b32 v26, 1, v26
    s_mov_b32 s{st['LS']}, 10240
    v_lshl_add_u32 v25, v25, 1, v26
    s_mov_b32 s{st['LW']}, 51200
    v_bfe_u32 v26, v23, 1, 2
    s_mul_i32 s6, s{HG}, 160
    v_lshl_add_u32 v25, v25, 2, v26
    v_mul_u32_u24 v25, 0x500, v25
    v_lshl_add_u32 v24, v24, 4, s6
    v_add_u32 v{st['v']}, v24, v25
    v_add_u32 v{st['v']+1}, {32*1280}, v{st['v']}
    s_branch L_se{k}
    L_sx{k}:
    s_add_u32 s6, s47, s{J}
    s_and_b32 s6, s6, 3
    s_lshr_b32 s7, s{HG}, 2
    s_lshl_b32 s6, s6, s7
    s_lshl_b32 s{st['L']}, s6, 10
    s_add_u32 s{st['L']}, s{st['L']}, {XBL}
    s_lshl_b32 s{st['LD']}, s{RBD}, 10
    s_and_b32 s47, s6, 1
    s_lshl_b32 s47, s47, 6
    v_xor_b32 v21, s47, v3
    s_lshl_b32 s7, s7, 6
    v_xor_b32 v22, s7, v21
    s_lshl_b32 s7, s{QB}, 3
    s_add_u32 s6, s6, s7
    s_mul_i32 s7, s6, 10240
    v_add_u32 v{st['v']}, s7, v21
    s_add_u32 s6, s6, s{RBD}
    s_mul_i32 s7, s6, 10240
    v_add_u32 v{st['v']+1}, s7, v22
    s_mov_b32 s{st['srd']+2}, 2621440
    s_mov_b32 s{st['GS']}, 128
    s_mov_b32 s{st['LS']}, 8192
    s_mov_b32 s{st['LW']}, 0
    L_se{k}:
    s_lshl_b32 s6, s{R0}, 1
    s_mul_i32 s{st['G']}, s6, s{st['GS']}
    s_mul_i32 s{st['GL']}, s{st['GS']}, 10""")
a(f"""s_and_b32 s6, s{W}, 3
s_lshl_b32 s6, s6, 6
v_add_u32 v21, s6, v0
v_mul_u32_u24 v48, {FS}, v0
s_and_b32 s6, s2, 7
s_mul_i32 s6, s6, {32*FS}
v_and_b32 v47, {32*FS-1}, v48
v_add_u32 v47, s6, v47
s_add_u32 s6, s6, {32*FS}
v_add_u32 v48, s6, v48
v_and_b32 v48, {256*FS-1}, v48
v_mul_u32_u24 v49, {FS}, v21
v_and_b32 v20, 1, v0
v_mul_u32_u24 v20, {40960-64}, v20
v_lshl_add_u32 v20, v0, 6, v20""")
stamp('f_ka0')
a(f"""s_waitcnt lgkmcnt(0)
s_cmp_ge_u32 s{W}, 7
s_cselect_b32 s36, s48, s50
s_cselect_b32 s37, s49, s51
s_cmp_ge_u32 s{W}, 6
s_cselect_b32 s12, s48, s50
s_cselect_b32 s13, s49, s51""")
a(cpy)
def issue(i):
    for st in ST:
        if i==5: a(f"s_sub_u32 s{st['L']}, s{st['L']}, s{st['LW']}")
        a(f"""s_mov_b32 m0, s{st['L']}
        s_add_u32 s{st['L']}, s{st['L']}, s{st['LS']}
        {dmab(st['v'],st['srd'],'s%d'%st['G'])}
        s_add_u32 m0, m0, s{st['LD']}
        s_add_u32 s6, s{st['G']}, s{st['GS']}
        {dmab(st['v']+1,st['srd'],'s%d'%st['G'])}
        s_cmp_eq_u32 s6, s{st['GL']}
        s_cselect_b32 s{st['G']}, 0, s6""")
KB=int(XP.get('kb',2))
for i in range(KB): issue(i)
stamp('f_kvi')
a("s_barrier")
DD=int(XP.get('dd',3))
for i in range(KB,DD): issue(i)
POLLI=int(XP.get('polli',6)); KG=47; OKF=46
fillL=pre_m()+[p1_scal()]
lpoll=f"buffer_load_dwordx2 v[50:51], v47, {S(WS_)}, s68 offen sc1"
kd=[f"buffer_load_dwordx4 v{L16}, {S(WS_)}, s{KG} offen sc1 lds","s_add_u32 m0, m0, 4096",f"s_add_u32 s{KG}, s{KG}, 4096",f"s_sub_u32 s7, s{KG}, 163840",f"s_min_u32 s{KG}, s{KG}, s7"]
def apoll(k): return f"buffer_load_dwordx2 v[50:51], v{48+k}, {S(WS_)}, s68 offen sc1"
def aspin(tag,k,n):
    a(f"""s_mov_b32 s{CNT}, 0
    s_waitcnt vmcnt({n})
    L_{tag}:
    v_cmp_ne_u64 s[6:7], s[{NON}:{NON+1}], v[50:51]
    s_add_u32 s{CNT}, s{CNT}, 1
    s_cmp_gt_u32 s{CNT}, {SPIN}
    s_cbranch_scc1 L_{tag}ok
    s_cmp_eq_u64 s[6:7], 0
    s_cbranch_scc1 L_{tag}ok
    {apoll(k)}
    s_waitcnt vmcnt(0)
    s_branch L_{tag}
    L_{tag}ok:""")
a(f"""s_mov_b32 s68, {WS_F1}
v_mov_b32 v18, {NONL}
s_and_b32 s6, s{W}, 3
s_lshl_b32 s63, s6, 10
s_and_b32 s6, s2, 7
s_mul_i32 s6, s6, 20480
s_add_u32 s{KG}, s6, s63
s_mov_b32 s{OKF}, 0""")
pmH=pre_m(); MF=int(XP.get('mf',5))
PI=int(XP.get('pi',7)); PRE9='post9' not in XP
for i in range(10):
    n=4*min(DD-1,9-i)+(1 if i>PI else 0)
    if i==9 and PRE9:
        a(f"""s_waitcnt vmcnt(0)
        v_cmp_ne_u64 s[6:7], s[{NON}:{NON+1}], v[50:51]
        s_cmp_eq_u64 s[6:7], 0
        s_cbranch_scc0 L_late""")
        stamp('f_qst'); K9=int(XP.get('k9',2)); em(kd*K9); a("s_barrier"); em(kd*(5-K9))
        a("s_branch L_kvgo\nL_late:"); a(apoll(-1)); a("s_barrier")
    else: a(f"s_waitcnt vmcnt({n})\ns_barrier")
    if i==6: a("ds_read_b32 v16, v18")
    if i+DD<10: issue(i+DD)
    if i==PI: a(apoll(-1))
    if i==7:
        a(f"s_mov_b32 m0, s63\ns_waitcnt lgkmcnt(0)\nv_readfirstlane_b32 s{NON}, v16\nv_readfirstlane_b32 s{NON+1}, v16")
        em(pmH[:MF])
    if i==8: em(p1_scal())
aspin('pk',-1,0)
stamp('f_qst')
em(kd*5)
a("L_kvgo:")
em(pmH[MF:])
stamp('f_flag')
a("s_waitcnt vmcnt(0)")
stamp('f_p1')

def th(q,r):
    base,o=[(TW_,4096),(TW_+2,12288),(RET,20480)][q//8]
    return f"global_load_dwordx4 v[{r}:{r+3}], v{L16}, s[{base}:{base+1}] offset:{1024*q-o}"
H0=24; FA=H0; PA2=H0+3; WOA=H0+4; UA=H0+9; UR=H0+14; WAD=H0+16
W3=4; VW=7; OA=8; SG=10; PA3=11; FNH=12; WXW=14
FT=92; P1A=124; PFR=128; PD=176; WA=92; WX=172
a("s_barrier")
stamp('att')
a(apoll(0))
a("s_setprio 3")
aspin('pa',0,0)
stamp('g_pa')
NI0=10
em(kd*5); a(apoll(1))
for k in range(5): a(th(9+k,H0+4*k))
em(kd*5)
aspin('pb',1,5)
a("s_setprio 0")
stamp('g_i0')
a("s_barrier"); stamp('h_0')
em(kd*5)
a(f"""s_mov_b32 s68, m0
s_lshl_b32 m0, s{HA}, 10
s_nop 0
{dmab(FA,XA_,'s69')}
s_add_u32 m0, m0, 4096
s_cmp_ge_u32 s{HA}, 2
{dmab(FA+1,XA_,'s69')}
s_cbranch_scc1 L_f2
s_add_u32 m0, m0, 4096
s_nop 0
{dmab(FA+2,XA_,'s69')}
L_f2:
s_mov_b32 m0, s68""")
for k in range(9): a(th(k,FT+4*k))
a(f"s_waitcnt vmcnt(0)\ns_barrier")
stamp('h_1')
em(kd*20)
if 'nopfwo' not in XP:
    a(f"""s_lshr_b32 s6, s2, 3
    s_lshl_b32 s6, s6, 2
    s_add_u32 s6, s6, s{HA}
    s_mul_i32 s6, s6, 6400
    v_lshlrev_b32 v1, 7, v0
    s_mov_b32 exec_hi, 0x3ffff
    buffer_load_dword v1, v1, {S(WO_)}, s6 offen
    s_mov_b32 exec_hi, -1""")
for s_ in range(4):
    for Tt in range(3):
        for u in range(2):
            f=PFR+12*s_+4*Tt+2*u
            a(f"ds_read_b64_tr_b16 v[{f}:{f+1}], v{P1A+(Tt==2)} offset:{(32*s_+u)*80+(32 if Tt==1 else 0)}")
a("s_waitcnt lgkmcnt(0)")
for s_ in range(4):
    if s_==int(XP.get('pb',2)): a("s_barrier"); stamp('h_2')
    for nt in range(2):
        for Tt in range(3):
            d=PD+12*nt+4*Tt; f=PFR+12*s_+4*Tt
            a(f"v_mfma_f32_16x16x32_bf16 v[{d}:{d+3}], v[{f}:{f+3}], v[{FT+16*nt+4*s_}:{FT+16*nt+4*s_+3}], {'0' if s_==0 else f'v[{d}:{d+3}]'}")
a("s_nop 2")
for nt in range(2):
    for Tt in range(3):
        d=PD+12*nt+4*Tt
        a(f"v_cvt_pk_bf16_f32 v{d}, v{d}, v{d+1}\nv_cvt_pk_bf16_f32 v{d+1}, v{d+2}, v{d+3}")
        if Tt<2: a(f"ds_write_b64 v{P1A+2}, v[{d}:{d+1}] offset:{1280*nt+32*Tt}")
a("s_mov_b32 exec_hi, 0")
for nt in range(2): a(f"ds_write_b64 v{P1A+2}, v[{PD+12*nt+8}:{PD+12*nt+9}] offset:{1280*nt+64}")
a("s_mov_b32 exec_hi, -1")
for k in range(3): a(f"ds_read_b128 v[{PFR+4*k}:{PFR+4*k+3}], v{P1A+3} offset:{1024*k}")
a("s_waitcnt lgkmcnt(0)")
for k in range(3):
    if k==2: a("s_mov_b32 exec_hi, 0")
    a(f"buffer_store_dwordx4 v[{PFR+4*k}:{PFR+4*k+3}], v{L16}, {S(WS_)}, s{PB} offen offset:{1024*k} sc1")
a("s_mov_b32 exec_hi, -1")
stamp('g_p1')
for k in range(3): a(th(14+k,W3+4*k))
a(f"""s_mul_i32 s6, s2, {FS}
s_add_u32 s6, s6, {WS_F2}
v_mov_b32 v3, s{NON}
s_lshl_b32 m0, s{HA}, 10
s_mul_i32 s68, s{HG}, 160
s_waitcnt vmcnt(6)
s_barrier""")
stamp('h_3')
for n in range(25):
    WN=int(XP.get('wn',13))
    if n==WN:
        stamp('g_wo')
        a(f"""s_cmp_eq_u32 s{W}, 7
        s_waitcnt vmcnt({WN})
        s_barrier
        s_cbranch_scc0 L_nofl2
        s_mov_b64 exec, 1
        buffer_store_dword v3, v{L16}, {S(WS_)}, s6 offen sc1
        s_mov_b64 exec, -1
        L_nofl2:""")
        stamp('h_4')
    a(dmab(WOA+n%5,WO_,'s68')); a("s_add_u32 m0, m0, 4096")
    a(f"s_add_u32 s68, s68, {128*1280}" if n%5==4 else "s_nop 0")
a(f"""s_add_u32 s66, s{TAB}, tab_hid-L_pc
s_addc_u32 s67, s{TAB+1}, 0
s_lshl_b32 s6, s{HA}, 10
v_add_u32 v1, s6, v{L16}
s_mov_b32 s68, {WS_F2}
s_waitcnt vmcnt(0)
s_barrier""")
stamp('h_5')
if 'pto' in XP:
    a(f"""s_lshl_b32 s6, s{HG}, 2
    s_add_u32 s6, s6, s{HA}
    s_mul_i32 s63, s{QB}, 81920
    s_add_u32 s63, s63, {WS_O}
    s_lshl_b32 s7, s6, 8
    s_add_u32 s7, s7, s63
    s_add_u32 s7, s7, 32768
    s_lshl_b32 s6, s6, 10
    s_add_u32 s6, s6, s63
    s_mov_b64 exec, 0xffff
    buffer_load_dword v18, v20, {S(WS_)}, s6 offen sc1
    s_mov_b64 exec, 15
    buffer_load_dword v18, v20, {S(WS_)}, s7 offen sc1
    s_mov_b64 exec, -1""")
if 'nopt' not in XP:
    a(f"""s_lshl_b32 s6, s{HG}, 7
    s_lshl_b32 s7, s{QB}, 10
    s_add_u32 s6, s6, s7
    s_add_u32 s6, s6, {WS_F3}
    s_mov_b64 exec, 1
    buffer_load_dword v18, v{L16}, {S(WS_)}, s6 offen sc1
    s_mov_b64 exec, -1""")

for k in range(5):
    for u in range(2):
        a(f"ds_read_b64_tr_b16 v[{44+4*k+2*u}:{45+4*k+2*u}], v{WAD+u+(2 if k==4 else 0)} offset:{6400*(k%4)}")
for half in range(2):
    for H in range(16*half,16*half+16):
        for u in range(2): a(f"ds_read_b64_tr_b16 v[{WA+4*H+2*u}:{WA+4*H+2*u+1}], v{W3+(H&1)} offset:{6400*((H>>1)%8)+1280*u}")
        if H==2:
            a("s_waitcnt lgkmcnt(6)")
            for k in range(5): a(f"ds_write_b128 v{WXW+(k==4)}, v[{44+4*k}:{47+4*k}] offset:{1024*(k%4)}")
    for b in range(4*half,4*half+4):
        for u in range(2): a(f"ds_read_b64_tr_b16 v[{WA+128+4*b+2*u}:{WA+128+4*b+2*u+1}], v{W3+2} offset:{12800*(b%4)+6400*u}")
    if half==0:
        for i in range(3): a(f"v_add_u32 v{W3+i}, 51200, v{W3+i}")
def spin(tag,addr,soff):
    a(f"""s_mov_b32 s{CNT}, 0
    L_{tag}:
    s_waitcnt vmcnt(0)
    v_cmp_ne_u32 vcc, s{NON}, v3
    s_add_u32 s{CNT}, s{CNT}, 1
    s_cmp_gt_u32 s{CNT}, {SPIN}
    s_cbranch_scc1 L_{tag}ok
    s_cbranch_vccz L_{tag}ok
    buffer_load_dword v3, v{addr}, {S(WS_)}, {soff} offen sc1
    s_branch L_{tag}
    L_{tag}ok:""")
a(f"buffer_load_dword v3, v{PA2}, {S(WS_)}, s68 offen sc1")
spin('pu',PA2,'s68')
a(f"""s_lshl_b32 m0, s{HA}, 10
s_mul_i32 s68, s{UU}, 160
s_add_u32 s68, s68, {WS_U}
s_waitcnt lgkmcnt(0)""")
stamp('g_wr')
a("s_barrier"); stamp('h_6')
for n in range(10):
    a(dmab(UA+n%5,WS_,'s68',0,'sc1')); a("s_add_u32 m0, m0, 4096")
    a(f"s_add_u32 s68, s68, {128*10240}" if n%5==4 else "s_nop 0")
a(f"s_add_u32 m0, m0, {TL-40960}\ns_nop 0")
for k in range(4):
    if k==3: a(f"s_cmp_eq_u32 s{HA}, 3\ns_cbranch_scc1 L_nt3")
    a("global_load_lds_dwordx4 v1, s[66:67]")
    if k<3: a("s_add_u32 m0, m0, 4096\ns_add_u32 s66, s66, 4096\ns_addc_u32 s67, s67, 0")
a("L_nt3:")
a(f"s_lshl_b32 s68, s{QB}, 10\ns_add_u32 s68, s68, {WS_F3}")
a("s_waitcnt vmcnt(0)")
stamp('g_u')
a("s_barrier"); stamp('h_7')
Fh=44
def s1r(b): return [f"ds_read_b64_tr_b16 v[{Fh+4*i+2*u}:{Fh+4*i+2*u+1}], v{UR+(i==2)} offset:{5120*b+32*i+1280*u+(2480 if i>2 else 0)}" for i in range(5) for u in range(2)]
em(s1r(0))
for b in range(2):
    nx=s1r(1) if b==0 else []
    for i in range(5):
        a(f"s_waitcnt lgkmcnt({8 if b==0 else 13-2*i})\nv_mfma_f32_16x16x32_bf16 v[{Fh+20+4*i}:{Fh+23+4*i}], v[{Fh+4*i}:{Fh+4*i+3}], v[{MM}:{MM+3}], 0")
        em(nx[2*i:2*i+2])
    if b==1: a("s_nop 0")
    for i in range(5):
        d=Fh+20+4*i; e=Fh+40+2*(i%4)
        a(f"v_cvt_pk_bf16_f32 v{d}, v{d}, v{d+1}\nv_cvt_pk_bf16_f32 v{d+1}, v{d+2}, v{d+3}\nds_write_b64 v{VW}, v[{d}:{d+1}] offset:{160*b+32*i}")
a("s_waitcnt lgkmcnt(0)")
stamp('loopend')
a("s_barrier")
stamp('T-1')
a(f"""s_setprio 1
v_mov_b32 v16, s{NON}
v_mov_b32 v1, s{NON}
s_lshl_b32 s6, s{HG}, 7
s_add_u32 s6, s6, s68
s_cmp_eq_u32 s{W}, 4
s_barrier""")
stamp('T0')
a(f"""s_cbranch_scc0 L_npo
s_mov_b64 exec, 0xff
buffer_store_dwordx4 v[16:19], v{L16}, {S(WS_)}, s6 offen sc1
s_mov_b64 exec, -1
L_npo:""")
em(rowsc3(HA,4))
a(f"""s_cmp_eq_u32 s{W}, 4
s_cbranch_scc0 L_np2
s_waitcnt vmcnt(0)
buffer_load_dword v3, v{PA3}, {S(WS_)}, s68 offen sc1
L_np2:""")
if TF:
    a("s_barrier"); stamp('o_tf')
    em(frd(0,72,4)+frd(1,80,4)); a("s_waitcnt lgkmcnt(2)"); em(fsto(0,72)); a("s_waitcnt lgkmcnt(0)"); em(fsto(1,80))
    HSP=-1
    a(f"""s_cbranch_scc0 L_pook
    s_waitcnt vmcnt(4)
    v_cmp_ne_u32 vcc, s{NON}, v3
    s_cbranch_vccz L_pook
    buffer_load_dword v3, v{PA3}, {S(WS_)}, s68 offen sc1""")
else: a("s_cbranch_scc0 L_pook")
spin('po',PA3,'s68')
stamp('o_fft')
a("s_barrier")
stamp('T1')
if HST and not TF:
    em(frd3(72,4))
NBH=int(XP.get('nbh',6)); AC=24
def rd(st):
    b=44+4*(st%(NBH+1))
    if st<32: return [f"ds_read_b128 v[{b}:{b+3}], v{OA} offset:{1024*st}"]
    return [f"ds_read_b64 v[{b+2*u}:{b+2*u+1}], v{OA+1} offset:{1024*(st-32)+512*u}" for u in range(2)]
KEEP=int(XP.get('keep',2))
nr=0; nm=0
def hm():
    global nm
    b=44+4*(nm%(NBH+1)); n=sum(len(rd(x)) for x in range(nm+1,nr))
    a(f"s_waitcnt lgkmcnt({n})\nv_mfma_f32_32x32x16_bf16 v[{AC}:{AC+15}], v[{WA+4*nm}:{WA+4*nm+3}], v[{b}:{b+3}], {'0' if nm==0 else f'v[{AC}:{AC+15}]'}")
    if HST and HSP>=0:
        pcs=fsto3(72,4); HS=int(XP.get('hs',3))
        if nm>=HSP and (nm-HSP)%HS==0 and (nm-HSP)//HS<3: em(pcs[(nm-HSP)//HS])
    nm+=1
while nm<40:
    if nr<40 and nr%4==0 and nr//4 in SYNC:
        while nr-nm>KEEP: hm()
        a("s_barrier"); stamp(f'o_b{nr//4}')
        em(rd(nr)); nr+=1
    elif nr<40 and nr-nm<NBH:
        em(rd(nr)); nr+=1
        if nr-nm>=4 and nr<40 and not (nr%4==0 and nr//4 in SYNC) and nr-nm<NBH:
            hm(); em(rd(nr)); nr+=1
    else: hm()
stamp('gemm')
if PRIV:
    a(f"{osc}\ns_add_u32 s7, s6, {16*2560}\ns_nop 6")
    for j in range(4):
        d=AC+4*j
        a(f"v_cvt_pk_bf16_f32 v{d}, v{d}, v{d+1}\nv_cvt_pk_bf16_f32 v{d+1}, v{d+2}, v{d+3}\nds_write_b64 v{SG}, v[{d}:{d+1}] offset:{16*j}")
    a(f"""ds_read_b128 v[44:47], v{FNH}
    ds_read_b128 v[48:51], v{FNH} offset:{16*176}
    s_waitcnt lgkmcnt(1)
    buffer_store_dwordx4 v[44:47], v{FNH+1}, {S(OUT_)}, s6 offen {OF}
    s_waitcnt lgkmcnt(0)
    buffer_store_dwordx4 v[48:51], v{FNH+1}, {S(OUT_)}, s7 offen {OF}
    L_fin:""")
else:
    a(f"v_mov_b64 v[{FN}:{FN+1}], v[{FNH}:{FNH+1}]\ns_nop 10")
    for j in range(4):
        d=AC+4*j
        a(f"v_cvt_pk_bf16_f32 v{d}, v{d}, v{d+1}\nv_cvt_pk_bf16_f32 v{d+1}, v{d+2}, v{d+3}\nds_write_b64 v{SG}, v[{d}:{d+1}] offset:{16*j}")
    OF=XP.get('of','nt')
    a(f"""L_fin:
s_mul_i32 s6, s{QB}, {64*2560}
s_mul_i32 s7, s{HG}, 160
s_add_u32 s6, s6, s7
s_add_u32 s6, s6, 1280
s_cmp_ge_u32 s{W}, 2
s_waitcnt lgkmcnt(0)
s_barrier
ds_read_b128 v[24:27], v{FN}
s_cbranch_scc1 L_one
ds_read_b128 v[28:31], v{FN+2}
s_waitcnt lgkmcnt(0)
buffer_store_dwordx4 v[28:31], v{FN+3}, {S(OUT_)}, s6 offen {OF}
L_one:
s_waitcnt lgkmcnt(0)
buffer_store_dwordx4 v[24:27], v{FN+1}, {S(OUT_)}, s6 offen {OF}""")
if STAMP:
    a("s_waitcnt vmcnt(0)"); stamp('end')
    a(f"""s_lshl_b32 s6, s2, 3
    s_add_u32 s6, s6, s{W}
    s_lshl_b32 s6, s6, 6
    s_add_u32 s6, s6, {WS_ST}
    v_mov_b32 v21, 0
    s_waitcnt lgkmcnt(0)""")
    for i in range(nstamp[0]): a(f"v_mov_b32 v22, s{STB+2*i}\nbuffer_store_dword v22, v21, {S(WS_)}, s6 offen offset:{4*i}")
a("L_end:\ns_endpgm")
X=SS[0]
a(f"""L_slow:
s_cmp_lg_u32 s{SLOW}, 0
s_cbranch_scc1 L_store
v_subrev_u32 v{AV}, 163840, v{AV}
s_mov_b32 s{IT}, 0
L_blk:
s_mov_b32 s{SLOW}, 1
v_mov_b32 v{T}, 0xff800000""")
zero(CM[0],16); zero(O[0],16)
a(f"""L_pass:
s_mov_b32 s{CNT}, 0
L_sl:
s_lshr_b32 s66, s{CNT}, 1
s_mul_i32 s66, s66, 10240
s_and_b32 s6, s{CNT}, 1
s_mul_i32 s7, s6, 2048
s_add_u32 s7, s7, s66
buffer_load_dwordx4 v[{KF}:{KF+3}], v{L16}, {S(WS_)}, s7 offen sc1
buffer_load_dwordx4 v[{KF+4}:{KF+7}], v{L16}, {S(WS_)}, s7 offen offset:1024 sc1
s_lshl_b32 s7, s6, 3
s_add_u32 s7, s7, s66
s_add_u32 s7, s7, 4096
buffer_load_dwordx2 v[{K4}:{K4+1}], v{L16}, {S(WS_)}, s7 offen sc1
s_mul_i32 s7, s6, 2560
s_add_u32 s7, s7, s66
s_add_u32 s7, s7, 5120
{on}""")
for u in range(4): a(f"buffer_load_dwordx4 v[{VF[0]+4*u}:{VF[0]+4*u+3}], v{AV}, {S(WS_)}, s7 offen offset:{640*u} sc1")
a(f"""{off}
s_waitcnt vmcnt(0)
{M16(X,KF,0,CMr[0])}
{M16(X+16,KF+4,0,CMr[0])}
s_nop 9
{M4(X,K4,0)}
s_nop 15
s_nop 3
s_cmp_eq_u32 s{SLOW}, 1
s_cbranch_scc0 L_p2""")
for i in range(0,32,2): a(f"v_max3_f32 v{T}, v{T}, v{X+i}, v{X+i+1}")
a("s_branch L_nx\nL_p2:")
for i in range(32): a(f"v_exp_f32 v{X+i}, v{X+i}")
a("s_nop 1")
for u in range(4): a(SM(VF[0]+4*u,X+8*u,0))
a(f"""L_nx:
s_add_u32 s{CNT}, s{CNT}, 1
s_cmp_lt_u32 s{CNT}, 32
s_cbranch_scc1 L_sl
s_cmp_eq_u32 s{SLOW}, 1
s_cbranch_scc0 L_swap
s_mov_b32 s{SLOW}, 2
v_mov_b32 v{T+1}, v{T}
s_nop 1
v_permlane32_swap_b32 v{T}, v{T+1}
v_max_f32 v{T}, v{T}, v{T+1}""")
for i in range(16): a(f"v_sub_f32 v{CM[0]+i}, 0, v{T}")
a("s_branch L_pass\nL_swap:\ns_nop 7")
for i in range(6): a(f"v_swap_b32 v{Q16[0]+i}, v{Q16[1]+i}")
for i in range(16): a(f"v_swap_b32 v{O[0]+i}, v{O[1]+i}")
a(f"""s_add_u32 s{IT}, s{IT}, 1
s_cmp_lt_u32 s{IT}, 2
s_cbranch_scc1 L_blk
s_branch L_check""")

hdr=open('concat_heads__spectral_fnet__grouped_kv_mqa__prompt.s.ref').read().split('; Override launch')[0]
s=hdr+"; @launch grid=(256,1,1) block=(512,1,1) lds=163840\n"
if STAMP: s+="; stamps: "+" ".join(stnames)+"\n"
s+='.amdgcn_target "amdgcn-amd-amdhsa--gfx950"\n.text\n'+khead(KN)+a.text()
s+=emit_table('tab_a',table_a())+emit_table('tab_h',table_h())+emit_table('tab_hid',table_hid())+'L_tabend:\n'
s+='.section .rodata,"a"\n'+kdesc(KN,256,102)
open(OUTF,'w').write(s)
print('wrote',OUTF,len(s),'stamps',nstamp[0],stnames)
```

```python
import sys, math, struct
import numpy as np, re
sys.path.insert(0,'gen')
from asmlib import *

STAMP = '--stamp' in sys.argv
XP = dict((a[4:].split(':')+[''])[:2] for a in sys.argv if a.startswith('--x='))
OUTF = [a for a in sys.argv[1:] if not a.startswith('--')]
OUTF = OUTF[0] if OUTF else 'concat_heads__spectral_fnet__grouped_kv_mqa__prompt.s'
KN='concat_heads__spectral_fnet__grouped_kv_mqa__prompt_kernel'

WS_KV = 0x000000
WS_F1 = 0x040000
WS_F2 = 0x050000
WS_F3 = 0x060000
WS_O  = 0x100000
WS_U  = 0x400000
WS_ST = 0x900000
WS_SZ = 0x1000000
CSCALE = (20**-0.5)*math.log2(math.e)
OFFS = float(XP.get('offs',102))
SPIN = 200000
def f2u(x): return struct.unpack('<I',struct.pack('<f',x))[0]
def fh(x): return hex(f2u(x))
def bf(x):
    u=np.asarray(x,np.float32).view(np.uint32)
    return ((u+0x7fff+((u>>16)&1))>>16).astype(np.uint32)
def pack(vals):
    b=bf(vals); return b[...,0::2]|(b[...,1::2]<<16)
def sig(n): return 16*((n>>2)&1)+4*(n>>3)+(n&3)
def table_hid():
    out=np.zeros((15,64,4),np.uint32)
    for l in range(64):
        n=l&31; h=l>>5; k1=sig(n)
        for s in range(2):
            d1=np.arange(8)+16*s+8*h
            out[s,l]=pack(np.cos(2*np.pi*d1*k1/32))
            out[2+s,l]=pack(-np.sin(2*np.pi*d1*k1/32))
            out[13+s,l]=out[2+s,l]^0x80008000
        for j in range(3):
            d2=8*j+4*h+np.arange(4); ok=(d2<20)
            out[4+j,l]=(np.cos(2*np.pi*d2*k1/640)*ok).astype(np.float32).view(np.uint32)
            out[7+j,l]=(-np.sin(2*np.pi*d2*k1/640)*ok).astype(np.float32).view(np.uint32)
            k2=n if n<20 else 0
            out[10+j,l]=pack(np.concatenate([np.cos(2*np.pi*d2*k2/20)*ok, np.sin(2*np.pi*d2*k2/20)*ok]))
    return out.reshape(-1)
XBL=25600; RB=107520; NONL=158720
UL=0; OL=0; STG=81920; FSG=81920; WXL=102400; TL=122880; VL=138240; VP=1288
FLF=0; FSF=10240; FS=32; QSL=RB; QP=168
def grp_rows(k0): return ((k0&~7)+((k0>>2)&1))
NQH=17; NQA=3
PRIV='priv' in XP
def fin(w,l):
    if PRIV:
        if w<4: r=16*w+((l&31)>>1); c=128+16*(l&1)
        else: r=32*(w&1)+(l>>2); c=64*((w>>1)&1)+16*(l&3)
        return [STG+r*176+c, r*2560+c, 0, 0]
    c0=64*w+l; c1=min(c0+512,639)
    return [STG+(c0+c0//10)*16, c0*16+(c0//10)*2400, STG+(c1+c1//10)*16, c1*16+(c1//10)*2400]
def table_h():
    t=np.zeros((4,NQH,64,4),np.uint32)
    for w in range(4):
        for l in range(64):
            n=l&15; g=l>>4; r=(l>>2)&3; c=l&3
            j=np.arange(8)
            for nt in range(2):
                kidx=32*w+16*nt+n; u=kidx>>1; q=kidx&1
                for s in range(4):
                    sh=32*s+8*g+2*(j&3)+(j>>2)
                    v=np.cos(np.pi*sh) if kidx==1 else (np.cos(2*np.pi*u*sh/128) if q==0 else -np.sin(2*np.pi*u*sh/128))
                    t[w,4*nt+s,l]=pack(v)
            rb=FLF+(8*g+2*r)*80; sb=FSF+2560*w
            t[w,8,l]=[rb+8*c, rb+64+8*(c&1), sb+80*n+8*g, sb+16*l]
            fa=[]; wo=[]; ua=[]
            for k in range(5):
                cell=64*(w+4*k)+l
                if k<3: cf=min(cell,639); fa.append((cf//5)*20480+(cf%5)*16)
                pos=cell//10; cc=cell%10
                wo.append(((pos&~7)|((pos>>1)&3)|((pos&1)<<2))*1280+cc*16); ua.append(pos*10240+cc*16)
            ur=UL+10240*w+(2*r+(g&1))*160+(g>>1)*80+8*c
            wad=[25600*w+r*320+128+8*c+160*(grp_rows(20*(g>>1)+4*(g&1)+8*uu) if kind==0 else grp_rows(20*(4*uu+g)+16)) for kind in range(2) for uu in range(2)]
            t[w,9:14,l]=np.array(fa+[FS*(64*w+l)]+wo+ua+[ur,ur+(2480 if c>=2 else 0)]+wad).reshape(5,4)
            h=l>>5; qh=w&1; ct=w>>1; cb=r*320+64*ct+32*(g&1)+8*c
            t[w,14,l]=[cb+160*grp_rows(4*h), cb+160*grp_rows(20+4*h), cb+160*grp_rows(20*h+16), VL+n*VP+320*w+8*g]
            t[w,15,l]=[OL+qh*40960+16*l, OL+qh*40960+32768+8*l, STG+(32*qh+(l&31))*176+64*ct+8*h, 128*(l&7)]
            t[w,16,l]=fin(w+4,l)[:2]+[WXL+4096*w+16*l, WXL+16384+1024*w+16*l]
    return t.reshape(-1)
def table_a():
    t=np.zeros((4,NQA,64,4),np.uint32)
    for w in range(4):
        for l in range(64):
            g=l>>4; r=(l>>2)&3; c=l&3; h=l>>5
            t[w,0,l]=[VL+4*w*VP+(8*h+r)*40+(32 if (g&1) else 8*c), FSG+2560*w+16*((4*min(l&31,19)+2*h)^(((l&31)>>1)&3)), 8*(l&31)+40960*h, (l&1)*40960+((l>>1)&7)*128]
            t[w,1,l]=fin(w,l)
            n=l&15
            t[w,2,l]=[OL+(w>>1)*40960+512*g+16*(16*(w&1)+n), OL+(w>>1)*40960+32768+256*g+8*(16*(w&1)+n), STG+(16*w+n)*176+8*g+128, WXL+16*l]
    return t.reshape(-1)
def emit_table(name, arr):
    s=f".p2align 8\n.type {name},@object\n{name}:\n"
    for i in range(0,len(arr),8):
        s+=".long "+",".join(hex(int(x)) for x in arr[i:i+8])+"\n"
    s+=f".size {name}, {4*len(arr)}\n"
    return s

W=3; QB=4; HG=5
XB_=8; TW_=12; KV_=16; WS_=20; XA_=24; WO_=28; OUT_=32
DBG=40; TAB=42; NON=44; R0=45; J=46; RBA=47; RBD=65
SA=49; SB=50; SC=51; SD=54; HA=55; IT=55; KS=38; KM=36; FLG=48; RET=52
PB=56; UU=57; QT=58; T0=59; MIR=60; SLOW=61; CNT=62
VM=64
STB=70
def S(r,n=4): return f"s[{r}:{r+n-1}]"
a=Asm()
nstamp=[0]; stnames=[]
def stamp(name):
    sel=XP.get('st','')
    front=['kvland','kvpub','b0','b3','b6','b9pre','b9']
    if sel!='tail' and name.startswith('o_'): return
    if sel!='loop' and name.startswith('g_'): return
    if sel!='epi' and name.startswith('e_'): return
    if sel!='bars' and name.startswith('h_'): return
    if sel!='front' and name.startswith('f_'): return
    if sel=='front' and name in ['loopend','T0','T1','gemm']: return
    if sel and sel!='front' and name in front: return
    if name.startswith('o_b') and name not in ('o_b0','o_b2','o_b4','o_b6','o_b8'): return
    if name in stnames:
        i=stnames.index(name); a(f"{'s_memtime' if 'cyc' in XP else 's_memrealtime'} s[{STB+2*i}:{STB+1+2*i}]"); return
    if STAMP:
        assert nstamp[0]<16
        a(f"{'s_memtime' if 'cyc' in XP else 's_memrealtime'} s[{STB+2*nstamp[0]}:{STB+1+2*nstamp[0]}]"); nstamp[0]+=1; stnames.append(name)
def zero(base,n):
    for i in range(n): a(f"v_mov_b32 v{base+i}, 0")
def dmab(v,srd,soff,off=0,fl=''):
    return f"buffer_load_dwordx4 v{v}, {S(srd)}, {soff} offen{' offset:%d'%off if off else ''} {fl} lds"
def mod5(d,s,t):
    a(f"s_mul_i32 s{t}, s{s}, 0x3334\ns_lshr_b32 s{t}, s{t}, 16\ns_mul_i32 s{t}, s{t}, 5\ns_sub_u32 s{d}, s{s}, s{t}")


L16=2
Q16=[4,10]; Q4=[8,14]; IDX=16; AK=3; AV=1
CM=[20,36]; O=[52,68]; SS=[84,116]; KF=148; K4=156; VF=[164,180]; QR=196; T=224
XR=8; WR=9; QW=13; FR=84; ACC=200; TA=248
MM=252
def lines(t): return [x.strip() for x in t.split("\n") if x.strip()]
def pre_m():
    o=[lines(f"""s_and_b32 s{UU}, s2, 7
    s_lshl_b32 s{UU}, s{UU}, 3
    s_bfe_u32 s6, s2, 0x30003
    s_add_u32 s{UU}, s{UU}, s6
    s_lshr_b32 s{QT}, s2, 6
    s_lshr_b32 s{MIR}, s{QT}, 1
    s_sub_u32 s6, 128, s{UU}"""),lines(f"""s_cmp_eq_u32 s{UU}, 0
    s_cselect_b32 s6, 64, s6
    s_cselect_b32 s66, 0, 512
    s_mul_i32 s7, s66, 3
    s_cmp_eq_u32 s{MIR}, 0
    s_cselect_b32 s{T0}, s{UU}, s6
    s_cselect_b32 s66, s7, s66"""),lines(f"""s_and_b32 s6, s{QT}, 1
    s_lshl_b32 s6, s6, 10
    s_add_u32 s{T0}, s{T0}, s6
    v_lshrrev_b32 v23, 5, v0
    v_cmp_eq_u32 vcc, s{MIR}, v23
    v_bfe_u32 v21, v0, 1, 3"""),lines(f"""v_lshl_add_u32 v21, v21, 7, s{T0}
    v_and_b32 v22, 1, v0
    v_lshlrev_b32 v22, 9, v22
    v_mad_u32_u24 v22, v23, s66, v22
    v_bfe_u32 v24, v0, 4, 1"""),lines(f"""v_mad_u32_u24 v22, v24, v21, v22
    v_cvt_f32_u32 v21, v21
    v_cvt_f32_u32 v22, v22
    v_mul_f32 v21, {fh(1/1024)}, v21
    v_mul_f32 v22, {fh(1/2048)}, v22
    s_cmp_eq_u32 s{UU}, 0
    s_cselect_b64 vcc, vcc, -1""")]
    for i in range(4):
        o.append(lines(f"""v_cos_f32 v25, v22
        v_add_f32 v22, v22, v21
        v_cos_f32 v26, v22
        v_add_f32 v22, v22, v21
        v_cvt_pk_bf16_f32 v24, v25, v26
        v_cndmask_b32 v{MM+i}, 0, v24, vcc"""))
    return o

def chunks(l,n): return [l[k:k+n] for k in range(0,len(l),n)]
def att_init():
    o=lines(f"""v_and_b32 v21, 27, v0
    v_cmp_eq_u32 vcc, 24, v21
    v_mov_b32 v21, 0x3f803f80
    s_mov_b32 s{VM}, 0xfffff
    s_mov_b32 s{VM+1}, 0xfffff
    v_cndmask_b32 v{VF[0]}, 0, v21, vcc
    v_cndmask_b32 v{VF[0]+1}, 0, v21, vcc""")
    o+=[f"v_mov_b64 v[{VF[0]+2*i}:{VF[0]+2*i+1}], v[{VF[0]}:{VF[0]+1}]" for i in range(1,16)]+[f"v_mov_b64 v[{O[0]+2*i}:{O[0]+2*i+1}], 0" for i in range(16)]
    o=chunks(o,6)
    o.append(lines(f"""s_mov_b32 s{OUT_+2}, 5242880
    s_mov_b32 s{OUT_+3}, 0x20000
    s_mul_i32 s66, s{W}, 40
    s_add_u32 s66, s66, {QSL}
    s_mul_i32 s67, s{W}, {NQA*1024}
    s_add_u32 s67, s67, tab_a-L_pc
    s_add_u32 s{TW_}, s{TAB}, s67
    s_addc_u32 s{TW_+1}, s{TAB+1}, 0"""))
    o.append(lines(f"""v_and_b32 v21, 31, v0
    v_cmp_gt_u32 vcc, 16, v21
    v_lshrrev_b32 v22, 5, v0
    v_mov_b32 v23, 0x180
    v_cndmask_b32 v23, 64, v23, vcc"""))
    o.append(lines(f"""v_mul_u32_u24 v23, v22, v23
    v_lshl_add_u32 v{AV}, v21, 4, v23
    v_mul_u32_u24 v21, {QP}, v21
    v_add_u32 v{QR+1}, s66, v21
    v_lshl_add_u32 v{QR}, v22, 4, v{QR+1}
    v_mov_b32 v{AK}, v{L16}"""))
    o.append(lines(f"""s_mul_i32 s{SA}, s{QB}, 81920
    s_add_u32 s{SA}, s{SA}, {WS_O}
    s_lshl_b32 s7, s{HG}, 2
    s_add_u32 s7, s7, s{W}
    s_lshl_b32 s{SB}, s7, 8
    s_lshl_b32 s7, s7, 10"""))
    o.append(lines(f"""s_add_u32 s{SB}, s{SB}, s{SA}
    s_add_u32 s{SA}, s{SA}, s7
    s_add_u32 s{SB}, s{SB}, 32768
    s_add_u32 s{SC}, s{SA}, 40960
    s_add_u32 s{SD}, s{SB}, 40960"""))
    return o
def p1_scal():
    return lines(f"""s_and_b32 s6, s2, 7
    s_lshl_b32 s6, s6, 1
    s_bfe_u32 s7, s2, 0x10003
    s_add_u32 s6, s6, s7
    s_lshr_b32 s7, s2, 4
    s_lshl_b32 s{PB}, s7, 4
    s_add_u32 s{PB}, s{PB}, s6
    s_mul_i32 s6, s6, 1280
    s_mul_i32 s7, s7, 80
    s_add_u32 s69, s6, s7
    s_and_b32 s{HA}, s{W}, 3
    s_lshl_b32 s{PB}, s{PB}, 2
    s_add_u32 s{PB}, s{PB}, s{HA}
    s_mul_i32 s{PB}, s{PB}, 2560
    s_add_u32 s{PB}, s{PB}, {WS_U}
    s_mov_b32 s{XA_+2}, 2621440
    s_mov_b32 s{XA_+3}, 0x20000
    s_mov_b32 s{WO_+2}, 819200
    s_mov_b32 s{WO_+3}, 0x20000
    s_mov_b32 s{OUT_+2}, 5242880
    s_mov_b32 s{OUT_+3}, 0x20000
    s_mul_i32 s6, s{HA}, {NQH*1024}
    s_add_u32 s6, s6, tab_h-L_pc+4096
    s_add_u32 s{TW_}, s{TAB}, s6
    s_addc_u32 s{TW_+1}, s{TAB+1}, 0
    s_add_u32 s{TW_+2}, s{TW_}, 8192
    s_addc_u32 s{TW_+3}, s{TW_+1}, 0
    s_add_u32 s{RET}, s{TW_}, 16384
    s_addc_u32 s{RET+1}, s{TW_+1}, 0""")
def em(l):
    for x in l:
        if x is None: continue
        if isinstance(x,list): em(x)
        else: a(x)
def wrap(d,s,inc,lim):
    a(f"s_add_u32 s{d}, s{s}, {inc}\ns_sub_u32 s7, s{d}, {lim}\ns_min_u32 s{d}, s{d}, s7")

a('; ---- entry: b=s2, wave=s3, query block qb=s4 (64 rows), head group hg=s5 (4 heads); surplus workgroups exit')
stamp('start')
a(f"""s_cmp_ge_u32 s2, 256
s_cbranch_scc1 L_end
s_load_dwordx8 s[48:55], s[0:1], 40
s_load_dwordx8 s[56:63], s[0:1], 72
s_load_dwordx2 s[24:25], s[0:1], 0
s_memrealtime s[68:69]
s_getpc_b64 s[{TAB}:{TAB+1}]
L_pc:
v_lshrrev_b32 v1, 6, v0
v_and_b32 v0, 63, v0
s_and_b32 s{QB}, s2, 7
v_readfirstlane_b32 s{W}, v1
s_lshl_b32 s{QB}, s{QB}, 2
v_lshlrev_b32 v{L16}, 4, v0
s_bfe_u32 s6, s2, 0x20003
v_lshrrev_b32 v21, 3, v0
s_add_u32 s{QB}, s{QB}, s6
v_lshrrev_b32 v23, 4, v0
s_lshr_b32 s{HG}, s2, 5
v_and_b32 v24, 7, v0
s_and_b32 s7, s2, 0xf8
s_add_u32 s7, s7, s{W}
s_lshl_b32 s7, s7, 7
v_mul_u32_u24 v22, ((L_tabend-L_pc-32768)/3)&0xffff80, v0
v_add_u32 v22, s7, v22
s_add_u32 s{R0}, s6, s{HG}
s_mov_b64 exec, {int(XP.get('pf',15))}
global_load_dword v255, v22, s[{TAB}:{TAB+1}]
s_mov_b64 exec, -1
v_xor_b32 v23, v23, v24
s_mul_i32 s7, s{R0}, 0x3334
v_mul_u32_u24 v21, 0x500, v21
s_lshr_b32 s7, s7, 16
v_lshl_add_u32 v3, v23, 4, v21
s_mul_i32 s7, s7, 5
v_mov_b32 v17, 0
v_mov_b32 v15, 0
s_sub_u32 s{R0}, s{R0}, s7
s_and_b32 s{J}, s{HG}, 3
s_lshl_b32 s7, s{J}, 1
s_cmp_lt_u32 s{HG}, 4
s_cselect_b32 s{RBA}, s{J}, s7
s_cselect_b32 s{RBD}, 4, 1
s_mov_b32 s{XB_+2}, 2621440
s_mov_b32 s{XB_+3}, 0x20000
s_mov_b32 s{WS_+2}, {WS_SZ}
s_mov_b32 s{WS_+3}, 0x20000
s_cmp_ge_u32 s{W}, 4
s_cbranch_scc1 L_loader
s_and_b32 s6, s{W}, 1
s_mul_i32 s6, s6, s{RBD}
s_add_u32 s6, s6, s{RBA}
s_and_b32 s7, s6, 1
s_lshl_b32 s7, s7, 6
v_xor_b32 v4, s7, v3
s_lshl_b32 s7, s{QB}, 3
s_add_u32 s7, s7, s6
s_mul_i32 s7, s7, 10240
v_add_u32 v4, s7, v4
s_lshr_b32 s36, s{W}, 1
s_lshl_b32 s35, s36, 3
s_add_u32 s35, s35, s6
s_lshl_b32 s35, s35, 10
s_add_u32 s35, s35, {XBL}
s_lshl_b32 s36, s36, 7
s_lshl_b32 s6, s{R0}, 8
s_add_u32 s36, s36, s6
s_lshl_b32 m0, s{W}, 10
s_mul_i32 s6, s{R0}, 5120
s_add_u32 s37, m0, s6
s_mov_b32 s{KV_+2}, 25600
s_mov_b32 s{KV_+3}, 0x20000
s_cmp_lt_u32 s{HG}, 4""")
a('; ---- waves 0-3: launch tag (first of workgroups 0-7 wins the zeroed d_debug word), then wk/wv and 16 rows of x into LDS')
stamp('f_ka0')
a(f"""s_waitcnt lgkmcnt(0)
s_cselect_b32 s{KV_}, s52, s54
s_cselect_b32 s{KV_+1}, s53, s55
s_lshr_b32 s6, s2, 3
s_xor_b32 s7, s{W}, 1
s_or_b32 s6, s6, s7
s_cbranch_scc1 L_nonon
s_or_b32 s68, s68, 1
v_mov_b32 v16, s68
s_mov_b64 exec, 1
global_atomic_cmpswap v17, v[16:17], s[60:61] sc1
s_mov_b64 exec, -1
L_nonon:""")
for t in range(6):
    a(dmab(L16,KV_,'s37')); a("s_add_u32 m0, m0, 4096"); wrap(37,37,4096,25600)
    if t==0: a(f"s_mov_b32 s{XB_}, s48\ns_mov_b32 s{XB_+1}, s49")
a(f"""s_cmp_lg_u32 s{W}, 0
s_cbranch_scc1 L_nw0
{dmab(L16,KV_,'s37')}
L_nw0:
s_mov_b32 m0, s35
s_nop 0""")
for t in range(5):
    a(dmab(4,XB_,'s36'))
    if t<4: a("s_add_u32 m0, m0, 16384"); wrap(36,36,256,1280)
stamp('f_kvi')
cpy=f"""s_mov_b32 s{WO_}, s56
s_mov_b32 s{WO_+1}, s57
s_mov_b32 s{OUT_}, s58
s_mov_b32 s{OUT_+1}, s59
s_mov_b32 s{DBG}, s60
s_mov_b32 s{DBG+1}, s61
s_mov_b32 s{WS_}, s62
s_mov_b32 s{WS_+1}, s63"""
a(cpy)
a(f"""v_and_b32 v21, 15, v0
v_lshrrev_b32 v22, 4, v0
s_and_b32 s6, s{W}, 1
s_lshl_b32 s7, s6, 12
s_add_u32 s7, s7, {XBL}
v_lshrrev_b32 v24, 1, v21
v_xor_b32 v23, v22, v24
v_lshl_add_u32 v24, v21, 7, s7
v_lshl_add_u32 v{XR}, v23, 4, v24
v_xor_b32 v7, 64, v{XR}
s_lshr_b32 s66, s{W}, 1
s_mul_i32 s66, s66, 96
s_add_u32 s7, s66, {RB}
v_lshrrev_b32 v23, 2, v0
v_mul_u32_u24 v23, 320, v23
v_and_b32 v25, 3, v0
v_lshl_add_u32 v23, v25, 3, v23
v_and_b32 v24, 1, v22
v_mul_u32_u24 v24, 160, v24
v_add3_u32 v{WR}, v23, v24, s7
s_add_u32 s7, s7, 160
v_sub_u32 v23, v23, v24
v_add_u32 v{WR+1}, s7, v23
s_mul_i32 s7, s6, {32*QP}
s_add_u32 s7, s7, s66
s_add_u32 s7, s7, {QSL}
v_mul_u32_u24 v23, {QP}, v21
v_lshl_add_u32 v23, v22, 3, v23
v_add_u32 v{QW}, s7, v23
s_lshr_b32 s67, s{W}, 1
s_lshl_b32 s7, s67, 11
v_add_u32 v{XR}, s7, v{XR}
v_add_u32 v7, s7, v7
s_mul_i32 s7, s67, {(-4096)&0xffffffff}
s_add_u32 s7, s7, 2048
v_add_u32 v32, s7, v{XR}
v_add_u32 v33, s7, v7
s_sub_u32 s7, 64, s66
v_add_u32 v11, s7, v{WR}
v_add_u32 v12, s7, v{WR+1}
s_mul_i32 s66, s67, {16*QP}
v_add_u32 v34, s66, v{QW}
v_add_u32 v35, s7, v34
s_sub_u32 s66, {16*QP}, s66
v_add_u32 v{QW}, s66, v{QW}
s_mov_b32 s{FLG}, 8
s_cmp_lt_u32 s{W}, 2
s_cbranch_scc1 L_nokv""")
a('; ---- K (hg<4, pre-scaled by log2(e)/sqrt(20)) or V (hg>=4) projection of 16 keys: wave 2 columns 0-15, wave 3 columns 16-19')
a(f"""s_mov_b32 s{FLG}, 0
v_lshrrev_b32 v26, 3, v21
v_and_b32 v27, 7, v21
v_mul_u32_u24 v23, s{RBD}, v26
v_add_u32 v23, s{RBA}, v23
v_and_b32 v24, 1, v23
v_lshlrev_b32 v23, 10, v23
v_lshl_add_u32 v23, v24, 6, v23
v_lshl_add_u32 v23, v27, 7, v23
v_lshrrev_b32 v24, 1, v27
v_xor_b32 v24, v24, v22
v_lshl_add_u32 v23, v24, 4, v23
v_add_u32 v18, {XBL}, v23
v_xor_b32 v19, 64, v18
v_bfe_u32 v23, v0, 2, 2
v_lshl_add_u32 v23, v22, 3, v23
v_mul_u32_u24 v23, 40, v23
s_cmp_eq_u32 s6, 0
s_cselect_b64 vcc, -1, 0
v_cndmask_b32 v25, 4, v25, vcc
v_lshl_add_u32 v20, v25, 3, v23
s_lshr_b32 s66, s{QB}, 1
s_mul_i32 s66, s66, 10240
s_and_b32 s67, s{QB}, 1
v_lshrrev_b32 v24, 1, v22
v_and_b32 v25, 1, v22
s_cmp_ge_u32 s{HG}, 4
s_cbranch_scc1 L_kvV""")
def kvgemm(isK):
    if 'ptk' in XP:
        a(f"""s_mov_b64 exec, s[64:65]
        buffer_load_dword v198, v15, {S(WS_)}, s66 offen sc1
        s_lshl_b32 s7, s{QB}, 3
        s_add_u32 s7, s7, s{HG}
        s_mul_i32 s7, s7, {FS}
        s_add_u32 s7, s7, {WS_F1}
        s_mov_b64 exec, 1
        buffer_load_dword v198, v17, {S(WS_)}, s7 offen sc1
        s_mov_b64 exec, -1
        s_waitcnt vmcnt(2)
        s_barrier""")
    else: a("s_waitcnt vmcnt(0)\ns_barrier")
    stamp('kvland')
    a(f"global_load_dword v16, v17, s[{DBG}:{DBG+1}] sc1")
    NB=5
    def rd(st):
        f=FR+8*(st%NB)
        if st==16: a("v_add_u32 v18, 0x10000, v18\nv_add_u32 v19, 0x10000, v19")
        a(f"""ds_read_b128 v[{f}:{f+3}], v{18+st%2} offset:{(8192*(st//2))&0xffff}
        ds_read_b64_tr_b16 v[{f+4}:{f+5}], v20 offset:{1280*st}
        ds_read_b64_tr_b16 v[{f+6}:{f+7}], v20 offset:{1280*st+160}""")
    for st in range(NB-1): rd(st)
    for st in range(20):
        if st+NB-1<20: rd(st+NB-1)
        f=FR+8*(st%NB); A,B=(f+4,f) if isK else (f,f+4)
        a(f"s_waitcnt lgkmcnt({3*min(NB-1,19-st)})\nv_mfma_f32_16x16x32_bf16 v[28:31], v[{A}:{A+3}], v[{B}:{B+3}], {'0' if st==0 else 'v[28:31]'}")
a(f"""v_lshlrev_b32 v27, 4, v27
v_lshl_add_u32 v23, v26, 11, v27
v_lshl_add_u32 v23, v24, 9, v23
v_lshl_add_u32 v23, v25, 3, v23
v_lshl_add_u32 v27, v26, 3, v27
v_cndmask_b32 v15, v27, v23, vcc
s_lshl_b32 s7, s67, 9
s_add_u32 s7, s7, 4096
s_lshl_b32 s67, s67, 10
s_cmp_eq_u32 s6, 0
s_cselect_b32 s67, s67, s7
s_cselect_b32 s64, -1, 0xffff
s_cselect_b32 s65, -1, 0
s_lshl_b32 s7, s{J}, 7
s_add_u32 s66, s66, s7
s_add_u32 s66, s66, s67""")
kvgemm(True)
a(f"""s_branch L_kvW
L_kvV:
s_cmp_eq_u32 s6, 0
s_cselect_b32 s7, 0x180, 64
s_cselect_b32 s64, -1, 0x000f000f
s_mov_b32 s65, s64
v_mul_u32_u24 v24, s7, v24
v_lshl_add_u32 v24, v21, 4, v24
v_lshl_add_u32 v15, v25, 3, v24
s_and_b32 s7, s{J}, 2
s_add_u32 s67, s67, s7
s_lshl_b32 s67, s67, 1
s_and_b32 s7, s{J}, 1
s_add_u32 s67, s67, s7
s_mul_i32 s67, s67, 640
s_lshl_b32 s7, s6, 8
s_add_u32 s66, s66, s7
s_add_u32 s66, s66, s67
s_add_u32 s66, s66, 5120""")
kvgemm(False)
a(f"""L_kvW:
s_mov_b32 s{KS}, s66
s_mov_b64 s[{KM}:{KM+1}], s[64:65]
s_cmp_lt_u32 s{HG}, 4
s_cselect_b32 s6, {fh(CSCALE)}, 1.0
s_mov_b32 s7, s6
s_nop 2
v_pk_mul_f32 v[28:29], v[28:29], s[6:7]
v_pk_mul_f32 v[30:31], v[30:31], s[6:7]
v_cvt_pk_bf16_f32 v28, v28, v29
v_cvt_pk_bf16_f32 v29, v30, v31
s_mov_b64 exec, s[64:65]
buffer_store_dwordx2 v[28:29], v15, {S(WS_)}, s66 offen sc1
s_mov_b64 exec, -1
s_branch L_kvE
L_nokv:""")
a("s_waitcnt vmcnt(0)\ns_barrier")
stamp('kvland')
a("L_kvE:")
stamp('kvpub')
a('; ---- Q projection 64x80x640, ten 64-deep chunks fed by waves 4-7; waves 2,3 publish their K/V flag once the store has drained')
def qmm(i,k,ct,qt):
    f=FR+40*(i%2)+20*k; d=ACC+8*ct+4*qt
    c='0' if (i==0 and k==0) else f"v[{d}:{d+3}]"
    return f"v_mfma_f32_16x16x32_bf16 v[{d}:{d+3}], v[{f+8+4*ct}:{f+11+4*ct}], v[{f+4*qt}:{f+4*qt+3}], {c}"
def qrx(i,k,qt):
    f=FR+40*(i%2)+20*k; return f"ds_read_b128 v[{f+4*qt}:{f+4*qt+3}], v{[[XR,32],[7,33]][k][qt]} offset:{(8192*i)&0xffff}"
def qrw(i,k,ct,u):
    f=FR+40*(i%2)+20*k+8+4*ct+2*u; return f"ds_read_b64_tr_b16 v[{f}:{f+1}], v{(WR if ct<2 else 11)+u} offset:{(i%5)*10240+5120*k+32*(ct%2)}"
TL5=[(0,0),(0,1),(1,0),(1,1),(2,0)]
def weave(R,M):
    n=max(len(M),1); k=0
    for j in range(n):
        t=(len(R)*(j+1))//n
        em(R[k:t]); k=t
        if M: a(M[j])
pm=pre_m(); fill=pm[:2]+[pm[2][:3]]+att_init()
NQ=int(XP.get('nq',6)); LAG=int(XP.get('lag',9))
quota=[max(2,min(len(fill),round(len(fill)*(i+1)/NQ))) for i in range(9)]; done=0
FORCE=int(XP.get('force',5))
for i in range(10):
    a("s_barrier")
    if i in (0,3,6,9): stamp(f'b{i}')
    if i==FORCE+1: a(f"v_mov_b32 v18, {NONL}\nds_read_b32 v16, v18")
    if i==FORCE+2: a(f"v_readfirstlane_b32 s{NON}, v16")
    R=[x for k in range(2) for x in [qrx(i,k,0),qrx(i,k,1)]+[qrw(i,k,ct,u) for ct in range(3) for u in range(2)]]
    M=[qmm(i-1,k,ct,qt) for k in range(2) for ct,qt in TL5] if 0<i<LAG else []
    if i==9: break
    if 0<i<FORCE and 'nomid' not in XP:
        a(f"s_getreg_b32 s68, hwreg(HW_REG_IB_STS, 0, 4)\ns_or_b32 s68, s68, s{FLG}\ns_cbranch_scc1 L_mf{i}\ns_call_b64 s[{RET}:{RET+1}], L_flag1\nL_mf{i}:")
    weave(R,M)
    if i==7: a("".join(f"v_add_u32 v{r_}, 0x10000, v{r_}\n" for r_ in (XR,7,32,33)))
    if i<9: em(fill[done:quota[i]]); done=quota[i]
    if i<=FORCE:
        if i<FORCE: a(f"s_getreg_b32 s68, hwreg(HW_REG_IB_STS, 0, 4)\ns_or_b32 s68, s68, s{FLG}")
        else: a(f"s_cmp_lg_u32 s{FLG}, 0")
        a(f"s_cbranch_scc1 L_nf{i}\ns_call_b64 s[{RET}:{RET+1}], L_flag1\nL_nf{i}:")
    if i>=LAG:
        a("s_waitcnt lgkmcnt(8)"); em([qmm(i,0,ct,qt) for ct,qt in TL5])
        a("s_waitcnt lgkmcnt(0)"); em([qmm(i,1,ct,qt) for ct,qt in TL5])
    else:
        a("s_waitcnt lgkmcnt(0)")
        if i==LAG-1: em([qmm(i,k,ct,qt) for k in range(2) for ct,qt in TL5])
def qst(ct,qt):
    d=ACC+8*ct+4*qt
    return [f"v_cvt_pk_bf16_f32 v{d}, v{d}, v{d+1}",f"v_cvt_pk_bf16_f32 v{d+1}, v{d+2}, v{d+3}",f"ds_write_b64 v{35 if ct==2 else [34,QW][qt]}, v[{d}:{d+1}] offset:{32*(ct%2)}"]
em(R[:12])
for k in range(2):
    for j,(ct,qt) in enumerate(TL5):
        if qt==0:
            issued=12+(2*min(ct,2) if k==0 else 4)
            a(f"s_waitcnt lgkmcnt({issued-(8*k+4+2*ct)})")
        a(qmm(9,k,ct,qt))
        if k==0 and j<4: a(R[12+j])
a(f"v_mov_b32 v{IDX}, 0xdddddddd\ns_nop 2")
for ct,qt in TL5: em(qst(ct,qt))
stamp('f_qst')

a('; ---- attention: wave w = head w of the group, two 32-query blocks, S^T = K Q^T + (-shift) as MFMA C operand')
a('; shift = max over the first 64 keys + 102 (never above the row max + 102); checked after the loop, true-max fallback in L_slow')
a(f"""s_setprio 2
s_waitcnt lgkmcnt(0)
s_barrier""")
stamp('att')
VRA=TA; FO=TA+1; L8=TA+2; PA=TA+3; FN=TA+4
def koff(g,t): return (g>>1)*10240+(2*(g&1)+t)*1024
def k4off(g): return (g>>1)*10240+4096
def voff(g,u): return (g>>1)*10240+5120+(4*(g&1)+u)*640
on=f"s_mov_b64 exec, s[{VM}:{VM+1}]"; off="s_mov_b64 exec, -1"
def M16(d,k,q,c): return f"v_mfma_f32_32x32x16_bf16 v[{d}:{d+15}], v[{k}:{k+3}], v[{Q16[q]}:{Q16[q]+3}], {c}"
def M4(d,k,q): return f"v_mfma_f32_32x32x4_2b_bf16 v[{d}:{d+31}], v[{k}:{k+1}], v[{Q4[q]}:{Q4[q]+1}], v[{d}:{d+31}]"
def SM(v,x,q): return f"v_smfmac_f32_32x32x32_bf16 v[{O[q]}:{O[q]+15}], v[{v}:{v+3}], v[{x}:{x+7}], v{IDX}"
CMr=[f"v[{c}:{c+15}]" for c in CM]
def qrd(q): return f"""ds_read_b64 v[{Q16[q]}:{Q16[q]+1}], v{QR} offset:{32*QP*q}
ds_read_b64 v[{Q16[q]+2}:{Q16[q]+3}], v{QR} offset:{32*QP*q+8}
ds_read_b64 v[{Q4[q]}:{Q4[q]+1}], v{QR+1} offset:{32*QP*q+32}"""
a(f"""{qrd(0)}
ds_read_b128 v[{KF}:{KF+3}], v{AK} offset:{koff(0,0)}
ds_read_b128 v[{KF+4}:{KF+7}], v{AK} offset:{koff(0,1)}
ds_read_b128 v[{K4}:{K4+3}], v{AK} offset:{k4off(0)}
s_waitcnt lgkmcnt(2)
{M16(SS[0],KF,0,'0')}
s_waitcnt lgkmcnt(1)
{M16(SS[0]+16,KF+4,0,'0')}
{qrd(1)}
{on}""")
for u in range(4): a(f"ds_read_b128 v[{VF[0]+4*u}:{VF[0]+4*u+3}], v{AV} offset:{voff(0,u)}")
a(f"""{off}
s_waitcnt lgkmcnt(4)
{M4(SS[0],K4,0)}
s_mov_b32 s{IT}, 8
s_mov_b32 s{SLOW}, 0
global_load_dwordx4 v[{TA}:{TA+3}], v{L16}, s[{TW_}:{TW_+1}]
global_load_dwordx4 v[{TA+4}:{TA+7}], v{L16}, s[{TW_}:{TW_+1}] offset:1024
global_load_dwordx4 v[{TA-4}:{TA-1}], v{L16}, s[{TW_}:{TW_+1}] offset:2048
s_nop 10
{M16(SS[1],KF,1,'0')}
s_nop 2""")
def rowmax(q,hooks):
    X=SS[q]; o=[f"v_max3_f32 v{T}, v{X}, v{X+1}, v{X+2}",f"v_max3_f32 v{T+1}, v{X+3}, v{X+4}, v{X+5}"]
    for i in range(6,32,4):
        o.append(f"v_max3_f32 v{T}, v{T}, v{X+i}, v{X+i+1}")
        if i+2<32: o.append(f"v_max3_f32 v{T+1}, v{T+1}, v{X+i+2}, v{X+i+3}")
    o+=lines(f"""v_max_f32 v{T}, v{T}, v{T+1}
    v_mov_b32 v{T+1}, v{T}
    s_nop 1
    v_permlane32_swap_b32 v{T}, v{T+1}
    v_max_f32 v{T}, v{T}, v{T+1}
    v_sub_f32 v{CM[q]}, {fh(-OFFS)}, v{T}
    v_sub_f32 v{CM[q]+1}, {fh(-OFFS)}, v{T}""")
    o+=[f"v_mov_b64 v[{CM[q]+2*i}:{CM[q]+2*i+1}], v[{CM[q]}:{CM[q]+1}]" for i in range(1,8)]
    for k,x in enumerate(o):
        if k in hooks: a(hooks[k])
        a(x)
X=SS[0]
pka=[f"v_pk_add_f32 v[{X+2*i}:{X+2*i+1}], v[{X+2*i}:{X+2*i+1}], v[{CM[0]}:{CM[0]+1}]" for i in range(16)]
rowmax(0,{3:M16(SS[1]+16,KF+4,1,'0'),13:M4(SS[1],K4,1)})
em(pka[:14])
rowmax(1,{})
em(pka[14:]); a(M16(SS[1],KF,1,CMr[1]))
ALT='alt' in XP
pos=dict(smp=2,mB=5,s0=10,mC=13,s1=21,s2=26,mA=29) if not ALT else dict(s2=0,smp=3,mB=6,mC=14,s0=22,s1=25,mA=28)
if 'pos' in XP: pos=dict(zip(['smp','mB','s0','mC','s1','s2','mA'],eval(XP['pos'])))
for i in range(pos['smp']): a(f"v_exp_f32 v{X+i}, v{X+i}")
a("s_waitcnt lgkmcnt(0)")
a('; main loop: 4 groups of 64 keys x 2 blocks; exp in place, P.V by sparse MFMA reading the high halves of the fp32 P')
stamp('g_0')
a(f".p2align {XP.get('al2',3)}\nL_loop:")
order=sorted(pos,key=lambda k:pos[k])
body=[]
for u in range(8):
    g,q=u>>1,u&1
    X=SS[q]; Y=SS[q^1]; gn=(u+1)>>1
    m={}
    m['mA']=M16(X,KF,q,CMr[q]); m['mB']=M16(Y+16,KF+4,q^1,CMr[q^1]); m['mC']=M4(Y,K4+2*(gn&1),q^1)
    for i in range(3): m[f's{i}']=SM(VF[g%2]+4*i,X+8*i,q)
    m['smp']=SM(VF[((u-1)>>1)%2]+12,Y+24,q^1)
    if ALT: m['s2']=SM(VF[((u-1)>>1)%2]+8,Y+16,q^1)
    aft={k:[] for k in pos}
    kw,kv,k1,k2=('s2','s0','s1','s2') if not ALT else ('s1','mB','s0','s1')
    if q==0:
        if g==3: aft['smp'].append("s_barrier")
        aft['smp'].append(f"ds_read_b128 v[{KF}:{KF+3}], v{AK} offset:{koff(g+1,0)}")
        if ALT: aft['mB'].append("s_nop 0")
        aft['mB'].append(f"ds_read_b128 v[{KF+4}:{KF+7}], v{AK} offset:{koff(g+1,1)}")
        if g&1: aft['mC'].append(f"ds_read_b128 v[{K4}:{K4+3}], v{AK} offset:{k4off(g+1)}")
        aft[kw].append("s_waitcnt lgkmcnt(0)")
    else:
        b=VF[(g+1)%2]
        aft[kv]+=[on]+[f"ds_read_b128 v[{b+4*i}:{b+4*i+3}], v{AV} offset:{voff(g+1,i)}" for i in range(4)]+[off]
        aft['mA'].append("s_waitcnt lgkmcnt(0)")
        if g==3:
            aft[k1]+=[f"s_sub_u32 s{IT}, s{IT}, 1",f"v_add_u32 v{AK}, 20480, v{AK}",f"v_add_u32 v{AV}, 20480, v{AV}"]
            aft[k2]+=[f"s_cmp_lg_u32 s{IT}, 0"]
    ins={i:[] for i in range(33)}
    for k in order: ins[pos[k]]+=[m[k]]+aft[k]
    for i in range(32): body+=ins[i]+[f"v_exp_f32 v{X+i}, v{X+i}"]
rot=pos['smp']+1+ALT
em(body[rot:]+body[:rot])
a("s_cbranch_scc1 L_loop\nL_check:")
stamp('loopend')
a('; ---- normalise, publish O (write-through), then verify that the shift was safe')
dd=[230,236]
def nrm(q,lo,hi):
    for i in range(lo,hi): a(f"v_pk_mul_f32 v[{CM[q]+2*i}:{CM[q]+1+2*i}], v[{O[q]+2*i}:{O[q]+2*i+1}], v[{T+4*q}:{T+1+4*q}] op_sel_hi:[1,0]")
    for i in range(lo,hi): a(f"v_cvt_pk_bf16_f32 v{dd[q]+i}, v{CM[q]+2*i}, v{CM[q]+1+2*i}")
a(f"v_rcp_f32 v{T}, v{O[0]+12}\ns_waitcnt vmcnt(0)")
nrm(0,0,4)
a(f"buffer_store_dwordx4 v[{dd[0]}:{dd[0]+3}], v{L16}, {S(WS_)}, s{SA} offen sc1\nv_rcp_f32 v{T+4}, v{O[1]+12}")
stamp('e_s0')
nrm(0,4,6); nrm(1,4,6); nrm(1,0,4)
a(f"""buffer_store_dwordx4 v[{dd[1]}:{dd[1]+3}], v{L16}, {S(WS_)}, s{SC} offen sc1
v_permlane32_swap_b32 v{dd[0]+4}, v{dd[1]+4}
v_permlane32_swap_b32 v{dd[0]+5}, v{dd[1]+5}
buffer_store_dwordx2 v[{dd[0]+4}:{dd[0]+5}], v{L8}, {S(WS_)}, s{SB} offen sc1""")
chk=[]
for q in range(2):
    o=O[q]
    chk+=lines(f"""v_max3_f32 v{T+2+q}, |v{o}|, |v{o+1}|, |v{o+2}|
    v_max3_f32 v{T+2+q}, v{T+2+q}, |v{o+3}|, |v{o+4}|
    v_max3_f32 v{T+2+q}, v{T+2+q}, |v{o+5}|, |v{o+6}|
    v_max_f32 v{T+2+q}, v{T+2+q}, |v{o+7}|""")
prs=[O[q]+2*i for q in range(2) for i in range(6)]
chk.append(f"v_pk_add_f32 v[{T+4}:{T+5}], v[{prs[0]}:{prs[0]+1}], v[{prs[1]}:{prs[1]+1}]")
for r_ in prs[2:]: chk.append(f"v_pk_add_f32 v[{T+4}:{T+5}], v[{T+4}:{T+5}], v[{r_}:{r_+1}]")
chk+=lines(f"""v_cmp_gt_f32 vcc, {fh(2.0**110)}, v{O[0]+12}
v_add_f32 v{T+4}, v{T+4}, v{T+5}
v_min_f32 v{T+2}, v{T+2}, v{T+3}
s_mov_b64 s[68:69], vcc
v_cmp_gt_f32 vcc, {fh(2.0**110)}, v{O[1]+12}
v_cmp_gt_f32 s[66:67], s6, |v{T+4}|
v_cmp_lt_f32 s[6:7], s7, v{T+2}
s_and_b64 vcc, vcc, s[68:69]
s_and_b64 vcc, vcc, s[66:67]
s_and_b64 vcc, vcc, s[6:7]""")
TB=84; NF=136; XX=[4,148]; TRs=[20,52]; TIs=[36,68]
stamp('e_st')
a(f"v_add_u32 v3, {TL}, v{L16}")
for qd in [0,2,1,3,13,14]: a(f"ds_read_b128 v[{TB+4*qd}:{TB+4*qd+3}], v3 offset:{1024*qd}")
a(f"s_mov_b32 s6, 0x7f800000\ns_mov_b32 s7, {fh(2.0**-min(OFFS+12,125))}")
stamp('e_rd')
em(chk)
stamp('e_chk')
a(f"""s_cmp_eq_u64 vcc, -1
s_waitcnt lgkmcnt(0)
s_cbranch_scc0 L_slow
L_store:""")
stamp('e_w')
a("s_barrier")
stamp('T-1')
a('; ---- FNet: 640-point DFT (32 x 20, twiddle between) of two output rows per wave while the O hand-off is in flight')
def mm(d,A,B,c): return f"v_mfma_f32_32x32x16_bf16 v[{d}:{d+15}], v[{A}:{A+3}], v[{B}:{B+3}], {c}"
def vrd(r):
    return [f"ds_read_b64_tr_b16 v[{XX[r]+8*p+4*s+2*u}:{XX[r]+8*p+4*s+2*u+1}], v{VRA} offset:{VP*(2*r+p)+640*s+160*u}" for p in range(2) for s in range(2) for u in range(2)]
def sta(r):
    f=XX[r]; TR=TRs[r]; TI=TIs[r]; TRr=f"v[{TR}:{TR+15}]"; TIr=f"v[{TI}:{TI+15}]"
    return [mm(TR,f,TB,'0'),mm(TI,f,TB+8,'0'),mm(TR,f+4,TB+4,TRr),mm(TI,f+4,TB+12,TIr),mm(TR,f+8,NF,TRr),mm(TI,f+8,TB,TIr),mm(TR,f+12,NF+4,TRr),mm(TI,f+12,TB+4,TIr)]
WRr=TB+16; WI=TB+28; GG=TB+40; P=144
def pr(x): return f"v[{x}:{x+1}]"
def twid(r):
    f=XX[r]; TR=TRs[r]; TI=TIs[r]; o=[]
    for i in range(0,12,2):
        if i//2<eval(XP.get('hy','(3,2)'))[r]:
            o+=lines(f"""v_mul_f32 v{P}, v{TI+i}, v{WI+i}
            v_mul_f32 v{P+1}, v{TR+i}, v{WI+i}
            v_mul_f32 v{P+2}, v{TI+i+1}, v{WI+i+1}
            v_mul_f32 v{P+3}, v{TR+i+1}, v{WI+i+1}
            v_fma_f32 v{TR+i}, v{TR+i}, v{WRr+i}, -v{P}
            v_fma_f32 v{TI+i}, v{TI+i}, v{WRr+i}, v{P+1}
            v_fma_f32 v{TR+i+1}, v{TR+i+1}, v{WRr+i+1}, -v{P+2}
            v_fma_f32 v{TI+i+1}, v{TI+i+1}, v{WRr+i+1}, v{P+3}
            v_cvt_pk_bf16_f32 v{f+4*(i//4)+(i%4)//2}, v{TR+i}, v{TR+i+1}
            v_cvt_pk_bf16_f32 v{f+4*(i//4)+2+(i%4)//2}, v{TI+i}, v{TI+i+1}"""); continue
        o+=lines(f"""v_pk_mul_f32 {pr(P)}, {pr(TI+i)}, {pr(WI+i)}
        v_pk_mul_f32 {pr(P+2)}, {pr(TR+i)}, {pr(WI+i)}
        v_pk_fma_f32 {pr(TR+i)}, {pr(TR+i)}, {pr(WRr+i)}, {pr(P)} neg_lo:[0,0,1] neg_hi:[0,0,1]
        v_pk_fma_f32 {pr(TI+i)}, {pr(TI+i)}, {pr(WRr+i)}, {pr(P+2)}
        v_cvt_pk_bf16_f32 v{f+4*(i//4)+(i%4)//2}, v{TR+i}, v{TR+i+1}
        v_cvt_pk_bf16_f32 v{f+4*(i//4)+2+(i%4)//2}, v{TI+i}, v{TI+i+1}""")
    return o
def stb(r):
    f=XX[r]; y=TRs[r]; return [mm(y,f,GG,'0'),mm(y,f+4,GG+4,f"v[{y}:{y+15}]"),mm(y,f+8,GG+8,f"v[{y}:{y+15}]")]
FF=XP.get('ff','sc1'); HST='ast' not in XP and 'al' not in XP; AL='al' in XP; HSP=int(XP.get('hsp',27))
def fout(r):
    y=TRs[r]; d=TIs[r]
    return [f"v_cvt_pk_bf16_f32 v{d+i}, v{y+2*i}, v{y+2*i+1}" for i in range(8)]+[on,f"ds_write_b128 v{FO}, v[{d}:{d+3}] offset:{1280*r}",f"ds_write_b128 v{L8}, v[{d+4}:{d+7}] offset:{1280*r}",off]
def frd(r,d,ad): return [f"ds_read_b128 v[{d}:{d+3}], v{ad} offset:{1280*r}",f"ds_read_b128 v[{d+4}:{d+7}], v{ad} offset:{1280*r+1024}"]
def fsto(r,d):
    return [f"buffer_store_dwordx4 v[{d}:{d+3}], v{L16}, {S(OUT_)}, s{66+r} offen {FF}","s_mov_b64 exec, 0xffff",f"buffer_store_dwordx4 v[{d+4}:{d+7}], v{L16}, {S(OUT_)}, s{66+r} offen offset:1024 {FF}",off]
def frd3(d,ad): return [f"ds_read_b128 v[{d}:{d+3}], v{ad}",f"ds_read_b128 v[{d+4}:{d+7}], v{ad} offset:1280",f"ds_read_b128 v[{d+8}:{d+11}], v{ad+1} offset:1024"]
def fsto3(d,ad): return [[f"buffer_store_dwordx4 v[{d}:{d+3}], v{L16}, {S(OUT_)}, s66 offen {FF}"],[f"buffer_store_dwordx4 v[{d+4}:{d+7}], v{L16}, {S(OUT_)}, s67 offen {FF}"],
    ["s_mov_b32 exec_hi, 0",f"buffer_store_dwordx4 v[{d+8}:{d+11}], v{ad+2}, {S(OUT_)}, s66 offen offset:1024 {FF}","s_mov_b32 exec_hi, -1"]]
def rowsc3(wr,ad): return rowsc(wr,ad)+lines(f"""v_bfe_u32 v{ad+2}, v0, 4, 1
v_bfe_u32 v{ad+1}, v0, 3, 1
v_xor_b32 v{ad+1}, v{ad+1}, v0
v_and_b32 v{ad+1}, 15, v{ad+1}
v_lshl_add_u32 v{ad+1}, v{ad+1}, 4, s7
s_movk_i32 s7, 1280
v_mad_u32_u24 v{ad+1}, v{ad+2}, s7, v{ad+1}
v_mul_u32_u24 v{ad+2}, {128*2560-256}, v{ad+2}
v_add_u32 v{ad+2}, v{ad+2}, v{L16}""")
def rowsc(wr,ad): return lines(f"""s_lshl_b32 s66, s{wr}, 8
s_add_u32 s66, s66, s{T0}
s_mul_i32 s66, s66, 2560
s_add_u32 s67, s66, {128*2560}
v_bfe_u32 v{ad}, v0, 3, 2
v_xor_b32 v{ad}, v{ad}, v0
s_mul_i32 s7, s{wr}, 2560
s_add_u32 s7, s7, {FSG}
v_lshl_add_u32 v{ad}, v{ad}, 4, s7""")
flag3=["s_waitcnt vmcnt(0)","s_barrier","s_mov_b64 exec, 0xffff",
   f"buffer_load_dword v1, v{PA}, {S(WS_)}, s{SA} offen sc1","s_mov_b64 exec, 15",f"buffer_load_dword v1, v{PA}, {S(WS_)}, s{SB} offen sc1",off]
scal=lines(f"""s_lshl_b32 m0, s{W}, 10
s_mul_i32 s68, s{QB}, 81920
s_add_u32 s68, s68, {WS_O}
s_add_u32 s{XB_}, s{WS_}, s68
s_addc_u32 s{XB_+1}, s{WS_+1}, 0
s_mov_b32 s{XB_+2}, 81920
v_xor_b32 v{L8}, 16, v{FO}""")
OAa=TA-4; WXa=164; BA=[84+4*i for i in range(8)]; ACa=116
wxr=[f"ds_read_b128 v[{WXa+4*st}:{WXa+4*st+3}], v{OAa+3} offset:{1024*st}" for st in range(20)]
TF='tf' in XP; WE=int(XP.get('we',6)) if TF else 20
wxl=wxr[WE:]; wxr=[x if k<WE else None for k,x in enumerate(wxr)]
A0=sta(0); A1=sta(1); W0=twid(0); W1=twid(1); B0=stb(0); FP=int(XP.get('fp',10))
R1=vrd(1)+[f"ds_read_b128 v[{TB+4*qd}:{TB+4*qd+3}], v3 offset:{1024*qd}" for qd in range(4,13)]
em(vrd(0)); em(scal); a("s_waitcnt lgkmcnt(6)")
a(A0[0]); a(A0[1]); a("s_waitcnt lgkmcnt(0)")
def fp(j):
    if FP==j: em(flag3); stamp('T0')
for j in range(2,8):
    a(A0[j]); em(R1[:3]); R1=R1[3:]; fp(j)
a("s_waitcnt lgkmcnt(9)")
for j in range(3):
    a(A1[j]); em(wxr[2*j:2*j+2]); fp(8+j)
a("s_waitcnt lgkmcnt(6)")
for j in range(3,8):
    NW0=int(XP.get('nw0',6))
    em(W0[:NW0]); W0=W0[NW0:]; a(A1[j]); em(wxr[2*j:2*j+2]); fp(8+j)
em(W0)
fp(16)
a("s_nop 1")
for j in range(3):
    NW1=int(XP.get('nw1',7)); a(B0[j]); em(W1[:NW1]); W1=W1[NW1:]
em(W1)
em(wxr[16:18]); B1=stb(1); f0=fout(0)
if TF: a("s_nop 1")
a(B1[0]); em(f0[:4]); a(B1[1]); em(f0[4:8]); a(B1[2]); em(f0[8:]); em(wxr[18:])
if not HST: em(rowsc(W,3)); em(frd(0,4,3))
else: a("s_nop 7" if TF else "s_nop 5")
em(fout(1))
if AL: em(frd(1,12,3))
elif not HST:
    em(frd(1,12,3)); a("s_waitcnt lgkmcnt(4)"); em(fsto(0,4)); a("s_waitcnt lgkmcnt(0)"); em(fsto(1,12))
a("s_waitcnt lgkmcnt(0)")
if TF: a("s_barrier"); stamp('o_tf'); em(wxl)
late=[]
FSP=int(XP.get('fsp',99))
stamp('o_fft')
a("s_barrier")
stamp('T1')
a("; ---- fetch the group's O tile and compute output columns 64-79")
oda=[f"buffer_load_dwordx4 v{L16}, {S(XB_)}, m0 offen sc1 lds","s_add_u32 m0, m0, 40960","s_nop 0",f"buffer_load_dwordx4 v{L16}, {S(XB_)}, m0 offen sc1 lds",f"s_sub_u32 m0, m0, {40960-4096}","s_nop 0"]
SYNC=eval(XP.get('sync','{0/1,1/2,2/3,3/4,4/5,5/6,6/7,7/8,8/10}').replace('/',':'))
AHEAD=int(XP.get('ahead',3))
def ard(st):
    b=BA[st%8]
    if st<16: return [f"ds_read_b128 v[{b}:{b+3}], v{OAa} offset:{2048*st}"]
    return [f"ds_read_b64 v[{b+2*u}:{b+2*u+1}], v{OAa+1} offset:{2048*(st-16)+1024*u}" for u in range(2)]
ar=0; am=0
def amm():
    global am
    b=BA[am%8]; n=sum(len(ard(x)) for x in range(am+1,ar))
    a(f"s_waitcnt lgkmcnt({n})\nv_mfma_f32_16x16x32_bf16 v[{ACa}:{ACa+3}], v[{WXa+4*am}:{WXa+4*am+3}], v[{b}:{b+3}], {'0' if am==0 else f'v[{ACa}:{ACa+3}]'}")
    am+=1
def awork(avail,k):
    global ar
    old=ar
    while ar<avail and ar-am<8 and sum(len(ard(x)) for x in range(am,ar+1))<=14: em(ard(ar)); ar+=1
    for _ in range(k):
        if am<old: amm()
issued=0; avail=0; vm=[]
def slot(k):
    global late
    if late:
        c=late[0]; late=late[1:]; em(c); vm.extend([None]*sum(x.startswith('buffer_') for x in c))
    else: awork(avail,k)
PRE=int(XP.get('pre',2))
for hc in sorted(SYNC):
    while issued<min(10,SYNC[hc]+AHEAD):
        if hc>0: slot(3)
        em(oda); vm.extend([issued]*2); issued+=1
        if AL and issued==int(XP['al'] or 10): em(fsto(0,4)+fsto(1,12)); vm.extend([None]*4)
    if hc==0:
        for _ in range(PRE): slot(0)
    elif issued==10:
        while late or am<avail-4: slot(2)
    last=max(i for i,x in enumerate(vm) if x==SYNC[hc]-1)
    a(f"s_waitcnt vmcnt({len(vm)-1-last})\ns_barrier")
    avail=2*SYNC[hc]
    stamp(f'o_b{hc}')
while am<20: awork(20,2)
stamp('gemm')
a(f"""s_nop 7
v_cvt_pk_bf16_f32 v{ACa}, v{ACa}, v{ACa+1}
v_cvt_pk_bf16_f32 v{ACa+1}, v{ACa+2}, v{ACa+3}
ds_write_b64 v{OAa+2}, v[{ACa}:{ACa+1}]""")
OF=XP.get('of','nt')
osc=f"""s_mul_i32 s6, s{QB}, {64*2560}
s_mul_i32 s7, s{HG}, 160
s_add_u32 s6, s6, s7
s_add_u32 s6, s6, 1280"""
if PRIV:
    a(f"""ds_read_b128 v[24:27], v{FN}
    {osc}
    s_mov_b32 exec_hi, 0
    s_waitcnt lgkmcnt(0)
    buffer_store_dwordx4 v[24:27], v{FN+1}, {S(OUT_)}, s6 offen {OF}
    s_mov_b32 exec_hi, -1""")
a("s_branch L_fin")
a('; ---- K/V flag')
a(f"""L_flag1:
s_mov_b32 s{CNT}, 0
L_non:
s_waitcnt vmcnt(0)
v_readfirstlane_b32 s{NON}, v16
s_add_u32 s{CNT}, s{CNT}, 1
s_cmp_gt_u32 s{CNT}, {SPIN}
s_cbranch_scc1 L_gotnon
s_cmp_lg_u32 s{NON}, 0
s_cbranch_scc1 L_gotnon
global_load_dword v16, v17, s[{DBG}:{DBG+1}] sc1
s_branch L_non
L_gotnon:
s_lshl_b32 s68, s{QB}, 3
s_add_u32 s68, s68, s{HG}
s_mul_i32 s68, s68, {FS//4}
s_add_u32 s68, s68, s{W}
s_lshl_b32 s68, s68, 2
s_add_u32 s68, s68, {WS_F1-8}
v_mov_b32 v18, {NONL}
s_mov_b64 exec, 1
buffer_store_dword v16, v17, {S(WS_)}, s68 offen sc1
{'' if 'nokp' in XP else f's_mov_b64 exec, s[{KM}:{KM+1}]'}
{'' if 'nokp' in XP else f'buffer_load_dword v198, v15, {S(WS_)}, s{KS} offen sc1'}
s_mov_b64 exec, -1
ds_write_b32 v18, v16
s_mov_b32 s{FLG}, 8""")
stamp('f_flag')
a(f"s_setpc_b64 s[{RET}:{RET+1}]")

a('; ---- waves 4-7: stream x and Wq chunks into LDS, then fetch the first K/V pairs')
a("L_loader:")
ST=[dict(srd=36,v=5,G=16,GS=17,GL=18,L=19,LD=30,LS=31,LW=34),dict(srd=12,v=7,G=26,GS=27,GL=35,L=44,LD=64,LS=66,LW=67)]
for k,st in enumerate(ST):
    a(f"""s_lshl_b32 s47, s{W}, 1
    s_sub_u32 s47, s47, {8-k}
    s_mov_b32 s{st['srd']+3}, 0x20000
    s_cmp_ge_u32 s47, 5
    s_cbranch_scc1 L_sx{k}
    s_lshl_b32 s6, s47, 6
    v_add_u32 v21, s6, v0
    v_mul_u32_u24 v23, 0x667, v21
    v_lshrrev_b32 v23, 14, v23
    s_mov_b32 s{st['srd']+2}, 819200
    v_mul_u32_u24 v24, 10, v23
    s_mov_b32 s{st['GS']}, {64*1280}
    v_sub_u32 v24, v21, v24
    s_lshl_b32 s{st['L']}, s47, 10
    v_lshrrev_b32 v25, 3, v23
    s_add_u32 s{st['L']}, s{st['L']}, {RB}
    v_xor_b32 v26, v25, v23
    s_mov_b32 s{st['LD']}, 5120
    v_and_b32 v26, 1, v26
    s_mov_b32 s{st['LS']}, 10240
    v_lshl_add_u32 v25, v25, 1, v26
    s_mov_b32 s{st['LW']}, 51200
    v_bfe_u32 v26, v23, 1, 2
    s_mul_i32 s6, s{HG}, 160
    v_lshl_add_u32 v25, v25, 2, v26
    v_mul_u32_u24 v25, 0x500, v25
    v_lshl_add_u32 v24, v24, 4, s6
    v_add_u32 v{st['v']}, v24, v25
    v_add_u32 v{st['v']+1}, {32*1280}, v{st['v']}
    s_branch L_se{k}
    L_sx{k}:
    s_add_u32 s6, s47, s{J}
    s_and_b32 s6, s6, 3
    s_lshr_b32 s7, s{HG}, 2
    s_lshl_b32 s6, s6, s7
    s_lshl_b32 s{st['L']}, s6, 10
    s_add_u32 s{st['L']}, s{st['L']}, {XBL}
    s_lshl_b32 s{st['LD']}, s{RBD}, 10
    s_and_b32 s47, s6, 1
    s_lshl_b32 s47, s47, 6
    v_xor_b32 v21, s47, v3
    s_lshl_b32 s7, s7, 6
    v_xor_b32 v22, s7, v21
    s_lshl_b32 s7, s{QB}, 3
    s_add_u32 s6, s6, s7
    s_mul_i32 s7, s6, 10240
    v_add_u32 v{st['v']}, s7, v21
    s_add_u32 s6, s6, s{RBD}
    s_mul_i32 s7, s6, 10240
    v_add_u32 v{st['v']+1}, s7, v22
    s_mov_b32 s{st['srd']+2}, 2621440
    s_mov_b32 s{st['GS']}, 128
    s_mov_b32 s{st['LS']}, 8192
    s_mov_b32 s{st['LW']}, 0
    L_se{k}:
    s_lshl_b32 s6, s{R0}, 1
    s_mul_i32 s{st['G']}, s6, s{st['GS']}
    s_mul_i32 s{st['GL']}, s{st['GS']}, 10""")
a(f"""s_and_b32 s6, s{W}, 3
s_lshl_b32 s6, s6, 6
v_add_u32 v21, s6, v0
v_mul_u32_u24 v48, {FS}, v0
s_and_b32 s6, s2, 7
s_mul_i32 s6, s6, {32*FS}
v_and_b32 v47, {32*FS-1}, v48
v_add_u32 v47, s6, v47
s_add_u32 s6, s6, {32*FS}
v_add_u32 v48, s6, v48
v_and_b32 v48, {256*FS-1}, v48
v_mul_u32_u24 v49, {FS}, v21
v_and_b32 v20, 1, v0
v_mul_u32_u24 v20, {40960-64}, v20
v_lshl_add_u32 v20, v0, 6, v20""")
stamp('f_ka0')
a(f"""s_waitcnt lgkmcnt(0)
s_cmp_ge_u32 s{W}, 7
s_cselect_b32 s36, s48, s50
s_cselect_b32 s37, s49, s51
s_cmp_ge_u32 s{W}, 6
s_cselect_b32 s12, s48, s50
s_cselect_b32 s13, s49, s51""")
a(cpy)
def issue(i):
    for st in ST:
        if i==5: a(f"s_sub_u32 s{st['L']}, s{st['L']}, s{st['LW']}")
        a(f"""s_mov_b32 m0, s{st['L']}
        s_add_u32 s{st['L']}, s{st['L']}, s{st['LS']}
        {dmab(st['v'],st['srd'],'s%d'%st['G'])}
        s_add_u32 m0, m0, s{st['LD']}
        s_add_u32 s6, s{st['G']}, s{st['GS']}
        {dmab(st['v']+1,st['srd'],'s%d'%st['G'])}
        s_cmp_eq_u32 s6, s{st['GL']}
        s_cselect_b32 s{st['G']}, 0, s6""")
KB=int(XP.get('kb',2))
for i in range(KB): issue(i)
stamp('f_kvi')
a("s_barrier")
DD=int(XP.get('dd',3))
for i in range(KB,DD): issue(i)
POLLI=int(XP.get('polli',6)); KG=47; OKF=46
fillL=pre_m()+[p1_scal()]
lpoll=f"buffer_load_dwordx2 v[50:51], v47, {S(WS_)}, s68 offen sc1"
kd=[f"buffer_load_dwordx4 v{L16}, {S(WS_)}, s{KG} offen sc1 lds","s_add_u32 m0, m0, 4096",f"s_add_u32 s{KG}, s{KG}, 4096",f"s_sub_u32 s7, s{KG}, 163840",f"s_min_u32 s{KG}, s{KG}, s7"]
def apoll(k): return f"buffer_load_dwordx2 v[50:51], v{48+k}, {S(WS_)}, s68 offen sc1"
def aspin(tag,k,n):
    a(f"""s_mov_b32 s{CNT}, 0
    s_waitcnt vmcnt({n})
    L_{tag}:
    v_cmp_ne_u64 s[6:7], s[{NON}:{NON+1}], v[50:51]
    s_add_u32 s{CNT}, s{CNT}, 1
    s_cmp_gt_u32 s{CNT}, {SPIN}
    s_cbranch_scc1 L_{tag}ok
    s_cmp_eq_u64 s[6:7], 0
    s_cbranch_scc1 L_{tag}ok
    {apoll(k)}
    s_waitcnt vmcnt(0)
    s_branch L_{tag}
    L_{tag}ok:""")
a(f"""s_mov_b32 s68, {WS_F1}
v_mov_b32 v18, {NONL}
s_and_b32 s6, s{W}, 3
s_lshl_b32 s63, s6, 10
s_and_b32 s6, s2, 7
s_mul_i32 s6, s6, 20480
s_add_u32 s{KG}, s6, s63
s_mov_b32 s{OKF}, 0""")
pmH=pre_m(); MF=int(XP.get('mf',5))
PI=int(XP.get('pi',7)); PRE9='post9' not in XP
for i in range(10):
    n=4*min(DD-1,9-i)+(1 if i>PI else 0)
    if i==9 and PRE9:
        a(f"""s_waitcnt vmcnt(0)
        v_cmp_ne_u64 s[6:7], s[{NON}:{NON+1}], v[50:51]
        s_cmp_eq_u64 s[6:7], 0
        s_cbranch_scc0 L_late""")
        stamp('f_qst'); K9=int(XP.get('k9',2)); em(kd*K9); a("s_barrier"); em(kd*(5-K9))
        a("s_branch L_kvgo\nL_late:"); a(apoll(-1)); a("s_barrier")
    else: a(f"s_waitcnt vmcnt({n})\ns_barrier")
    if i==6: a("ds_read_b32 v16, v18")
    if i+DD<10: issue(i+DD)
    if i==PI: a(apoll(-1))
    if i==7:
        a(f"s_mov_b32 m0, s63\ns_waitcnt lgkmcnt(0)\nv_readfirstlane_b32 s{NON}, v16\nv_readfirstlane_b32 s{NON+1}, v16")
        em(pmH[:MF])
    if i==8: em(p1_scal())
aspin('pk',-1,0)
stamp('f_qst')
em(kd*5)
a("L_kvgo:")
em(pmH[MF:])
stamp('f_flag')
a("s_waitcnt vmcnt(0)")
stamp('f_p1')

a('; ---- waves 4-7 during attention (one barrier per 4 groups): rest of K/V, FNet 128-point sequence DFT (-> U),')
def th(q,r):
    base,o=[(TW_,4096),(TW_+2,12288),(RET,20480)][q//8]
    return f"global_load_dwordx4 v[{r}:{r+3}], v{L16}, s[{base}:{base+1}] offset:{1024*q-o}"
H0=24; FA=H0; PA2=H0+3; WOA=H0+4; UA=H0+9; UR=H0+14; WAD=H0+16
W3=4; VW=7; OA=8; SG=10; PA3=11; FNH=12; WXW=14
FT=92; P1A=124; PFR=128; PD=176; WA=92; WX=172
a("s_barrier")
stamp('att')
a(apoll(0))
a("s_setprio 3")
aspin('pa',0,0)
stamp('g_pa')
NI0=10
em(kd*5); a(apoll(1))
for k in range(5): a(th(9+k,H0+4*k))
em(kd*5)
aspin('pb',1,5)
a("s_setprio 0")
stamp('g_i0')
a("s_barrier"); stamp('h_0')
em(kd*5)
a(f"""s_mov_b32 s68, m0
s_lshl_b32 m0, s{HA}, 10
s_nop 0
{dmab(FA,XA_,'s69')}
s_add_u32 m0, m0, 4096
s_cmp_ge_u32 s{HA}, 2
{dmab(FA+1,XA_,'s69')}
s_cbranch_scc1 L_f2
s_add_u32 m0, m0, 4096
s_nop 0
{dmab(FA+2,XA_,'s69')}
L_f2:
s_mov_b32 m0, s68""")
for k in range(9): a(th(k,FT+4*k))
a(f"s_waitcnt vmcnt(0)\ns_barrier")
stamp('h_1')
em(kd*20)
if 'nopfwo' not in XP:
    a(f"""s_lshr_b32 s6, s2, 3
    s_lshl_b32 s6, s6, 2
    s_add_u32 s6, s6, s{HA}
    s_mul_i32 s6, s6, 6400
    v_lshlrev_b32 v1, 7, v0
    s_mov_b32 exec_hi, 0x3ffff
    buffer_load_dword v1, v1, {S(WO_)}, s6 offen
    s_mov_b32 exec_hi, -1""")
for s_ in range(4):
    for Tt in range(3):
        for u in range(2):
            f=PFR+12*s_+4*Tt+2*u
            a(f"ds_read_b64_tr_b16 v[{f}:{f+1}], v{P1A+(Tt==2)} offset:{(32*s_+u)*80+(32 if Tt==1 else 0)}")
a("s_waitcnt lgkmcnt(0)")
for s_ in range(4):
    if s_==int(XP.get('pb',2)): a("s_barrier"); stamp('h_2')
    for nt in range(2):
        for Tt in range(3):
            d=PD+12*nt+4*Tt; f=PFR+12*s_+4*Tt
            a(f"v_mfma_f32_16x16x32_bf16 v[{d}:{d+3}], v[{f}:{f+3}], v[{FT+16*nt+4*s_}:{FT+16*nt+4*s_+3}], {'0' if s_==0 else f'v[{d}:{d+3}]'}")
a("s_nop 2")
for nt in range(2):
    for Tt in range(3):
        d=PD+12*nt+4*Tt
        a(f"v_cvt_pk_bf16_f32 v{d}, v{d}, v{d+1}\nv_cvt_pk_bf16_f32 v{d+1}, v{d+2}, v{d+3}")
        if Tt<2: a(f"ds_write_b64 v{P1A+2}, v[{d}:{d+1}] offset:{1280*nt+32*Tt}")
a("s_mov_b32 exec_hi, 0")
for nt in range(2): a(f"ds_write_b64 v{P1A+2}, v[{PD+12*nt+8}:{PD+12*nt+9}] offset:{1280*nt+64}")
a("s_mov_b32 exec_hi, -1")
for k in range(3): a(f"ds_read_b128 v[{PFR+4*k}:{PFR+4*k+3}], v{P1A+3} offset:{1024*k}")
a("s_waitcnt lgkmcnt(0)")
for k in range(3):
    if k==2: a("s_mov_b32 exec_hi, 0")
    a(f"buffer_store_dwordx4 v[{PFR+4*k}:{PFR+4*k+3}], v{L16}, {S(WS_)}, s{PB} offen offset:{1024*k} sc1")
a("s_mov_b32 exec_hi, -1")
stamp('g_p1')
for k in range(3): a(th(14+k,W3+4*k))
a(f"""s_mul_i32 s6, s2, {FS}
s_add_u32 s6, s6, {WS_F2}
v_mov_b32 v3, s{NON}
s_lshl_b32 m0, s{HA}, 10
s_mul_i32 s68, s{HG}, 160
s_waitcnt vmcnt(6)
s_barrier""")
stamp('h_3')
for n in range(25):
    WN=int(XP.get('wn',13))
    if n==WN:
        stamp('g_wo')
        a(f"""s_cmp_eq_u32 s{W}, 7
        s_waitcnt vmcnt({WN})
        s_barrier
        s_cbranch_scc0 L_nofl2
        s_mov_b64 exec, 1
        buffer_store_dword v3, v{L16}, {S(WS_)}, s6 offen sc1
        s_mov_b64 exec, -1
        L_nofl2:""")
        stamp('h_4')
    a(dmab(WOA+n%5,WO_,'s68')); a("s_add_u32 m0, m0, 4096")
    a(f"s_add_u32 s68, s68, {128*1280}" if n%5==4 else "s_nop 0")
a(f"""s_add_u32 s66, s{TAB}, tab_hid-L_pc
s_addc_u32 s67, s{TAB+1}, 0
s_lshl_b32 s6, s{HA}, 10
v_add_u32 v1, s6, v{L16}
s_mov_b32 s68, {WS_F2}
s_waitcnt vmcnt(0)
s_barrier""")
stamp('h_5')
if 'pto' in XP:
    a(f"""s_lshl_b32 s6, s{HG}, 2
    s_add_u32 s6, s6, s{HA}
    s_mul_i32 s63, s{QB}, 81920
    s_add_u32 s63, s63, {WS_O}
    s_lshl_b32 s7, s6, 8
    s_add_u32 s7, s7, s63
    s_add_u32 s7, s7, 32768
    s_lshl_b32 s6, s6, 10
    s_add_u32 s6, s6, s63
    s_mov_b64 exec, 0xffff
    buffer_load_dword v18, v20, {S(WS_)}, s6 offen sc1
    s_mov_b64 exec, 15
    buffer_load_dword v18, v20, {S(WS_)}, s7 offen sc1
    s_mov_b64 exec, -1""")
if 'nopt' not in XP:
    a(f"""s_lshl_b32 s6, s{HG}, 7
    s_lshl_b32 s7, s{QB}, 10
    s_add_u32 s6, s6, s7
    s_add_u32 s6, s6, {WS_F3}
    s_mov_b64 exec, 1
    buffer_load_dword v18, v{L16}, {S(WS_)}, s6 offen sc1
    s_mov_b64 exec, -1""")

for k in range(5):
    for u in range(2):
        a(f"ds_read_b64_tr_b16 v[{44+4*k+2*u}:{45+4*k+2*u}], v{WAD+u+(2 if k==4 else 0)} offset:{6400*(k%4)}")
for half in range(2):
    for H in range(16*half,16*half+16):
        for u in range(2): a(f"ds_read_b64_tr_b16 v[{WA+4*H+2*u}:{WA+4*H+2*u+1}], v{W3+(H&1)} offset:{6400*((H>>1)%8)+1280*u}")
        if H==2:
            a("s_waitcnt lgkmcnt(6)")
            for k in range(5): a(f"ds_write_b128 v{WXW+(k==4)}, v[{44+4*k}:{47+4*k}] offset:{1024*(k%4)}")
    for b in range(4*half,4*half+4):
        for u in range(2): a(f"ds_read_b64_tr_b16 v[{WA+128+4*b+2*u}:{WA+128+4*b+2*u+1}], v{W3+2} offset:{12800*(b%4)+6400*u}")
    if half==0:
        for i in range(3): a(f"v_add_u32 v{W3+i}, 51200, v{W3+i}")
def spin(tag,addr,soff):
    a(f"""s_mov_b32 s{CNT}, 0
    L_{tag}:
    s_waitcnt vmcnt(0)
    v_cmp_ne_u32 vcc, s{NON}, v3
    s_add_u32 s{CNT}, s{CNT}, 1
    s_cmp_gt_u32 s{CNT}, {SPIN}
    s_cbranch_scc1 L_{tag}ok
    s_cbranch_vccz L_{tag}ok
    buffer_load_dword v3, v{addr}, {S(WS_)}, {soff} offen sc1
    s_branch L_{tag}
    L_{tag}ok:""")
a(f"buffer_load_dword v3, v{PA2}, {S(WS_)}, s68 offen sc1")
spin('pu',PA2,'s68')
a(f"""s_lshl_b32 m0, s{HA}, 10
s_mul_i32 s68, s{UU}, 160
s_add_u32 s68, s68, {WS_U}
s_waitcnt lgkmcnt(0)""")
stamp('g_wr')
a("s_barrier"); stamp('h_6')
for n in range(10):
    a(dmab(UA+n%5,WS_,'s68',0,'sc1')); a("s_add_u32 m0, m0, 4096")
    a(f"s_add_u32 s68, s68, {128*10240}" if n%5==4 else "s_nop 0")
a(f"s_add_u32 m0, m0, {TL-40960}\ns_nop 0")
for k in range(4):
    if k==3: a(f"s_cmp_eq_u32 s{HA}, 3\ns_cbranch_scc1 L_nt3")
    a("global_load_lds_dwordx4 v1, s[66:67]")
    if k<3: a("s_add_u32 m0, m0, 4096\ns_add_u32 s66, s66, 4096\ns_addc_u32 s67, s67, 0")
a("L_nt3:")
a(f"s_lshl_b32 s68, s{QB}, 10\ns_add_u32 s68, s68, {WS_F3}")
a("s_waitcnt vmcnt(0)")
stamp('g_u')
a("s_barrier"); stamp('h_7')
Fh=44
def s1r(b): return [f"ds_read_b64_tr_b16 v[{Fh+4*i+2*u}:{Fh+4*i+2*u+1}], v{UR+(i==2)} offset:{5120*b+32*i+1280*u+(2480 if i>2 else 0)}" for i in range(5) for u in range(2)]
em(s1r(0))
for b in range(2):
    nx=s1r(1) if b==0 else []
    for i in range(5):
        a(f"s_waitcnt lgkmcnt({8 if b==0 else 13-2*i})\nv_mfma_f32_16x16x32_bf16 v[{Fh+20+4*i}:{Fh+23+4*i}], v[{Fh+4*i}:{Fh+4*i+3}], v[{MM}:{MM+3}], 0")
        em(nx[2*i:2*i+2])
    if b==1: a("s_nop 0")
    for i in range(5):
        d=Fh+20+4*i; e=Fh+40+2*(i%4)
        a(f"v_cvt_pk_bf16_f32 v{d}, v{d}, v{d+1}\nv_cvt_pk_bf16_f32 v{d+1}, v{d+2}, v{d+3}\nds_write_b64 v{VW}, v[{d}:{d+1}] offset:{160*b+32*i}")
a("s_waitcnt lgkmcnt(0)")
stamp('loopend')
a("s_barrier")
stamp('T-1')
a(f"""s_setprio 1
v_mov_b32 v16, s{NON}
v_mov_b32 v1, s{NON}
s_lshl_b32 s6, s{HG}, 7
s_add_u32 s6, s6, s68
s_cmp_eq_u32 s{W}, 4
s_barrier""")
stamp('T0')
a(f"""s_cbranch_scc0 L_npo
s_mov_b64 exec, 0xff
buffer_store_dwordx4 v[16:19], v{L16}, {S(WS_)}, s6 offen sc1
s_mov_b64 exec, -1
L_npo:""")
em(rowsc3(HA,4))
a(f"""s_cmp_eq_u32 s{W}, 4
s_cbranch_scc0 L_np2
s_waitcnt vmcnt(0)
buffer_load_dword v3, v{PA3}, {S(WS_)}, s68 offen sc1
L_np2:""")
if TF:
    a("s_barrier"); stamp('o_tf')
    em(frd(0,72,4)+frd(1,80,4)); a("s_waitcnt lgkmcnt(2)"); em(fsto(0,72)); a("s_waitcnt lgkmcnt(0)"); em(fsto(1,80))
    HSP=-1
    a(f"""s_cbranch_scc0 L_pook
    s_waitcnt vmcnt(4)
    v_cmp_ne_u32 vcc, s{NON}, v3
    s_cbranch_vccz L_pook
    buffer_load_dword v3, v{PA3}, {S(WS_)}, s68 offen sc1""")
else: a("s_cbranch_scc0 L_pook")
spin('po',PA3,'s68')
stamp('o_fft')
a("s_barrier")
stamp('T1')
if HST and not TF:
    em(frd3(72,4))
a('; ---- output projection columns 0-63 (32x32 tile per wave); FNet rows are stored in its shadow')
NBH=int(XP.get('nbh',6)); AC=24
def rd(st):
    b=44+4*(st%(NBH+1))
    if st<32: return [f"ds_read_b128 v[{b}:{b+3}], v{OA} offset:{1024*st}"]
    return [f"ds_read_b64 v[{b+2*u}:{b+2*u+1}], v{OA+1} offset:{1024*(st-32)+512*u}" for u in range(2)]
KEEP=int(XP.get('keep',2))
nr=0; nm=0
def hm():
    global nm
    b=44+4*(nm%(NBH+1)); n=sum(len(rd(x)) for x in range(nm+1,nr))
    a(f"s_waitcnt lgkmcnt({n})\nv_mfma_f32_32x32x16_bf16 v[{AC}:{AC+15}], v[{WA+4*nm}:{WA+4*nm+3}], v[{b}:{b+3}], {'0' if nm==0 else f'v[{AC}:{AC+15}]'}")
    if HST and HSP>=0:
        pcs=fsto3(72,4); HS=int(XP.get('hs',3))
        if nm>=HSP and (nm-HSP)%HS==0 and (nm-HSP)//HS<3: em(pcs[(nm-HSP)//HS])
    nm+=1
while nm<40:
    if nr<40 and nr%4==0 and nr//4 in SYNC:
        while nr-nm>KEEP: hm()
        a("s_barrier"); stamp(f'o_b{nr//4}')
        em(rd(nr)); nr+=1
    elif nr<40 and nr-nm<NBH:
        em(rd(nr)); nr+=1
        if nr-nm>=4 and nr<40 and not (nr%4==0 and nr//4 in SYNC) and nr-nm<NBH:
            hm(); em(rd(nr)); nr+=1
    else: hm()
stamp('gemm')
if PRIV:
    a(f"{osc}\ns_add_u32 s7, s6, {16*2560}\ns_nop 6")
    for j in range(4):
        d=AC+4*j
        a(f"v_cvt_pk_bf16_f32 v{d}, v{d}, v{d+1}\nv_cvt_pk_bf16_f32 v{d+1}, v{d+2}, v{d+3}\nds_write_b64 v{SG}, v[{d}:{d+1}] offset:{16*j}")
    a(f"""ds_read_b128 v[44:47], v{FNH}
    ds_read_b128 v[48:51], v{FNH} offset:{16*176}
    s_waitcnt lgkmcnt(1)
    buffer_store_dwordx4 v[44:47], v{FNH+1}, {S(OUT_)}, s6 offen {OF}
    s_waitcnt lgkmcnt(0)
    buffer_store_dwordx4 v[48:51], v{FNH+1}, {S(OUT_)}, s7 offen {OF}
    L_fin:""")
else:
    a(f"v_mov_b64 v[{FN}:{FN+1}], v[{FNH}:{FNH+1}]\ns_nop 10")
    for j in range(4):
        d=AC+4*j
        a(f"v_cvt_pk_bf16_f32 v{d}, v{d}, v{d+1}\nv_cvt_pk_bf16_f32 v{d+1}, v{d+2}, v{d+3}\nds_write_b64 v{SG}, v[{d}:{d+1}] offset:{16*j}")
    OF=XP.get('of','nt')
    a(f"""L_fin:
s_mul_i32 s6, s{QB}, {64*2560}
s_mul_i32 s7, s{HG}, 160
s_add_u32 s6, s6, s7
s_add_u32 s6, s6, 1280
s_cmp_ge_u32 s{W}, 2
s_waitcnt lgkmcnt(0)
s_barrier
ds_read_b128 v[24:27], v{FN}
s_cbranch_scc1 L_one
ds_read_b128 v[28:31], v{FN+2}
s_waitcnt lgkmcnt(0)
buffer_store_dwordx4 v[28:31], v{FN+3}, {S(OUT_)}, s6 offen {OF}
L_one:
s_waitcnt lgkmcnt(0)
buffer_store_dwordx4 v[24:27], v{FN+1}, {S(OUT_)}, s6 offen {OF}""")
if STAMP:
    a("s_waitcnt vmcnt(0)"); stamp('end')
    a(f"""s_lshl_b32 s6, s2, 3
    s_add_u32 s6, s6, s{W}
    s_lshl_b32 s6, s6, 6
    s_add_u32 s6, s6, {WS_ST}
    v_mov_b32 v21, 0
    s_waitcnt lgkmcnt(0)""")
    for i in range(nstamp[0]): a(f"v_mov_b32 v22, s{STB+2*i}\nbuffer_store_dword v22, v21, {S(WS_)}, s6 offen offset:{4*i}")
a("L_end:\ns_endpgm")
a('; ---- fallback: true row max in a first pass, plain second pass, K/V read from memory, both blocks in turn')
X=SS[0]
a(f"""L_slow:
s_cmp_lg_u32 s{SLOW}, 0
s_cbranch_scc1 L_store
v_subrev_u32 v{AV}, 163840, v{AV}
s_mov_b32 s{IT}, 0
L_blk:
s_mov_b32 s{SLOW}, 1
v_mov_b32 v{T}, 0xff800000""")
zero(CM[0],16); zero(O[0],16)
a(f"""L_pass:
s_mov_b32 s{CNT}, 0
L_sl:
s_lshr_b32 s66, s{CNT}, 1
s_mul_i32 s66, s66, 10240
s_and_b32 s6, s{CNT}, 1
s_mul_i32 s7, s6, 2048
s_add_u32 s7, s7, s66
buffer_load_dwordx4 v[{KF}:{KF+3}], v{L16}, {S(WS_)}, s7 offen sc1
buffer_load_dwordx4 v[{KF+4}:{KF+7}], v{L16}, {S(WS_)}, s7 offen offset:1024 sc1
s_lshl_b32 s7, s6, 3
s_add_u32 s7, s7, s66
s_add_u32 s7, s7, 4096
buffer_load_dwordx2 v[{K4}:{K4+1}], v{L16}, {S(WS_)}, s7 offen sc1
s_mul_i32 s7, s6, 2560
s_add_u32 s7, s7, s66
s_add_u32 s7, s7, 5120
{on}""")
for u in range(4): a(f"buffer_load_dwordx4 v[{VF[0]+4*u}:{VF[0]+4*u+3}], v{AV}, {S(WS_)}, s7 offen offset:{640*u} sc1")
a(f"""{off}
s_waitcnt vmcnt(0)
{M16(X,KF,0,CMr[0])}
{M16(X+16,KF+4,0,CMr[0])}
s_nop 9
{M4(X,K4,0)}
s_nop 15
s_nop 3
s_cmp_eq_u32 s{SLOW}, 1
s_cbranch_scc0 L_p2""")
for i in range(0,32,2): a(f"v_max3_f32 v{T}, v{T}, v{X+i}, v{X+i+1}")
a("s_branch L_nx\nL_p2:")
for i in range(32): a(f"v_exp_f32 v{X+i}, v{X+i}")
a("s_nop 1")
for u in range(4): a(SM(VF[0]+4*u,X+8*u,0))
a(f"""L_nx:
s_add_u32 s{CNT}, s{CNT}, 1
s_cmp_lt_u32 s{CNT}, 32
s_cbranch_scc1 L_sl
s_cmp_eq_u32 s{SLOW}, 1
s_cbranch_scc0 L_swap
s_mov_b32 s{SLOW}, 2
v_mov_b32 v{T+1}, v{T}
s_nop 1
v_permlane32_swap_b32 v{T}, v{T+1}
v_max_f32 v{T}, v{T}, v{T+1}""")
for i in range(16): a(f"v_sub_f32 v{CM[0]+i}, 0, v{T}")
a("s_branch L_pass\nL_swap:\ns_nop 7")
for i in range(6): a(f"v_swap_b32 v{Q16[0]+i}, v{Q16[1]+i}")
for i in range(16): a(f"v_swap_b32 v{O[0]+i}, v{O[1]+i}")
a(f"""s_add_u32 s{IT}, s{IT}, 1
s_cmp_lt_u32 s{IT}, 2
s_cbranch_scc1 L_blk
s_branch L_check""")

hdr=open('concat_heads__spectral_fnet__grouped_kv_mqa__prompt.s.ref').read().split('; Override launch')[0]
s=hdr+"; @launch grid=(256,1,1) block=(512,1,1) lds=163840\n"
s+='''; One persistent launch, one workgroup per CU (generated by a script, all instructions hand-scheduled).
'''
if STAMP: s+="; stamps: "+" ".join(stnames)+"\n"
s+='.amdgcn_target "amdgcn-amd-amdhsa--gfx950"\n.text\n'+khead(KN)+a.text()
s+=emit_table('tab_a',table_a())+emit_table('tab_h',table_h())+emit_table('tab_hid',table_hid())+'L_tabend:\n'
s+='.section .rodata,"a"\n'+kdesc(KN,256,102)
open(OUTF,'w').write(s)
print('wrote',OUTF,len(s),'stamps',nstamp[0],stnames)
```
